```python
import torch

def _softmax(x, axis=-1):
    return torch.softmax(x, dim=axis)
def _gelu(x):
    return torch.nn.functional.gelu(x, approximate="tanh")
def _silu(x):
    return torch.nn.functional.silu(x)
def _sigmoid(x):
    return torch.sigmoid(x)
def _layernorm(x, axis=-1, eps=1e-5):
    m = x.mean(dim=axis, keepdim=True)
    v = x.var(dim=axis, keepdim=True, unbiased=False)
    return (x - m) / torch.sqrt(v + eps)
def _scatter_add(tgt, idx, src, axis=0):
    return tgt.clone().index_add_(axis, idx, src)
def _segment_sum(src, seg, n):
    out = torch.zeros((n,) + src.shape[1:], dtype=src.dtype)
    return out.index_add_(0, seg, src)
def _pad(x, pw):
    flat = tuple(v for pair in reversed(pw) for v in pair)
    return torch.nn.functional.pad(x, flat)

kernel_name = 'recurrent_scan__ssm_conv_s5__glu_gated_swiglu__prompt'

def setup_inputs():

    _w = (lambda a: (lambda t: t.to(torch.bfloat16) if t.is_floating_point() else t)(torch.as_tensor(a)))
    def _A_setup():
        B, S, D = 1, 2048, 512
        P = D
        Lambda_re = -0.5 * (lambda _x: torch.exp(torch.as_tensor(_x)))((lambda *s: torch.randn(*s, dtype=torch.bfloat16) * 0.8)(P))
        Lambda_im = (lambda *s: torch.randn(*s, dtype=torch.bfloat16) * 0.8)(P) * 1.0
        B_re = (lambda *s: torch.randn(*s, dtype=torch.bfloat16) * 0.8)(P, D) * (D ** -0.5)
        B_im = (lambda *s: torch.randn(*s, dtype=torch.bfloat16) * 0.8)(P, D) * (D ** -0.5)
        C_re = (lambda *s: torch.randn(*s, dtype=torch.bfloat16) * 0.8)(D, P) * (P ** -0.5)
        C_im = (lambda *s: torch.randn(*s, dtype=torch.bfloat16) * 0.8)(D, P) * (P ** -0.5)
        log_dt = (lambda *s: torch.randn(*s, dtype=torch.bfloat16) * 0.8)(P) * 0.3 - 2.0
        Dskip = (lambda *s: torch.randn(*s, dtype=torch.bfloat16) * 0.8)(D)
        return {
            "x": _w((lambda *s: torch.randn(*s, dtype=torch.bfloat16) * 0.05)(B, S, D)),
            "Lambda_re": _w(Lambda_re),
            "Lambda_im": _w(Lambda_im),
            "B_re": _w(B_re),
            "B_im": _w(B_im),
            "C_re": _w(C_re),
            "C_im": _w(C_im),
            "log_dt": _w(log_dt),
            "Dskip": _w(Dskip),
        }
    _A_in = _A_setup()

    def _B_setup():
        B, S, D, F = 1, 2048, 512, 1792
        return {
            "x": _w((lambda *s: torch.randn(*s, dtype=torch.bfloat16) * 0.05)(B, S, D)),
            "w1": _w((lambda *s: torch.randn(*s, dtype=torch.bfloat16) * 0.2)(D, F) * (2.0 / D) ** 0.5),
            "w3": _w((lambda *s: torch.randn(*s, dtype=torch.bfloat16) * 0.2)(D, F) * (2.0 / D) ** 0.5),
            "w2": _w((lambda *s: torch.randn(*s, dtype=torch.bfloat16) * 0.2)(F, D) * (2.0 / F) ** 0.5),
        }
    _B_in = _B_setup()

    return {
        "A_x": _A_in["x"],
        "A_Lambda_re": _A_in["Lambda_re"],
        "A_Lambda_im": _A_in["Lambda_im"],
        "A_B_re": _A_in["B_re"],
        "A_B_im": _A_in["B_im"],
        "A_C_re": _A_in["C_re"],
        "A_C_im": _A_in["C_im"],
        "A_log_dt": _A_in["log_dt"],
        "A_Dskip": _A_in["Dskip"],
        "B_x": _B_in["x"],
        "B_w1": _B_in["w1"],
        "B_w3": _B_in["w3"],
        "B_w2": _B_in["w2"],
    }

def reference(A_x, A_Lambda_re, A_Lambda_im, A_B_re, A_B_im, A_C_re, A_C_im, A_log_dt, A_Dskip, B_x, B_w1, B_w3, B_w2):
    def _A_ref(x, Lambda_re, Lambda_im, B_re, B_im, C_re, C_im, log_dt, Dskip):
        Bsz, L, H = x.shape
        Lam = Lambda_re + 1j * Lambda_im
        Bmat = B_re + 1j * B_im
        Cmat = C_re + 1j * C_im
        dt = torch.exp(log_dt)
        Lam_bar = torch.exp(dt * Lam)
        B_bar = ((Lam_bar - 1.0) / Lam)[:, None] * Bmat
        Bu = torch.einsum("bld,pd->blp", x + 0j, B_bar)
        h = torch.zeros_like(Bu[:, 0, :])
        hs = []
        for t in range(L):
            h = Lam_bar[None, :] * h + Bu[:, t, :]
            hs.append(h)
        hseq = torch.stack(hs, 1)
        y = 2.0 * torch.einsum("blp,dp->bld", hseq, Cmat).real + x * Dskip[None, None, :]
        return y

    def _B_ref(x, w1, w3, w2):
        gate = torch.einsum("bsd,df->bsf", x, w1)
        up = torch.einsum("bsd,df->bsf", x, w3)
        h = _silu(gate) * up
        out = torch.einsum("bsf,fd->bsd", h, w2)
        return out

    x = A_x
    xn = _layernorm(x, axis=-1)
    s = _A_ref(xn, A_Lambda_re, A_Lambda_im, A_B_re, A_B_im, A_C_re, A_C_im, A_log_dt, A_Dskip)
    g = _silu(_B_ref(xn, B_w1, B_w3, B_w2))
    return x + s * g
```

```python
NAME = "recurrent_scan__ssm_conv_s5__glu_gated_swiglu__prompt"
KN = NAME + "_kernel"

def header(launch_lines):
    s = "".join("; " + l + "\n" for l in launch_lines)
    s += '.amdgcn_target "amdgcn-amd-amdhsa--gfx950"\n.text\n'
    return s

def kernel_open(name):
    return f".globl {name}\n.p2align 8\n.type {name},@function\n{name}:\n"

def descriptor(name, vgpr, sgpr=102, accum=None, extra=""):
    if accum is None: accum = (min(vgpr,256) + 3)//4*4
    return (f".amdhsa_kernel {name}\n  .amdhsa_next_free_vgpr {vgpr}\n  .amdhsa_next_free_sgpr {sgpr}\n"
            f"  .amdhsa_accum_offset {accum}\n  .amdhsa_group_segment_fixed_size 0\n  .amdhsa_kernarg_size 128\n"
            f"  .amdhsa_user_sgpr_count 2\n  .amdhsa_user_sgpr_kernarg_segment_ptr 1\n"
            f"  .amdhsa_system_sgpr_workgroup_id_x 1\n{extra}.end_amdhsa_kernel\n")

def rodata():
    return '.section .rodata,"a"\n.p2align 6\n'
```

```python
import sys
sys.path.insert(0, 'gen'); sys.path.insert(0, 'exp')
from asmlib import *
HDR = open('recurrent_scan__ssm_conv_s5__glu_gated_swiglu__prompt.s.ref').read().split('; Override launch')[0]
def assemble(kernels):
    if len(kernels) == 1 and kernels[0][0] == KN:
        k = kernels[0]
        lines = [f"@launch grid=({k[2]},1,1) block=({k[3]},1,1) lds={k[4]}"]
    else:
        lines = [f"@launch kernel={k[0]} grid=({k[2]},1,1) block=({k[3]},1,1) lds={k[4]}" for k in kernels]
    s = HDR + header(lines)
    seen = []
    for k in kernels:
        if k[0] in seen: continue
        seen.append(k[0])
        s += kernel_open(k[0]) + k[1]
    s += 'TEXT_END:\n  s_endpgm\n'
    s += rodata()
    seen = []
    for k in kernels:
        if k[0] in seen: continue
        seen.append(k[0])
        s += descriptor(k[0], k[5], 102, k[6])
    return s
```

```python
import re
RV = re.compile(r'\bv\[(\d+):(\d+)\]|\bv(\d+)\b')
RA = re.compile(r'\ba\[(\d+):(\d+)\]|\ba(\d+)\b')
RS = re.compile(r'\bs\[(\d+):(\d+)\]|\bs(\d+)\b')
TRANS = ('v_exp_f32','v_log_f32','v_rcp_f32','v_rsq_f32','v_sqrt_f32','v_sin_f32','v_cos_f32')

def vregs(txt):
    out = []
    for m in RV.finditer(txt):
        if m.group(1) is not None: out += list(range(int(m.group(1)), int(m.group(2)) + 1))
        else: out.append(int(m.group(3)))
    for m in RA.finditer(txt):
        if m.group(1) is not None: out += list(range(256 + int(m.group(1)), 256 + int(m.group(2)) + 1))
        else: out.append(256 + int(m.group(3)))
    return out
def sregs(txt):
    out = []
    for m in RS.finditer(txt):
        if m.group(1) is not None: out += list(range(int(m.group(1)), int(m.group(2)) + 1))
        else: out.append(int(m.group(3)))
    return out

def split_ops(s):
    ops = []; d = 0; cur = ''
    for ch in s:
        if ch == '[': d += 1
        if ch == ']': d -= 1
        if ch == ',' and d == 0: ops.append(cur.strip()); cur = ''
        else: cur += ch
    if cur.strip(): ops.append(cur.strip())
    return ops

class Em:
    def __init__(s):
        s.out = []
        s.n = 0
        s.lgk = []
        s.vm = []
        s.lastw = {}
        s.lastsw = {}
        s.mfmaC = {}
        s.storer = {}
        s.stats = {}
        s.lastw_mf = {}
    def comment(s, t): s.out.append('; ' + t)
    def label(s, l): s.out.append(l + ':')
    def raw(s, t):
        s.out.append('  ' + t); s.n += 1
    def nop(s, k):
        while k > 0:
            c = min(k, 16); s.out.append(f'  s_nop {c-1}'); s.n += c; k -= c
    def _wait(s, lg=None, vm=None):
        parts = []
        if vm is not None and vm < len(s.vm):
            c = min(vm, 63); parts.append(f'vmcnt({c})'); s.vm = s.vm[len(s.vm) - c:] if c else []
        if lg is not None and lg < len(s.lgk):
            c = min(lg, 15); parts.append(f'lgkmcnt({c})'); s.lgk = s.lgk[len(s.lgk) - c:] if c else []
        if parts: s.out.append('  s_waitcnt ' + ' '.join(parts)); s.n += 1
    def _need(s, regs):
        regs = set(regs); lg = vm = None
        for i, p in enumerate(s.lgk):
            if p['regs'] & regs: lg = len(s.lgk) - 1 - i
        for i, p in enumerate(s.vm):
            if p['regs'] & regs: vm = len(s.vm) - 1 - i
        s._wait(lg, vm)
    def wait_tag(s, tag, kind='vm'):
        q = s.vm if kind == 'vm' else s.lgk
        k = None
        for i, p in enumerate(q):
            if p['tag'] == tag: k = len(q) - 1 - i
        if k is not None:
            if kind == 'vm': s._wait(vm=k)
            else: s._wait(lg=k)
    def wait_all(s, lg=True, vm=True):
        s._wait(0 if lg else None, 0 if vm else None)
    def force_wait(s, txt):
        s.out.append('  s_waitcnt ' + txt); s.n += 1
        m = re.search(r'vmcnt\((\d+)\)', txt)
        if m: c = int(m.group(1)); s.vm = s.vm[len(s.vm) - c:] if 0 < c < len(s.vm) else ([] if c == 0 else s.vm)
        m = re.search(r'lgkmcnt\((\d+)\)', txt)
        if m: c = int(m.group(1)); s.lgk = s.lgk[len(s.lgk) - c:] if 0 < c < len(s.lgk) else ([] if c == 0 else s.lgk)
    def barrier(s):
        s._wait(lg=0)
        s.out.append('  s_barrier'); s.n += 1
    def reset_hazards(s, pad=0):
        if pad: s.nop(pad)
        s.lastw = {}; s.lastsw = {}; s.mfmaC = {}; s.storer = {}; s.lastw_mf = {}
    def I(s, txt, tag=None):
        txt = txt.strip()
        assert not (txt.startswith('v_pk_') and 'op_sel:[0,1' in txt), 'HW hazard: pk op_sel:[0,1 before MFMA corrupts lanes 48-63: ' + txt
        mn, _, rest = txt.partition(' ')
        ops = split_ops(rest)
        mnb = mn.replace('_e32', '').replace('_e64', '').replace('_dpp','').replace('_sdwa','')
        rd_v = []; wr_v = []; rd_s = []; wr_s = []
        kind = None
        isdpp = (' quad_perm' in txt or ' row_' in txt or 'wave_' in txt)
        def S(o):
            r = sregs(o)
            if re.search(r'\bvcc(_lo|_hi)?\b', o): r = r + ['vcc']
            if re.search(r'\bm0\b', o): r = r + ['m0']
            if re.search(r'\bexec\b', o): r = r + ['exec']
            return r
        if mnb.startswith('v_mfma'):
            kind = 'mfma'; wr_v = vregs(ops[0]); rd_v = vregs(ops[1]) + vregs(ops[2]); cv = vregs(ops[3])
        elif mnb.startswith('v_'):
            kind = 'valu'
            if mnb.startswith('v_cmp'):
                wr_s = S(ops[0]);
                for o in ops[1:]: rd_v += vregs(o); rd_s += S(o)
            elif mnb in ('v_readfirstlane_b32', 'v_readlane_b32'):
                wr_s = S(ops[0])
                for o in ops[1:]: rd_v += vregs(o); rd_s += S(o)
            elif 'permlane' in mnb and 'swap' in mnb:
                wr_v = vregs(ops[0]) + vregs(ops[1]); rd_v = list(wr_v)
            else:
                wr_v = vregs(ops[0])
                k0 = 1
                if mnb in ('v_add_co_u32','v_sub_co_u32','v_addc_co_u32','v_subb_co_u32'):
                    wr_s = S(ops[1]); k0 = 2
                for o in ops[k0:]: rd_v += vregs(o); rd_s += S(o)
                if mnb in ('v_fmac_f32','v_mac_f32','v_dot2c_f32_bf16','v_fmac_f16','v_pk_fmac_f16') or isdpp or 'op_sel' in txt and mnb.startswith('v_cvt'):
                    rd_v += wr_v
                if mnb == 'v_cndmask_b32' and len(ops) == 3: rd_s.append('vcc')
        elif mnb.startswith('ds_'):
            kind = 'ds'
            if mnb.startswith('ds_read') or mnb.startswith('ds_bpermute') or mnb.startswith('ds_permute') or mnb.startswith('ds_swizzle') or '_rtn' in mnb:
                wr_v = vregs(ops[0])
                for o in ops[1:]: rd_v += vregs(o)
            else:
                for o in ops: rd_v += vregs(o)
        elif mnb.startswith('buffer_') or mnb.startswith('global_'):
            kind = 'vm'
            islds = re.search(r'\blds\b', rest) is not None
            isload = '_load' in mnb
            isatomic = 'atomic' in mnb
            ret = isatomic and re.search(r'\bsc0\b', rest) is not None
            if isload and not islds:
                wr_v = vregs(ops[0])
                for o in ops[1:]: rd_v += vregs(o); rd_s += S(o)
            else:
                for o in ops: rd_v += vregs(o); rd_s += S(o)
                if ret:
                    if mnb.startswith('buffer_'): wr_v = vregs(ops[0])
                    else: wr_v = vregs(ops[0])
                if islds: rd_s.append('m0')
        elif mnb.startswith('s_'):
            kind = 'salu'
            if mnb in ('s_waitcnt', 's_barrier', 's_nop', 's_endpgm', 's_branch', 's_sleep', 's_setprio') or mnb.startswith('s_cbranch'):
                pass
            elif mnb.startswith('s_cmp') or mnb.startswith('s_bitcmp'):
                for o in ops: rd_s += S(o)
            elif mnb.startswith('s_load') or mnb.startswith('s_memtime') or mnb.startswith('s_memrealtime'):
                wr_s = S(ops[0])
                for o in ops[1:]: rd_s += S(o)
            else:
                wr_s = S(ops[0])
                for o in ops[1:]: rd_s += S(o)
                if 'saveexec' in mnb: wr_s.append('exec')
        else:
            raise ValueError(txt)
        allv = rd_v + wr_v + (cv if kind == 'mfma' else [])
        if kind == 'vm' and wr_v == [255]: allv = rd_v
        s._need(allv)
        need = 0
        def req(idx, dist):
            nonlocal need
            need = max(need, dist - (s.n - idx - 1))
        for r in rd_v + (cv if kind == 'mfma' else []):
            w = s.lastw.get(r)
            if not w: continue
            idx, k = w
            if kind == 'mfma':
                if k in ('valu', 'trans', 'dot'): req(idx, 2 if k != 'dot' else 3)
                elif k in ('mfma8', 'mfma4'):
                    p = 8 if k == 'mfma8' else 4
                    if r in rd_v: req(idx, 12 if p == 8 else 8)
                    else:
                        if s.lastw_mf.get(r) == tuple(cv) and tuple(cv) == tuple(wr_v): pass
                        else: req(idx, 10 if p == 8 else 6)
            else:
                if k == 'mfma8': req(idx, 12)
                elif k == 'mfma4': req(idx, 8)
                elif k == 'trans' and kind == 'valu': req(idx, 1)
                elif k == 'dot' and kind == 'valu':
                    if not (mnb.startswith('v_dot') and r in wr_v): req(idx, 3)
                if kind == 'valu' and k in ('valu', 'trans', 'dot'):
                    if 'permlane' in mnb or isdpp: req(idx, 2)
                    if mnb in ('v_readfirstlane_b32', 'v_readlane_b32'): req(idx, 1)
        for r in wr_v:
            w = s.lastw.get(r)
            if w and kind != 'mfma':
                idx, k = w
                if k == 'mfma8': req(idx, 12)
                elif k == 'mfma4': req(idx, 8)
                elif k == 'dot' and kind == 'valu' and not mnb.startswith('v_dot'): req(idx, 3)
            if w and kind == 'mfma':
                idx, k = w
                if k in ('mfma8', 'mfma4') and not (s.lastw_mf.get(r) == tuple(wr_v)): req(idx, 10)
                if k in ('valu', 'trans', 'dot') and r not in cv: req(idx, 2)
            if kind in ('valu', 'ds', 'vm'):
                c = s.mfmaC.get(r)
                if c: req(c[0], 7 if c[1] == 8 else 3)
            if kind == 'valu':
                st = s.storer.get(r)
                if st is not None: req(st, 2)
        for r in rd_s:
            w = s.lastsw.get(r)
            if not w: continue
            idx, k = w
            if k == 'valu':
                if kind == 'valu': req(idx, 2 if mnb not in ('v_readlane_b32', 'v_writelane_b32') else 4)
                elif kind == 'vm': req(idx, 5)
                elif kind == 'salu': req(idx, 1)
            if k == 'salu' and r == 'm0' and kind == 'vm': req(idx, 1)
            if k == 'salu' and r == 'exec': pass
        if need > 0: s.nop(need)
        idx = s.n
        s.out.append('  ' + txt); s.n += 1
        s.stats[kind] = s.stats.get(kind, 0) + 1
        if kind == 'mfma':
            p = 8 if '32x32' in mnb else 4
            for r in wr_v:
                s.lastw[r] = (idx, 'mfma8' if p == 8 else 'mfma4'); s.lastw_mf[r] = tuple(wr_v)
            for r in cv: s.mfmaC[r] = (idx, p)
        elif kind == 'valu':
            k = 'trans' if mnb in TRANS else ('dot' if mnb.startswith('v_dot') else 'valu')
            for r in wr_v: s.lastw[r] = (idx, k)
            for r in wr_s: s.lastsw[r] = (idx, 'valu')
        elif kind == 'salu':
            for r in wr_s: s.lastsw[r] = (idx, 'salu')
            if mnb.startswith('s_load') or mnb.startswith('s_memtime') or mnb.startswith('s_memrealtime'):
                s.pending_smem = True
        elif kind == 'ds':
            for r in wr_v: s.lastw.pop(r, None)
            s.lgk.append(dict(regs=set(wr_v), tag=tag))
        elif kind == 'vm':
            for r in wr_v: s.lastw.pop(r, None)
            s.vm.append(dict(regs=set(wr_v), tag=tag))
            if 'store' in mnb and ('x3' in mnb or 'x4' in mnb):
                for r in vregs(ops[0]) if mnb.startswith('buffer_') else vregs(ops[1]): s.storer[r] = idx
    def text(s): return '\n'.join(s.out) + '\n'
```

```python
from em import Em
from collections import deque
WS_STATS = 12 << 20
WS_CS = (12 << 20) + (64 << 10)
WS_E = 13 << 20
WS_TS = 14 << 20
WS_SIZE = 16 << 20
TSTRIDE = 176 * 1024
SLOT = 36864
HALF = 2 * SLOT
MISC = 4 * SLOT
L_WAUG = MISC
L_RS = MISC + 2304
L_TOTZ = MISC + 2816
L_TAB = MISC + 5504
L_NONCE = MISC + 11648
L_END = MISC + 11664
OOB = 0x40000000
LOG2E = 0x3fb8aa3b
NLOG2E = 0xbfb8aa3b
INV2PI = 0x3e22f983
SPIN = 20000

sX, sWA, sSB, sWS, sWC, sDBG = 8, 12, 16, 20, 24, 28
sw, sR, sC, sRho, sNonce, sW4, sWS1, sT0, sT1 = 32, 33, 34, 35, 36, 37, 38, 39, 40
sXo, sF1o, sF2o, sSo, sKa, sKb, sKc, sTmp, sTmp2, sTmp3 = 41, 42, 43, 44, 45, 46, 47, 48, 49, 50
sTg0, sTg1, sO1a, sO1b, sO2a, sO2b = 51, 52, 53, 54, 55, 56
sCG0, sCGx, sTp, sCp, sSpin, sW2k = 57, 58, 59, 60, 61, 62
sKA = 64
sMhi = 88
sModd = 90
sBad = 92
sMsel = 94
sTS = 96
sLre, sLim, sLdt = 66, 68, 78

ACC1 = 0; ACC2 = 80; WF = 144
vXA, vXB, vSS, vSC = 168, 172, 176, 180
vP0, vP1, vFB = 184, 185, 186
vDX, vDF, vDS, vDP = 188, 192, 196, 199
vL = 201
vXaug = 202
vNRS = 210; vK2 = 212
vHB = 214
vT = 215
vTSV, vTSA = 219, 187
vTA = 196
vWa = 198

def cost(txt):
    mn = txt.split()[0]
    if mn in ('v_exp_f32','v_log_f32','v_rcp_f32','v_rsq_f32','v_sqrt_f32','v_sin_f32','v_cos_f32'): return 8
    if mn.startswith('v_'): return 4
    if mn.startswith('ds_'): return 4
    if mn.startswith('buffer_') or mn.startswith('global_'): return 6
    return 2

class Gen:
    def __init__(s, typ, e, ts=False, cfg=None):
        s.typ = typ; s.e = e; s.ts = ts
        s.cfg = dict(gather_stage=5, check_stage=7, budget1=16, budget2=22, pf2=3)
        if cfg: s.cfg.update(cfg)
        s.fill = deque(); s.events = set(); s.half = {}
        s.slow = []
        s.nlab = 0
        s.P = f'P1{typ}'
    def I(s, t, tag=None): s.e.I(t, tag)
    def lab(s, n):
        s.nlab += 1; return f'{s.P}_{n}{s.nlab}'
    def stamp(s, k):
        if not s.ts: return
        e = s.e
        e.raw(f's_memtime s[{sTS}:{sTS+1}]')
        s.pend_stamp = k
        e.force_wait('lgkmcnt(0)')
        s.I(f'v_mov_b32 v{vTSV}, s{sTS}')
        s.I(f'buffer_store_dword v{vTSV}, v{vTSA}, s[{sWS}:{sWS+3}], 0 offen offset:{4*k}')
    def add(s, items):
        for x in items: s.fill.append(x)
    def run_fill(s, budget):
        while s.fill and budget > 0:
            x = s.fill[0]
            if isinstance(x, tuple) and x[0] == 'gate':
                if x[1] in s.events: s.fill.popleft(); continue
                return
            s.fill.popleft()
            if callable(x): budget -= x() or 4
            elif isinstance(x, tuple): s.I(x[0], x[1]); budget -= cost(x[0])
            else: s.I(x); budget -= cost(x)
    def atom(s, lst):
        def f():
            c = 0
            for x in lst: s.I(x); c += cost(x)
            return c
        return f
    def drain(s):
        while s.fill:
            x = s.fill[0]
            if isinstance(x, tuple) and x[0] == 'gate':
                assert x[1] in s.events, x
            s.run_fill(10**9)
    def addr(s, reg, slot):
        h = slot >> 1
        if s.half.get(reg, 0) != h:
            s.I(f'v_add_u32 v{reg}, {HALF}, v{reg}' if h else f'v_subrev_u32 v{reg}, {HALF}, v{reg}')
            s.half[reg] = h
        return (slot & 1) * SLOT
    def rd_x(s, st, ks, t):
        reg = (vXA if t == 0 else vXB) + ks
        a = ((4 * st + ks) * 2 + t) * 4
        def f():
            o = s.addr(reg, st & 3)
            s.I(f'ds_read_b128 a[{a}:{a+3}], v{reg} offset:{o}')
        return [f]
    def rd_b128(s, dst, reg, slot, off):
        def f():
            o = s.addr(reg, slot)
            s.I(f'ds_read_b128 v[{dst}:{dst+3}], v{reg} offset:{o+off}')
        return [f]
    def rd_tr(s, dst, reg, slot, off, second):
        def f1():
            o = s.addr(reg, slot)
            s.I(f'ds_read_b64_tr_b16 v[{dst}:{dst+1}], v{reg} offset:{o+off}')
        def f2():
            o = s.addr(reg, slot)
            s.I(f'ds_read_b64_tr_b16 v[{dst+2}:{dst+3}], v{reg} offset:{o+off+second}')
        return [f1, f2]
    def rd_w1(s, role, st, ks, dst):
        slot = st & 3
        if s.typ == 'A':
            if role == 'ex': return s.rd_b128(dst, vSS + ks, slot, 0)
            return s.rd_tr(dst, vP0 if role == 'c0' else vP1, slot, 16384 + 2048 * ks, 512)
        else:
            if role == 'c0': return s.rd_b128(dst, vSC + ks, slot, 16384)
            if role == 'ex': return s.rd_b128(dst, vSS + ks, slot, 16384 + 2048)
            return s.rd_tr(dst, vFB, slot, 1024 * ks, 256)
    def is_S(s, role):
        return role == 'ex' or (s.typ == 'B' and role == 'c0')
    def dma_list(s, st):
        ops = []
        slot = (st & 3) * SLOT
        tag = f'D{st}'
        def kst(k, dst):
            return [f's_add_u32 s{dst}, s{sRho}, {k}', f's_and_b32 s{dst}, s{dst}, 7']
        if st < 8:
            pre = kst(st, sKa) + [f's_lshl_b32 s{sKb}, s{sKa}, 7', f's_add_u32 s{sKc}, s{sXo}, s{sKb}', f's_add_u32 m0, s{sW4}, {slot}']
            for A in range(4):
                ops.append(((pre if A == 0 else []), f'buffer_load_dwordx4 v{vDX+A}, s[{sX}:{sX+3}], s{sKc} offen offset:{1024*A} lds'))
            if s.typ == 'A':
                pre = [f's_mul_i32 s{sKc}, s{sKa}, {64*3584}', f's_add_u32 s{sKc}, s{sKc}, s{sF1o}', f's_add_u32 m0, s{sW4}, {slot+16384}']
                for i in range(4):
                    ops.append(((pre if i == 0 else []), f'buffer_load_dwordx4 v{vDF+i}, s[{sWA}:{sWA+3}], s{sKc} offen offset:{1024*i} lds'))
                pre = [f's_add_u32 s{sKc}, s{sSo}, s{sKb}', f's_add_u32 m0, s{sWS1}, {slot+32768}']
                ops.append((pre, f'buffer_load_dwordx4 v{vDS}, s[{sSB}:{sSB+3}], s{sKc} offen lds'))
            else:
                pre = [f's_add_u32 s{sKc}, s{sSo}, s{sKb}', f's_add_u32 m0, s{sWS1}, {slot+16384}']
                for i in range(3):
                    ops.append(((pre if i == 0 else []), f'buffer_load_dwordx4 v{vDS+i}, s[{sSB}:{sSB+3}], s{sKc} offen offset:{1024*i} lds'))
                pre = [f's_mul_i32 s{sKc}, s{sKa}, {64*3584}', f's_add_u32 s{sKc}, s{sKc}, s{sF1o}', f's_add_u32 m0, s{sW2k}, {slot+28672}']
                for i in range(2):
                    ops.append(((pre if i == 0 else []), f'buffer_load_dwordx4 v{vDP+i}, s[{sWA}:{sWA+3}], s{sKc} offen offset:{1024*i} lds'))
        else:
            for jj in range(2):
                j = 2 * (st - 8) + jj
                pre = kst(j, sKa) + [f's_mul_i32 s{sKc}, s{sKa}, {64*3584}', f's_add_u32 s{sKc}, s{sKc}, s{sF2o}', f's_add_u32 m0, s{sW4}, {slot+16384*jj}']
                for i in range(4):
                    ops.append(((pre if i == 0 else []), f'buffer_load_dwordx4 v{vDF+i}, s[{sWA}:{sWA+3}], s{sKc} offen offset:{1024*i} lds'))
        out = []
        for pre, ins in ops:
            def f(pre=pre, ins=ins):
                for p in pre: s.I(p)
                s.I(ins, tag)
            out.append(f)
        return out
    def barrier(s, name, wait_tag=None):
        e = s.e
        if wait_tag: e.wait_tag(wait_tag)
        e.barrier()
        s.events.add(name)

    def prologue(s):
        e = s.e; I = s.I; typ = s.typ
        a, b, c, d = vT, vT + 1, vT + 2, vT + 3
        I(f's_lshr_b32 s{sTmp}, s{sw}, 1'); I(f's_cmp_eq_u32 s{sTmp}, 0')
        I(f's_cselect_b64 s[{sWA}:{sWA+1}], s[80:81], s[82:83]')
        I(f's_cselect_b64 s[{sSB}:{sSB+1}], s[70:71], s[72:73]')
        I(f's_mov_b64 s[{sWC}:{sWC+1}], s[{sWA}:{sWA+1}]')
        I(f's_mov_b64 s[{sX}:{sX+1}], s[64:65]')
        I(f's_mov_b64 s[{sDBG}:{sDBG+1}], s[84:85]')
        I(f's_mov_b64 s[{sWS}:{sWS+1}], s[86:87]')
        I(f's_lshl_b32 s{sXo}, s{sR}, 2'); I(f's_add_u32 s{sXo}, s{sXo}, s{sw}'); I(f's_lshl_b32 s{sXo}, s{sXo}, 15')
        I(f's_and_b32 s{sTmp}, s{sw}, 1'); I(f's_mul_i32 s{sTmp}, s{sTmp}, {32*3584}')
        if typ == 'A':
            I(f's_lshl_b32 s{sTmp2}, s{sC}, 8')
            I(f's_add_u32 s{sF1o}, s{sTmp}, s{sTmp2}'); I(f's_add_u32 s{sF2o}, s{sF1o}, 128')
            I(f's_mov_b32 s{sCG0}, s{sC}'); I(f's_mov_b32 s{sCGx}, s{sC}')
            I(f's_lshl_b32 s{sSo}, s{sC}, 14')
        else:
            I(f's_sub_u32 s{sTmp3}, s{sC}, 8')
            I(f's_lshl_b32 s{sTmp2}, s{sTmp3}, 6'); I(f's_add_u32 s{sTmp2}, s{sTmp2}, {96*32}')
            I(f's_add_u32 s{sF1o}, s{sTmp}, s{sTmp2}')
            I(f's_lshl_b32 s{sTmp2}, s{sTmp3}, 7'); I(f's_add_u32 s{sTmp2}, s{sTmp2}, {16*128}')
            I(f's_add_u32 s{sF2o}, s{sTmp}, s{sTmp2}')
            I(f's_mul_i32 s{sCG0}, s{sTmp3}, 3'); I(f's_add_u32 s{sCG0}, s{sCG0}, 8')
            I(f's_lshl_b32 s{sSo}, s{sCG0}, 14')
            I(f's_add_u32 s{sCGx}, s{sCG0}, 2')
        I(f's_lshl_b32 s{sW4}, s{sw}, 12')
        if typ == 'A': I(f's_lshl_b32 s{sWS1}, s{sw}, 10')
        else: I(f's_mul_i32 s{sWS1}, s{sw}, 3072')
        I(f's_lshl_b32 s{sW2k}, s{sw}, 11')
        I(f's_or_b32 s{sTmp}, s{sTS}, 1')
        I(f's_or_b32 s{sTmp2}, s2, s{sw}'); I(f's_cmp_eq_u32 s{sTmp2}, 0'); I(f's_cselect_b32 s{sTmp2}, 0, {OOB}')
        I(f'v_mov_b32 v{a}, s{sTmp}'); I(f'v_lshlrev_b32 v{b}, 2, v{vL}'); I(f'v_lshlrev_b32 v{b}, 8, v{b}'); I(f'v_add_u32 v{b}, s{sTmp2}, v{b}')
        I(f'buffer_store_dword v{a}, v{b}, s[{sDBG}:{sDBG+3}], 0 offen sc1')
        for f in s.dma_list(0): f()
        s.stamp(0)
        I(f's_lshl_b32 s{sTmp}, s{sR}, 7'); I(f's_lshl_b32 s{sTmp2}, s{sC}, 3'); I(f's_add_u32 s{sTmp}, s{sTmp}, s{sTmp2}')
        I(f's_lshl_b32 s{sTmp2}, s{sw}, 1'); I(f's_add_u32 s{sTmp}, s{sTmp}, s{sTmp2}')
        I(f's_lshl_b32 s{sTmp3}, s{sTmp}, 3'); I(f's_add_u32 s{sTmp3}, s{sTmp3}, {WS_STATS}')
        I(f's_lshl_b32 s{sTmp}, s{sTmp}, 10')
        XR = 80
        I(f'buffer_load_dwordx4 v[{XR}:{XR+3}], v{vHB}, s[{sX}:{sX+3}], s{sTmp} offen', 'XR')
        I(f'buffer_load_dwordx4 v[{XR+4}:{XR+7}], v{vHB}, s[{sX}:{sX+3}], s{sTmp} offen offset:1024', 'XR')
        I(f's_mov_b32 s{sSpin}, s{sTmp3}')
        ntile = 1 if typ == 'A' else 3
        PR = 88
        I(f'v_and_b32 v{a}, 15, v{vL}'); I(f'v_lshlrev_b32 v{a}, 1, v{a}')
        I(f's_lshl_b32 s{sTmp}, s{sCG0}, 5'); I(f'v_add_u32 v{a}, s{sTmp}, v{a}')
        for t in range(ntile):
            I(f'global_load_ushort v{PR+3*t}, v{a}, s[{sLre}:{sLre+1}] offset:{32*t}', 'PR')
            I(f'global_load_ushort v{PR+3*t+1}, v{a}, s[{sLim}:{sLim+1}] offset:{32*t}', 'PR')
            I(f'global_load_ushort v{PR+3*t+2}, v{a}, s[{sLdt}:{sLdt+1}] offset:{32*t}', 'PR')
        vN = 100
        I(f's_cmp_eq_u32 s{sw}, 0'); I(f's_cselect_b32 s{sTmp}, 0, {OOB}'); I(f'v_mov_b32 v{vN+1}, s{sTmp}')
        I(f'buffer_load_dword v{vN}, v{vN+1}, s[{sDBG}:{sDBG+3}], 0 offen sc1', 'NP')
        I(f's_and_b32 s{sTmp}, s{sR}, 1'); I(f's_cmp_eq_u32 s{sTmp}, 1'); I(f's_cselect_b32 s{sWC+2}, {512*1792*2}, 0')
        I(f's_mul_i32 s{sKc}, s{sRho}, {64*3584}'); I(f's_add_u32 s{sKc}, s{sKc}, s{sF2o}'); I(f's_add_u32 m0, s{sW4}, {3*SLOT}')
        for i in range(4):
            I(f'buffer_load_dwordx4 v{vDF+i}, s[{sWC}:{sWC+3}], s{sKc} offen offset:{1024*i} lds', 'CSC')
        for f in s.dma_list(1): f()
        for f in s.dma_list(2): f()
        s.lds_addrs()
        s.tab(PR, ntile)
        s.stats(XR)
        e.wait_tag('NP')
        L1 = s.lab('np'); L2 = s.lab('npd')
        I(f's_cmp_lg_u32 s{sw}, 0'); e.raw(f's_cbranch_scc1 {L2}')
        I(f's_mov_b32 s{sTmp}, 0')
        I(f'v_readfirstlane_b32 s{sNonce}, v{vN}'); I(f's_cmp_lg_u32 s{sNonce}, 0'); e.raw(f's_cbranch_scc1 {L1}_ok')
        e.label(L1); e.reset_hazards()
        sv = (list(e.vm), list(e.lgk))
        I(f'buffer_load_dword v{vN}, v{vN+1}, s[{sDBG}:{sDBG+3}], 0 offen sc1'); e.force_wait('vmcnt(0)')
        I(f'v_readfirstlane_b32 s{sNonce}, v{vN}'); I(f's_add_u32 s{sTmp}, s{sTmp}, 1')
        I(f's_cmp_gt_u32 s{sTmp}, {SPIN}'); e.raw(f's_cbranch_scc1 {L1}_ok')
        I(f's_cmp_eq_u32 s{sNonce}, 0'); e.raw(f's_cbranch_scc1 {L1}')
        e.label(f'{L1}_ok'); e.reset_hazards()
        I(f'v_mov_b32 v{a}, s{sNonce}'); I(f'v_mov_b32 v{b}, {L_NONCE}'); I(f'ds_write_b32 v{b}, v{a}')
        e.force_wait('lgkmcnt(0)')
        e.label(L2); e.reset_hazards(); e.lgk = []
        e.vm = [p for p in sv[0]]
        e.wait_tag('CSC')
        s.barrier('X')
        s.stamp(1)
        I(f'v_mov_b32 v{b}, {L_NONCE}'); I(f'ds_read_b32 v{a}, v{b}'); I(f'v_readfirstlane_b32 s{sNonce}, v{a}')
        SV = s.SV
        I(f'v_mov_b32 v{SV+1}, s{sNonce}')
        I(f'buffer_store_dwordx2 v[{SV}:{SV+1}], v{SV+2}, s[{sWS}:{sWS+3}], s{sSpin} offen sc1')
        s.cs_partial()
        s.barrier('B0')

    def lane_consts(s):
        I = s.I; a, b, c, d = vT, vT + 1, vT + 2, vT + 3
        I(f'v_lshlrev_b32 v{vHB}, 4, v{vL}')
        I(f'v_lshrrev_b32 v{a}, 5, v{vL}'); I(f'v_lshlrev_b32 v{a}, 4, v{a}'); I(f'v_bfe_u32 v{b}, v{vL}, 3, 2'); I(f'v_add_u32 v{a}, v{a}, v{b}'); I(f'v_lshlrev_b32 v{a}, 10, v{a}')
        I(f'v_and_b32 v{b}, 7, v{vL}'); I(f'v_lshrrev_b32 v{c}, 4, v{vL}'); I(f'v_xor_b32 v{d}, v{b}, v{c}')
        I(f'v_lshl_add_u32 v{vDX}, v{d}, 4, v{a}')
        I(f'v_xor_b32 v{vDX+1}, 64, v{vDX}'); I(f'v_add_u32 v{vDX+1}, 3072, v{vDX+1}')
        I(f'v_add_u32 v{vDX+2}, 6144, v{vDX}'); I(f'v_add_u32 v{vDX+3}, 6144, v{vDX+1}')
    def wave_consts(s):
        I = s.I; typ = s.typ; a, b, c, d = vT, vT + 1, vT + 2, vT + 3
        I(f's_lshr_b32 s{sTmp}, s{sw}, 1'); I(f's_lshl_b32 s{sTmp2}, s{sTmp}, 1')
        I(f'v_bfe_u32 v{a}, v{vL}, 1, 2'); I(f'v_bfe_u32 v{b}, v{vL}, 4, 1'); I(f'v_or_b32 v{b}, s{sTmp2}, v{b}'); I(f'v_xor_b32 v{a}, v{a}, v{b}')
        I(f'v_lshlrev_b32 v{a}, 5, v{a}'); I(f'v_and_b32 v{b}, 1, v{vL}'); I(f'v_lshl_add_u32 v{a}, v{b}, 4, v{a}')
        I(f'v_lshrrev_b32 v{b}, 3, v{vL}'); I(f'v_mul_u32_u24 v{b}, 3584, v{b}'); I(f'v_add_u32 v{vDF}, v{a}, v{b}')
        for i in range(1, 4): I(f'v_add_u32 v{vDF+i}, {27648*i}, v{vDF}')
        I(f's_and_b32 s{sTmp2}, s{sw}, 1'); I(f's_lshl_b32 s{sTmp3}, s{sTmp2}, 2')
        I(f'v_lshrrev_b32 v{a}, 4, v{vL}'); I(f'v_add_u32 v{a}, s{sTmp3}, v{a}'); I(f'v_and_b32 v{b}, 7, v{vL}'); I(f'v_xor_b32 v{a}, v{a}, v{b}')
        I(f'v_lshlrev_b32 v{a}, 4, v{a}'); I(f'v_lshrrev_b32 v{b}, 3, v{vL}'); I(f'v_lshl_add_u32 v{a}, v{b}, 10, v{a}')
        I(f's_lshl_b32 s{sTmp3}, s{sTmp2}, 13'); I(f'v_add_u32 v{vDS}, s{sTmp3}, v{a}')
        if typ == 'B':
            I(f'v_add_u32 v{vDS+1}, {16384-1024}, v{vDS}'); I(f'v_add_u32 v{vDS+2}, {2*(16384-1024)}, v{vDS}')
            I(f'v_bfe_u32 v{a}, v{vL}, 1, 1'); I(f'v_xor_b32 v{a}, s{sTmp}, v{a}'); I(f'v_lshlrev_b32 v{a}, 5, v{a}')
            I(f'v_and_b32 v{b}, 1, v{vL}'); I(f'v_lshl_add_u32 v{a}, v{b}, 4, v{a}')
            I(f'v_lshrrev_b32 v{b}, 2, v{vL}'); I(f'v_mul_u32_u24 v{b}, 3584, v{b}'); I(f'v_add_u32 v{vDP}, v{a}, v{b}')
            I(f'v_add_u32 v{vDP+1}, {16*3584-1024}, v{vDP}')

    def lds_addrs(s):
        I = s.I; typ = s.typ; a, b, c, d = vT, vT + 1, vT + 2, vT + 3
        I(f's_and_b32 s{sTp}, s{sw}, 1'); I(f's_lshr_b32 s{sCp}, s{sw}, 1')
        I(f's_lshl_b32 s{sT0}, s{sTp}, 1'); I(f's_add_u32 s{sT0}, s{sT0}, s{sCp}'); I(f's_xor_b32 s{sT1}, s{sT0}, 1')
        I(f'v_and_b32 v{a}, 31, v{vL}'); I(f'v_bfe_u32 v{b}, v{vL}, 1, 3'); I(f'v_lshrrev_b32 v{c}, 5, v{vL}'); I(f'v_xor_b32 v{b}, v{b}, v{c}')
        I(f'v_lshlrev_b32 v{b}, 4, v{b}')
        I(f'v_lshl_add_u32 v{d}, v{a}, 7, v{b}')
        I(f's_lshl_b32 s{sTmp}, s{sT0}, 12')
        I(f'v_add_u32 v{vXA}, s{sTmp}, v{d}')
        for k in range(1, 4): I(f'v_xor_b32 v{vXA+k}, {32*k}, v{vXA}')
        for k in range(4): I(f'v_xor_b32 v{vXB+k}, 4096, v{vXA+k}')
        if typ == 'A':
            I(f'v_add_u32 v{vSS}, 32768, v{d}')
        else:
            I(f'v_lshrrev_b32 v{c}, 3, v{a}'); I(f'v_mul_u32_u24 v{c}, 3072, v{c}'); I(f'v_and_b32 v{d}, 7, v{a}'); I(f'v_lshl_add_u32 v{c}, v{d}, 7, v{c}')
            I(f'v_add_u32 v{vSS}, v{c}, v{b}')
        for k in range(1, 4): I(f'v_xor_b32 v{vSS+k}, {32*k}, v{vSS}')
        if typ == 'B':
            I(f's_lshl_b32 s{sTmp}, s{sCp}, 10')
            for k in range(4): I(f'v_add_u32 v{vSC+k}, s{sTmp}, v{vSS+k}')
        I(f'v_bfe_u32 v{a}, v{vL}, 4, 1')
        I(f'v_lshrrev_b32 v{b}, 5, v{vL}')
        I(f'v_bfe_u32 v{c}, v{vL}, 2, 2')
        I(f'v_lshl_add_u32 v{b}, v{b}, 3, v{c}')
        I(f'v_and_b32 v{d}, 3, v{vL}'); I(f'v_lshlrev_b32 v{d}, 3, v{d}')
        if typ == 'B':
            I(f'v_lshl_add_u32 v{vFB}, v{b}, 6, v{d}'); I(f'v_lshl_add_u32 v{vFB}, v{a}, 12, v{vFB}')
            I(f'v_xor_b32 v{vP1}, s{sCp}, v{a}'); I(f'v_lshl_add_u32 v{vFB}, v{vP1}, 5, v{vFB}'); I(f'v_add_u32 v{vFB}, 28672, v{vFB}')
        I(f'v_lshl_add_u32 v{d}, v{b}, 7, v{d}'); I(f'v_lshl_add_u32 v{d}, v{a}, 13, v{d}')
        I(f'v_lshrrev_b32 v{c}, 1, v{c}'); I(f'v_lshl_add_u32 v{c}, v{a}, 1, v{c}')
        I(f's_lshl_b32 s{sTmp}, s{sCp}, 1'); I(f'v_xor_b32 v{c}, s{sTmp}, v{c}')
        I(f'v_lshl_add_u32 v{vP0}, v{c}, 5, v{d}'); I(f'v_xor_b32 v{vP1}, 32, v{vP0}')
        I(f's_mov_b32 s{sMhi}, 0'); I(f's_mov_b32 s{sMhi+1}, -1')
        I(f's_mov_b32 s{sModd}, 0xffff0000'); I(f's_mov_b32 s{sModd+1}, 0xffff0000')
        I(f's_lshl_b32 s{sTmp}, s{sR}, 2')
        I(f's_add_u32 s{sTg0}, s{sTmp}, s{sT0}'); I(f's_mul_i32 s{sTg0}, s{sTg0}, {TSTRIDE}')
        I(f's_add_u32 s{sTg1}, s{sTmp}, s{sT1}'); I(f's_mul_i32 s{sTg1}, s{sTg1}, {TSTRIDE}')
        if typ == 'A':
            I(f's_lshl_b32 s{sTmp}, s{sC}, 13'); I(f's_lshl_b32 s{sTmp2}, s{sCp}, 11'); I(f's_add_u32 s{sTmp}, s{sTmp}, s{sTmp2}')
            I(f's_add_u32 s{sO1a}, s{sTg0}, s{sTmp}'); I(f's_add_u32 s{sO1b}, s{sTg1}, s{sTmp}')
            I(f's_add_u32 s{sO2a}, s{sO1a}, 4096'); I(f's_add_u32 s{sO2b}, s{sO1b}, 4096')
        else:
            I(f's_sub_u32 s{sTmp3}, s{sC}, 8')
            I(f's_lshl_b32 s{sTmp}, s{sTmp3}, 1'); I(f's_add_u32 s{sTmp}, s{sTmp}, s{sCp}'); I(f's_add_u32 s{sTmp}, s{sTmp}, 96'); I(f's_lshl_b32 s{sTmp}, s{sTmp}, 10')
            I(f's_add_u32 s{sO1a}, s{sTg0}, s{sTmp}'); I(f's_add_u32 s{sO1b}, s{sTg1}, s{sTmp}')
            I(f's_lshl_b32 s{sTmp}, s{sTmp3}, 2'); I(f's_lshl_b32 s{sTmp2}, s{sCp}, 1'); I(f's_add_u32 s{sTmp}, s{sTmp}, s{sTmp2}'); I(f's_add_u32 s{sTmp}, s{sTmp}, 64'); I(f's_lshl_b32 s{sTmp}, s{sTmp}, 10')
            I(f's_add_u32 s{sO2a}, s{sTg0}, s{sTmp}'); I(f's_add_u32 s{sO2b}, s{sTg1}, s{sTmp}')
        z = 104
        for k in range(4): I(f'v_mov_b32 v{z+k}, 0')
        I(f'v_add_u32 v{a}, {L_TOTZ}, v{vHB}'); I(f'ds_write_b128 v{a}, v[{z}:{z+3}]')
        I(f'ds_write_b128 v{a}, v[{z}:{z+3}] offset:128')

    def tab(s, PR, ntile):
        I = s.I; e = s.e
        n, u, v_, lr, li, t0, t1, t2, t3 = range(108, 117)
        I(f'v_lshrrev_b32 v{t0}, 4, v{vL}')
        I(f's_lshl_b32 s{sTmp}, s{sw}, 1'); I(f's_lshl_b32 s{sTmp}, 8, s{sTmp}')
        I(f'v_mul_u32_u24 v{n}, s{sTmp}, v{t0}')
        I(f'v_cmp_eq_u32 vcc, 1, v{t0}'); I(f'v_mov_b32 v{t1}, 1'); I(f'v_mov_b32 v{t2}, 0x200'); I(f'v_cndmask_b32 v{t1}, v{t1}, v{t2}, vcc')
        I(f's_cmp_eq_u32 s{sw}, 3'); I(f's_cselect_b64 s[{sMsel}:{sMsel+1}], -1, 0')
        I(f'v_cndmask_b32 v{n}, v{n}, v{t1}, s[{sMsel}:{sMsel+1}]'); I(f'v_cvt_f32_u32 v{n}, v{n}')
        I(f's_cselect_b32 s{sMsel+1}, 0xffff, 0'); I(f's_mov_b32 s{sMsel}, 0')
        wa = 117
        I(f's_lshl_b32 s{sTmp}, s{sw}, 9'); I(f's_add_u32 s{sTmp}, s{sTmp}, {L_TAB}')
        I(f'v_lshlrev_b32 v{wa}, 3, v{vL}'); I(f'v_add_u32 v{wa}, s{sTmp}, v{wa}')
        I(f's_mov_b32 s{sTmp}, {LOG2E:#x}'); I(f's_mov_b32 s{sTmp2}, {INV2PI:#x}')
        for t in range(ntile):
            p = PR + 3 * t
            I(f'v_lshlrev_b32 v{lr}, 16, v{p}'); I(f'v_lshlrev_b32 v{li}, 16, v{p+1}'); I(f'v_lshlrev_b32 v{t0}, 16, v{p+2}')
            I(f'v_mul_f32 v{t0}, s{sTmp}, v{t0}'); I(f'v_exp_f32 v{t0}, v{t0}')
            I(f'v_cvt_pk_bf16_f32 v{t0}, v{t0}, v{t0}'); I(f'v_lshlrev_b32 v{t0}, 16, v{t0}')
            I(f'v_mul_f32 v{u}, v{t0}, v{lr}'); I(f'v_mul_f32 v{v_}, v{t0}, v{li}')
            I(f'v_mul_f32 v{u}, s{sTmp}, v{u}'); I(f'v_mul_f32 v{v_}, s{sTmp2}, v{v_}')
            I(f'v_mul_f32 v{u}, v{n}, v{u}'); I(f'v_mul_f32 v{v_}, v{n}, v{v_}')
            I(f'v_exp_f32 v{u}, v{u}'); I(f'v_fract_f32 v{v_}, v{v_}')
            I(f'v_cos_f32 v{t0}, v{v_}'); I(f'v_sin_f32 v{t1}, v{v_}')
            P = 118
            I(f'v_mul_f32 v{P}, v{u}, v{t0}'); I(f'v_mul_f32 v{P+1}, v{u}, v{t1}')
            I(f'v_add_f32 v{t0}, -1.0, v{P}')
            I(f'v_mul_f32 v{t1}, v{lr}, v{lr}'); I(f'v_fma_f32 v{t1}, v{li}, v{li}, v{t1}'); I(f'v_rcp_f32 v{t1}, v{t1}')
            I(f'v_mul_f32 v{t2}, v{t0}, v{lr}'); I(f'v_fma_f32 v{t2}, v{P+1}, v{li}, v{t2}')
            I(f'v_mul_f32 v{t3}, v{P+1}, v{lr}'); I(f'v_fma_f32 v{t3}, -v{t0}, v{li}, v{t3}')
            I(f'v_add_f32 v{t1}, v{t1}, v{t1}')
            I(f'v_mul_f32 v{t2}, v{t2}, v{t1}'); I(f'v_mul_f32 v{t3}, v{t3}, v{t1}')
            I(f'v_cndmask_b32 v{P}, v{P}, v{t2}, s[{sMsel}:{sMsel+1}]'); I(f'v_cndmask_b32 v{P+1}, v{P+1}, v{t3}, s[{sMsel}:{sMsel+1}]')
            I(f'ds_write_b64 v{wa}, v[{P}:{P+1}] offset:{2048*t}')

    def stats(s, XR):
        I = s.I
        F = 120
        for r in range(2):
            for k in range(4):
                I(f'v_lshlrev_b32 v{F+8*r+2*k}, 16, v{XR+4*r+k}'); I(f'v_and_b32 v{F+8*r+2*k+1}, 0xffff0000, v{XR+4*r+k}')
        pa, pb, t0, t1 = 136, 137, 138, 139
        def reduce2(pa, pb):
            I(f'v_permlane32_swap_b32 v{pa}, v{pb}'); I(f'v_add_f32 v{pa}, v{pa}, v{pb}')
            I(f'v_mov_b32 v{pb}, v{pa}'); I(f'v_permlane16_swap_b32 v{pa}, v{pb}'); I(f'v_add_f32 v{pa}, v{pa}, v{pb}')
            for k in (8, 4, 2, 1): I(f'v_add_f32_dpp v{pa}, v{pa}, v{pa} row_ror:{k} row_mask:0xf bank_mask:0xf')
            I(f'v_mov_b32 v{pb}, v{pa}'); I(f'v_permlane32_swap_b32 v{pa}, v{pb}')
        for r, p in ((0, pa), (1, pb)):
            I(f'v_add_f32 v{p}, v{F+8*r}, v{F+8*r+1}')
            for k in range(2, 8): I(f'v_add_f32 v{p}, v{p}, v{F+8*r+k}')
        reduce2(pa, pb)
        I(f'v_mul_f32 v{t0}, 0x3b000000, v{pa}'); I(f'v_mul_f32 v{t1}, 0x3b000000, v{pb}')
        for r, m in ((0, t0), (1, t1)):
            for k in range(8): I(f'v_sub_f32 v{F+8*r+k}, v{F+8*r+k}, v{m}')
        for r, p in ((0, pa), (1, pb)):
            I(f'v_mul_f32 v{p}, v{F+8*r}, v{F+8*r}')
            for k in range(1, 8): I(f'v_fma_f32 v{p}, v{F+8*r+k}, v{F+8*r+k}, v{p}')
        reduce2(pa, pb)
        I(f'v_cndmask_b32 v{t0}, v{t0}, v{t1}, s[{sMhi}:{sMhi+1}]')
        I(f'v_cndmask_b32 v{pa}, v{pa}, v{pb}, s[{sMhi}:{sMhi+1}]')
        I(f'v_mul_f32 v{pa}, 0x3b000000, v{pa}')
        I(f'v_cvt_pk_bf16_f32 v{pa}, v{pa}, v{pa}'); I(f'v_lshlrev_b32 v{pa}, 16, v{pa}')
        I(f'v_add_f32 v{pa}, 0x3727c5ac, v{pa}')
        I(f'v_cvt_pk_bf16_f32 v{pa}, v{pa}, v{pa}'); I(f'v_lshlrev_b32 v{pa}, 16, v{pa}')
        I(f'v_sqrt_f32 v{pa}, v{pa}')
        SV = 140; s.SV = SV
        I(f'v_cvt_pk_bf16_f32 v{SV}, v{pa}, v{t0}')
        I(f'v_and_b32 v{t1}, 31, v{vL}'); I(f'v_cmp_eq_u32 vcc, 0, v{t1}'); I(f'v_lshrrev_b32 v{t1}, 2, v{vL}')
        I(f'v_mov_b32 v{pb}, {OOB}'); I(f'v_cndmask_b32 v{SV+2}, v{pb}, v{t1}, vcc')

    def cs_partial(s):
        e = s.e; I = s.I; typ = s.typ
        ONE = 120; ACa = 80; ACb = 96; FR = 124
        for k in range(4): I(f'v_mov_b32 v{ONE+k}, 0x3f803f80')
        va = 112; vo = 113; G = 114
        I(f'v_lshlrev_b32 v{vo}, 3, v{vL}'); I(f'v_mov_b32 v{va}, {OOB}'); I(f'v_cndmask_b32 v{vo}, v{vo}, v{va}, s[{sMhi}:{sMhi+1}]')
        I(f's_mul_i32 s{sKc}, s{sC}, {9*2048}'); I(f's_lshl_b32 s{sTmp}, s{sRho}, 8'); I(f's_add_u32 s{sKc}, s{sKc}, s{sTmp}'); I(f's_add_u32 s{sKc}, s{sKc}, {WS_CS}')
        I(f'v_mov_b32 v{G+1}, s{sNonce}')
        I(f's_lshl_b32 s{sTmp}, s{sCp}, 1'); I(f's_add_u32 s{sTmp}, s{sTmp}, s{sTp}')
        I(f's_lshl_b32 s{sTmp2}, s{sTmp}, 11')
        def chain(acc, reads):
            for ks in range(4):
                for x in reads(ks, FR + 4 * ks): I(x)
            for ks in range(4):
                I(f'v_mfma_f32_32x32x16_bf16 v[{acc}:{acc+15}], v[{ONE}:{ONE+3}], v[{FR+4*ks}:{FR+4*ks+3}], ' + ('0' if ks == 0 else f'v[{acc}:{acc+15}]'))
        def tr(reg, off, step, second):
            return lambda ks, d: [f'ds_read_b64_tr_b16 v[{d}:{d+1}], v{reg} offset:{off+step*ks}', f'ds_read_b64_tr_b16 v[{d+2}:{d+3}], v{reg} offset:{off+step*ks+second}']
        def publish(acc, soff):
            I(f'v_mov_b32 v{G}, v{acc}')
            I(f'buffer_store_dwordx2 v[{G}:{G+1}], v{vo}, s[{sWS}:{sWS+3}], s{soff} offen sc1')
        Lodd = s.lab('csodd'); Lend = s.lab('csend')
        vm0 = list(e.vm)
        I(f's_and_b32 s{sTmp3}, s{sR}, 1'); I(f's_cmp_eq_u32 s{sTmp3}, 1'); e.raw(f's_cbranch_scc1 {Lodd}')
        if typ == 'A':
            I(f's_lshl_b32 s{sTmp3}, s{sTp}, 5'); I(f'v_xor_b32 v{va}, s{sTmp3}, v{vP0}')
            chain(ACa, tr(va, 16384, 2048, 512))
        else:
            Lf = s.lab('csf'); Lg = s.lab('csg')
            I(f's_cmp_eq_u32 s{sTp}, 1'); e.raw(f's_cbranch_scc1 {Lf}')
            chain(ACa, lambda ks, d: [f'ds_read_b128 v[{d}:{d+3}], v{vSC+ks} offset:16384'])
            e.raw(f's_branch {Lg}')
            e.label(Lf); e.reset_hazards(); e.lgk = []
            chain(ACa, tr(vFB, 0, 1024, 256))
            e.label(Lg); e.reset_hazards(pad=16); e.lgk = []
        I(f's_add_u32 s{sTmp3}, s{sKc}, s{sTmp2}')
        publish(ACa, sTmp3)
        off = 0 if typ == 'A' else 16384 + 2048
        chain(ACb, lambda ks, d: [f'ds_read_b128 v[{d}:{d+3}], v{vSS+ks} offset:{off}'])
        I(f's_add_u32 s{sTmp3}, s{sKc}, {4*2048}'); I(f's_cmp_eq_u32 s{sw}, 0'); I(f's_cselect_b32 s{sTmp3}, s{sTmp3}, {OOB}')
        publish(ACb, sTmp3)
        e.raw(f's_branch {Lend}')
        e.label(Lodd); e.reset_hazards(); e.lgk = []; e.vm = list(vm0)
        I(f's_lshl_b32 s{sTmp3}, s{sTp}, 5'); I(f'v_xor_b32 v{va}, s{sTmp3}, v{vP0}'); I(f'v_add_u32 v{va}, {3*SLOT}, v{va}')
        chain(ACa, tr(va, 0, 2048, 512))
        I(f's_add_u32 s{sTmp3}, s{sKc}, s{sTmp2}'); I(f's_add_u32 s{sTmp3}, s{sTmp3}, {5*2048}')
        publish(ACa, sTmp3)
        e.label(Lend); e.reset_hazards(pad=4); e.lgk = []

    def gather_issue(s):
        GS = 80
        s.GS = GS
        va, vb = 108, 109
        ops = []
        ops += [f'v_bfe_u32 v{va}, v{vL}, 2, 1', f'v_lshlrev_b32 v{va}, 4, v{va}', f'v_bfe_u32 v{vb}, v{vL}, 3, 2', f'v_lshl_add_u32 v{va}, v{vb}, 2, v{va}',
                f'v_and_b32 v{vb}, 3, v{vL}', f'v_add_u32 v{va}, v{va}, v{vb}', f'v_lshlrev_b32 v{va}, 3, v{va}']
        ops += [f's_lshl_b32 s{sTmp}, s{sR}, 10', f's_add_u32 s{sTmp}, s{sTmp}, {WS_STATS}',
                f's_lshl_b32 s{sTmp2}, s{sT0}, 8', f's_add_u32 s{sG0}, s{sTmp}, s{sTmp2}',
                f's_lshl_b32 s{sTmp2}, s{sT1}, 8', f's_add_u32 s{sG1}, s{sTmp}, s{sTmp2}',
                f's_mul_i32 s{sG2}, s{sC}, {9*2048}', f's_add_u32 s{sG2}, s{sG2}, {WS_CS}', f's_lshl_b32 s{sTmp2}, s{sw}, 11',
                f's_add_u32 s{sG3}, s{sG2}, s{sTmp2}', f's_add_u32 s{sG4}, s{sG3}, {4*2048}', f's_add_u32 s{sG2}, s{sG2}, {8*2048}']
        s.gl = [(f'buffer_load_dwordx2 v[{GS}:{GS+1}], v{va}, s[{sWS}:{sWS+3}], s{sG0} offen sc1'),
                (f'buffer_load_dwordx2 v[{GS+2}:{GS+3}], v{va}, s[{sWS}:{sWS+3}], s{sG1} offen sc1')]
        for k, so in enumerate((sG3, sG4, sG2)):
            for n in range(2):
                d = GS + 4 + 8 * k + 4 * n
                s.gl.append(f'buffer_load_dwordx4 v[{d}:{d+3}], v{vHB}, s[{sWS}:{sWS+3}], s{so} offen offset:{1024*n} sc1')
        ops += [(x, 'G') for x in s.gl]
        return ops
    def tagcheck(s, regs, loads, exp=None):
        e = s.e
        ops = []
        for i, r in enumerate(regs):
            src = f's{sNonce}' if exp is None else f'v{exp[i]}'
            if i == 0: ops.append(f'v_cmp_ne_u32 s[{sBad}:{sBad+1}], {src}, v{r}')
            else:
                ops.append(f'v_cmp_ne_u32 vcc, {src}, v{r}'); ops.append(f's_or_b64 s[{sBad}:{sBad+1}], s[{sBad}:{sBad+1}], vcc')
        Ls = s.lab('slow'); Lr = s.lab('ret')
        def br():
            s.I(f's_cmp_lg_u64 s[{sBad}:{sBad+1}], 0'); e.raw(f's_cbranch_scc1 {Ls}'); e.label(Lr); return 6
        ops.append(br)
        def slow():
            e.label(Ls); e.reset_hazards(); e.vm = []; e.lgk = []
            s.I(f's_mov_b32 s{sSpin}, 0')
            e.label(Ls + 'l'); e.reset_hazards()
            for x in loads: s.I(x)
            e.force_wait('vmcnt(0)')
            for i, r in enumerate(regs):
                src = f's{sNonce}' if exp is None else f'v{exp[i]}'
                if i == 0: s.I(f'v_cmp_ne_u32 s[{sBad}:{sBad+1}], {src}, v{r}')
                else:
                    s.I(f'v_cmp_ne_u32 vcc, {src}, v{r}'); s.I(f's_or_b64 s[{sBad}:{sBad+1}], s[{sBad}:{sBad+1}], vcc')
            s.I(f's_add_u32 s{sSpin}, s{sSpin}, 1'); s.I(f's_cmp_gt_u32 s{sSpin}, {SPIN}'); e.raw(f's_cbranch_scc1 {Lr}')
            s.I(f's_cmp_lg_u64 s[{sBad}:{sBad+1}], 0'); e.raw(f's_cbranch_scc1 {Ls}l')
            e.raw('s_nop 4'); e.raw(f's_branch {Lr}')
        s.slow.append(slow)
        return ops
    def gather_process(s):
        GS = s.GS
        regs = [GS + 1, GS + 3] + [GS + 4 + 8 * k + 4 * n + 1 + 2 * m for k in range(3) for n in range(2) for m in range(2)]
        ops = s.tagcheck(regs, s.gl)
        t0, t1, t2, t3, ra, wa = 110, 111, 112, 113, 114, 115
        ops += [f'v_lshrrev_b32 v{ra}, 1, v108', f's_lshl_b32 s{sTmp}, s{sT0}, 7', f's_add_u32 s{sTmp}, s{sTmp}, {L_RS}', f'v_add_u32 v{ra}, s{sTmp}, v{ra}']
        ops += [f's_mov_b32 s{sTmp2}, {NLOG2E:#x}']
        for t in range(2):
            ms = GS + 2 * t; xa = vXaug + 4 * t
            ops += [f'v_lshlrev_b32 v{t0}, 16, v{ms}',
                    f'v_and_b32 v{t1}, 0xffff0000, v{ms}', f'v_xor_b32 v{t1}, 0x80000000, v{t1}',
                    f'v_rcp_f32 v{t2}, v{t0}', f'v_mul_f32 v{vK2+t}, v{t0}, v{t0}',
                    f'v_lshrrev_b32 v{t3}, 16, v{t1}', f'v_or_b32 v{t1}, v{t1}, v{t3}',
                    f'v_cndmask_b32 v{xa}, v{t1}, 0, s[{sMhi}:{sMhi+1}]', f'v_cndmask_b32 v{xa+1}, v{t3}, 0, s[{sMhi}:{sMhi+1}]',
                    f'v_mov_b32 v{xa+2}, 0', f'v_mov_b32 v{xa+3}, 0',
                    f'v_mul_f32 v{vNRS+t}, s{sTmp2}, v{t2}']
            if t == 0: ops += [f'ds_write_b32 v{ra}, v{t2}']
        ops += [f'v_and_b32 v{wa}, 15, v{vL}', f'v_lshlrev_b32 v{wa}, 4, v{wa}', f'v_bfe_u32 v{t0}, v{vL}, 4, 1', f'v_lshl_add_u32 v{wa}, v{t0}, 3, v{wa}',
                f's_lshl_b32 s{sTmp}, s{sw}, 8', f's_add_u32 s{sTmp}, s{sTmp}, {L_WAUG}', f'v_add_u32 v{ra}, s{sTmp}, v{wa}', f'v_add_u32 v{wa}, {L_WAUG + 8*256}, v{wa}']
        for k in range(3):
            d = GS + 4 + 8 * k
            A, B = d, d + 2
            ops += [f'v_add_f32 v{A}, v{A}, v{d+4}', f'v_add_f32 v{B}, v{B}, v{d+6}',
                    f'v_permlane16_swap_b32 v{A}, v{B}', f'v_add_f32 v{A}, v{A}, v{B}',
                    f'v_mov_b32 v{B}, v{A}', f'v_permlane32_swap_b32 v{A}, v{B}', f'v_add_f32 v{A}, v{A}, v{B}',
                    f'v_cvt_pk_bf16_f32 v{t0}, v{A}, v{A}', f'v_and_b32 v{t0}, 0xffff0000, v{t0}',
                    f'v_sub_f32 v{t1}, v{A}, v{t0}',
                    f'v_cvt_pk_bf16_f32 v{t2}, v{t1}, v{t1}', f'v_and_b32 v{t2}, 0xffff0000, v{t2}',
                    f'v_sub_f32 v{t1}, v{t1}, v{t2}',
                    f'v_cvt_pk_bf16_f32 v{d+5}, v{t1}, 0',
                    f'v_lshrrev_b32 v{t0}, 16, v{t0}', f'v_or_b32 v{d+4}, v{t0}, v{t2}']
            if k < 2: ops.append(f'ds_write_b64 v{ra}, v[{d+4}:{d+5}] offset:{1024*k}')
            else: ops.append(f'ds_write_b64 v{wa}, v[{d+4}:{d+5}]')
        return ops

    def f_epi(s, acc, t, soff, ioff):
        G = acc; U = acc + 8
        ops = []
        for j in range(8): ops.append(f'v_mul_f32 v{U+j}, v{G+j}, v{U+j}')
        for j in range(8): ops.append(f'v_mul_f32 v{G+j}, v{G+j}, v{vNRS+t}')
        for j in range(8): ops.append(f'v_exp_f32 v{G+j}, v{G+j}')
        for j in range(8): ops.append(f'v_fma_f32 v{G+j}, v{G+j}, v{vK2+t}, v{vK2+t}')
        for j in range(8): ops.append(f'v_rcp_f32 v{G+j}, v{G+j}')
        for j in range(8): ops.append(f'v_mul_f32 v{U+j}, v{U+j}, v{G+j}')
        for j in range(4): ops.append(f'v_cvt_pk_bf16_f32 v{G+j}, v{U+2*j}, v{U+2*j+1}')
        ops.append(f'buffer_store_dwordx4 v[{G}:{G+3}], v{vHB}, s[{sWS}:{sWS+3}], s{soff} offen offset:{ioff}')
        return ops

    def cmul_add(s, dr, di, ar, ai, br, bi, cr, ci):
        return [f'v_fma_f32 v{dr}, v{ar}, v{br}, v{cr}', f'v_fma_f32 v{di}, v{ar}, v{bi}, v{ci}',
                f'v_fma_f32 v{dr}, -v{ai}, v{bi}, v{dr}', f'v_fma_f32 v{di}, v{ai}, v{br}, v{di}']
    def s_setup(s):
        typ = s.typ
        s.vCh = 168
        s.vTg = 169
        s.vRs = 170
        s.vTo = 171
        s.vTw = 172
        s.vTr = 173
        s.vEo = 174
        s.vEg = 176
        s.vEx = 180
        a, b = 188, 189
        o = []
        o += [f'v_and_b32 v{a}, 15, v{vL}', f'v_lshlrev_b32 v{b}, 3, v{a}',
              f'v_add_u32 v{s.vCh}, {L_TAB}, v{b}', f'v_add_u32 v{s.vTo}, {L_TOTZ}, v{b}',
              f'v_lshlrev_b32 v{s.vTg}, 3, v{vL}', f'v_add_u32 v{s.vTg}, {L_TAB}, v{s.vTg}',
              f'v_lshrrev_b32 v{b}, 4, v{vL}', f'v_lshlrev_b32 v{s.vRs}, 5, v{b}', f'v_add_u32 v{s.vRs}, {L_RS}, v{s.vRs}',
              f's_mul_i32 s{sTmp}, s{sw}, {SLOT}', f's_add_u32 s{sTmp}, s{sTmp}, 32768',
              f'v_mul_u32_u24 v{s.vTw}, 80, v{a}', f'v_lshl_add_u32 v{s.vTw}, v{b}, 4, v{s.vTw}', f'v_add_u32 v{s.vTw}, s{sTmp}, v{s.vTw}',
              f'v_lshrrev_b32 v{s.vTr}, 5, v{vL}', f'v_lshlrev_b32 v{s.vTr}, 3, v{s.vTr}', f'v_bfe_u32 v{b}, v{vL}, 2, 2', f'v_add_u32 v{s.vTr}, v{s.vTr}, v{b}',
              f'v_mul_u32_u24 v{s.vTr}, 80, v{s.vTr}',
              f'v_and_b32 v{b}, 1, v{vL}', f'v_lshl_add_u32 v{s.vTr}, v{b}, 5, v{s.vTr}',
              f'v_bfe_u32 v{b}, v{vL}, 1, 1', f'v_lshl_add_u32 v{s.vTr}, v{b}, 3, v{s.vTr}',
              f'v_bfe_u32 v{b}, v{vL}, 4, 1', f'v_lshl_add_u32 v{s.vTr}, v{b}, 4, v{s.vTr}',
              f'v_add_u32 v{s.vTr}, s{sTmp}, v{s.vTr}']
        o += [f'v_lshlrev_b32 v{a}, 4, v{a}', f's_lshl_b32 s{sTmp}, s{sR}, 8', f'v_add_u32 v{a}, s{sTmp}, v{a}',
              f'v_lshrrev_b32 v{b}, 4, v{vL}', f'v_cmp_eq_u32 vcc, 2, v{b}', f'v_mov_b32 v{s.vEo}, {OOB}', f'v_cndmask_b32 v{b}, v{s.vEo}, v{a}, vcc',
              s.atom([f's_cmp_eq_u32 s{sT0}, 3', f's_cselect_b64 s[{sMsel}:{sMsel+1}], -1, 0']),
              f'v_cndmask_b32 v{s.vEo}, v{s.vEo}, v{b}, s[{sMsel}:{sMsel+1}]']
        o += [s.atom([f's_cmp_eq_u32 s{sT1}, 3', f's_cselect_b64 s[{sMsel}:{sMsel+1}], -1, 0']), f'v_mov_b32 v{s.vEo+1}, {OOB}', f'v_cndmask_b32 v{s.vEo+1}, v{s.vEo+1}, v{b}, s[{sMsel}:{sMsel+1}]']
        o += [f'v_and_b32 v{a}, 15, v{vL}', f'v_lshlrev_b32 v{a}, 4, v{a}', f'v_lshrrev_b32 v{b}, 4, v{vL}', f'v_sub_u32 v{b}, s{sR}, v{b}', f'v_add_u32 v{b}, -1, v{b}']
        for k in range(4):
            g = s.vEg + k; x = s.vEx + k
            if k: o.append(f'v_add_u32 v{b}, -4, v{b}')
            o += [f'v_cmp_le_i32 vcc, 0, v{b}', f'v_lshl_add_u32 v{g}, v{b}, 8, v{a}', f'v_mov_b32 v{x}, {OOB}', f'v_cndmask_b32 v{g}, v{x}, v{g}, vcc',
                  f'v_mov_b32 v{x}, s{sNonce}', f'v_cndmask_b32 v{x}, 0, v{x}, vcc']
        return o
    def s_inst(s):
        if s.typ == 'A': return [dict(acc=ACC1 + 64, t=0, role='ex', P=224)]
        return [dict(acc=ACC1 + 0, t=0, role='c0', P=224), dict(acc=ACC1 + 16, t=1, role='c0', P=228), dict(acc=ACC1 + 64, t=0, role='ex', P=232)]
    def tile_off(s, role, unit):
        if s.typ == 'A': return 0
        return 2 * unit if role == 'ex' else 0
    def areg(s, base, role, unit, tmp):
        if s.typ == 'A' or role == 'ex': return [], base
        return [f's_mul_i32 s{sTmp}, s{sCp}, {unit}', f'v_add_u32 v{tmp}, s{sTmp}, v{base}'], tmp
    def s1(s, inst):
        A = inst['acc']; t = inst['t']; role = inst['role']; P = inst['P']
        R = 236
        L1, L8, L16 = 244, 246, 248
        er, ei, zr, zi, x0, x1 = 250, 251, 252, 253, 254, 255
        qr, qi = 190, 191
        ta = vTA
        ops = []
        sT = sT0 if t == 0 else sT1
        o, tb = s.areg(s.vCh, role, 2048, ta); ops += o
        to = s.tile_off(role, 2048)
        ops += [f's_lshl_b32 s{sTmp}, s{sT}, 7', f'v_add_u32 v{x0}, s{sTmp}, v{s.vRs}',
                f'ds_read_b128 v[{R}:{R+3}], v{x0}', f'ds_read_b128 v[{R+4}:{R+7}], v{x0} offset:16',
                f'ds_read_b64 v[{L1}:{L1+1}], v{tb} offset:{to+1536}', f'ds_read_b64 v[{L8}:{L8+1}], v{tb} offset:{to+128}', f'ds_read_b64 v[{L16}:{L16+1}], v{tb} offset:{to+256}']
        for j in range(8): ops.append(f'v_permlane16_swap_b32 v{A+j}, v{A+j+8}')
        for j in range(8): ops += [f'v_mul_f32 v{A+j}, v{A+j}, v{R+j}', f'v_mul_f32 v{A+j+8}, v{A+j+8}, v{R+j}']
        for j in range(1, 8):
            pr, pi = (A, A + 8) if j == 1 else (er, ei)
            ops += [f'v_fma_f32 v{x0}, v{L1}, v{pr}, v{A+j}', f'v_fma_f32 v{x1}, v{L1}, v{pi}, v{A+j+8}',
                    f'v_fma_f32 v{zr}, -v{L1+1}, v{pi}, v{x0}', f'v_fma_f32 v{zi}, v{L1+1}, v{pr}, v{x1}']
            er, zr = zr, er; ei, zi = zi, ei
        ops += [f'v_mov_b32 v{zr}, 0', f'v_mov_b32 v{zi}, 0', f'v_mov_b32 v{x0}, v{er}', f'v_mov_b32 v{x1}, v{ei}',
                f'v_cndmask_b32 v{qr}, 1.0, v{L8}, s[{sModd}:{sModd+1}]', f'v_cndmask_b32 v{qi}, 0, v{L8+1}, s[{sModd}:{sModd+1}]',
                f'v_permlane16_swap_b32 v{zr}, v{x0}', f'v_permlane16_swap_b32 v{zi}, v{x1}']
        ops += s.cmul_add(er, ei, L8, L8 + 1, zr, zi, er, ei)
        ops += [f'v_mov_b32 v{x0}, v{er}', f'v_mov_b32 v{x1}, v{ei}', f'v_mov_b32 v{R}, 0', f'v_mov_b32 v{R+1}, 0',
                f'v_permlane16_swap_b32 v{er}, v{x0}', f'v_permlane16_swap_b32 v{ei}, v{x1}',
                f'v_permlane32_swap_b32 v{R}, v{x0}', f'v_permlane32_swap_b32 v{R+1}, v{x1}']
        ops += s.cmul_add(x0, x1, L16, L16 + 1, R, R + 1, x0, x1)
        ops += s.cmul_add(P, P + 1, qr, qi, R, R + 1, zr, zi)
        o, tb2 = s.areg(s.vTo, role, 128, ta); ops += o
        to2 = s.tile_off(role, 128)
        ops += [f's_mul_i32 s{sTmp}, s{sT}, 384', f'v_add_u32 v{R+2}, s{sTmp}, v{tb2}',
                s.atom([f's_mov_b64 exec, s[{sMhi}:{sMhi+1}]', f'ds_write_b64 v{R+2}, v[254:255] offset:{3*384+to2}', f's_mov_b64 exec, -1'])]
        assert (x0, x1) == (254, 255)
        return ops
    def s2(s, inst):
        A = inst['acc']; t = inst['t']; role = inst['role']; P = inst['P']
        sT = sT0 if t == 0 else sT1
        R = 236; L32 = 244; ta = vTA; tb_ = vTA + 1; Gq = 248
        ops = []
        o, tb2 = s.areg(s.vTo, role, 128, ta); ops += o
        to2 = s.tile_off(role, 128)
        o, tb = s.areg(s.vCh, role, 2048, tb_); ops += o
        to = s.tile_off(role, 2048)
        ops += [f's_mul_i32 s{sTmp}, s{sT}, 384', f'v_add_u32 v{ta}, s{sTmp}, v{tb2}']
        for k in range(4): ops.append(f'ds_read_b64 v[{R+2*k}:{R+2*k+1}], v{ta} offset:{k*384+to2}')
        ops.append(f'ds_read_b64 v[{L32}:{L32+1}], v{tb} offset:{to+640}')
        C0, C1 = P + 2, P + 3
        ops += s.cmul_add(R + 2, R + 3, L32, L32 + 1, R, R + 1, R + 2, R + 3)
        ops += s.cmul_add(R + 4, R + 5, L32, L32 + 1, R + 2, R + 3, R + 4, R + 5)
        ops += [f'v_mov_b32 v{C0}, v{R+4}', f'v_mov_b32 v{C1}, v{R+5}', f'v_mov_b32 v{Gq+1}, s{sNonce}', f'v_mov_b32 v{Gq+3}, s{sNonce}']
        ops += s.cmul_add(R + 6, R + 7, L32, L32 + 1, R + 4, R + 5, R + 6, R + 7)
        ops += [f'v_mov_b32 v{Gq}, v{R+6}', f'v_mov_b32 v{Gq+2}, v{R+7}']
        cg = sCGx if role == 'ex' else sTmp2
        if role != 'ex': ops += [f's_add_u32 s{sTmp2}, s{sCG0}, s{sCp}']
        ops += [f's_lshl_b32 s{sTmp}, s{cg}, 12', f's_add_u32 s{sTmp}, s{sTmp}, {WS_E}',
                f'buffer_store_dwordx4 v[{Gq}:{Gq+3}], v{s.vEo+t}, s[{sWS}:{sWS+3}], s{sTmp} offen sc1']
        return ops
    def s3_issue(s, role, EG, sE):
        ops = []
        cg = sCGx if role == 'ex' else sTmp2
        if role != 'ex': ops += [f's_add_u32 s{sTmp2}, s{sCG0}, s{sCp}']
        ops += [f's_lshl_b32 s{sE}, s{cg}, 12', f's_add_u32 s{sE}, s{sE}, {WS_E}']
        loads = [f'buffer_load_dwordx4 v[{EG+4*k}:{EG+4*k+3}], v{s.vEg+k}, s[{sWS}:{sWS+3}], s{sE} offen sc1' for k in range(4)]
        ops += [(x, 'EG' + role) for x in loads]
        return ops, loads
    def s3(s, role, EG, loads, H):
        L512, Q = 244, 246; ta = vTA
        regs = [EG + 4 * k + 1 + 2 * m for k in range(4) for m in range(2)]
        exp = [s.vEx + k for k in range(4) for m in range(2)]
        ops = []
        o, tb = s.areg(s.vCh, role, 2048, ta); ops += o
        to = s.tile_off(role, 2048)
        ops += [f'ds_read_b64 v[{L512}:{L512+1}], v{tb} offset:{to+1664}']
        o, tg = s.areg(s.vTg, role, 2048, ta + 1); ops += o
        ops += [f'ds_read_b64 v[{Q}:{Q+1}], v{tg} offset:{to+1024}']
        ops += s.tagcheck(regs, loads, exp)
        for k in (2, 1, 0):
            ops += s.cmul_add(EG + 4 * k, EG + 4 * k + 2, L512, L512 + 1, EG + 4 * (k + 1), EG + 4 * (k + 1) + 2, EG + 4 * k, EG + 4 * k + 2)
        wr, wi = EG + 4, EG + 5
        ops += [f'v_mul_f32 v{wr}, v{Q}, v{EG}', f'v_mul_f32 v{wi}, v{Q}, v{EG+2}', f'v_fma_f32 v{wr}, -v{Q+1}, v{EG+2}, v{wr}', f'v_fma_f32 v{wi}, v{Q+1}, v{EG}, v{wi}',
                f'v_permlane16_swap_b32 v{wr}, v{wi}', f'v_add_f32 v{wr}, v{wr}, v{wi}', f'v_mov_b32 v{wi}, v{wr}',
                f'v_permlane32_swap_b32 v{wr}, v{wi}', f'v_add_f32 v{H}, v{wr}, v{wi}', f'v_mov_b32 v{H+1}, v{H}',
                f'v_permlane16_swap_b32 v{H}, v{H+1}']
        return ops
    def s4(s, inst, H):
        A = inst['acc']; t = inst['t']; role = inst['role']; P = inst['P']
        sT = sT0 if t == 0 else sT1
        L1, Q32, Q8, CF = 236, 238, 240, 242
        x0, x1, hr, hi = 244, 245, 246, 247
        O = 248
        ta = vTA
        ops = []
        o, tb = s.areg(s.vCh, role, 2048, ta); ops += o
        to = s.tile_off(role, 2048)
        o, tg = s.areg(s.vTg, role, 2048, ta + 1); ops += o
        ops += [f's_lshl_b32 s{sTmp}, s{sT}, 7', f'v_add_u32 v{x0}, s{sTmp}, v{tb}',
                f'ds_read_b64 v[{Q32}:{Q32+1}], v{x0} offset:{to+512}', f'ds_read_b64 v[{Q8}:{Q8+1}], v{tg} offset:{to}',
                f'ds_read_b64 v[{L1}:{L1+1}], v{tb} offset:{to+1536}', f'ds_read_b64 v[{CF}:{CF+1}], v{tb} offset:{to+1792}']
        C0, C1 = P + 2, P + 3
        ops += s.cmul_add(C0, C1, Q32, Q32 + 1, H, H + 1, C0, C1)
        ops += s.cmul_add(P, P + 1, Q8, Q8 + 1, C0, C1, P, P + 1)
        pr, pi = P, P + 1
        for j in range(8):
            ops += s.cmul_add(A + j, A + j + 8, L1, L1 + 1, pr, pi, A + j, A + j + 8)
            pr, pi = A + j, A + j + 8
        for j in range(8):
            ops += [f'v_mul_f32 v{x0}, v{CF}, v{A+j}', f'v_mul_f32 v{x1}, -v{CF+1}, v{A+j}',
                    f'v_fma_f32 v{A+j}, -v{CF+1}, v{A+j+8}, v{x0}', f'v_fma_f32 v{A+j+8}, -v{CF}, v{A+j+8}, v{x1}']
        for k in range(4): ops.append(f'v_cvt_pk_bf16_f32 v{O+k}, v{A+2*k}, v{A+2*k+1}')
        for k in range(4): ops.append(f'v_cvt_pk_bf16_f32 v{O+4+k}, v{A+8+2*k}, v{A+8+2*k+1}')
        ops += [f'ds_write_b128 v{s.vTw}, v[{O}:{O+3}]', f'ds_write_b128 v{s.vTw}, v[{O+4}:{O+7}] offset:1280']
        for ri in range(2):
            d = A + 4 * ri
            ops += [f'ds_read_b64_tr_b16 v[{d}:{d+1}], v{s.vTr} offset:{1280*ri}', f'ds_read_b64_tr_b16 v[{d+2}:{d+3}], v{s.vTr} offset:{1280*ri+320}']
        cg = sCGx if role == 'ex' else sTmp2
        if role != 'ex': ops += [f's_add_u32 s{sTmp2}, s{sCG0}, s{sCp}']
        tg_ = sTg0 if t == 0 else sTg1
        ops += [f's_lshr_b32 s{sTmp}, s{cg}, 2', f's_lshl_b32 s{sTmp}, s{sTmp}, 3', f's_and_b32 s{sTmp3}, s{cg}, 3', f's_add_u32 s{sTmp}, s{sTmp}, s{sTmp3}',
                f's_add_u32 s{sTmp}, s{sTmp}, 112', f's_lshl_b32 s{sTmp}, s{sTmp}, 10', f's_add_u32 s{sTmp}, s{sTmp}, s{tg_}', f's_add_u32 s{sTmp3}, s{sTmp}, 4096',
                f'buffer_store_dwordx4 v[{A}:{A+3}], v{vHB}, s[{sWS}:{sWS+3}], s{sTmp} offen',
                f'buffer_store_dwordx4 v[{A+4}:{A+7}], v{vHB}, s[{sWS}:{sWS+3}], s{sTmp3} offen']
        return ops

    def mf(s, acc, wfrag, xreg, isS, first=False):
        c = '0' if first else f'v[{acc}:{acc+15}]'
        w = f'v[{wfrag}:{wfrag+3}]'
        if isS: s.I(f'v_mfma_f32_32x32x16_bf16 v[{acc}:{acc+15}], {xreg}, {w}, {c}')
        else: s.I(f'v_mfma_f32_32x32x16_bf16 v[{acc}:{acc+15}], {w}, {xreg}, {c}')
    def body(s):
        e = s.e; I = s.I; cfg = s.cfg
        s.prologue()
        roles = ['c0', 'c1', 'ex']
        def reads1(st, ks):
            b = WF + 12 * ((4 * st + ks) & 1)
            return (s.rd_x(st, ks, 0) + s.rd_w1('c0', st, ks, b) + s.rd_x(st, ks, 1) + s.rd_w1('c1', st, ks, b + 4) + s.rd_w1('ex', st, ks, b + 8))
        def rd2(kk, tile, ring):
            j = kk >> 2; ks = kk & 3
            d = WF + 4 * ring
            return s.rd_tr(d, vP0 if tile == 0 else vP1, j >> 1, (j & 1) * 16384 + 2048 * ks, 512)
        dma = deque(s.dma_list(3))
        for f in reads1(0, 0): f()
        s.stamp(2)
        pf = cfg['pf2']
        for st in range(8):
            if st == cfg['gather_stage']: s.add(s.gather_issue())
            if st == cfg['check_stage']: s.add(s.gather_process())
            for ks in range(4):
                kk = 4 * st + ks
                b = WF + 12 * (kk & 1)
                if ks < 3: nxt = reads1(st, ks + 1)
                elif st < 7: nxt = reads1(st + 1, 0)
                else:
                    nxt = []
                    for q in range(pf): nxt += rd2(q, 0, q)
                nxt = deque(nxt)
                seq = [('c0', 0), ('c0', 1), ('c1', 0), ('c1', 1), ('ex', 0)]
                for m, (role, t) in enumerate(seq):
                    acc = ACC1 + (64 if role == 'ex' else 32 * roles.index(role) + 16 * t)
                    xr = (kk * 2 + t) * 4
                    s.mf(acc, b + 4 * roles.index(role), f'a[{xr}:{xr+3}]', s.is_S(role), first=(kk == 0))
                    if ks == 3 and m == 0:
                        if st == 7: s.drain()
                        s.barrier(f'B{st+1}', f'D{st+1}')
                        while dma: dma.popleft()()
                        dma = deque(s.dma_list(st + 4))
                    nrd = 2 if m < 4 else 9
                    for _ in range(nrd):
                        if nxt: nxt.popleft()()
                    gi = (5 * ((ks + 1) & 3) + m)
                    if dma and gi % 2 == 1: dma.popleft()()
                    s.run_fill(cfg['budget1'])
        s.stamp(3)
        insts = s.s_inst()
        s.add(s.s_setup())
        ab = WF + 12
        I(f'v_and_b32 v{vWa}, 31, v{vL}'); I(f'v_lshlrev_b32 v{vWa}, 3, v{vWa}'); I(f'v_add_u32 v{vWa}, {L_WAUG}, v{vWa}')
        I(f's_lshl_b32 s{sTmp}, s{sCp}, 9'); I(f'v_add_u32 v{vWa+1}, s{sTmp}, v{vWa}')
        I(f'ds_read_b64 v[{ab}:{ab+1}], v{vWa+1}'); I(f'ds_read_b64 v[{ab+4}:{ab+5}], v{vWa+1} offset:256'); I(f'ds_read_b64 v[{ab+8}:{ab+9}], v{vWa} offset:1024')
        for role, t in [('c0', 0), ('c0', 1), ('c1', 0), ('c1', 1), ('ex', 0)]:
            acc = ACC1 + (64 if role == 'ex' else 32 * roles.index(role) + 16 * t)
            s.mf(acc, ab + 4 * roles.index(role), f'v[{vXaug+4*t}:{vXaug+4*t+3}]', s.is_S(role))
            s.run_fill(cfg['budget2'])
        s.events.add('aug1')
        F1 = []
        if s.typ == 'A':
            F1 = [s.f_epi(ACC1 + 0, 0, sO1a, 0), s.f_epi(ACC1 + 16, 1, sO1b, 0), s.f_epi(ACC1 + 32, 0, sO1a, 1024), s.f_epi(ACC1 + 48, 1, sO1b, 1024)]
        else:
            F1 = [s.f_epi(ACC1 + 32, 0, sO1a, 0), s.f_epi(ACC1 + 48, 1, sO1b, 0)]
        for inst in insts: s.add(s.s1(inst))
        s.add([lambda: s.events.add('s1done') or 1])
        s.add(F1[0])
        s.add([('gate', 'TOTB')])
        for inst in insts: s.add(s.s2(inst))
        s.add(F1[1])
        EGs = {}
        rl = ['ex'] if s.typ == 'A' else ['c0', 'ex']
        for f in F1[2:]: s.add(f)
        s.add([('gate', 'acc2a')])
        s.add(s.f_epi(ACC2 + 0, 0, sO2a, 0)); s.add(s.f_epi(ACC2 + 16, 1, sO2b, 0))
        Hreg = {'ex': 220, 'c0': 222}
        for i, role in enumerate(rl):
            EG = ACC1 + 32 + 16 * i
            o, loads = s.s3_issue(role, EG, sG0 + i)
            s.add(o); EGs[role] = (EG, loads)
        for role in rl:
            EG, loads = EGs[role]
            s.add(s.s3(role, EG, loads, Hreg[role]))
            for inst in insts:
                if inst['role'] == role: s.add(s.s4(inst, Hreg[role]))
        ring = pf
        NR = 6
        order = [(kk, 0) for kk in range(32)] + [(kk, 1) for kk in range(32)]
        pend = deque()
        issued = pf
        for idx, (kk, tile) in enumerate(order):
            slotr = idx % NR
            fr = WF + 4 * slotr
            if tile == 0 and kk in (5, 13, 21):
                nb = {5: 9, 13: 10, 21: 11}[kk]
                if nb == cfg.get('totb', 10):
                    while 's1done' not in s.events: s.run_fill(64)
                s.barrier(f'B{nb}', f'D{nb}')
                if nb == cfg.get('totb', 10): s.events.add('TOTB')
            nxt = deque()
            if issued < len(order):
                k2, t2 = order[issued]
                nxt = deque(rd2(k2, t2, issued % NR)); issued += 1
            for t in range(2):
                acc = ACC2 + 32 * tile + 16 * t
                xr = (kk * 2 + t) * 4
                s.mf(acc, fr, f'a[{xr}:{xr+3}]', False, first=(kk == 0))
                if nxt: nxt.popleft()()
                if dma: dma.popleft()()
                s.run_fill(cfg['budget2'])
            if kk == 31:
                fa = WF + 4 * ((idx + pf + 1) % NR)
                fa = WF + 4 * ((idx - 1) % NR)
                I(f'ds_read_b64 v[{fa}:{fa+1}], v{vWa+1} offset:{(5+tile)*256}')
                for t in range(2):
                    acc = ACC2 + 32 * tile + 16 * t
                    s.mf(acc, fa, f'v[{vXaug+4*t}:{vXaug+4*t+3}]', False)
                    s.run_fill(cfg['budget2'])
                if tile == 0: s.events.add('acc2a')
        s.stamp(4)
        s.drain()
        s.add(s.f_epi(ACC2 + 32, 0, sO2a, 1024)); s.add(s.f_epi(ACC2 + 48, 1, sO2b, 1024))
        s.drain()
        s.stamp(5)
        e.raw('s_endpgm')
        for f in s.slow: f()

sG0, sG1, sG2, sG3, sG4 = 100, 101, 63, 6, 7

def gen_p1(ts=False, cfg=None):
    e = Em(); I = e.I
    e.raw('s_cmp_ge_u32 s2, 256'); e.raw('s_cbranch_scc1 P1_done')
    I(f's_load_dwordx16 s[64:79], s[0:1], 0')
    I(f's_load_dwordx4 s[80:83], s[0:1], 80')
    I(f's_load_dwordx4 s[84:87], s[0:1], 112')
    e.raw(f's_memrealtime s[{sTS}:{sTS+1}]')
    I(f'v_and_b32 v{vL}, 63, v0'); I(f'v_lshrrev_b32 v{vT}, 6, v0'); I(f'v_readfirstlane_b32 s{sw}, v{vT}')
    I(f's_and_b32 s{sTmp}, s2, 7'); I(f's_lshr_b32 s{sTmp2}, s2, 3')
    I(f's_lshr_b32 s{sRho}, s{sTmp2}, 2')
    I(f's_and_b32 s{sTmp3}, s{sTmp}, 1'); I(f's_lshl_b32 s{sR}, s{sRho}, 1'); I(f's_add_u32 s{sR}, s{sR}, s{sTmp3}')
    I(f's_lshr_b32 s{sC}, s{sTmp}, 1'); I(f's_lshl_b32 s{sC}, s{sC}, 2'); I(f's_and_b32 s{sTmp3}, s{sTmp2}, 3'); I(f's_add_u32 s{sC}, s{sC}, s{sTmp3}')
    for s_, n in [(sX, 2048*512*2), (sWA, 512*1792*2), (sSB, 512*512*2), (sWS, WS_SIZE), (sWC, 0), (sDBG, 256)]:
        I(f's_mov_b32 s{s_+2}, {n}'); I(f's_mov_b32 s{s_+3}, 0x00020000')
    gA = Gen('A', e, ts, cfg); gB = Gen('B', e, ts, cfg)
    gA.lane_consts()
    if ts:
        I(f's_lshl_b32 s{sTmp}, s2, 2'); I(f's_add_u32 s{sTmp}, s{sTmp}, s{sw}'); I(f's_lshl_b32 s{sTmp}, s{sTmp}, 6'); I(f's_add_u32 s{sTmp}, s{sTmp}, {WS_TS}')
        I(f'v_lshlrev_b32 v{vTSA}, 10, v{vL}'); I(f'v_lshlrev_b32 v{vTSA}, 16, v{vTSA}'); I(f'v_add_u32 v{vTSA}, s{sTmp}, v{vTSA}')
    I(f's_cmp_ge_u32 s{sC}, 8'); e.raw('s_cbranch_scc1 P1_B')
    for g, lab in ((gA, None), (gB, 'P1_B')):
        if lab: e.label(lab); e.reset_hazards(); e.lgk = []; e.vm = []
        g.wave_consts()
        e.force_wait('lgkmcnt(0)')
        g.body()
    e.label('P1_done'); e.raw('s_endpgm')
    return e
```

```python
from em import Em
WS_STATS = 12 << 20
WS_TS = 14 << 20
WS_SIZE = 16 << 20
TSTRIDE = 176 * 1024
NLOG2E = 0xbfb8aa3b

def gen_p2(D=3, NB=4, prefix='P2', ts=False, st_flags='', noB=False, noW=False, same=0, mapping=0, nomfma=False):
    e = Em()
    I = e.I
    sW2, sCre, sCim, sWS, sX, sOut, sDk = 8, 12, 16, 20, 24, 28, 32
    sw = 36; sTT = 37; sDT = 38; sBoff = 39; sRow = 40; sM0 = 41; sTmp = 42; sTmp2 = 43
    sTokO = 44
    sTokX = 48
    sTokS = 52
    sCrow = 56; sK = 57
    sNL = 58
    sOne = 60
    sT0 = 64
    ACC = 0
    AF = 64
    vL = 80; vB0 = 81; vB1 = 82
    vW = 84
    vC = 88
    vA0 = 92; vA1 = 93
    vY = 94
    vR = 98; vT = 99
    vF = 100
    vXo = 104; vOo = 105; vSo = 106; vDo = 107
    vX = 108
    vS = 116
    vDk = 124
    vDf = 128
    vXf = 132
    vYi = 148
    vP4 = 164
    vG = 180
    vH = 184
    vE = 188
    vT2 = 244
    def acc(ee, t): b = ACC + 16 * (2 * ee + t); return f'v[{b}:{b+15}]'
    def stamp(k):
        if ts:
            e.raw(f'{ts} s[{sT0+2*k}:{sT0+2*k+1}]')
    e.raw(f's_cmp_ge_u32 s2, 256')
    e.raw(f's_cbranch_scc1 {prefix}_done')
    stamp(0)
    I(f's_load_dwordx2 s[{sWS}:{sWS+1}], s[0:1], 120')
    I(f's_load_dwordx2 s[{sW2}:{sW2+1}], s[0:1], 96')
    I(f's_load_dwordx2 s[{sCre}:{sCre+1}], s[0:1], 40')
    I(f's_load_dwordx2 s[{sCim}:{sCim+1}], s[0:1], 48')
    I(f's_load_dwordx2 s[{sX}:{sX+1}], s[0:1], 0')
    I(f's_load_dwordx2 s[{sOut}:{sOut+1}], s[0:1], 104')
    I(f's_load_dwordx2 s[{sDk}:{sDk+1}], s[0:1], 64')
    I(f'v_and_b32 v{vL}, 63, v0')
    I(f'v_lshrrev_b32 v{vT}, 6, v0')
    I(f'v_readfirstlane_b32 s{sw}, v{vT}')
    I(f's_and_b32 s{sTmp}, s2, 7')
    I(f's_lshr_b32 s{sTmp2}, s2, 3')
    I(f's_lshr_b32 s{sTT}, s{sTmp}, 1')
    I(f's_lshl_b32 s{sTT}, s{sTT}, 3')
    I(f's_and_b32 s{sDT}, s{sTmp2}, 7')
    I(f's_add_u32 s{sTT}, s{sTT}, s{sDT}')
    I(f's_and_b32 s{sDT}, s{sTmp}, 1')
    I(f's_lshl_b32 s{sDT}, s{sDT}, 2')
    I(f's_lshr_b32 s{sTmp2}, s{sTmp2}, 3')
    I(f's_add_u32 s{sDT}, s{sDT}, s{sTmp2}')
    if mapping == 1:
        I(f's_and_b32 s{sTmp}, s2, 7'); I(f's_lshr_b32 s{sTmp2}, s2, 3')
        I(f's_lshl_b32 s{sTT}, s{sTmp}, 2'); I(f's_and_b32 s{sDT}, s{sTmp2}, 3'); I(f's_add_u32 s{sTT}, s{sTT}, s{sDT}')
        I(f's_lshr_b32 s{sDT}, s{sTmp2}, 2')
    if mapping == 2:
        I(f's_lshr_b32 s{sTT}, s2, 3'); I(f's_and_b32 s{sDT}, s2, 7')
    if same & 1: I(f's_mov_b32 s{sTT}, 0')
    if same & 2: I(f's_mov_b32 s{sDT}, 0')
    for s_, n in [(sW2, 1792*512*2), (sCre, 512*512*2), (sCim, 512*512*2), (sWS, WS_SIZE), (sX, 2048*512*2), (sOut, 2048*512*4), (sDk, 1024)]:
        I(f's_mov_b32 s{s_+2}, {n}')
        I(f's_mov_b32 s{s_+3}, 0x00020000')
    I(f'v_lshlrev_b32 v{vB0}, 4, v{vL}')
    I(f'v_add_u32 v{vB1}, {TSTRIDE}, v{vB0}')
    I(f's_mul_i32 s{sBoff}, s{sTT}, {2*TSTRIDE}')
    I(f's_mul_i32 s{sTmp}, s{sw}, {11*4096}')
    I(f's_add_u32 s{sBoff}, s{sBoff}, s{sTmp}')
    a, b, c = vT2, vT2+1, vT2+2
    I(f'v_lshrrev_b32 v{a}, 3, v{vL}')
    I(f'v_lshlrev_b32 v{a}, 10, v{a}')
    I(f'v_lshrrev_b32 v{b}, 4, v{vL}')
    I(f'v_and_b32 v{c}, 7, v{vL}')
    I(f'v_and_b32 v{vT}, 1, v{b}')
    I(f'v_lshlrev_b32 v{vT}, 2, v{vT}')
    I(f'v_xor_b32 v{vT}, v{vT}, v{c}')
    I(f'v_lshl_add_u32 v{vW}, v{vT}, 4, v{a}')
    for i in range(1, 4): I(f'v_add_u32 v{vW+i}, {7168*i}, v{vW}')
    I(f'v_xor_b32 v{vT}, v{b}, v{c}')
    I(f'v_lshl_add_u32 v{vC}, v{vT}, 4, v{a}')
    I(f'v_xor_b32 v{vC+1}, 64, v{vC}')
    I(f'v_add_u32 v{vC+1}, 7168, v{vC+1}')
    I(f'v_add_u32 v{vC+2}, {7168*2}, v{vC}')
    I(f'v_add_u32 v{vC+3}, {7168*2}, v{vC+1}')
    I(f's_lshl_b32 s{sM0}, s{sw}, 15')
    I(f's_lshl_b32 s{sTmp}, s{sDT}, 7')
    I(f's_mul_i32 s{sRow}, s{sw}, {11*64*1024}')
    I(f's_add_u32 s{sRow}, s{sRow}, s{sTmp}')
    I(f's_lshl_b32 s{sCrow}, s{sDT}, 16')
    I(f's_lshl_b32 s{sK}, s{sDT}, 7')

    def setup_late():
        I(f'v_lshrrev_b32 v{b}, 4, v{vL}')
        I(f'v_lshrrev_b32 v{a}, 5, v{vL}')
        I(f'v_lshlrev_b32 v{a}, 2, v{a}')
        I(f'v_bfe_u32 v{c}, v{vL}, 2, 2')
        I(f'v_add_u32 v{a}, v{a}, v{c}')
        I(f'v_lshlrev_b32 v{a}, 7, v{a}')
        I(f'v_lshrrev_b32 v{c}, 1, v{c}')
        I(f'v_lshlrev_b32 v{c}, 6, v{c}')
        I(f'v_add_u32 v{a}, v{a}, v{c}')
        I(f'v_and_b32 v{c}, 1, v{b}')
        I(f'v_lshl_add_u32 v{a}, v{c}, 5, v{a}')
        I(f'v_and_b32 v{c}, 3, v{vL}')
        I(f'v_lshl_add_u32 v{a}, v{c}, 3, v{a}')
        I(f'v_add_u32 v{vA0}, s{sM0}, v{a}')
        I(f'v_xor_b32 v{vA1}, 64, v{vA0}')
        I(f'v_and_b32 v{a}, 31, v{vL}')
        I(f'v_lshlrev_b32 v{a}, 7, v{a}')
        I(f'v_bfe_u32 v{c}, v{vL}, 1, 3')
        I(f'v_lshrrev_b32 v{vT}, 5, v{vL}')
        I(f'v_xor_b32 v{c}, v{c}, v{vT}')
        I(f'v_lshl_add_u32 v{a}, v{c}, 4, v{a}')
        I(f'v_add_u32 v{vY}, s{sM0}, v{a}')
        for s_ in range(1, 4): I(f'v_xor_b32 v{vY+s_}, {32*s_}, v{vY}')
        I(f'v_and_b32 v{a}, 31, v{vL}')
        I(f'v_lshlrev_b32 v{a}, 8, v{a}')
        I(f'v_and_b32 v{c}, 15, v{vL}')
        I(f'v_xor_b32 v{c}, v{c}, v{vT}')
        I(f'v_lshl_add_u32 v{vR}, v{c}, 4, v{a}')
        I(f'v_and_b32 v{c}, 15, v{vL}')
        I(f'v_xor_b32 v{a}, v{b}, v{c}')
        I(f'v_lshlrev_b32 v{a}, 4, v{a}')
        I(f'v_lshl_add_u32 v{a}, v{b}, 8, v{a}')
        I(f's_lshl_b32 s{sTmp}, s{sw}, 12')
        I(f'v_add_u32 v{vF}, s{sTmp}, v{a}')
        for i in range(1, 4): I(f'v_xor_b32 v{vF+i}, {64*i}, v{vF}')
        for i in range(4):
            I(f'v_add_u32 v{vG+i}, 65536, v{vF+i}')
            I(f'v_add_u32 v{vH+i}, 131072, v{vF+i}')
        I(f's_mov_b32 s{sNL}, {NLOG2E:#x}'); I(f's_mov_b32 s{sNL+1}, {NLOG2E:#x}')
        I(f's_mov_b32 s{sOne}, 1.0'); I(f's_mov_b32 s{sOne+1}, 1.0')

    def setup_epi_addr():
        I(f'v_lshrrev_b32 v{b}, 4, v{vL}')
        I(f'v_and_b32 v{c}, 15, v{vL}')
        I(f'v_lshlrev_b32 v{vOo}, 11, v{b}')
        I(f'v_lshl_add_u32 v{vOo}, v{c}, 4, v{vOo}')
        I(f'v_lshlrev_b32 v{vXo}, 10, v{b}')
        I(f'v_lshl_add_u32 v{vXo}, v{c}, 3, v{vXo}')
        I(f'v_lshlrev_b32 v{vSo}, 3, v{b}')
        I(f'v_lshlrev_b32 v{vDo}, 3, v{c}')
        I(f's_lshl_b32 s{sTmp}, s{sTT}, 6')
        I(f's_lshr_b32 s{sTmp2}, s{sw}, 1')
        I(f's_lshl_b32 s{sTmp2}, s{sTmp2}, 5')
        I(f's_add_u32 s{sTmp}, s{sTmp}, s{sTmp2}')
        I(f's_and_b32 s{sTmp2}, s{sw}, 1')
        I(f's_lshl_b32 s{sTmp2}, s{sTmp2}, 3')
        I(f's_add_u32 s{sTmp}, s{sTmp}, s{sTmp2}')
        toff = [0, 16, 4, 20]
        I(f's_lshl_b32 s{sOne}, s{sDT}, 8')
        for i in range(4):
            I(f's_add_u32 s{sTmp2}, s{sTmp}, {toff[i]}')
            I(f's_lshl_b32 s{sTokO+i}, s{sTmp2}, 11')
            I(f's_add_u32 s{sTokO+i}, s{sTokO+i}, s{sOne}')
            I(f's_lshr_b32 s{sTokX+i}, s{sTokO+i}, 1')
            I(f's_lshl_b32 s{sTokS+i}, s{sTmp2}, 3')
            I(f's_add_u32 s{sTokS+i}, s{sTokS+i}, {WS_STATS}')

    e.force_wait('lgkmcnt(0)')
    I(f's_cmp_eq_u32 s{sw}, 2'); e.raw(f's_cbranch_scc1 {prefix}_role2')
    I(f's_cmp_eq_u32 s{sw}, 3'); e.raw(f's_cbranch_scc1 {prefix}_role3')

    def pre_epilogue_ops():
        ops = []
        ops.append(f'v_lshlrev_b32 v{vDf}, 16, v{vDk}')
        ops.append(f'v_and_b32 v{vDf+1}, 0xffff0000, v{vDk}')
        ops.append(f'v_lshlrev_b32 v{vDf+2}, 16, v{vDk+1}')
        ops.append(f'v_and_b32 v{vDf+3}, 0xffff0000, v{vDk+1}')
        for i in range(4):
            m = vS + 2 * i; rs = m + 1
            x0 = vX + 2 * i
            xf = vXf + 4 * i
            ops.append(f'v_lshlrev_b32 v{rs}, 16, v{m}')
            ops.append(f'v_rcp_f32 v{rs}, v{rs}')
            ops.append(f'v_and_b32 v{m}, 0xffff0000, v{m}')
            ops.append(f'v_lshlrev_b32 v{xf}, 16, v{x0}')
            ops.append(f'v_and_b32 v{xf+1}, 0xffff0000, v{x0}')
            ops.append(f'v_lshlrev_b32 v{xf+2}, 16, v{x0+1}')
            ops.append(f'v_and_b32 v{xf+3}, 0xffff0000, v{x0+1}')
            for j in range(4):
                y = vYi + 4 * i + j
                ops.append(f'v_sub_f32 v{y}, v{xf+j}, v{m}')
            for j in range(4):
                y = vYi + 4 * i + j
                ops.append(f'v_mul_f32 v{y}, v{y}, v{rs}')
            for j in range(4):
                y = vYi + 4 * i + j
                ops.append(f'v_mul_f32 v{y}, v{y}, v{vDf+j}')
        return ops

    def role(types, last=False):
        n = len(types)
        def issueB(q):
            S = (q % NB) * 32
            ops = []
            for s_ in range(4):
                for t in range(2):
                    r = S + 8 * s_ + 4 * t
                    ops.append((f'buffer_load_dwordx4 a[{r}:{r+3}], v{vB0 + t}, s[{sWS}:{sWS+3}], s{sBoff} offen offset:{1024*s_}', f'B{q}'))
            return ops
        def issueW(q):
            ty, Y = types[q]
            slot = q % 4
            ops = []
            for half in range(2):
                for i in range(4):
                    pre = []
                    if i == 0:
                        pre.append(f's_add_u32 m0, s{sM0}, {slot*8192 + half*4096}')
                        if ty == 'o':
                            pre.append(f's_add_u32 s{sTmp}, s{sRow}, {q*65536 + half*32768}')
                        else:
                            pre.append(f's_add_u32 s{sTmp}, s{sCrow}, {(Y >> 1)*128 + half*32768}')
                    if ty == 'o':
                        ins = f'buffer_load_dwordx4 v{vW+i}, s[{sW2}:{sW2+3}], s{sTmp} offen offset:{1024*i} lds'
                    else:
                        sr = sCim if (Y & 1) else sCre
                        ins = f'buffer_load_dwordx4 v{vC+i}, s[{sr}:{sr+3}], s{sTmp} offen offset:{1024*i} lds'
                    ops.append((pre, ins, f'W{q}'))
            return ops
        def group(q, wfirst=False):
            g = []; gb = []; gw = []
            bops = issueB(q)
            for k, (ins, tag) in enumerate(bops):
                def f(ins=ins, tag=tag, k=k):
                    I(ins, tag)
                    if k == 7: I(f's_add_u32 s{sBoff}, s{sBoff}, 4096')
                gb.append(f)
            wops = issueW(q)
            for k, (pre, ins, tag) in enumerate(wops):
                def f(pre=pre, ins=ins, tag=tag, k=k):
                    for p in pre: I(p)
                    I(ins, tag)
                gw.append(f)
            if noB: gb = []
            if noW: gw = []
            return gw + gb if wfirst else gb + gw
        def readA(q, s_, buf):
            ty, Y = types[q]
            slot = q % 4
            ops = []
            for ee in range(2):
                r = AF + 8 * buf + 4 * ee
                if ty == 'o':
                    va = vA0 if ee == 0 else vA1
                    ops.append(f'ds_read_b64_tr_b16 v[{r}:{r+1}], v{va} offset:{slot*8192 + s_*2048}')
                    ops.append(f'ds_read_b64_tr_b16 v[{r+2}:{r+3}], v{va} offset:{slot*8192 + s_*2048 + 1024}')
                else:
                    ops.append(f'ds_read_b128 v[{r}:{r+3}], v{vY+s_} offset:{slot*8192 + ee*4096}')
            return ops
        def write_partial(vbase):
            for ee in range(2):
                for A in range(4):
                    k = (8 * ee + 2 * A) * 16
                    t_ = vT2 + (A & 1)
                    I(f'v_xor_b32 v{t_}, {k}, v{vbase}')
                    for t in range(2):
                        b_ = ACC + 16 * (2 * ee + t) + 4 * A
                        I(f'ds_write_b128 v{t_}, v[{b_}:{b_+3}] offset:{t*8192}')
        for q in range(D):
            for f in group(q, wfirst=(q == 0)): f()
        setup_epi_addr()
        for i in range(4):
            I(f'buffer_load_dwordx2 v[{vX+2*i}:{vX+2*i+1}], v{vXo}, s[{sX}:{sX+3}], s{sTokX+i} offen')
        for i in range(4):
            I(f'buffer_load_dwordx2 v[{vS+2*i}:{vS+2*i+1}], v{vSo}, s[{sWS}:{sWS+3}], s{sTokS+i} offen')
        I(f'buffer_load_dwordx2 v[{vDk}:{vDk+1}], v{vDo}, s[{sDk}:{sDk+3}], s{sK} offen')
        setup_late()
        e.wait_tag('W0')
        stamp(1)
        for x in readA(0, 0, 0): I(x)
        buf = 0
        fresh = True
        for q in range(n):
            ty, Y = types[q]
            fill = group(q + D) if q + D < n else []
            extra = pre_epilogue_ops() if q == 4 else []
            fi = 0
            for s_ in range(4):
                if s_ < 3: aops = readA(q, s_ + 1, buf ^ 1); needw = None
                elif q + 1 < n: aops = readA(q + 1, 0, buf ^ 1); needw = f'W{q+1}'
                else: aops = []; needw = None
                switch = (s_ == 3 and q + 1 < n and types[q+1][0] != ty)
                k = 0
                for ee in range(2):
                    for t in range(2):
                        r = AF + 8 * buf + 4 * ee
                        br = (q % NB) * 32 + 8 * s_ + 4 * t
                        cs = '0' if (fresh and s_ == 0) else acc(ee, t)
                        if not nomfma: I(f'v_mfma_f32_32x32x16_bf16 {acc(ee,t)}, v[{r}:{r+3}], a[{br}:{br+3}], {cs}')
                        else: I(f'v_accvgpr_read_b32 v{vT2+8}, a{br}')
                        if k == 0 and needw: e.wait_tag(needw)
                        if len(aops) == 4: I(aops[k])
                        elif len(aops) == 2 and k < 2: I(aops[k])
                        if fi < len(fill): fill[fi](); fi += 1
                        for _ in range(4):
                            if extra: I(extra.pop(0))
                        k += 1
                fresh = False
                buf ^= 1
                if switch:
                    I(f'v_add_u32 v{vT}, {131072}, v{vR}')
                    write_partial(vT)
                    fresh = True
            while fi < len(fill): fill[fi](); fi += 1
            while extra: I(extra.pop(0))
        stamp(2)
        I(f'v_add_u32 v{vT}, s{sM0}, v{vR}')
        write_partial(vT)
        e.force_wait('lgkmcnt(0)')
        if not last: e.raw(f's_branch {prefix}_final')
        e.reset_hazards(); e.lgk = []; e.vm = []

    role([('o', None)] * 11)
    e.label(f'{prefix}_role2')
    role([('o', None)] * 6 + [('y', Y) for Y in range(5)])
    e.label(f'{prefix}_role3')
    role([('y', Y) for Y in range(5, 16)], last=True)
    e.label(f'{prefix}_final')
    e.raw('s_barrier')
    for i in range(4):
        I(f'ds_read_b128 v[{4*i}:{4*i+3}], v{vF+i} offset:{i*1024}')
        I(f'ds_read_b128 v[{16+4*i}:{16+4*i+3}], v{vF+i} offset:{32768+i*1024}')
        I(f'ds_read_b128 v[{32+4*i}:{32+4*i+3}], v{vH+i} offset:{i*1024}')
        I(f'ds_read_b128 v[{48+4*i}:{48+4*i+3}], v{vG+i} offset:{i*1024}')
        I(f'ds_read_b128 v[{vP4+4*i}:{vP4+4*i+3}], v{vG+i} offset:{32768+i*1024}')
    def pk(op, d, x, y, z=None):
        def o(r): return r if isinstance(r, str) else f'v[{r}:{r+1}]'
        if z is None: I(f'{op} v[{d}:{d+1}], {o(x)}, {o(y)}')
        else: I(f'{op} v[{d}:{d+1}], {o(x)}, {o(y)}, {o(z)}')
    for i in range(4):
        o0 = 4 * i; o1 = 16 + 4 * i; o2 = 32 + 4 * i; y0 = 48 + 4 * i; y1 = vP4 + 4 * i
        ex = vE + 4 * i
        for p in (0, 2): pk('v_pk_add_f32', o0 + p, o0 + p, o1 + p)
        for p in (0, 2): pk('v_pk_add_f32', o0 + p, o0 + p, o2 + p)
        for p in (0, 2): pk('v_pk_mul_f32', ex + p, o0 + p, f's[{sNL}:{sNL+1}]')
        for j in range(4): I(f'v_exp_f32 v{ex+j}, v{ex+j}')
        for p in (0, 2): pk('v_pk_add_f32', y0 + p, y0 + p, y1 + p)
        for p in (0, 2): pk('v_pk_add_f32', y0 + p, y0 + p, vYi + 4 * i + p)
        for p in (0, 2): pk('v_pk_add_f32', ex + p, ex + p, f's[{sOne}:{sOne+1}]')
        for j in range(4): I(f'v_rcp_f32 v{ex+j}, v{ex+j}')
        for p in (0, 2): pk('v_pk_mul_f32', y0 + p, y0 + p, o0 + p)
        for p in (0, 2): pk('v_pk_fma_f32', y0 + p, y0 + p, ex + p, vXf + 4 * i + p)
        I(f'buffer_store_dwordx4 v[{y0}:{y0+3}], v{vOo}, s[{sOut}:{sOut+3}], s{sTokO+i} offen {st_flags}'.strip())
    if ts:
        stamp(3)
        e.force_wait('lgkmcnt(0)')
        I(f's_lshl_b32 s{sTmp}, s2, 2'); I(f's_add_u32 s{sTmp}, s{sTmp}, s{sw}'); I(f's_lshl_b32 s{sTmp}, s{sTmp}, 4')
        I(f's_add_u32 s{sTmp}, s{sTmp}, {WS_TS + 0x20000}')
        for k in range(4): I(f'v_mov_b32 v{20+k}, s{sT0+2*k}')
        I(f'v_mov_b32 v24, 0')
        I(f'buffer_store_dwordx4 v[20:23], v24, s[{sWS}:{sWS+3}], s{sTmp} offen')
    e.label(f'{prefix}_done')
    e.raw('s_endpgm')
    return e

if __name__ == '__main__':
    e = gen_p2()
    print(e.text())
```

```python
import sys
sys.path.insert(0, 'gen'); sys.path.insert(0, 'exp')
from build import assemble, KN
import p1, p2
out = sys.argv[1] if len(sys.argv) > 1 else 'recurrent_scan__ssm_conv_s5__glu_gated_swiglu__prompt.s'
e1 = p1.gen_p1(); e2 = p2.gen_p2()
s = assemble([(KN, e1.text(), 256, 256, 163840, 512, 256), ('p2_kernel', e2.text(), 256, 256, 147456, 512, 256)])
open(out, 'w').write(s)
print(len(s))
```

```python
from em import Em
from collections import deque
WS_STATS = 12 << 20
WS_CS = (12 << 20) + (64 << 10)
WS_E = 13 << 20
WS_TS = 14 << 20
WS_SIZE = 16 << 20
TSTRIDE = 176 * 1024
SLOT = 36864
HALF = 2 * SLOT
MISC = 4 * SLOT
L_WAUG = MISC
L_RS = MISC + 2304
L_TOTZ = MISC + 2816
L_TAB = MISC + 5504
L_NONCE = MISC + 11648
L_END = MISC + 11664
OOB = 0x40000000
LOG2E = 0x3fb8aa3b
NLOG2E = 0xbfb8aa3b
INV2PI = 0x3e22f983
SPIN = 20000

sX, sWA, sSB, sWS, sWC, sDBG = 8, 12, 16, 20, 24, 28
sw, sR, sC, sRho, sNonce, sW4, sWS1, sT0, sT1 = 32, 33, 34, 35, 36, 37, 38, 39, 40
sXo, sF1o, sF2o, sSo, sKa, sKb, sKc, sTmp, sTmp2, sTmp3 = 41, 42, 43, 44, 45, 46, 47, 48, 49, 50
sTg0, sTg1, sO1a, sO1b, sO2a, sO2b = 51, 52, 53, 54, 55, 56
sCG0, sCGx, sTp, sCp, sSpin, sW2k = 57, 58, 59, 60, 61, 62
sKA = 64
sMhi = 88
sModd = 90
sBad = 92
sMsel = 94
sTS = 96
sLre, sLim, sLdt = 66, 68, 78

STAMPS = [98, 4, 74, 76, 70, 72, 80, 82, 84, 86]
ACC1 = 0; ACC2 = 80; WF = 144
vXA, vXB, vSS, vSC = 168, 172, 176, 180
vP0, vP1, vFB = 184, 185, 186
vDX, vDF, vDS, vDP = 188, 192, 196, 199
vL = 201
vXaug = 202
vNRS = 210; vK2 = 212
vHB = 214
vT = 215
vTSV, vTSA = 219, 187
vTA = 196
vWa = 198

def cost(txt):
    mn = txt.split()[0]
    if mn in ('v_exp_f32','v_log_f32','v_rcp_f32','v_rsq_f32','v_sqrt_f32','v_sin_f32','v_cos_f32'): return 8
    if mn.startswith('v_'): return 4
    if mn.startswith('ds_'): return 4
    if mn.startswith('buffer_') or mn.startswith('global_'): return 6
    return 2

class Gen:
    def __init__(s, typ, e, ts=False, cfg=None):
        s.typ = typ; s.e = e; s.ts = ts
        s.cfg = dict(gather_stage=5, check_stage=7, budget1=16, budget2=22, pf2=3)
        if cfg: s.cfg.update(cfg)
        s.fill = deque(); s.events = set(); s.half = {}
        s.slow = []
        s.nlab = 0
        s.P = f'P1{typ}'
    def I(s, t, tag=None): s.e.I(t, tag)
    def lab(s, n):
        s.nlab += 1; return f'{s.P}_{n}{s.nlab}'
    def stamp(s, name):
        if not s.ts: return
        names = s.cfg.get('stamps', ['X', 'B0', 'p1end', 'p2end', 'end'])
        if name not in names: return
        k = names.index(name) + 1
        r = STAMPS[k]
        s.e.raw(f'{s.ts} s[{r}:{r+1}]')
        s.nstamp = max(getattr(s, 'nstamp', 0), k)
    def flush_stamps(s):
        if not s.ts: return
        s.e.force_wait('lgkmcnt(0)')
        for k in range(s.nstamp + 1):
            s.I(f'v_mov_b32 v{vTSV}, s{STAMPS[k]}')
            s.I(f'buffer_store_dword v{vTSV}, v{vTSA}, s[{sWS}:{sWS+3}], 0 offen offset:{4*k}')
    def add(s, items):
        for x in items: s.fill.append(x)
    def run_fill(s, budget):
        while s.fill and budget > 0:
            x = s.fill[0]
            if isinstance(x, tuple) and x[0] == 'gate':
                if x[1] in s.events: s.fill.popleft(); continue
                return
            s.fill.popleft()
            if callable(x): budget -= x() or 4
            elif isinstance(x, tuple): s.I(x[0], x[1]); budget -= cost(x[0])
            else: s.I(x); budget -= cost(x)
    def atom(s, lst):
        def f():
            c = 0
            for x in lst: s.I(x); c += cost(x)
            return c
        return f
    def drain(s):
        while s.fill:
            x = s.fill[0]
            if isinstance(x, tuple) and x[0] == 'gate':
                assert x[1] in s.events, x
            s.run_fill(10**9)
    def addr(s, reg, slot):
        h = slot >> 1
        if s.half.get(reg, 0) != h:
            s.I(f'v_add_u32 v{reg}, {HALF}, v{reg}' if h else f'v_subrev_u32 v{reg}, {HALF}, v{reg}')
            s.half[reg] = h
        return (slot & 1) * SLOT
    def rd_x(s, st, ks, t):
        reg = (vXA if t == 0 else vXB) + ks
        a = ((4 * st + ks) * 2 + t) * 4
        def f():
            o = s.addr(reg, st & 3)
            s.I(f'ds_read_b128 a[{a}:{a+3}], v{reg} offset:{o}')
        return [f]
    def rd_b128(s, dst, reg, slot, off):
        def f():
            o = s.addr(reg, slot)
            s.I(f'ds_read_b128 v[{dst}:{dst+3}], v{reg} offset:{o+off}')
        return [f]
    def rd_tr(s, dst, reg, slot, off, second):
        def f1():
            o = s.addr(reg, slot)
            s.I(f'ds_read_b64_tr_b16 v[{dst}:{dst+1}], v{reg} offset:{o+off}')
        def f2():
            o = s.addr(reg, slot)
            s.I(f'ds_read_b64_tr_b16 v[{dst+2}:{dst+3}], v{reg} offset:{o+off+second}')
        return [f1, f2]
    def rd_w1(s, role, st, ks, dst):
        slot = st & 3
        if s.typ == 'A':
            if role == 'ex': return s.rd_b128(dst, vSS + ks, slot, 0)
            return s.rd_tr(dst, vP0 if role == 'c0' else vP1, slot, 16384 + 2048 * ks, 512)
        else:
            if role == 'c0': return s.rd_b128(dst, vSC + ks, slot, 16384)
            if role == 'ex': return s.rd_b128(dst, vSS + ks, slot, 16384 + 2048)
            return s.rd_tr(dst, vFB, slot, 1024 * ks, 256)
    def is_S(s, role):
        return role == 'ex' or (s.typ == 'B' and role == 'c0')
    def dma_list(s, st):
        ops = []
        slot = (st & 3) * SLOT
        tag = f'D{st}'
        def kst(k, dst):
            return [f's_add_u32 s{dst}, s{sRho}, {k}', f's_and_b32 s{dst}, s{dst}, 7']
        if st < 8:
            pre = kst(st, sKa) + [f's_lshl_b32 s{sKb}, s{sKa}, 7', f's_add_u32 s{sKc}, s{sXo}, s{sKb}', f's_add_u32 m0, s{sW4}, {slot}']
            for A in range(4):
                ops.append(((pre if A == 0 else []), f'buffer_load_dwordx4 v{vDX+A}, s[{sX}:{sX+3}], s{sKc} offen offset:{1024*A} lds'))
            if s.typ == 'A':
                pre = [f's_mul_i32 s{sKc}, s{sKa}, {64*3584}', f's_add_u32 s{sKc}, s{sKc}, s{sF1o}', f's_add_u32 m0, s{sW4}, {slot+16384}']
                for i in range(4):
                    ops.append(((pre if i == 0 else []), f'buffer_load_dwordx4 v{vDF+i}, s[{sWA}:{sWA+3}], s{sKc} offen offset:{1024*i} lds'))
                pre = [f's_add_u32 s{sKc}, s{sSo}, s{sKb}', f's_add_u32 m0, s{sWS1}, {slot+32768}']
                ops.append((pre, f'buffer_load_dwordx4 v{vDS}, s[{sSB}:{sSB+3}], s{sKc} offen lds'))
            else:
                pre = [f's_add_u32 s{sKc}, s{sSo}, s{sKb}', f's_add_u32 m0, s{sWS1}, {slot+16384}']
                for i in range(3):
                    ops.append(((pre if i == 0 else []), f'buffer_load_dwordx4 v{vDS+i}, s[{sSB}:{sSB+3}], s{sKc} offen offset:{1024*i} lds'))
                pre = [f's_mul_i32 s{sKc}, s{sKa}, {64*3584}', f's_add_u32 s{sKc}, s{sKc}, s{sF1o}', f's_add_u32 m0, s{sW2k}, {slot+28672}']
                for i in range(2):
                    ops.append(((pre if i == 0 else []), f'buffer_load_dwordx4 v{vDP+i}, s[{sWA}:{sWA+3}], s{sKc} offen offset:{1024*i} lds'))
        else:
            for jj in range(2):
                j = 2 * (st - 8) + jj
                pre = kst(j, sKa) + [f's_mul_i32 s{sKc}, s{sKa}, {64*3584}', f's_add_u32 s{sKc}, s{sKc}, s{sF2o}', f's_add_u32 m0, s{sW4}, {slot+16384*jj}']
                for i in range(4):
                    ops.append(((pre if i == 0 else []), f'buffer_load_dwordx4 v{vDF+i}, s[{sWA}:{sWA+3}], s{sKc} offen offset:{1024*i} lds'))
        out = []
        for pre, ins in ops:
            def f(pre=pre, ins=ins):
                for p in pre: s.I(p)
                s.I(ins, tag)
            out.append(f)
        return out
    def barrier(s, name, wait_tag=None):
        e = s.e
        if wait_tag: e.wait_tag(wait_tag)
        e.barrier()
        s.events.add(name)

    def prologue(s):
        e = s.e; I = s.I; typ = s.typ
        a, b, c, d = vT, vT + 1, vT + 2, vT + 3
        s.stamp('karg')
        I(f's_lshr_b32 s{sTmp}, s{sw}, 1'); I(f's_cmp_eq_u32 s{sTmp}, 0')
        I(f's_cselect_b64 s[{sWA}:{sWA+1}], s[80:81], s[82:83]')
        I(f's_cselect_b64 s[{sSB}:{sSB+1}], s[70:71], s[72:73]')
        I(f's_mov_b64 s[{sWC}:{sWC+1}], s[{sWA}:{sWA+1}]')
        I(f's_mov_b64 s[{sX}:{sX+1}], s[64:65]')
        I(f's_mov_b64 s[{sDBG}:{sDBG+1}], s[84:85]')
        I(f's_mov_b64 s[{sWS}:{sWS+1}], s[86:87]')
        I(f's_lshl_b32 s{sXo}, s{sR}, 2'); I(f's_add_u32 s{sXo}, s{sXo}, s{sw}'); I(f's_lshl_b32 s{sXo}, s{sXo}, 15')
        I(f's_and_b32 s{sTmp}, s{sw}, 1'); I(f's_mul_i32 s{sTmp}, s{sTmp}, {32*3584}')
        if typ == 'A':
            I(f's_lshl_b32 s{sTmp2}, s{sC}, 8')
            I(f's_add_u32 s{sF1o}, s{sTmp}, s{sTmp2}'); I(f's_add_u32 s{sF2o}, s{sF1o}, 128')
            I(f's_mov_b32 s{sCG0}, s{sC}'); I(f's_mov_b32 s{sCGx}, s{sC}')
            I(f's_lshl_b32 s{sSo}, s{sC}, 14')
        else:
            I(f's_sub_u32 s{sTmp3}, s{sC}, 8')
            I(f's_lshl_b32 s{sTmp2}, s{sTmp3}, 6'); I(f's_add_u32 s{sTmp2}, s{sTmp2}, {96*32}')
            I(f's_add_u32 s{sF1o}, s{sTmp}, s{sTmp2}')
            I(f's_lshl_b32 s{sTmp2}, s{sTmp3}, 7'); I(f's_add_u32 s{sTmp2}, s{sTmp2}, {16*128}')
            I(f's_add_u32 s{sF2o}, s{sTmp}, s{sTmp2}')
            I(f's_mul_i32 s{sCG0}, s{sTmp3}, 3'); I(f's_add_u32 s{sCG0}, s{sCG0}, 8')
            I(f's_lshl_b32 s{sSo}, s{sCG0}, 14')
            I(f's_add_u32 s{sCGx}, s{sCG0}, 2')
        I(f's_lshl_b32 s{sW4}, s{sw}, 12')
        if typ == 'A': I(f's_lshl_b32 s{sWS1}, s{sw}, 10')
        else: I(f's_mul_i32 s{sWS1}, s{sw}, 3072')
        I(f's_lshl_b32 s{sW2k}, s{sw}, 11')
        I(f's_or_b32 s{sTmp}, s{sTS}, 1')
        I(f's_or_b32 s{sTmp2}, s2, s{sw}'); I(f's_cmp_eq_u32 s{sTmp2}, 0'); I(f's_cselect_b32 s{sTmp2}, 0, {OOB}')
        I(f'v_mov_b32 v{a}, s{sTmp}'); I(f'v_lshlrev_b32 v{b}, 2, v{vL}'); I(f'v_lshlrev_b32 v{b}, 8, v{b}'); I(f'v_add_u32 v{b}, s{sTmp2}, v{b}')
        I(f'buffer_store_dword v{a}, v{b}, s[{sDBG}:{sDBG+3}], 0 offen sc1')
        s.stamp('q0')
        for f in s.dma_list(0): f()
        s.stamp('q1')
        I(f's_lshl_b32 s{sTmp}, s{sR}, 7'); I(f's_lshl_b32 s{sTmp2}, s{sC}, 3'); I(f's_add_u32 s{sTmp}, s{sTmp}, s{sTmp2}')
        I(f's_lshl_b32 s{sTmp2}, s{sw}, 1'); I(f's_add_u32 s{sTmp}, s{sTmp}, s{sTmp2}')
        I(f's_lshl_b32 s{sTmp3}, s{sTmp}, 3'); I(f's_add_u32 s{sTmp3}, s{sTmp3}, {WS_STATS}')
        I(f's_lshl_b32 s{sTmp}, s{sTmp}, 10')
        XR = 80
        I(f'buffer_load_dwordx4 v[{XR}:{XR+3}], v{vHB}, s[{sX}:{sX+3}], s{sTmp} offen', 'XR')
        I(f'buffer_load_dwordx4 v[{XR+4}:{XR+7}], v{vHB}, s[{sX}:{sX+3}], s{sTmp} offen offset:1024', 'XR')
        I(f's_mov_b32 s{sSpin}, s{sTmp3}')
        s.stamp('q2')
        ntile = 1 if typ == 'A' else 3
        PR = 88
        I(f'v_and_b32 v{a}, 15, v{vL}'); I(f'v_lshlrev_b32 v{a}, 1, v{a}')
        I(f's_lshl_b32 s{sTmp}, s{sCG0}, 5'); I(f'v_add_u32 v{a}, s{sTmp}, v{a}')
        for t in range(ntile):
            I(f'global_load_ushort v{PR+3*t}, v{a}, s[{sLre}:{sLre+1}] offset:{32*t}', 'PR')
            I(f'global_load_ushort v{PR+3*t+1}, v{a}, s[{sLim}:{sLim+1}] offset:{32*t}', 'PR')
            I(f'global_load_ushort v{PR+3*t+2}, v{a}, s[{sLdt}:{sLdt+1}] offset:{32*t}', 'PR')
        s.stamp('q3')
        vN = 100
        I(f's_cmp_eq_u32 s{sw}, 0'); I(f's_cselect_b32 s{sTmp}, 0, {OOB}'); I(f'v_mov_b32 v{vN+1}, s{sTmp}')
        I(f'buffer_load_dword v{vN}, v{vN+1}, s[{sDBG}:{sDBG+3}], 0 offen sc1', 'NP')
        s.stamp('q4')
        I(f's_and_b32 s{sTmp}, s{sR}, 1'); I(f's_cmp_eq_u32 s{sTmp}, 1'); I(f's_cselect_b32 s{sWC+2}, {512*1792*2}, 0')
        I(f's_mul_i32 s{sKc}, s{sRho}, {64*3584}'); I(f's_add_u32 s{sKc}, s{sKc}, s{sF2o}'); I(f's_add_u32 m0, s{sW4}, {3*SLOT}')
        for i in range(4):
            I(f'buffer_load_dwordx4 v{vDF+i}, s[{sWC}:{sWC+3}], s{sKc} offen offset:{1024*i} lds', 'CSC')
        s.stamp('q5')
        for f in s.dma_list(1): f()
        s.stamp('q6')
        for f in s.dma_list(2): f()
        s.stamp('issued')
        s.lds_addrs()
        s.tab(PR, ntile)
        s.stamp('tab')
        s.stats(XR)
        s.stamp('stats')
        e.wait_tag('NP')
        L1 = s.lab('np'); L2 = s.lab('npd')
        I(f's_cmp_lg_u32 s{sw}, 0'); e.raw(f's_cbranch_scc1 {L2}')
        I(f's_mov_b32 s{sTmp}, 0')
        I(f'v_readfirstlane_b32 s{sNonce}, v{vN}'); I(f's_cmp_lg_u32 s{sNonce}, 0'); e.raw(f's_cbranch_scc1 {L1}_ok')
        e.label(L1); e.reset_hazards()
        sv = (list(e.vm), list(e.lgk))
        I(f'buffer_load_dword v{vN}, v{vN+1}, s[{sDBG}:{sDBG+3}], 0 offen sc1'); e.force_wait('vmcnt(0)')
        I(f'v_readfirstlane_b32 s{sNonce}, v{vN}'); I(f's_add_u32 s{sTmp}, s{sTmp}, 1')
        I(f's_cmp_gt_u32 s{sTmp}, {SPIN}'); e.raw(f's_cbranch_scc1 {L1}_ok')
        I(f's_cmp_eq_u32 s{sNonce}, 0'); e.raw(f's_cbranch_scc1 {L1}')
        e.label(f'{L1}_ok'); e.reset_hazards()
        I(f'v_mov_b32 v{a}, s{sNonce}'); I(f'v_mov_b32 v{b}, {L_NONCE}'); I(f'ds_write_b32 v{b}, v{a}')
        e.force_wait('lgkmcnt(0)')
        e.label(L2); e.reset_hazards(); e.lgk = []
        e.vm = [p for p in sv[0]]
        s.stamp('preX')
        e.wait_tag('CSC')
        s.barrier('X')
        s.stamp('X')
        I(f'v_mov_b32 v{b}, {L_NONCE}'); I(f'ds_read_b32 v{a}, v{b}'); I(f'v_readfirstlane_b32 s{sNonce}, v{a}')
        SV = s.SV
        I(f'v_mov_b32 v{SV+1}, s{sNonce}')
        I(f'buffer_store_dwordx2 v[{SV}:{SV+1}], v{SV+2}, s[{sWS}:{sWS+3}], s{sSpin} offen sc1')
        s.cs_partial()
        s.barrier('B0')

    def lane_consts(s):
        I = s.I; a, b, c, d = vT, vT + 1, vT + 2, vT + 3
        I(f'v_lshlrev_b32 v{vHB}, 4, v{vL}')
        I(f'v_lshrrev_b32 v{a}, 5, v{vL}'); I(f'v_lshlrev_b32 v{a}, 4, v{a}'); I(f'v_bfe_u32 v{b}, v{vL}, 3, 2'); I(f'v_add_u32 v{a}, v{a}, v{b}'); I(f'v_lshlrev_b32 v{a}, 10, v{a}')
        I(f'v_and_b32 v{b}, 7, v{vL}'); I(f'v_lshrrev_b32 v{c}, 4, v{vL}'); I(f'v_xor_b32 v{d}, v{b}, v{c}')
        I(f'v_lshl_add_u32 v{vDX}, v{d}, 4, v{a}')
        I(f'v_xor_b32 v{vDX+1}, 64, v{vDX}'); I(f'v_add_u32 v{vDX+1}, 3072, v{vDX+1}')
        I(f'v_add_u32 v{vDX+2}, 6144, v{vDX}'); I(f'v_add_u32 v{vDX+3}, 6144, v{vDX+1}')
    def wave_consts(s):
        I = s.I; typ = s.typ; a, b, c, d = vT, vT + 1, vT + 2, vT + 3
        I(f's_lshr_b32 s{sTmp}, s{sw}, 1'); I(f's_lshl_b32 s{sTmp2}, s{sTmp}, 1')
        I(f'v_bfe_u32 v{a}, v{vL}, 1, 2'); I(f'v_bfe_u32 v{b}, v{vL}, 4, 1'); I(f'v_or_b32 v{b}, s{sTmp2}, v{b}'); I(f'v_xor_b32 v{a}, v{a}, v{b}')
        I(f'v_lshlrev_b32 v{a}, 5, v{a}'); I(f'v_and_b32 v{b}, 1, v{vL}'); I(f'v_lshl_add_u32 v{a}, v{b}, 4, v{a}')
        I(f'v_lshrrev_b32 v{b}, 3, v{vL}'); I(f'v_mul_u32_u24 v{b}, 3584, v{b}'); I(f'v_add_u32 v{vDF}, v{a}, v{b}')
        for i in range(1, 4): I(f'v_add_u32 v{vDF+i}, {27648*i}, v{vDF}')
        I(f's_and_b32 s{sTmp2}, s{sw}, 1'); I(f's_lshl_b32 s{sTmp3}, s{sTmp2}, 2')
        I(f'v_lshrrev_b32 v{a}, 4, v{vL}'); I(f'v_add_u32 v{a}, s{sTmp3}, v{a}'); I(f'v_and_b32 v{b}, 7, v{vL}'); I(f'v_xor_b32 v{a}, v{a}, v{b}')
        I(f'v_lshlrev_b32 v{a}, 4, v{a}'); I(f'v_lshrrev_b32 v{b}, 3, v{vL}'); I(f'v_lshl_add_u32 v{a}, v{b}, 10, v{a}')
        I(f's_lshl_b32 s{sTmp3}, s{sTmp2}, 13'); I(f'v_add_u32 v{vDS}, s{sTmp3}, v{a}')
        if typ == 'B':
            I(f'v_add_u32 v{vDS+1}, {16384-1024}, v{vDS}'); I(f'v_add_u32 v{vDS+2}, {2*(16384-1024)}, v{vDS}')
            I(f'v_bfe_u32 v{a}, v{vL}, 1, 1'); I(f'v_xor_b32 v{a}, s{sTmp}, v{a}'); I(f'v_lshlrev_b32 v{a}, 5, v{a}')
            I(f'v_and_b32 v{b}, 1, v{vL}'); I(f'v_lshl_add_u32 v{a}, v{b}, 4, v{a}')
            I(f'v_lshrrev_b32 v{b}, 2, v{vL}'); I(f'v_mul_u32_u24 v{b}, 3584, v{b}'); I(f'v_add_u32 v{vDP}, v{a}, v{b}')
            I(f'v_add_u32 v{vDP+1}, {16*3584-1024}, v{vDP}')

    def lds_addrs(s):
        I = s.I; typ = s.typ; a, b, c, d = vT, vT + 1, vT + 2, vT + 3
        I(f's_and_b32 s{sTp}, s{sw}, 1'); I(f's_lshr_b32 s{sCp}, s{sw}, 1')
        I(f's_lshl_b32 s{sT0}, s{sTp}, 1'); I(f's_add_u32 s{sT0}, s{sT0}, s{sCp}'); I(f's_xor_b32 s{sT1}, s{sT0}, 1')
        I(f'v_and_b32 v{a}, 31, v{vL}'); I(f'v_bfe_u32 v{b}, v{vL}, 1, 3'); I(f'v_lshrrev_b32 v{c}, 5, v{vL}'); I(f'v_xor_b32 v{b}, v{b}, v{c}')
        I(f'v_lshlrev_b32 v{b}, 4, v{b}')
        I(f'v_lshl_add_u32 v{d}, v{a}, 7, v{b}')
        I(f's_lshl_b32 s{sTmp}, s{sT0}, 12')
        I(f'v_add_u32 v{vXA}, s{sTmp}, v{d}')
        for k in range(1, 4): I(f'v_xor_b32 v{vXA+k}, {32*k}, v{vXA}')
        for k in range(4): I(f'v_xor_b32 v{vXB+k}, 4096, v{vXA+k}')
        if typ == 'A':
            I(f'v_add_u32 v{vSS}, 32768, v{d}')
        else:
            I(f'v_lshrrev_b32 v{c}, 3, v{a}'); I(f'v_mul_u32_u24 v{c}, 3072, v{c}'); I(f'v_and_b32 v{d}, 7, v{a}'); I(f'v_lshl_add_u32 v{c}, v{d}, 7, v{c}')
            I(f'v_add_u32 v{vSS}, v{c}, v{b}')
        for k in range(1, 4): I(f'v_xor_b32 v{vSS+k}, {32*k}, v{vSS}')
        if typ == 'B':
            I(f's_lshl_b32 s{sTmp}, s{sCp}, 10')
            for k in range(4): I(f'v_add_u32 v{vSC+k}, s{sTmp}, v{vSS+k}')
        I(f'v_bfe_u32 v{a}, v{vL}, 4, 1')
        I(f'v_lshrrev_b32 v{b}, 5, v{vL}')
        I(f'v_bfe_u32 v{c}, v{vL}, 2, 2')
        I(f'v_lshl_add_u32 v{b}, v{b}, 3, v{c}')
        I(f'v_and_b32 v{d}, 3, v{vL}'); I(f'v_lshlrev_b32 v{d}, 3, v{d}')
        if typ == 'B':
            I(f'v_lshl_add_u32 v{vFB}, v{b}, 6, v{d}'); I(f'v_lshl_add_u32 v{vFB}, v{a}, 12, v{vFB}')
            I(f'v_xor_b32 v{vP1}, s{sCp}, v{a}'); I(f'v_lshl_add_u32 v{vFB}, v{vP1}, 5, v{vFB}'); I(f'v_add_u32 v{vFB}, 28672, v{vFB}')
        I(f'v_lshl_add_u32 v{d}, v{b}, 7, v{d}'); I(f'v_lshl_add_u32 v{d}, v{a}, 13, v{d}')
        I(f'v_lshrrev_b32 v{c}, 1, v{c}'); I(f'v_lshl_add_u32 v{c}, v{a}, 1, v{c}')
        I(f's_lshl_b32 s{sTmp}, s{sCp}, 1'); I(f'v_xor_b32 v{c}, s{sTmp}, v{c}')
        I(f'v_lshl_add_u32 v{vP0}, v{c}, 5, v{d}'); I(f'v_xor_b32 v{vP1}, 32, v{vP0}')
        I(f's_mov_b32 s{sMhi}, 0'); I(f's_mov_b32 s{sMhi+1}, -1')
        I(f's_mov_b32 s{sModd}, 0xffff0000'); I(f's_mov_b32 s{sModd+1}, 0xffff0000')
        I(f's_lshl_b32 s{sTmp}, s{sR}, 2')
        I(f's_add_u32 s{sTg0}, s{sTmp}, s{sT0}'); I(f's_mul_i32 s{sTg0}, s{sTg0}, {TSTRIDE}')
        I(f's_add_u32 s{sTg1}, s{sTmp}, s{sT1}'); I(f's_mul_i32 s{sTg1}, s{sTg1}, {TSTRIDE}')
        if typ == 'A':
            I(f's_lshl_b32 s{sTmp}, s{sC}, 13'); I(f's_lshl_b32 s{sTmp2}, s{sCp}, 11'); I(f's_add_u32 s{sTmp}, s{sTmp}, s{sTmp2}')
            I(f's_add_u32 s{sO1a}, s{sTg0}, s{sTmp}'); I(f's_add_u32 s{sO1b}, s{sTg1}, s{sTmp}')
            I(f's_add_u32 s{sO2a}, s{sO1a}, 4096'); I(f's_add_u32 s{sO2b}, s{sO1b}, 4096')
        else:
            I(f's_sub_u32 s{sTmp3}, s{sC}, 8')
            I(f's_lshl_b32 s{sTmp}, s{sTmp3}, 1'); I(f's_add_u32 s{sTmp}, s{sTmp}, s{sCp}'); I(f's_add_u32 s{sTmp}, s{sTmp}, 96'); I(f's_lshl_b32 s{sTmp}, s{sTmp}, 10')
            I(f's_add_u32 s{sO1a}, s{sTg0}, s{sTmp}'); I(f's_add_u32 s{sO1b}, s{sTg1}, s{sTmp}')
            I(f's_lshl_b32 s{sTmp}, s{sTmp3}, 2'); I(f's_lshl_b32 s{sTmp2}, s{sCp}, 1'); I(f's_add_u32 s{sTmp}, s{sTmp}, s{sTmp2}'); I(f's_add_u32 s{sTmp}, s{sTmp}, 64'); I(f's_lshl_b32 s{sTmp}, s{sTmp}, 10')
            I(f's_add_u32 s{sO2a}, s{sTg0}, s{sTmp}'); I(f's_add_u32 s{sO2b}, s{sTg1}, s{sTmp}')
        z = 104
        for k in range(4): I(f'v_mov_b32 v{z+k}, 0')
        I(f'v_add_u32 v{a}, {L_TOTZ}, v{vHB}'); I(f'ds_write_b128 v{a}, v[{z}:{z+3}]')
        I(f'ds_write_b128 v{a}, v[{z}:{z+3}] offset:128')

    def tab(s, PR, ntile):
        I = s.I; e = s.e
        n, u, v_, lr, li, t0, t1, t2, t3 = range(108, 117)
        I(f'v_lshrrev_b32 v{t0}, 4, v{vL}')
        I(f's_lshl_b32 s{sTmp}, s{sw}, 1'); I(f's_lshl_b32 s{sTmp}, 8, s{sTmp}')
        I(f'v_mul_u32_u24 v{n}, s{sTmp}, v{t0}')
        I(f'v_cmp_eq_u32 vcc, 1, v{t0}'); I(f'v_mov_b32 v{t1}, 1'); I(f'v_mov_b32 v{t2}, 0x200'); I(f'v_cndmask_b32 v{t1}, v{t1}, v{t2}, vcc')
        I(f's_cmp_eq_u32 s{sw}, 3'); I(f's_cselect_b64 s[{sMsel}:{sMsel+1}], -1, 0')
        I(f'v_cndmask_b32 v{n}, v{n}, v{t1}, s[{sMsel}:{sMsel+1}]'); I(f'v_cvt_f32_u32 v{n}, v{n}')
        I(f's_cselect_b32 s{sMsel+1}, 0xffff, 0'); I(f's_mov_b32 s{sMsel}, 0')
        wa = 117
        I(f's_lshl_b32 s{sTmp}, s{sw}, 9'); I(f's_add_u32 s{sTmp}, s{sTmp}, {L_TAB}')
        I(f'v_lshlrev_b32 v{wa}, 3, v{vL}'); I(f'v_add_u32 v{wa}, s{sTmp}, v{wa}')
        I(f's_mov_b32 s{sTmp}, {LOG2E:#x}'); I(f's_mov_b32 s{sTmp2}, {INV2PI:#x}')
        for t in range(ntile):
            p = PR + 3 * t
            I(f'v_lshlrev_b32 v{lr}, 16, v{p}'); I(f'v_lshlrev_b32 v{li}, 16, v{p+1}'); I(f'v_lshlrev_b32 v{t0}, 16, v{p+2}')
            I(f'v_mul_f32 v{t0}, s{sTmp}, v{t0}'); I(f'v_exp_f32 v{t0}, v{t0}')
            I(f'v_cvt_pk_bf16_f32 v{t0}, v{t0}, v{t0}'); I(f'v_lshlrev_b32 v{t0}, 16, v{t0}')
            I(f'v_mul_f32 v{u}, v{t0}, v{lr}'); I(f'v_mul_f32 v{v_}, v{t0}, v{li}')
            I(f'v_mul_f32 v{u}, s{sTmp}, v{u}'); I(f'v_mul_f32 v{v_}, s{sTmp2}, v{v_}')
            I(f'v_mul_f32 v{u}, v{n}, v{u}'); I(f'v_mul_f32 v{v_}, v{n}, v{v_}')
            I(f'v_exp_f32 v{u}, v{u}'); I(f'v_fract_f32 v{v_}, v{v_}')
            I(f'v_cos_f32 v{t0}, v{v_}'); I(f'v_sin_f32 v{t1}, v{v_}')
            P = 118
            I(f'v_mul_f32 v{P}, v{u}, v{t0}'); I(f'v_mul_f32 v{P+1}, v{u}, v{t1}')
            I(f'v_add_f32 v{t0}, -1.0, v{P}')
            I(f'v_mul_f32 v{t1}, v{lr}, v{lr}'); I(f'v_fma_f32 v{t1}, v{li}, v{li}, v{t1}'); I(f'v_rcp_f32 v{t1}, v{t1}')
            I(f'v_mul_f32 v{t2}, v{t0}, v{lr}'); I(f'v_fma_f32 v{t2}, v{P+1}, v{li}, v{t2}')
            I(f'v_mul_f32 v{t3}, v{P+1}, v{lr}'); I(f'v_fma_f32 v{t3}, -v{t0}, v{li}, v{t3}')
            I(f'v_add_f32 v{t1}, v{t1}, v{t1}')
            I(f'v_mul_f32 v{t2}, v{t2}, v{t1}'); I(f'v_mul_f32 v{t3}, v{t3}, v{t1}')
            I(f'v_cndmask_b32 v{P}, v{P}, v{t2}, s[{sMsel}:{sMsel+1}]'); I(f'v_cndmask_b32 v{P+1}, v{P+1}, v{t3}, s[{sMsel}:{sMsel+1}]')
            I(f'ds_write_b64 v{wa}, v[{P}:{P+1}] offset:{2048*t}')

    def stats(s, XR):
        I = s.I
        F = 120
        for r in range(2):
            for k in range(4):
                I(f'v_lshlrev_b32 v{F+8*r+2*k}, 16, v{XR+4*r+k}'); I(f'v_and_b32 v{F+8*r+2*k+1}, 0xffff0000, v{XR+4*r+k}')
        pa, pb, t0, t1 = 136, 137, 138, 139
        def reduce2(pa, pb):
            I(f'v_permlane32_swap_b32 v{pa}, v{pb}'); I(f'v_add_f32 v{pa}, v{pa}, v{pb}')
            I(f'v_mov_b32 v{pb}, v{pa}'); I(f'v_permlane16_swap_b32 v{pa}, v{pb}'); I(f'v_add_f32 v{pa}, v{pa}, v{pb}')
            for k in (8, 4, 2, 1): I(f'v_add_f32_dpp v{pa}, v{pa}, v{pa} row_ror:{k} row_mask:0xf bank_mask:0xf')
            I(f'v_mov_b32 v{pb}, v{pa}'); I(f'v_permlane32_swap_b32 v{pa}, v{pb}')
        for r, p in ((0, pa), (1, pb)):
            I(f'v_add_f32 v{p}, v{F+8*r}, v{F+8*r+1}')
            for k in range(2, 8): I(f'v_add_f32 v{p}, v{p}, v{F+8*r+k}')
        reduce2(pa, pb)
        I(f'v_mul_f32 v{t0}, 0x3b000000, v{pa}'); I(f'v_mul_f32 v{t1}, 0x3b000000, v{pb}')
        for r, m in ((0, t0), (1, t1)):
            for k in range(8): I(f'v_sub_f32 v{F+8*r+k}, v{F+8*r+k}, v{m}')
        for r, p in ((0, pa), (1, pb)):
            I(f'v_mul_f32 v{p}, v{F+8*r}, v{F+8*r}')
            for k in range(1, 8): I(f'v_fma_f32 v{p}, v{F+8*r+k}, v{F+8*r+k}, v{p}')
        reduce2(pa, pb)
        I(f'v_cndmask_b32 v{t0}, v{t0}, v{t1}, s[{sMhi}:{sMhi+1}]')
        I(f'v_cndmask_b32 v{pa}, v{pa}, v{pb}, s[{sMhi}:{sMhi+1}]')
        I(f'v_mul_f32 v{pa}, 0x3b000000, v{pa}')
        I(f'v_cvt_pk_bf16_f32 v{pa}, v{pa}, v{pa}'); I(f'v_lshlrev_b32 v{pa}, 16, v{pa}')
        I(f'v_add_f32 v{pa}, 0x3727c5ac, v{pa}')
        I(f'v_cvt_pk_bf16_f32 v{pa}, v{pa}, v{pa}'); I(f'v_lshlrev_b32 v{pa}, 16, v{pa}')
        I(f'v_sqrt_f32 v{pa}, v{pa}')
        SV = 140; s.SV = SV
        I(f'v_cvt_pk_bf16_f32 v{SV}, v{pa}, v{t0}')
        I(f'v_and_b32 v{t1}, 31, v{vL}'); I(f'v_cmp_eq_u32 vcc, 0, v{t1}'); I(f'v_lshrrev_b32 v{t1}, 2, v{vL}')
        I(f'v_mov_b32 v{pb}, {OOB}'); I(f'v_cndmask_b32 v{SV+2}, v{pb}, v{t1}, vcc')

    def cs_partial(s):
        e = s.e; I = s.I; typ = s.typ
        ONE = 120; ACa = 80; ACb = 96; FR = 124
        for k in range(4): I(f'v_mov_b32 v{ONE+k}, 0x3f803f80')
        va = 112; vo = 113; G = 114
        I(f'v_lshlrev_b32 v{vo}, 3, v{vL}'); I(f'v_mov_b32 v{va}, {OOB}'); I(f'v_cndmask_b32 v{vo}, v{vo}, v{va}, s[{sMhi}:{sMhi+1}]')
        I(f's_mul_i32 s{sKc}, s{sC}, {9*2048}'); I(f's_lshl_b32 s{sTmp}, s{sRho}, 8'); I(f's_add_u32 s{sKc}, s{sKc}, s{sTmp}'); I(f's_add_u32 s{sKc}, s{sKc}, {WS_CS}')
        I(f'v_mov_b32 v{G+1}, s{sNonce}')
        I(f's_lshl_b32 s{sTmp}, s{sCp}, 1'); I(f's_add_u32 s{sTmp}, s{sTmp}, s{sTp}')
        I(f's_lshl_b32 s{sTmp2}, s{sTmp}, 11')
        def chain(acc, reads):
            for ks in range(4):
                for x in reads(ks, FR + 4 * ks): I(x)
            for ks in range(4):
                I(f'v_mfma_f32_32x32x16_bf16 v[{acc}:{acc+15}], v[{ONE}:{ONE+3}], v[{FR+4*ks}:{FR+4*ks+3}], ' + ('0' if ks == 0 else f'v[{acc}:{acc+15}]'))
        def tr(reg, off, step, second):
            return lambda ks, d: [f'ds_read_b64_tr_b16 v[{d}:{d+1}], v{reg} offset:{off+step*ks}', f'ds_read_b64_tr_b16 v[{d+2}:{d+3}], v{reg} offset:{off+step*ks+second}']
        def publish(acc, soff):
            I(f'v_mov_b32 v{G}, v{acc}')
            I(f'buffer_store_dwordx2 v[{G}:{G+1}], v{vo}, s[{sWS}:{sWS+3}], s{soff} offen sc1')
        Lodd = s.lab('csodd'); Lend = s.lab('csend')
        vm0 = list(e.vm)
        I(f's_and_b32 s{sTmp3}, s{sR}, 1'); I(f's_cmp_eq_u32 s{sTmp3}, 1'); e.raw(f's_cbranch_scc1 {Lodd}')
        if typ == 'A':
            I(f's_lshl_b32 s{sTmp3}, s{sTp}, 5'); I(f'v_xor_b32 v{va}, s{sTmp3}, v{vP0}')
            chain(ACa, tr(va, 16384, 2048, 512))
        else:
            Lf = s.lab('csf'); Lg = s.lab('csg')
            I(f's_cmp_eq_u32 s{sTp}, 1'); e.raw(f's_cbranch_scc1 {Lf}')
            chain(ACa, lambda ks, d: [f'ds_read_b128 v[{d}:{d+3}], v{vSC+ks} offset:16384'])
            e.raw(f's_branch {Lg}')
            e.label(Lf); e.reset_hazards(); e.lgk = []
            chain(ACa, tr(vFB, 0, 1024, 256))
            e.label(Lg); e.reset_hazards(pad=16); e.lgk = []
        I(f's_add_u32 s{sTmp3}, s{sKc}, s{sTmp2}')
        publish(ACa, sTmp3)
        off = 0 if typ == 'A' else 16384 + 2048
        chain(ACb, lambda ks, d: [f'ds_read_b128 v[{d}:{d+3}], v{vSS+ks} offset:{off}'])
        I(f's_add_u32 s{sTmp3}, s{sKc}, {4*2048}'); I(f's_cmp_eq_u32 s{sw}, 0'); I(f's_cselect_b32 s{sTmp3}, s{sTmp3}, {OOB}')
        publish(ACb, sTmp3)
        e.raw(f's_branch {Lend}')
        e.label(Lodd); e.reset_hazards(); e.lgk = []; e.vm = list(vm0)
        I(f's_lshl_b32 s{sTmp3}, s{sTp}, 5'); I(f'v_xor_b32 v{va}, s{sTmp3}, v{vP0}'); I(f'v_add_u32 v{va}, {3*SLOT}, v{va}')
        chain(ACa, tr(va, 0, 2048, 512))
        I(f's_add_u32 s{sTmp3}, s{sKc}, s{sTmp2}'); I(f's_add_u32 s{sTmp3}, s{sTmp3}, {5*2048}')
        publish(ACa, sTmp3)
        e.label(Lend); e.reset_hazards(pad=4); e.lgk = []

    def gather_issue(s):
        GS = 80
        s.GS = GS
        va, vb = 108, 109
        ops = []
        ops += [f'v_bfe_u32 v{va}, v{vL}, 2, 1', f'v_lshlrev_b32 v{va}, 4, v{va}', f'v_bfe_u32 v{vb}, v{vL}, 3, 2', f'v_lshl_add_u32 v{va}, v{vb}, 2, v{va}',
                f'v_and_b32 v{vb}, 3, v{vL}', f'v_add_u32 v{va}, v{va}, v{vb}', f'v_lshlrev_b32 v{va}, 3, v{va}']
        ops += [f's_lshl_b32 s{sTmp}, s{sR}, 10', f's_add_u32 s{sTmp}, s{sTmp}, {WS_STATS}',
                f's_lshl_b32 s{sTmp2}, s{sT0}, 8', f's_add_u32 s{sG0}, s{sTmp}, s{sTmp2}',
                f's_lshl_b32 s{sTmp2}, s{sT1}, 8', f's_add_u32 s{sG1}, s{sTmp}, s{sTmp2}',
                f's_mul_i32 s{sG2}, s{sC}, {9*2048}', f's_add_u32 s{sG2}, s{sG2}, {WS_CS}', f's_lshl_b32 s{sTmp2}, s{sw}, 11',
                f's_add_u32 s{sG3}, s{sG2}, s{sTmp2}', f's_add_u32 s{sG4}, s{sG3}, {4*2048}', f's_add_u32 s{sG2}, s{sG2}, {8*2048}']
        s.gl = [(f'buffer_load_dwordx2 v[{GS}:{GS+1}], v{va}, s[{sWS}:{sWS+3}], s{sG0} offen sc1'),
                (f'buffer_load_dwordx2 v[{GS+2}:{GS+3}], v{va}, s[{sWS}:{sWS+3}], s{sG1} offen sc1')]
        for k, so in enumerate((sG3, sG4, sG2)):
            for n in range(2):
                d = GS + 4 + 8 * k + 4 * n
                s.gl.append(f'buffer_load_dwordx4 v[{d}:{d+3}], v{vHB}, s[{sWS}:{sWS+3}], s{so} offen offset:{1024*n} sc1')
        ops += [(x, 'G') for x in s.gl]
        return ops
    def tagcheck(s, regs, loads, exp=None):
        e = s.e
        ops = []
        for i, r in enumerate(regs):
            src = f's{sNonce}' if exp is None else f'v{exp[i]}'
            if i == 0: ops.append(f'v_cmp_ne_u32 s[{sBad}:{sBad+1}], {src}, v{r}')
            else:
                ops.append(f'v_cmp_ne_u32 vcc, {src}, v{r}'); ops.append(f's_or_b64 s[{sBad}:{sBad+1}], s[{sBad}:{sBad+1}], vcc')
        Ls = s.lab('slow'); Lr = s.lab('ret')
        def br():
            s.I(f's_cmp_lg_u64 s[{sBad}:{sBad+1}], 0'); e.raw(f's_cbranch_scc1 {Ls}'); e.label(Lr); return 6
        ops.append(br)
        def slow():
            e.label(Ls); e.reset_hazards(); e.vm = []; e.lgk = []
            s.I(f's_mov_b32 s{sSpin}, 0')
            e.label(Ls + 'l'); e.reset_hazards()
            for x in loads: s.I(x)
            e.force_wait('vmcnt(0)')
            for i, r in enumerate(regs):
                src = f's{sNonce}' if exp is None else f'v{exp[i]}'
                if i == 0: s.I(f'v_cmp_ne_u32 s[{sBad}:{sBad+1}], {src}, v{r}')
                else:
                    s.I(f'v_cmp_ne_u32 vcc, {src}, v{r}'); s.I(f's_or_b64 s[{sBad}:{sBad+1}], s[{sBad}:{sBad+1}], vcc')
            s.I(f's_add_u32 s{sSpin}, s{sSpin}, 1'); s.I(f's_cmp_gt_u32 s{sSpin}, {SPIN}'); e.raw(f's_cbranch_scc1 {Lr}')
            s.I(f's_cmp_lg_u64 s[{sBad}:{sBad+1}], 0'); e.raw(f's_cbranch_scc1 {Ls}l')
            e.raw('s_nop 4'); e.raw(f's_branch {Lr}')
        s.slow.append(slow)
        return ops
    def gather_process(s):
        GS = s.GS
        regs = [GS + 1, GS + 3] + [GS + 4 + 8 * k + 4 * n + 1 + 2 * m for k in range(3) for n in range(2) for m in range(2)]
        ops = s.tagcheck(regs, s.gl)
        t0, t1, t2, t3, ra, wa = 110, 111, 112, 113, 114, 115
        ops += [f'v_lshrrev_b32 v{ra}, 1, v108', f's_lshl_b32 s{sTmp}, s{sT0}, 7', f's_add_u32 s{sTmp}, s{sTmp}, {L_RS}', f'v_add_u32 v{ra}, s{sTmp}, v{ra}']
        ops += [f's_mov_b32 s{sTmp2}, {NLOG2E:#x}']
        for t in range(2):
            ms = GS + 2 * t; xa = vXaug + 4 * t
            ops += [f'v_lshlrev_b32 v{t0}, 16, v{ms}',
                    f'v_and_b32 v{t1}, 0xffff0000, v{ms}', f'v_xor_b32 v{t1}, 0x80000000, v{t1}',
                    f'v_rcp_f32 v{t2}, v{t0}', f'v_mul_f32 v{vK2+t}, v{t0}, v{t0}',
                    f'v_lshrrev_b32 v{t3}, 16, v{t1}', f'v_or_b32 v{t1}, v{t1}, v{t3}',
                    f'v_cndmask_b32 v{xa}, v{t1}, 0, s[{sMhi}:{sMhi+1}]', f'v_cndmask_b32 v{xa+1}, v{t3}, 0, s[{sMhi}:{sMhi+1}]',
                    f'v_mov_b32 v{xa+2}, 0', f'v_mov_b32 v{xa+3}, 0',
                    f'v_mul_f32 v{vNRS+t}, s{sTmp2}, v{t2}']
            if t == 0: ops += [f'ds_write_b32 v{ra}, v{t2}']
        ops += [f'v_and_b32 v{wa}, 15, v{vL}', f'v_lshlrev_b32 v{wa}, 4, v{wa}', f'v_bfe_u32 v{t0}, v{vL}, 4, 1', f'v_lshl_add_u32 v{wa}, v{t0}, 3, v{wa}',
                f's_lshl_b32 s{sTmp}, s{sw}, 8', f's_add_u32 s{sTmp}, s{sTmp}, {L_WAUG}', f'v_add_u32 v{ra}, s{sTmp}, v{wa}', f'v_add_u32 v{wa}, {L_WAUG + 8*256}, v{wa}']
        for k in range(3):
            d = GS + 4 + 8 * k
            A, B = d, d + 2
            ops += [f'v_add_f32 v{A}, v{A}, v{d+4}', f'v_add_f32 v{B}, v{B}, v{d+6}',
                    f'v_permlane16_swap_b32 v{A}, v{B}', f'v_add_f32 v{A}, v{A}, v{B}',
                    f'v_mov_b32 v{B}, v{A}', f'v_permlane32_swap_b32 v{A}, v{B}', f'v_add_f32 v{A}, v{A}, v{B}',
                    f'v_cvt_pk_bf16_f32 v{t0}, v{A}, v{A}', f'v_and_b32 v{t0}, 0xffff0000, v{t0}',
                    f'v_sub_f32 v{t1}, v{A}, v{t0}',
                    f'v_cvt_pk_bf16_f32 v{t2}, v{t1}, v{t1}', f'v_and_b32 v{t2}, 0xffff0000, v{t2}',
                    f'v_sub_f32 v{t1}, v{t1}, v{t2}',
                    f'v_cvt_pk_bf16_f32 v{d+5}, v{t1}, 0',
                    f'v_lshrrev_b32 v{t0}, 16, v{t0}', f'v_or_b32 v{d+4}, v{t0}, v{t2}']
            if k < 2: ops.append(f'ds_write_b64 v{ra}, v[{d+4}:{d+5}] offset:{1024*k}')
            else: ops.append(f'ds_write_b64 v{wa}, v[{d+4}:{d+5}]')
        return ops

    def f_epi(s, acc, t, soff, ioff):
        G = acc; U = acc + 8
        ops = []
        for j in range(8): ops.append(f'v_mul_f32 v{U+j}, v{G+j}, v{U+j}')
        for j in range(8): ops.append(f'v_mul_f32 v{G+j}, v{G+j}, v{vNRS+t}')
        for j in range(8): ops.append(f'v_exp_f32 v{G+j}, v{G+j}')
        for j in range(8): ops.append(f'v_fma_f32 v{G+j}, v{G+j}, v{vK2+t}, v{vK2+t}')
        for j in range(8): ops.append(f'v_rcp_f32 v{G+j}, v{G+j}')
        for j in range(8): ops.append(f'v_mul_f32 v{U+j}, v{U+j}, v{G+j}')
        for j in range(4): ops.append(f'v_cvt_pk_bf16_f32 v{G+j}, v{U+2*j}, v{U+2*j+1}')
        ops.append(f'buffer_store_dwordx4 v[{G}:{G+3}], v{vHB}, s[{sWS}:{sWS+3}], s{soff} offen offset:{ioff}')
        return ops

    def cmul_add(s, dr, di, ar, ai, br, bi, cr, ci):
        return [f'v_fma_f32 v{dr}, v{ar}, v{br}, v{cr}', f'v_fma_f32 v{di}, v{ar}, v{bi}, v{ci}',
                f'v_fma_f32 v{dr}, -v{ai}, v{bi}, v{dr}', f'v_fma_f32 v{di}, v{ai}, v{br}, v{di}']
    def s_setup(s):
        typ = s.typ
        s.vCh = 168
        s.vTg = 169
        s.vRs = 170
        s.vTo = 171
        s.vTw = 172
        s.vTr = 173
        s.vEo = 174
        s.vEg = 176
        s.vEx = 180
        a, b = 188, 189
        o = []
        o += [f'v_and_b32 v{a}, 15, v{vL}', f'v_lshlrev_b32 v{b}, 3, v{a}',
              f'v_add_u32 v{s.vCh}, {L_TAB}, v{b}', f'v_add_u32 v{s.vTo}, {L_TOTZ}, v{b}',
              f'v_lshlrev_b32 v{s.vTg}, 3, v{vL}', f'v_add_u32 v{s.vTg}, {L_TAB}, v{s.vTg}',
              f'v_lshrrev_b32 v{b}, 4, v{vL}', f'v_lshlrev_b32 v{s.vRs}, 5, v{b}', f'v_add_u32 v{s.vRs}, {L_RS}, v{s.vRs}',
              f's_mul_i32 s{sTmp}, s{sw}, {SLOT}', f's_add_u32 s{sTmp}, s{sTmp}, 32768',
              f'v_mul_u32_u24 v{s.vTw}, 80, v{a}', f'v_lshl_add_u32 v{s.vTw}, v{b}, 4, v{s.vTw}', f'v_add_u32 v{s.vTw}, s{sTmp}, v{s.vTw}',
              f'v_lshrrev_b32 v{s.vTr}, 5, v{vL}', f'v_lshlrev_b32 v{s.vTr}, 3, v{s.vTr}', f'v_bfe_u32 v{b}, v{vL}, 2, 2', f'v_add_u32 v{s.vTr}, v{s.vTr}, v{b}',
              f'v_mul_u32_u24 v{s.vTr}, 80, v{s.vTr}',
              f'v_and_b32 v{b}, 1, v{vL}', f'v_lshl_add_u32 v{s.vTr}, v{b}, 5, v{s.vTr}',
              f'v_bfe_u32 v{b}, v{vL}, 1, 1', f'v_lshl_add_u32 v{s.vTr}, v{b}, 3, v{s.vTr}',
              f'v_bfe_u32 v{b}, v{vL}, 4, 1', f'v_lshl_add_u32 v{s.vTr}, v{b}, 4, v{s.vTr}',
              f'v_add_u32 v{s.vTr}, s{sTmp}, v{s.vTr}']
        o += [f'v_lshlrev_b32 v{a}, 4, v{a}', f's_lshl_b32 s{sTmp}, s{sR}, 8', f'v_add_u32 v{a}, s{sTmp}, v{a}',
              f'v_lshrrev_b32 v{b}, 4, v{vL}', f'v_cmp_eq_u32 vcc, 2, v{b}', f'v_mov_b32 v{s.vEo}, {OOB}', f'v_cndmask_b32 v{b}, v{s.vEo}, v{a}, vcc',
              s.atom([f's_cmp_eq_u32 s{sT0}, 3', f's_cselect_b64 s[{sMsel}:{sMsel+1}], -1, 0']),
              f'v_cndmask_b32 v{s.vEo}, v{s.vEo}, v{b}, s[{sMsel}:{sMsel+1}]']
        o += [s.atom([f's_cmp_eq_u32 s{sT1}, 3', f's_cselect_b64 s[{sMsel}:{sMsel+1}], -1, 0']), f'v_mov_b32 v{s.vEo+1}, {OOB}', f'v_cndmask_b32 v{s.vEo+1}, v{s.vEo+1}, v{b}, s[{sMsel}:{sMsel+1}]']
        o += [f'v_and_b32 v{a}, 15, v{vL}', f'v_lshlrev_b32 v{a}, 4, v{a}', f'v_lshrrev_b32 v{b}, 4, v{vL}', f'v_sub_u32 v{b}, s{sR}, v{b}', f'v_add_u32 v{b}, -1, v{b}']
        for k in range(4):
            g = s.vEg + k; x = s.vEx + k
            if k: o.append(f'v_add_u32 v{b}, -4, v{b}')
            o += [f'v_cmp_le_i32 vcc, 0, v{b}', f'v_lshl_add_u32 v{g}, v{b}, 8, v{a}', f'v_mov_b32 v{x}, {OOB}', f'v_cndmask_b32 v{g}, v{x}, v{g}, vcc',
                  f'v_mov_b32 v{x}, s{sNonce}', f'v_cndmask_b32 v{x}, 0, v{x}, vcc']
        return o
    def s_inst(s):
        if s.typ == 'A': return [dict(acc=ACC1 + 64, t=0, role='ex', P=224)]
        return [dict(acc=ACC1 + 0, t=0, role='c0', P=224), dict(acc=ACC1 + 16, t=1, role='c0', P=228), dict(acc=ACC1 + 64, t=0, role='ex', P=232)]
    def tile_off(s, role, unit):
        if s.typ == 'A': return 0
        return 2 * unit if role == 'ex' else 0
    def areg(s, base, role, unit, tmp):
        if s.typ == 'A' or role == 'ex': return [], base
        return [f's_mul_i32 s{sTmp}, s{sCp}, {unit}', f'v_add_u32 v{tmp}, s{sTmp}, v{base}'], tmp
    def s1(s, inst):
        A = inst['acc']; t = inst['t']; role = inst['role']; P = inst['P']
        R = 236
        L1, L8, L16 = 244, 246, 248
        er, ei, zr, zi, x0, x1 = 250, 251, 252, 253, 254, 255
        qr, qi = 190, 191
        ta = vTA
        ops = []
        sT = sT0 if t == 0 else sT1
        o, tb = s.areg(s.vCh, role, 2048, ta); ops += o
        to = s.tile_off(role, 2048)
        ops += [f's_lshl_b32 s{sTmp}, s{sT}, 7', f'v_add_u32 v{x0}, s{sTmp}, v{s.vRs}',
                f'ds_read_b128 v[{R}:{R+3}], v{x0}', f'ds_read_b128 v[{R+4}:{R+7}], v{x0} offset:16',
                f'ds_read_b64 v[{L1}:{L1+1}], v{tb} offset:{to+1536}', f'ds_read_b64 v[{L8}:{L8+1}], v{tb} offset:{to+128}', f'ds_read_b64 v[{L16}:{L16+1}], v{tb} offset:{to+256}']
        for j in range(8): ops.append(f'v_permlane16_swap_b32 v{A+j}, v{A+j+8}')
        for j in range(8): ops += [f'v_mul_f32 v{A+j}, v{A+j}, v{R+j}', f'v_mul_f32 v{A+j+8}, v{A+j+8}, v{R+j}']
        for j in range(1, 8):
            pr, pi = (A, A + 8) if j == 1 else (er, ei)
            ops += [f'v_fma_f32 v{x0}, v{L1}, v{pr}, v{A+j}', f'v_fma_f32 v{x1}, v{L1}, v{pi}, v{A+j+8}',
                    f'v_fma_f32 v{zr}, -v{L1+1}, v{pi}, v{x0}', f'v_fma_f32 v{zi}, v{L1+1}, v{pr}, v{x1}']
            er, zr = zr, er; ei, zi = zi, ei
        ops += [f'v_mov_b32 v{zr}, 0', f'v_mov_b32 v{zi}, 0', f'v_mov_b32 v{x0}, v{er}', f'v_mov_b32 v{x1}, v{ei}',
                f'v_cndmask_b32 v{qr}, 1.0, v{L8}, s[{sModd}:{sModd+1}]', f'v_cndmask_b32 v{qi}, 0, v{L8+1}, s[{sModd}:{sModd+1}]',
                f'v_permlane16_swap_b32 v{zr}, v{x0}', f'v_permlane16_swap_b32 v{zi}, v{x1}']
        ops += s.cmul_add(er, ei, L8, L8 + 1, zr, zi, er, ei)
        ops += [f'v_mov_b32 v{x0}, v{er}', f'v_mov_b32 v{x1}, v{ei}', f'v_mov_b32 v{R}, 0', f'v_mov_b32 v{R+1}, 0',
                f'v_permlane16_swap_b32 v{er}, v{x0}', f'v_permlane16_swap_b32 v{ei}, v{x1}',
                f'v_permlane32_swap_b32 v{R}, v{x0}', f'v_permlane32_swap_b32 v{R+1}, v{x1}']
        ops += s.cmul_add(x0, x1, L16, L16 + 1, R, R + 1, x0, x1)
        ops += s.cmul_add(P, P + 1, qr, qi, R, R + 1, zr, zi)
        o, tb2 = s.areg(s.vTo, role, 128, ta); ops += o
        to2 = s.tile_off(role, 128)
        ops += [f's_mul_i32 s{sTmp}, s{sT}, 384', f'v_add_u32 v{R+2}, s{sTmp}, v{tb2}',
                s.atom([f's_mov_b64 exec, s[{sMhi}:{sMhi+1}]', f'ds_write_b64 v{R+2}, v[254:255] offset:{3*384+to2}', f's_mov_b64 exec, -1'])]
        assert (x0, x1) == (254, 255)
        return ops
    def s2(s, inst):
        A = inst['acc']; t = inst['t']; role = inst['role']; P = inst['P']
        sT = sT0 if t == 0 else sT1
        R = 236; L32 = 244; ta = vTA; tb_ = vTA + 1; Gq = 248
        ops = []
        o, tb2 = s.areg(s.vTo, role, 128, ta); ops += o
        to2 = s.tile_off(role, 128)
        o, tb = s.areg(s.vCh, role, 2048, tb_); ops += o
        to = s.tile_off(role, 2048)
        ops += [f's_mul_i32 s{sTmp}, s{sT}, 384', f'v_add_u32 v{ta}, s{sTmp}, v{tb2}']
        for k in range(4): ops.append(f'ds_read_b64 v[{R+2*k}:{R+2*k+1}], v{ta} offset:{k*384+to2}')
        ops.append(f'ds_read_b64 v[{L32}:{L32+1}], v{tb} offset:{to+640}')
        C0, C1 = P + 2, P + 3
        ops += s.cmul_add(R + 2, R + 3, L32, L32 + 1, R, R + 1, R + 2, R + 3)
        ops += s.cmul_add(R + 4, R + 5, L32, L32 + 1, R + 2, R + 3, R + 4, R + 5)
        ops += [f'v_mov_b32 v{C0}, v{R+4}', f'v_mov_b32 v{C1}, v{R+5}', f'v_mov_b32 v{Gq+1}, s{sNonce}', f'v_mov_b32 v{Gq+3}, s{sNonce}']
        ops += s.cmul_add(R + 6, R + 7, L32, L32 + 1, R + 4, R + 5, R + 6, R + 7)
        ops += [f'v_mov_b32 v{Gq}, v{R+6}', f'v_mov_b32 v{Gq+2}, v{R+7}']
        cg = sCGx if role == 'ex' else sTmp2
        if role != 'ex': ops += [f's_add_u32 s{sTmp2}, s{sCG0}, s{sCp}']
        ops += [f's_lshl_b32 s{sTmp}, s{cg}, 12', f's_add_u32 s{sTmp}, s{sTmp}, {WS_E}',
                f'buffer_store_dwordx4 v[{Gq}:{Gq+3}], v{s.vEo+t}, s[{sWS}:{sWS+3}], s{sTmp} offen sc1']
        return ops
    def s3_issue(s, role, EG, sE):
        ops = []
        cg = sCGx if role == 'ex' else sTmp2
        if role != 'ex': ops += [f's_add_u32 s{sTmp2}, s{sCG0}, s{sCp}']
        ops += [f's_lshl_b32 s{sE}, s{cg}, 12', f's_add_u32 s{sE}, s{sE}, {WS_E}']
        loads = [f'buffer_load_dwordx4 v[{EG+4*k}:{EG+4*k+3}], v{s.vEg+k}, s[{sWS}:{sWS+3}], s{sE} offen sc1' for k in range(4)]
        ops += [(x, 'EG' + role) for x in loads]
        return ops, loads
    def s3(s, role, EG, loads, H):
        L512, Q = 244, 246; ta = vTA
        regs = [EG + 4 * k + 1 + 2 * m for k in range(4) for m in range(2)]
        exp = [s.vEx + k for k in range(4) for m in range(2)]
        ops = []
        o, tb = s.areg(s.vCh, role, 2048, ta); ops += o
        to = s.tile_off(role, 2048)
        ops += [f'ds_read_b64 v[{L512}:{L512+1}], v{tb} offset:{to+1664}']
        o, tg = s.areg(s.vTg, role, 2048, ta + 1); ops += o
        ops += [f'ds_read_b64 v[{Q}:{Q+1}], v{tg} offset:{to+1024}']
        ops += s.tagcheck(regs, loads, exp)
        for k in (2, 1, 0):
            ops += s.cmul_add(EG + 4 * k, EG + 4 * k + 2, L512, L512 + 1, EG + 4 * (k + 1), EG + 4 * (k + 1) + 2, EG + 4 * k, EG + 4 * k + 2)
        wr, wi = EG + 4, EG + 5
        ops += [f'v_mul_f32 v{wr}, v{Q}, v{EG}', f'v_mul_f32 v{wi}, v{Q}, v{EG+2}', f'v_fma_f32 v{wr}, -v{Q+1}, v{EG+2}, v{wr}', f'v_fma_f32 v{wi}, v{Q+1}, v{EG}, v{wi}',
                f'v_permlane16_swap_b32 v{wr}, v{wi}', f'v_add_f32 v{wr}, v{wr}, v{wi}', f'v_mov_b32 v{wi}, v{wr}',
                f'v_permlane32_swap_b32 v{wr}, v{wi}', f'v_add_f32 v{H}, v{wr}, v{wi}', f'v_mov_b32 v{H+1}, v{H}',
                f'v_permlane16_swap_b32 v{H}, v{H+1}']
        return ops
    def s4(s, inst, H):
        A = inst['acc']; t = inst['t']; role = inst['role']; P = inst['P']
        sT = sT0 if t == 0 else sT1
        L1, Q32, Q8, CF = 236, 238, 240, 242
        x0, x1, hr, hi = 244, 245, 246, 247
        O = 248
        ta = vTA
        ops = []
        o, tb = s.areg(s.vCh, role, 2048, ta); ops += o
        to = s.tile_off(role, 2048)
        o, tg = s.areg(s.vTg, role, 2048, ta + 1); ops += o
        ops += [f's_lshl_b32 s{sTmp}, s{sT}, 7', f'v_add_u32 v{x0}, s{sTmp}, v{tb}',
                f'ds_read_b64 v[{Q32}:{Q32+1}], v{x0} offset:{to+512}', f'ds_read_b64 v[{Q8}:{Q8+1}], v{tg} offset:{to}',
                f'ds_read_b64 v[{L1}:{L1+1}], v{tb} offset:{to+1536}', f'ds_read_b64 v[{CF}:{CF+1}], v{tb} offset:{to+1792}']
        C0, C1 = P + 2, P + 3
        ops += s.cmul_add(C0, C1, Q32, Q32 + 1, H, H + 1, C0, C1)
        ops += s.cmul_add(P, P + 1, Q8, Q8 + 1, C0, C1, P, P + 1)
        pr, pi = P, P + 1
        for j in range(8):
            ops += s.cmul_add(A + j, A + j + 8, L1, L1 + 1, pr, pi, A + j, A + j + 8)
            pr, pi = A + j, A + j + 8
        for j in range(8):
            ops += [f'v_mul_f32 v{x0}, v{CF}, v{A+j}', f'v_mul_f32 v{x1}, -v{CF+1}, v{A+j}',
                    f'v_fma_f32 v{A+j}, -v{CF+1}, v{A+j+8}, v{x0}', f'v_fma_f32 v{A+j+8}, -v{CF}, v{A+j+8}, v{x1}']
        for k in range(4): ops.append(f'v_cvt_pk_bf16_f32 v{O+k}, v{A+2*k}, v{A+2*k+1}')
        for k in range(4): ops.append(f'v_cvt_pk_bf16_f32 v{O+4+k}, v{A+8+2*k}, v{A+8+2*k+1}')
        ops += [f'ds_write_b128 v{s.vTw}, v[{O}:{O+3}]', f'ds_write_b128 v{s.vTw}, v[{O+4}:{O+7}] offset:1280']
        for ri in range(2):
            d = A + 4 * ri
            ops += [f'ds_read_b64_tr_b16 v[{d}:{d+1}], v{s.vTr} offset:{1280*ri}', f'ds_read_b64_tr_b16 v[{d+2}:{d+3}], v{s.vTr} offset:{1280*ri+320}']
        cg = sCGx if role == 'ex' else sTmp2
        if role != 'ex': ops += [f's_add_u32 s{sTmp2}, s{sCG0}, s{sCp}']
        tg_ = sTg0 if t == 0 else sTg1
        ops += [f's_lshr_b32 s{sTmp}, s{cg}, 2', f's_lshl_b32 s{sTmp}, s{sTmp}, 3', f's_and_b32 s{sTmp3}, s{cg}, 3', f's_add_u32 s{sTmp}, s{sTmp}, s{sTmp3}',
                f's_add_u32 s{sTmp}, s{sTmp}, 112', f's_lshl_b32 s{sTmp}, s{sTmp}, 10', f's_add_u32 s{sTmp}, s{sTmp}, s{tg_}', f's_add_u32 s{sTmp3}, s{sTmp}, 4096',
                f'buffer_store_dwordx4 v[{A}:{A+3}], v{vHB}, s[{sWS}:{sWS+3}], s{sTmp} offen',
                f'buffer_store_dwordx4 v[{A+4}:{A+7}], v{vHB}, s[{sWS}:{sWS+3}], s{sTmp3} offen']
        return ops

    def mf(s, acc, wfrag, xreg, isS, first=False):
        c = '0' if first else f'v[{acc}:{acc+15}]'
        w = f'v[{wfrag}:{wfrag+3}]'
        if isS: s.I(f'v_mfma_f32_32x32x16_bf16 v[{acc}:{acc+15}], {xreg}, {w}, {c}')
        else: s.I(f'v_mfma_f32_32x32x16_bf16 v[{acc}:{acc+15}], {w}, {xreg}, {c}')
    def body(s):
        e = s.e; I = s.I; cfg = s.cfg
        s.prologue()
        roles = ['c0', 'c1', 'ex']
        def reads1(st, ks):
            b = WF + 12 * ((4 * st + ks) & 1)
            return (s.rd_x(st, ks, 0) + s.rd_w1('c0', st, ks, b) + s.rd_x(st, ks, 1) + s.rd_w1('c1', st, ks, b + 4) + s.rd_w1('ex', st, ks, b + 8))
        def rd2(kk, tile, ring):
            j = kk >> 2; ks = kk & 3
            d = WF + 4 * ring
            return s.rd_tr(d, vP0 if tile == 0 else vP1, j >> 1, (j & 1) * 16384 + 2048 * ks, 512)
        dma = deque(s.dma_list(3))
        for f in reads1(0, 0): f()
        s.stamp('B0')
        pf = cfg['pf2']
        for st in range(8):
            if st == cfg['gather_stage']: s.add(s.gather_issue())
            if st == cfg['check_stage']: s.add(s.gather_process())
            for ks in range(4):
                kk = 4 * st + ks
                b = WF + 12 * (kk & 1)
                if ks < 3: nxt = reads1(st, ks + 1)
                elif st < 7: nxt = reads1(st + 1, 0)
                else:
                    nxt = []
                    for q in range(pf): nxt += rd2(q, 0, q)
                nxt = deque(nxt)
                seq = [('c0', 0), ('c0', 1), ('c1', 0), ('c1', 1), ('ex', 0)]
                for m, (role, t) in enumerate(seq):
                    acc = ACC1 + (64 if role == 'ex' else 32 * roles.index(role) + 16 * t)
                    xr = (kk * 2 + t) * 4
                    s.mf(acc, b + 4 * roles.index(role), f'a[{xr}:{xr+3}]', s.is_S(role), first=(kk == 0))
                    if ks == 3 and m == 0:
                        if st == 7: s.drain()
                        s.stamp(f'preB{st+1}')
                        s.barrier(f'B{st+1}', f'D{st+1}')
                        s.stamp(f'B{st+1}')
                        while dma: dma.popleft()()
                        dma = deque(s.dma_list(st + 4))
                    nrd = 2 if m < 4 else 9
                    for _ in range(nrd):
                        if nxt: nxt.popleft()()
                    gi = (5 * ((ks + 1) & 3) + m)
                    if dma and gi % 2 == 1: dma.popleft()()
                    s.run_fill(cfg['budget1'])
        s.stamp('p1end')
        insts = s.s_inst()
        s.add(s.s_setup())
        ab = WF + 12
        I(f'v_and_b32 v{vWa}, 31, v{vL}'); I(f'v_lshlrev_b32 v{vWa}, 3, v{vWa}'); I(f'v_add_u32 v{vWa}, {L_WAUG}, v{vWa}')
        I(f's_lshl_b32 s{sTmp}, s{sCp}, 9'); I(f'v_add_u32 v{vWa+1}, s{sTmp}, v{vWa}')
        I(f'ds_read_b64 v[{ab}:{ab+1}], v{vWa+1}'); I(f'ds_read_b64 v[{ab+4}:{ab+5}], v{vWa+1} offset:256'); I(f'ds_read_b64 v[{ab+8}:{ab+9}], v{vWa} offset:1024')
        for role, t in [('c0', 0), ('c0', 1), ('c1', 0), ('c1', 1), ('ex', 0)]:
            acc = ACC1 + (64 if role == 'ex' else 32 * roles.index(role) + 16 * t)
            s.mf(acc, ab + 4 * roles.index(role), f'v[{vXaug+4*t}:{vXaug+4*t+3}]', s.is_S(role))
            s.run_fill(cfg['budget2'])
        s.events.add('aug1')
        F1 = []
        if s.typ == 'A':
            F1 = [s.f_epi(ACC1 + 0, 0, sO1a, 0), s.f_epi(ACC1 + 16, 1, sO1b, 0), s.f_epi(ACC1 + 32, 0, sO1a, 1024), s.f_epi(ACC1 + 48, 1, sO1b, 1024)]
        else:
            F1 = [s.f_epi(ACC1 + 32, 0, sO1a, 0), s.f_epi(ACC1 + 48, 1, sO1b, 0)]
        for inst in insts: s.add(s.s1(inst))
        s.add([lambda: s.events.add('s1done') or 1])
        s.add(F1[0])
        s.add([('gate', 'TOTB')])
        for inst in insts: s.add(s.s2(inst))
        s.add(F1[1])
        EGs = {}
        rl = ['ex'] if s.typ == 'A' else ['c0', 'ex']
        for f in F1[2:]: s.add(f)
        s.add([('gate', 'acc2a')])
        s.add(s.f_epi(ACC2 + 0, 0, sO2a, 0)); s.add(s.f_epi(ACC2 + 16, 1, sO2b, 0))
        Hreg = {'ex': 220, 'c0': 222}
        for i, role in enumerate(rl):
            EG = ACC1 + 32 + 16 * i
            o, loads = s.s3_issue(role, EG, sG0 + i)
            s.add(o); EGs[role] = (EG, loads)
        for role in rl:
            EG, loads = EGs[role]
            s.add(s.s3(role, EG, loads, Hreg[role]))
            for inst in insts:
                if inst['role'] == role: s.add(s.s4(inst, Hreg[role]))
        ring = pf
        NR = 6
        order = [(kk, 0) for kk in range(32)] + [(kk, 1) for kk in range(32)]
        pend = deque()
        issued = pf
        for idx, (kk, tile) in enumerate(order):
            slotr = idx % NR
            fr = WF + 4 * slotr
            if tile == 0 and kk in (5, 13, 21):
                nb = {5: 9, 13: 10, 21: 11}[kk]
                if nb == cfg.get('totb', 10):
                    while 's1done' not in s.events: s.run_fill(64)
                s.stamp(f'preB{nb}')
                s.barrier(f'B{nb}', f'D{nb}')
                s.stamp(f'B{nb}')
                if nb == cfg.get('totb', 10): s.events.add('TOTB')
            nxt = deque()
            if issued < len(order):
                k2, t2 = order[issued]
                nxt = deque(rd2(k2, t2, issued % NR)); issued += 1
            for t in range(2):
                acc = ACC2 + 32 * tile + 16 * t
                xr = (kk * 2 + t) * 4
                s.mf(acc, fr, f'a[{xr}:{xr+3}]', False, first=(kk == 0))
                if nxt: nxt.popleft()()
                if dma: dma.popleft()()
                s.run_fill(cfg['budget2'])
            if kk == 31:
                fa = WF + 4 * ((idx + pf + 1) % NR)
                fa = WF + 4 * ((idx - 1) % NR)
                I(f'ds_read_b64 v[{fa}:{fa+1}], v{vWa+1} offset:{(5+tile)*256}')
                for t in range(2):
                    acc = ACC2 + 32 * tile + 16 * t
                    s.mf(acc, fa, f'v[{vXaug+4*t}:{vXaug+4*t+3}]', False)
                    s.run_fill(cfg['budget2'])
                if tile == 0: s.events.add('acc2a'); s.stamp('p2a')
        s.stamp('p2end')
        s.drain()
        s.add(s.f_epi(ACC2 + 32, 0, sO2a, 1024)); s.add(s.f_epi(ACC2 + 48, 1, sO2b, 1024))
        s.drain()
        s.stamp('end')
        s.flush_stamps()
        e.raw('s_endpgm')
        for f in s.slow: f()

sG0, sG1, sG2, sG3, sG4 = 100, 101, 63, 6, 7

def gen_p1(ts=False, cfg=None):
    e = Em(); I = e.I
    e.raw('s_cmp_ge_u32 s2, 256'); e.raw('s_cbranch_scc1 P1_done')
    I(f's_load_dwordx16 s[64:79], s[0:1], 0')
    I(f's_load_dwordx4 s[80:83], s[0:1], 80')
    I(f's_load_dwordx4 s[84:87], s[0:1], 112')
    e.raw(f's_memrealtime s[{sTS}:{sTS+1}]')
    if ts: e.raw(f'{ts} s[98:99]')
    I(f'v_and_b32 v{vL}, 63, v0'); I(f'v_lshrrev_b32 v{vT}, 6, v0'); I(f'v_readfirstlane_b32 s{sw}, v{vT}')
    if (cfg or {}).get('codepf', 1):
        e.raw('s_getpc_b64 s[4:5]'); e.label('PF_base')
        I(f's_lshr_b32 s6, s2, 3'); I(f's_and_b32 s6, s6, 3'); I(f's_lshl_b32 s6, s6, 15')
        I(f'v_lshlrev_b32 v{vT+1}, 7, v0'); I(f'v_add_u32 v{vT+1}, s6, v{vT+1}')
        e.raw(f'v_min_u32 v{vT+1}, TEXT_END-PF_base-4, v{vT+1}')
        I(f'v_mov_b32 v{vT+3}, s4'); I(f'v_mov_b32 v{vT+4}, s5')
        I(f'v_add_co_u32 v{vT+3}, vcc, v{vT+3}, v{vT+1}'); I(f'v_addc_co_u32 v{vT+4}, vcc, 0, v{vT+4}, vcc')
        I(f'global_load_dword v{vT+30}, v[{vT+3}:{vT+4}], off')
    I(f's_and_b32 s{sTmp}, s2, 7'); I(f's_lshr_b32 s{sTmp2}, s2, 3')
    I(f's_lshr_b32 s{sRho}, s{sTmp2}, 2')
    I(f's_and_b32 s{sTmp3}, s{sTmp}, 1'); I(f's_lshl_b32 s{sR}, s{sRho}, 1'); I(f's_add_u32 s{sR}, s{sR}, s{sTmp3}')
    I(f's_lshr_b32 s{sC}, s{sTmp}, 1'); I(f's_lshl_b32 s{sC}, s{sC}, 2'); I(f's_and_b32 s{sTmp3}, s{sTmp2}, 3'); I(f's_add_u32 s{sC}, s{sC}, s{sTmp3}')
    for s_, n in [(sX, 2048*512*2), (sWA, 512*1792*2), (sSB, 512*512*2), (sWS, WS_SIZE), (sWC, 0), (sDBG, 256)]:
        I(f's_mov_b32 s{s_+2}, {n}'); I(f's_mov_b32 s{s_+3}, 0x00020000')
    gA = Gen('A', e, ts, cfg); gB = Gen('B', e, ts, cfg)
    gA.lane_consts()
    if ts:
        I(f's_lshl_b32 s{sTmp}, s2, 2'); I(f's_add_u32 s{sTmp}, s{sTmp}, s{sw}'); I(f's_lshl_b32 s{sTmp}, s{sTmp}, 6'); I(f's_add_u32 s{sTmp}, s{sTmp}, {WS_TS}')
        I(f'v_lshlrev_b32 v{vTSA}, 10, v{vL}'); I(f'v_lshlrev_b32 v{vTSA}, 16, v{vTSA}'); I(f'v_add_u32 v{vTSA}, s{sTmp}, v{vTSA}')
    I(f's_cmp_ge_u32 s{sC}, 8'); e.raw('s_cbranch_scc1 P1_B')
    for g, lab in ((gA, None), (gB, 'P1_B')):
        if lab: e.label(lab); e.reset_hazards(); e.lgk = []; e.vm = []
        g.wave_consts()
        e.force_wait('lgkmcnt(0)')
        g.body()
    e.label('P1_done'); e.raw('s_endpgm')
    return e
```

```python
from em import Em
from collections import deque
WS_STATS = 12 << 20
WS_CSS = (12 << 20) + (64 << 10)
WS_CSF = (12 << 20) + (128 << 10)
WS_E = 13 << 20
WS_FL = (13 << 20) + (512 << 10)
WS_TS = 14 << 20
WS_SIZE = 16 << 20
TSTRIDE = 176 * 1024
SLOT = 32768
HALF = 65536
MISC = 131072
L_RS = MISC
L_TOTZ = MISC + 512
L_TAB = MISC + 2304
L_WAUG = MISC + 6400
L_CSC = MISC + 16384
L_TR = MISC + 16384
OOB = 0x40000000
LOG2E = 0x3fb8aa3b
NLOG2E = 0xbfb8aa3b
INV2PI = 0x3e22f983
SPIN = 20000
WROW = 3584
WCH = 64 * WROW

sCSC, sX, sW1, sW3, sWS, sSB, sDBG = 4, 8, 12, 16, 20, 24, 28
sw, sR, sC, sOff, sNonce, sTp, sCp, sU, sG, sRho = 32, 33, 34, 35, 36, 37, 38, 39, 40, 41
sXo, sSo, sFo, sKa, sKb, sKc, sTmp, sTmp2, sTmp3 = 42, 43, 44, 45, 46, 47, 48, 49, 50
sW12, sW11, sW13, sTg0, sHF = 51, 52, 53, 54, 55
sMhi, sModd, sBad, sMsel = 56, 58, 60, 62
sSpin = 3
sGa, sGb = 96, 97
kX, kLre, kLim, kBre, kBim, kCre, kCim, kLdt = 64, 66, 68, 70, 72, 74, 76, 78
kDk, kBx, kW1, kW3, kW2, kOut, kDbg, kWs = 80, 82, 84, 86, 88, 90, 92, 94
TSPOOL = [98, 82, 0]
sSo2 = 101
sFlP = 100
sW2, sCRE, sCIM, sOUT = 64, 68, 84, 92
sBE, sBY, sFlC, sXb, sSb, sDko, sRowW, sCrow, sOb = 72, 73, 74, 75, 76, 77, 78, 79, 88
aS, aG0, aU0, aG1, aU1, WF = 0, 32, 64, 96, 128, 160
vW, vA0, vA1, vB1, vPl = 176, 180, 181, 182, 183
vXA, vSS, vG, vL, vHB, vCA = 184, 188, 192, 193, 194, 195
vDX, vDF, vDS = 196, 200, 204
vXaug, vNRS, vK2, vSA = 206, 214, 216, 218
vT = 222
vNon, vPo, vTS, vDUM = 252, 253, 254, 255
vCh, vTg, vRs, vTo, vTw, vTr, vEo, vFl = 222, 223, 224, 225, 226, 227, 228, 229
vPc, vPC, vH = 230, 234, 238
vC, vY = 196, 184
ACCO, ACCY = 128, 192
TRANS = ('v_exp_f32','v_log_f32','v_rcp_f32','v_rsq_f32','v_sqrt_f32','v_sin_f32','v_cos_f32')

VOP3 = ('v_fma_f32', 'v_lshl_add_u32', 'v_bfe_u32', 'v_cvt_pk_bf16_f32', 'v_mul_lo_u32', 'v_add3_u32', 'v_lshl_or_b32', 'v_and_or_b32', 'v_writelane_b32', 'v_mul_u32_u24')
def cost(txt):
    mn = txt.split()[0]
    if mn in TRANS or 'permlane' in mn: return 8
    if mn.startswith('v_mfma'): return 8
    if mn.startswith('v_pk_'): return 20
    if mn in VOP3 or (mn.startswith('v_cndmask') and 's[' in txt) or (mn.startswith('v_cmp') and ' s[' in txt[:30]) or '0x' in txt and mn.startswith('v_') or (mn.startswith('v_') and ' -v' in txt): return 5
    return 4

class Atom:
    def __init__(s, items):
        s.items = items; s.cost = sum(icost(x) for x in items)
class Fn:
    def __init__(s, f, c): s.f = f; s.cost = c
def icost(x):
    if isinstance(x, (Atom, Fn)): return x.cost
    return cost(x[0] if isinstance(x, tuple) else x)
def isctl(x, k): return isinstance(x, tuple) and x[0] == k

def cmac(d, a, b, c):
    if d == c:
        return [f'v_fmac_f32 v{d}, v{a}, v{b}', f'v_fmac_f32 v{d+1}, v{a}, v{b+1}',
                f'v_fma_f32 v{d}, -v{a+1}, v{b+1}, v{d}', f'v_fmac_f32 v{d+1}, v{a+1}, v{b}']
    return [f'v_fma_f32 v{d}, v{a}, v{b}, v{c}', f'v_fma_f32 v{d+1}, v{a}, v{b+1}, v{c+1}',
            f'v_fma_f32 v{d}, -v{a+1}, v{b+1}, v{d}', f'v_fmac_f32 v{d+1}, v{a+1}, v{b}']
def zipl(a, b):
    out = []; i = j = 0
    while i < len(a) or j < len(b):
        if j >= len(b) or (i < len(a) and i * len(b) <= j * len(a)): out.append(a[i]); i += 1
        else: out.append(b[j]); j += 1
    return out

DEF_SCHED = [['W3', 'B2', 'B3'], ['W4'], ['pL', 'W5'], ['W6', 'cL', 'B4', 'B5', 'B6'], ['pY', 'W7'], ['W8', 'cY', 'B7', 'B8'], ['W9', 'B9'], ['W10', 'B10'], [], [], []]
class Gen:
    def __init__(s, typ, e, ts=False, cfg=None):
        s.typ = typ; s.e = e; s.ts = ts
        s.cfg = dict(gA_issue=4, gB_issue=6, gB_proc=7, fcs=3, budA=30, budB=24, budC=24, budD=24, pf=3, p2=True, budP=40, budP0=64, slack=1,
                     pE=10, cE=16, s3i=10, sched=DEF_SCHED, totb=12)
        if cfg: s.cfg.update(cfg)
        s.fill = deque(); s.events = set(); s.half = {}
        s.slow = []
        s.nlab = 0
        s.P = f'FZ{typ}'
        s.pend = []
        s.names = s.cfg.get('stamps', [])
    def I(s, t, tag=None): s.e.I(t, tag)
    def lab(s, n):
        s.nlab += 1; return f'{s.P}_{n}{s.nlab}'
    def stamp(s, name):
        if not s.ts or name not in s.names: return
        k = s.names.index(name) + 1
        used = [p[0] for p in s.pend]
        free = [r for r in TSPOOL if r not in used]
        if not free:
            s.flush_stamps(); free = list(TSPOOL)
        r = free[0]
        s.e.raw(f'{s.ts} s[{r}:{r+1}]')
        s.pend.append((r, k))
    def fstamp(s, name):
        return Fn(lambda: s.stamp(name), 0)
    def flush_stamps(s):
        if not s.pend: return
        s.e.force_wait('lgkmcnt(0)')
        for r, k in s.pend: s.I(f'v_writelane_b32 v{vTS}, s{r}, {k}')
        s.pend = []
    def final_stamps(s):
        if not s.ts: return
        s.flush_stamps()
        I = s.I
        I(f's_lshl_b32 s{sTmp}, s2, 2'); I(f's_add_u32 s{sTmp}, s{sTmp}, s{sw}'); I(f's_lshl_b32 s{sTmp}, s{sTmp}, 8'); I(f's_add_u32 s{sTmp}, s{sTmp}, {WS_TS}')
        I(f'v_lshlrev_b32 v{vDUM}, 2, v{vL}')
        I(f'buffer_store_dword v{vTS}, v{vDUM}, s[{sWS}:{sWS+3}], s{sTmp} offen')
    def add(s, items):
        for x in items: s.fill.append(x)
    def addfront(s, items):
        for x in reversed(items): s.fill.appendleft(x)
    def gate(s, ev): return ('gate', ev)
    def mark(s, ev): return ('mark', ev)
    def emit1(s, x):
        if isinstance(x, Atom):
            for y in x.items: s.emit1(y)
        elif isinstance(x, Fn): x.f()
        elif isinstance(x, tuple): s.I(x[0], x[1])
        else: s.I(x)
    def run_fill(s, budget):
        while s.fill:
            x = s.fill[0]
            if isctl(x, 'gate'):
                if x[1] in s.events: s.fill.popleft(); continue
                return
            if isctl(x, 'mark'):
                s.fill.popleft(); s.events.add(x[1]); continue
            c = icost(x)
            if c > budget + s.cfg['slack'] and not (c > 20 and budget >= 12): return
            n0 = s.e.n
            s.fill.popleft(); s.emit1(x); budget -= max(c, 4 * (s.e.n - n0))
    def gap(s, n0, G):
        s.run_fill(G - 4 * (s.e.n - n0))
    def atom(s, lst): return Atom(lst)
    def capture(s, fn):
        rec = []
        old = s.I
        s.I = lambda t, tag=None: rec.append((t, tag) if tag else t)
        fn()
        s.I = old
        out = []; i = 0
        txt = lambda x: x[0] if isinstance(x, tuple) else x
        while i < len(rec):
            t = txt(rec[i])
            if t.startswith(('s_cmp', 's_bitcmp')):
                j = i + 1
                while j < len(rec) and txt(rec[j]).startswith('s_cselect'): j += 1
                out.append(Atom(rec[i:j])); i = j
            elif t.startswith('v_cmp') and ' vcc,' in t:
                j = i + 1
                while j < len(rec) and txt(rec[j]).startswith('v_cndmask') and txt(rec[j]).endswith('vcc'): j += 1
                assert j > i + 1, t
                out.append(Atom(rec[i:j])); i = j
            else: out.append(rec[i]); i += 1
        return out
    def until(s, ev):
        while ev not in s.events:
            assert s.fill, ev
            x = s.fill[0]
            if isctl(x, 'gate'): assert x[1] in s.events, (ev, x)
            s.run_fill(64)
    def drain(s):
        while s.fill:
            x = s.fill[0]
            if isctl(x, 'gate'): assert x[1] in s.events, x
            s.run_fill(10**9)
    def addr(s, reg, slot):
        h = slot >> 1
        if s.half.get(reg, 0) != h:
            s.I(f'v_add_u32 v{reg}, {HALF}, v{reg}' if h else f'v_subrev_u32 v{reg}, {HALF}, v{reg}')
            s.half[reg] = h
        return (slot & 1) * SLOT
    def barrier(s, name, wait_tag=None):
        e = s.e
        s.stamp('pre' + name)
        if wait_tag: e.wait_tag(wait_tag)
        e.barrier()
        s.events.add(name)
        s.stamp(name)
        s.flush_stamps()
    def rd_x(s, st, ks, t):
        a = ((4 * st + ks) * 2 + t) * 4
        def f():
            o = s.addr(vXA + ks, st & 3)
            s.I(f'ds_read_b128 a[{a}:{a+3}], v{vXA+ks} offset:{o+4096*t}')
        return [f]
    def rd_S(s, st, ks, dst):
        def f():
            o = s.addr(vSS + ks, st & 3)
            s.I(f'ds_read_b128 v[{dst}:{dst+3}], v{vSS+ks} offset:{o}')
        return [f]
    def rd_W(s, slot, off, dst):
        def f1():
            o = s.addr(vG, slot)
            s.I(f'ds_read_b64_tr_b16 v[{dst}:{dst+1}], v{vG} offset:{o+off}')
        def f2():
            o = s.addr(vG, slot)
            s.I(f'ds_read_b64_tr_b16 v[{dst+2}:{dst+3}], v{vG} offset:{o+off+512}')
        return [f1, f2]
    def mkdma(s, ops, tag):
        out = []
        for pre, ins in ops:
            def f(pre=pre, ins=ins):
                for p in pre: s.I(p)
                s.I(ins, tag)
            out.append(f)
        return out
    def dma_list(s, st):
        ops = []
        slot = (st & 3) * SLOT
        if st < 8:
            pre = [f's_add_u32 s{sKa}, s{sOff}, {st}', f's_and_b32 s{sKa}, s{sKa}, 7', f's_lshl_b32 s{sKb}, s{sKa}, 7',
                   f's_add_u32 s{sKc}, s{sXo}, s{sKb}', f's_add_u32 m0, s{sW12}, {slot}']
            for A in range(4):
                ops.append((pre if A == 0 else [], f'buffer_load_dwordx4 v{vDX+A}, s[{sX}:{sX+3}], s{sKc} offen offset:{1024*A} lds'))
            pre = [f's_add_u32 s{sKc}, s{sSo}, s{sKb}', f's_add_u32 m0, s{sW11}, {slot+16384}']
            for i in range(2):
                ops.append((pre if i == 0 else [], f'buffer_load_dwordx4 v{vDS+i}, s[{sSB}:{sSB+3}], s{sKc} offen offset:{1024*i} lds'))
            pre = [f's_mul_i32 s{sKc}, s{sKa}, {WCH}', f's_add_u32 s{sKc}, s{sKc}, s{sFo}', f's_add_u32 m0, s{sW11}, {slot+24576}']
            for i in range(2):
                ops.append((pre if i == 0 else [], f'buffer_load_dwordx4 v{vDF+i}, s[{sW1}:{sW1+3}], s{sKc} offen offset:{1024*i} lds'))
        else:
            p = (st - 8) >> 1; vs = st & 1
            srd = sW1 if p == 1 else sW3
            line = 128 if p >= 1 else 0
            pre = [f's_add_u32 s{sKa}, s{sOff}, s{sw}', f's_add_u32 s{sKa}, s{sKa}, {4*vs}', f's_and_b32 s{sKa}, s{sKa}, 7',
                   f's_mul_i32 s{sKc}, s{sKa}, {WCH}', f's_add_u32 s{sKc}, s{sKc}, s{sSo2}']
            if line: pre.append(f's_add_u32 s{sKc}, s{sKc}, {line}')
            pre.append(f's_add_u32 m0, s{sW13}, {slot}')
            for i in range(4):
                ops.append((pre if i == 0 else [], f'buffer_load_dwordx4 v{vDF+i}, s[{srd}:{srd+3}], s{sKc} offen offset:{1024*i} lds'))
            pre = [f's_add_u32 s{sKc}, s{sKc}, {32*WROW}', f's_add_u32 m0, s{sW13}, {slot+4096}']
            for i in range(4):
                ops.append((pre if i == 0 else [], f'buffer_load_dwordx4 v{vDF+i}, s[{srd}:{srd+3}], s{sKc} offen offset:{1024*i} lds'))
        return s.mkdma(ops, f'D{st}')
    def dma_csc(s):
        ops = []
        nl = 2 if s.typ == 'H' else 1
        for X in range(nl):
            pre = [f's_mul_i32 s{sKc}, s{sRho}, {WCH}', f's_add_u32 s{sKc}, s{sKc}, s{sFo}']
            if X: pre.append(f's_add_u32 s{sKc}, s{sKc}, 128')
            pre.append(f's_add_u32 m0, s{sW11}, {L_CSC + X*8192}')
            for i in range(2):
                ops.append((pre if i == 0 else [], f'buffer_load_dwordx4 v{vDF+i}, s[{sCSC}:{sCSC+3}], s{sKc} offen offset:{1024*i} lds'))
        return s.mkdma(ops, 'CSC')

    XR, SR, PR, NP = 96, 104, 108, 114
    SV = 152
    def prologue(s):
        e = s.e; I = s.I; typ = s.typ
        a, b, c, d = vT, vT + 1, vT + 2, vT + 3
        XR, SR, PR, NP = s.XR, s.SR, s.PR, s.NP
        s.stamp('karg')
        I(f's_mov_b64 s[{sX}:{sX+1}], s[{kX}:{kX+1}]')
        I(f's_mov_b64 s[{sW1}:{sW1+1}], s[{kW1}:{kW1+1}]')
        I(f's_mov_b64 s[{sWS}:{sWS+1}], s[{kWs}:{kWs+1}]')
        I(f's_cmp_eq_u32 s{sCp}, 0'); I(f's_cselect_b64 s[{sSB}:{sSB+1}], s[{kBre}:{kBre+1}], s[{kBim}:{kBim+1}]')
        for f in s.dma_list(0): f()
        s.stamp('q0')
        I(f's_mov_b64 s[{sW3}:{sW3+1}], s[{kW3}:{kW3+1}]')
        I(f's_mov_b64 s[{sDBG}:{sDBG+1}], s[{kDbg}:{kDbg+1}]')
        I(f's_and_b32 s{sTmp}, s{sR}, 1'); I(f's_cmp_eq_u32 s{sTmp}, 0'); I(f's_cselect_b64 s[{sCSC}:{sCSC+1}], s[{kW1}:{kW1+1}], s[{kW3}:{kW3+1}]')
        I(f's_or_b32 s{sTmp}, s96, 1')
        I(f's_or_b32 s{sTmp2}, s2, s{sw}'); I(f's_cmp_eq_u32 s{sTmp2}, 0'); I(f's_cselect_b32 s{sTmp2}, 0, {OOB}')
        I(f'v_mov_b32 v{a}, s{sTmp}'); I(f'v_lshlrev_b32 v{b}, 10, v{vL}'); I(f'v_add_u32 v{b}, s{sTmp2}, v{b}')
        I(f'buffer_store_dword v{a}, v{b}, s[{sDBG}:{sDBG+3}], 0 offen sc1')
        I(f's_lshl_b32 s{sTmp}, s{sR}, 7'); I(f's_lshl_b32 s{sTmp2}, s{sC}, 3'); I(f's_add_u32 s{sTmp}, s{sTmp}, s{sTmp2}')
        I(f's_lshl_b32 s{sTmp2}, s{sw}, 1'); I(f's_add_u32 s{sTmp}, s{sTmp}, s{sTmp2}')
        I(f's_lshl_b32 s{sGa}, s{sTmp}, 3'); I(f's_add_u32 s{sGa}, s{sGa}, {WS_STATS}')
        I(f's_lshl_b32 s{sTmp}, s{sTmp}, 10')
        I(f'buffer_load_dwordx4 v[{XR}:{XR+3}], v{vHB}, s[{sX}:{sX+3}], s{sTmp} offen', 'XR')
        I(f'buffer_load_dwordx4 v[{XR+4}:{XR+7}], v{vHB}, s[{sX}:{sX+3}], s{sTmp} offen offset:1024', 'XR')
        I(f'v_and_b32 v{a}, 15, v{vL}'); I(f'v_lshlrev_b32 v{a}, 1, v{a}')
        I(f's_lshl_b32 s{sTmp}, s{sC}, 6'); I(f'v_add_u32 v{a}, s{sTmp}, v{a}')
        for t in range(2):
            I(f'global_load_ushort v{PR+3*t}, v{a}, s[{kLre}:{kLre+1}] offset:{32*t}', 'PR')
            I(f'global_load_ushort v{PR+3*t+1}, v{a}, s[{kLim}:{kLim+1}] offset:{32*t}', 'PR')
            I(f'global_load_ushort v{PR+3*t+2}, v{a}, s[{kLdt}:{kLdt+1}] offset:{32*t}', 'PR')
        I(f's_lshr_b32 s{sTmp3}, s{sR}, 3'); I(f's_lshl_b32 s{sTmp3}, s{sTmp3}, 4')
        I(f's_and_b32 s{sTmp}, s{sR}, 3'); I(f's_lshl_b32 s{sTmp}, s{sTmp}, 2'); I(f's_add_u32 s{sTmp3}, s{sTmp3}, s{sTmp}')
        I(f's_lshl_b32 s{sTmp}, s{sC}, 5'); I(f's_add_u32 s{sTmp3}, s{sTmp3}, s{sTmp}'); I(f's_add_u32 s{sTmp3}, s{sTmp3}, s{sw}')
        I(f's_lshl_b32 s{sTmp3}, s{sTmp3}, 10'); I(f'v_add_u32 v{a}, s{sTmp3}, v{vHB}')
        I(f's_bitcmp1_b32 s{sR}, 2'); I(f's_cselect_b64 s[{sTmp}:{sTmp+1}], s[{kBim}:{kBim+1}], s[{kBre}:{kBre+1}]')
        I(f'global_load_dwordx4 v[{SR}:{SR+3}], v{a}, s[{sTmp}:{sTmp+1}]', 'SR')
        I(f'v_mov_b32 v{NP+1}, 0')
        I(f'buffer_load_dword v{NP}, v{NP+1}, s[{sDBG}:{sDBG+3}], 0 offen sc1', 'NP')
        I(f's_lshl_b32 s{sGb}, s{sR}, 2'); I(f's_add_u32 s{sGb}, s{sGb}, s{sw}'); I(f's_lshl_b32 s{sGb}, s{sGb}, 3')
        I(f's_lshl_b32 s{sTmp3}, s{sC}, 9'); I(f's_add_u32 s{sGb}, s{sGb}, s{sTmp3}'); I(f's_add_u32 s{sGb}, s{sGb}, {WS_CSS}')
        s.stamp('q1')
        if s.cfg.get('linepf', 1):
            I(f'v_lshlrev_b32 v{a}, 10, v{vL}'); I(f'v_mul_u32_u24 v{b}, {WROW}, v{vL}')
            I(f's_add_u32 s{sTmp}, s{sOff}, 1'); I(f's_and_b32 s{sTmp}, s{sTmp}, 7'); I(f's_lshl_b32 s{sTmp}, s{sTmp}, 7')
            I(f's_lshl_b32 s{sTmp2}, s{sR}, 17'); I(f's_add_u32 s{sTmp}, s{sTmp}, s{sTmp2}'); I(f's_lshl_b32 s{sTmp2}, s{sw}, 16'); I(f's_add_u32 s{sTmp}, s{sTmp}, s{sTmp2}')
            I(f's_cmp_lt_u32 s{sw}, 2'); I(f's_cselect_b32 s{sTmp}, s{sTmp}, {OOB}')
            I(f'buffer_load_dword v{vDUM}, v{a}, s[{sX}:{sX+3}], s{sTmp} offen')
            I(f's_mul_i32 s{sTmp}, s{sOff}, {WCH}'); I(f's_add_u32 s{sTmp}, s{sTmp}, s{sSo2}')
            if typ == 'H':
                I(f's_add_u32 s{sTmp2}, s{sTmp}, 128')
                I(f's_cmp_eq_u32 s{sw}, 0'); I(f's_cselect_b32 s{sTmp3}, s{sTmp2}, {OOB}')
                I(f's_cmp_eq_u32 s{sw}, 2'); I(f's_cselect_b32 s{sTmp3}, s{sTmp}, s{sTmp3}')
                I(f'buffer_load_dword v{vDUM}, v{b}, s[{sW3}:{sW3+3}], s{sTmp3} offen')
                I(f's_cmp_eq_u32 s{sw}, 3'); I(f's_cselect_b32 s{sTmp3}, s{sTmp2}, {OOB}')
                I(f'buffer_load_dword v{vDUM}, v{b}, s[{sW1}:{sW1+3}], s{sTmp3} offen')
            else:
                I(f's_cmp_eq_u32 s{sw}, 2'); I(f's_cselect_b32 s{sTmp3}, s{sTmp}, {OOB}')
                I(f'buffer_load_dword v{vDUM}, v{b}, s[{sW3}:{sW3+3}], s{sTmp3} offen')
        s.stamp('q2')
        for f in s.dma_list(1): f()
        s.stamp('q3')
        s.lds_addrs()
        s.p2_early()
        s.stamp('q4')
        s.barrier('B0', 'D0')

    def p2_early(s):
        I = s.I; a, b, c, d = vT, vT + 1, vT + 2, vT + 3
        for dst, src, n in ((sW2, kW2, 1792*512*2), (sCRE, kCre, 512*512*2), (sCIM, kCim, 512*512*2), (sOUT, kOut, 2048*512*4)):
            I(f's_mov_b64 s[{dst}:{dst+1}], s[{src}:{src+1}]'); I(f's_mov_b32 s{dst+2}, {n}'); I(f's_mov_b32 s{dst+3}, 0x00020000')
        I(f's_and_b32 s{sTmp}, s2, 7'); I(f's_lshl_b32 s{sTmp}, s{sTmp}, 2'); I(f's_add_u32 s{sTmp}, s{sTmp}, s{sU}')
        I(f's_mul_i32 s{sTmp2}, s{sTmp}, {2*TSTRIDE}')
        I(f's_mul_i32 s{sBE}, s{sw}, 28672'); I(f's_add_u32 s{sBE}, s{sBE}, s{sTmp2}')
        I(f's_lshl_b32 s{sBY}, s{sw}, 14'); I(f's_add_u32 s{sBY}, s{sBY}, s{sTmp2}'); I(f's_add_u32 s{sBY}, s{sBY}, 114688')
        I(f's_mul_i32 s{sRowW}, s{sw}, {7*65536}'); I(f's_lshl_b32 s{sDko}, s{sRho}, 7'); I(f's_add_u32 s{sRowW}, s{sRowW}, s{sDko}')
        I(f's_lshl_b32 s{sCrow}, s{sRho}, 16'); I(f's_lshl_b32 s{sTmp2}, s{sw}, 8'); I(f's_add_u32 s{sCrow}, s{sCrow}, s{sTmp2}')
        I(f's_lshl_b32 s{sFlC}, s{sTmp}, 2'); I(f's_add_u32 s{sFlC}, s{sFlC}, s{sw}'); I(f's_lshl_b32 s{sFlC}, s{sFlC}, 7'); I(f's_add_u32 s{sFlC}, s{sFlC}, {WS_FL}')
        I(f's_lshl_b32 s{sTmp}, s{sTmp}, 6'); I(f's_lshl_b32 s{sTmp2}, s{sw}, 4'); I(f's_add_u32 s{sTmp}, s{sTmp}, s{sTmp2}')
        I(f's_lshl_b32 s{sXb}, s{sTmp}, 10'); I(f's_add_u32 s{sXb}, s{sXb}, s{sDko}')
        I(f's_lshl_b32 s{sOb}, s{sXb}, 1')
        I(f's_lshl_b32 s{sSb}, s{sTmp}, 3'); I(f's_add_u32 s{sSb}, s{sSb}, {WS_STATS}')
        I(f's_lshl_b32 s{sFlP}, s{sR}, 1'); I(f's_add_u32 s{sFlP}, s{sFlP}, s{sTp}'); I(f's_lshl_b32 s{sFlP}, s{sFlP}, 2'); I(f's_add_u32 s{sFlP}, s{sFlP}, s{sG}')
        I(f's_lshl_b32 s{sFlP}, s{sFlP}, 7'); I(f's_lshl_b32 s{sTmp}, s{sU}, 1'); I(f's_add_u32 s{sTmp}, s{sTmp}, s{sCp}'); I(f's_lshl_b32 s{sTmp}, s{sTmp}, 2')
        I(f's_add_u32 s{sFlP}, s{sFlP}, s{sTmp}'); I(f's_add_u32 s{sFlP}, s{sFlP}, {WS_FL}')
        I(f'v_bfe_u32 v{a}, v{vL}, 4, 1'); I(f'v_lshlrev_b32 v{a}, 2, v{a}'); I(f'v_and_b32 v{b}, 7, v{vL}'); I(f'v_xor_b32 v{a}, v{a}, v{b}')
        I(f'v_lshrrev_b32 v{c}, 3, v{vL}'); I(f'v_lshlrev_b32 v{c}, 10, v{c}'); I(f'v_lshl_add_u32 v{vW}, v{a}, 4, v{c}')
        for i in range(1, 4): I(f'v_add_u32 v{vW+i}, {7168*i}, v{vW}')
        I(f'v_lshrrev_b32 v{a}, 5, v{vL}'); I(f'v_lshlrev_b32 v{a}, 2, v{a}'); I(f'v_bfe_u32 v{c}, v{vL}, 2, 2'); I(f'v_add_u32 v{a}, v{a}, v{c}')
        I(f'v_lshlrev_b32 v{a}, 7, v{a}'); I(f'v_lshrrev_b32 v{c}, 1, v{c}'); I(f'v_lshlrev_b32 v{c}, 6, v{c}'); I(f'v_add_u32 v{a}, v{a}, v{c}')
        I(f'v_bfe_u32 v{c}, v{vL}, 4, 1'); I(f'v_lshl_add_u32 v{a}, v{c}, 5, v{a}'); I(f'v_and_b32 v{c}, 3, v{vL}'); I(f'v_lshl_add_u32 v{a}, v{c}, 3, v{a}')
        I(f'v_add_u32 v{vA0}, s{sW13}, v{a}'); I(f'v_xor_b32 v{vA1}, 64, v{vA0}')
        I(f'v_add_u32 v{vB1}, {TSTRIDE}, v{vHB}')
        I(f'v_and_b32 v{vPl}, 31, v{vL}'); I(f'v_lshlrev_b32 v{vPl}, 2, v{vPl}')

    def lds_addrs(s):
        I = s.I; a, b, c, d = vT, vT + 1, vT + 2, vT + 3
        I(f'v_and_b32 v{a}, 31, v{vL}'); I(f'v_bfe_u32 v{b}, v{vL}, 1, 3'); I(f'v_lshrrev_b32 v{c}, 5, v{vL}'); I(f'v_xor_b32 v{b}, v{b}, v{c}')
        I(f'v_lshlrev_b32 v{b}, 4, v{b}')
        I(f'v_lshl_add_u32 v{d}, v{a}, 7, v{b}')
        I(f's_lshl_b32 s{sTmp}, s{sTp}, 13')
        I(f'v_add_u32 v{vXA}, s{sTmp}, v{d}')
        for k in range(1, 4): I(f'v_xor_b32 v{vXA+k}, {32*k}, v{vXA}')
        I(f'v_lshrrev_b32 v{c}, 3, v{a}'); I(f'v_lshlrev_b32 v{c}, 11, v{c}'); I(f'v_and_b32 v{d}, 7, v{a}'); I(f'v_lshl_add_u32 v{c}, v{d}, 7, v{c}')
        I(f'v_add_u32 v{c}, v{c}, v{b}'); I(f's_lshl_b32 s{sTmp}, s{sCp}, 10'); I(f's_add_u32 s{sTmp}, s{sTmp}, 16384')
        I(f'v_add_u32 v{vSS}, s{sTmp}, v{c}')
        for k in range(1, 4): I(f'v_xor_b32 v{vSS+k}, {32*k}, v{vSS}')
        I(f'v_lshrrev_b32 v{b}, 5, v{vL}'); I(f'v_bfe_u32 v{c}, v{vL}, 2, 2'); I(f'v_lshl_add_u32 v{b}, v{b}, 3, v{c}')
        I(f'v_and_b32 v{d}, 3, v{vL}'); I(f'v_lshlrev_b32 v{d}, 3, v{d}'); I(f'v_lshl_add_u32 v{d}, v{b}, 7, v{d}')
        I(f'v_bfe_u32 v{a}, v{vL}, 4, 1'); I(f'v_lshl_add_u32 v{d}, v{a}, 5, v{d}')
        I(f'v_lshrrev_b32 v{c}, 1, v{c}'); I(f'v_lshlrev_b32 v{c}, 6, v{c}'); I(f'v_add_u32 v{d}, v{d}, v{c}')
        I(f's_lshl_b32 s{sTmp}, s{sCp}, 6'); I(f'v_xor_b32 v{vG}, s{sTmp}, v{d}')
        I(f's_lshl_b32 s{sTmp}, s{sTp}, 6'); I(f'v_xor_b32 v{vCA}, s{sTmp}, v{d}')
        if s.typ == 'H':
            I(f's_lshl_b32 s{sTmp}, s{sCp}, 13'); I(f's_add_u32 s{sTmp}, s{sTmp}, {L_CSC}')
        else:
            I(f's_mov_b32 s{sTmp}, {L_CSC}')
        I(f'v_add_u32 v{vCA}, s{sTmp}, v{vCA}')
        I(f's_mov_b32 s{sMhi}, 0'); I(f's_mov_b32 s{sMhi+1}, -1')
        I(f's_mov_b32 s{sModd}, 0xffff0000'); I(f's_mov_b32 s{sModd+1}, 0xffff0000')
        I(f's_lshl_b32 s{sTmp}, s{sR}, 2'); I(f's_lshl_b32 s{sTmp2}, s{sTp}, 1'); I(f's_add_u32 s{sTmp}, s{sTmp}, s{sTmp2}')
        I(f's_mul_i32 s{sTg0}, s{sTmp}, {TSTRIDE}')
        I(f's_lshl_b32 s{sTmp}, s{sSo2}, 5')
        I(f's_lshl_b32 s{sTmp2}, s{sCp}, 11'); I(f's_add_u32 s{sTmp}, s{sTmp}, s{sTmp2}'); I(f's_add_u32 s{sHF}, s{sTg0}, s{sTmp}')
        z = 116
        for k in range(4): I(f'v_mov_b32 v{z+k}, 0')
        I(f'v_add_u32 v{a}, {L_TOTZ}, v{vHB}'); I(f'ds_write_b128 v{a}, v[{z}:{z+3}]')

    def tab(s):
        I = s.I; PR = s.PR
        n, u, v_, lr, li, t0, t1, t2, t3 = range(116, 125)
        I(f'v_lshrrev_b32 v{t0}, 4, v{vL}')
        I(f's_lshl_b32 s{sTmp}, s{sw}, 1'); I(f's_lshl_b32 s{sTmp}, 8, s{sTmp}')
        I(f'v_mul_u32_u24 v{n}, s{sTmp}, v{t0}')
        I(f'v_mov_b32 v{t1}, 1'); I(f'v_mov_b32 v{t2}, 0x200')
        I(f's_cmp_eq_u32 s{sw}, 3'); I(f's_cselect_b64 s[{sBad}:{sBad+1}], -1, 0'); I(f's_cselect_b32 s{sMsel+1}, 0xffff, 0')
        I(f'v_cmp_eq_u32 vcc, 1, v{t0}'); I(f'v_cndmask_b32 v{t1}, v{t1}, v{t2}, vcc')
        I(f's_mov_b32 s{sMsel}, 0')
        I(f'v_cndmask_b32 v{n}, v{n}, v{t1}, s[{sBad}:{sBad+1}]'); I(f'v_cvt_f32_u32 v{n}, v{n}')
        wa = 125
        I(f's_lshl_b32 s{sTmp}, s{sw}, 9'); I(f's_add_u32 s{sTmp}, s{sTmp}, {L_TAB}')
        I(f'v_lshlrev_b32 v{wa}, 3, v{vL}'); I(f'v_add_u32 v{wa}, s{sTmp}, v{wa}')
        for t in range(2):
            p = PR + 3 * t
            I(f'v_lshlrev_b32 v{lr}, 16, v{p}'); I(f'v_lshlrev_b32 v{li}, 16, v{p+1}'); I(f'v_lshlrev_b32 v{t0}, 16, v{p+2}')
            I(f'v_mul_f32 v{t0}, {LOG2E:#x}, v{t0}'); I(f'v_exp_f32 v{t0}, v{t0}')
            I(f'v_cvt_pk_bf16_f32 v{t0}, v{t0}, v{t0}'); I(f'v_lshlrev_b32 v{t0}, 16, v{t0}')
            I(f'v_mul_f32 v{u}, v{t0}, v{lr}'); I(f'v_mul_f32 v{v_}, v{t0}, v{li}')
            I(f'v_mul_f32 v{u}, {LOG2E:#x}, v{u}'); I(f'v_mul_f32 v{v_}, {INV2PI:#x}, v{v_}')
            I(f'v_mul_f32 v{u}, v{n}, v{u}'); I(f'v_mul_f32 v{v_}, v{n}, v{v_}')
            I(f'v_exp_f32 v{u}, v{u}'); I(f'v_fract_f32 v{v_}, v{v_}')
            I(f'v_cos_f32 v{t0}, v{v_}'); I(f'v_sin_f32 v{t1}, v{v_}')
            P = 126
            I(f'v_mul_f32 v{P}, v{u}, v{t0}'); I(f'v_mul_f32 v{P+1}, v{u}, v{t1}')
            I(f'v_add_f32 v{t0}, -1.0, v{P}')
            I(f'v_mul_f32 v{t1}, v{lr}, v{lr}'); I(f'v_fma_f32 v{t1}, v{li}, v{li}, v{t1}'); I(f'v_rcp_f32 v{t1}, v{t1}')
            I(f'v_mul_f32 v{t2}, v{t0}, v{lr}'); I(f'v_fma_f32 v{t2}, v{P+1}, v{li}, v{t2}')
            I(f'v_mul_f32 v{t3}, v{P+1}, v{lr}'); I(f'v_fma_f32 v{t3}, -v{t0}, v{li}, v{t3}')
            I(f'v_add_f32 v{t1}, v{t1}, v{t1}')
            I(f'v_mul_f32 v{t2}, v{t2}, v{t1}'); I(f'v_mul_f32 v{t3}, v{t3}, v{t1}')
            I(f'v_cndmask_b32 v{P}, v{P}, v{t2}, s[{sMsel}:{sMsel+1}]'); I(f'v_cndmask_b32 v{P+1}, v{P+1}, v{t3}, s[{sMsel}:{sMsel+1}]')
            I(f'ds_write_b64 v{wa}, v[{P}:{P+1}] offset:{2048*t}')

    def stats_x(s):
        I = s.I; XR = s.XR; SV = s.SV
        F = 128
        for r in range(2):
            for k in range(4):
                I(f'v_lshlrev_b32 v{F+8*r+2*k}, 16, v{XR+4*r+k}'); I(f'v_and_b32 v{F+8*r+2*k+1}, 0xffff0000, v{XR+4*r+k}')
        pa, pb, t0, t1 = 144, 145, 146, 147
        def reduce2(pa, pb):
            I(f'v_permlane32_swap_b32 v{pa}, v{pb}'); I(f'v_add_f32 v{pa}, v{pa}, v{pb}')
            I(f'v_mov_b32 v{pb}, v{pa}'); I(f'v_permlane16_swap_b32 v{pa}, v{pb}'); I(f'v_add_f32 v{pa}, v{pa}, v{pb}')
            for k in (8, 4, 2, 1): I(f'v_add_f32_dpp v{pa}, v{pa}, v{pa} row_ror:{k} row_mask:0xf bank_mask:0xf')
            I(f'v_mov_b32 v{pb}, v{pa}'); I(f'v_permlane32_swap_b32 v{pa}, v{pb}')
        for k in range(1, 8):
            for r, p in ((0, pa), (1, pb)):
                if k == 1: I(f'v_add_f32 v{p}, v{F+8*r}, v{F+8*r+1}')
                else: I(f'v_add_f32 v{p}, v{p}, v{F+8*r+k}')
        reduce2(pa, pb)
        I(f'v_mul_f32 v{t0}, 0x3b000000, v{pa}'); I(f'v_mul_f32 v{t1}, 0x3b000000, v{pb}')
        for r, m in ((0, t0), (1, t1)):
            for k in range(8): I(f'v_sub_f32 v{F+8*r+k}, v{F+8*r+k}, v{m}')
        for k in range(8):
            for r, p in ((0, pa), (1, pb)):
                if k == 0: I(f'v_mul_f32 v{p}, v{F+8*r}, v{F+8*r}')
                else: I(f'v_fmac_f32 v{p}, v{F+8*r+k}, v{F+8*r+k}')
        reduce2(pa, pb)
        I(f'v_cndmask_b32 v{t0}, v{t0}, v{t1}, s[{sMhi}:{sMhi+1}]')
        I(f'v_cndmask_b32 v{pa}, v{pa}, v{pb}, s[{sMhi}:{sMhi+1}]')
        I(f'v_mul_f32 v{pa}, 0x3b000000, v{pa}')
        I(f'v_cvt_pk_bf16_f32 v{pa}, v{pa}, v{pa}'); I(f'v_lshlrev_b32 v{pa}, 16, v{pa}')
        I(f'v_add_f32 v{pa}, 0x3727c5ac, v{pa}')
        I(f'v_cvt_pk_bf16_f32 v{pa}, v{pa}, v{pa}'); I(f'v_lshlrev_b32 v{pa}, 16, v{pa}')
        I(f'v_sqrt_f32 v{pa}, v{pa}')
        I(f'v_cvt_pk_bf16_f32 v{SV}, v{pa}, v{t0}')
        I(f'v_and_b32 v{t1}, 31, v{vL}'); I(f'v_lshrrev_b32 v{t0}, 2, v{vL}'); I(f'v_mov_b32 v{pb}, {OOB}')
        I(f'v_cmp_eq_u32 vcc, 0, v{t1}'); I(f'v_cndmask_b32 v{SV+4}, v{pb}, v{t0}, vcc')
    def stats_s(s):
        I = s.I; SR = s.SR; SV = s.SV
        F = 158
        F = 64; q0, q1, ob = 72, 73, 74
        for k in range(4):
            I(f'v_lshlrev_b32 v{F+2*k}, 16, v{SR+k}'); I(f'v_and_b32 v{F+2*k+1}, 0xffff0000, v{SR+k}')
        for k in range(4): I(f'v_add_f32 v{F+k}, v{F+k}, v{F+4+k}')
        I(f'v_add_f32 v{F}, v{F}, v{F+2}'); I(f'v_add_f32 v{F+1}, v{F+1}, v{F+3}'); I(f'v_add_f32 v{q0}, v{F}, v{F+1}')
        I(f'v_mov_b32 v{q1}, v{q0}'); I(f'v_permlane32_swap_b32 v{q0}, v{q1}'); I(f'v_add_f32 v{q0}, v{q0}, v{q1}')
        I(f'v_mov_b32 v{q1}, v{q0}'); I(f'v_permlane16_swap_b32 v{q0}, v{q1}'); I(f'v_add_f32 v{q0}, v{q0}, v{q1}')
        for k in (8, 4, 2): I(f'v_add_f32_dpp v{q0}, v{q0}, v{q0} row_ror:{k} row_mask:0xf bank_mask:0xf')
        I(f'v_add_f32_dpp v{SV+2}, v{q0}, v{q0} row_ror:1 row_mask:0xf bank_mask:0xf')
        I(f'v_mov_b32 v{ob}, {OOB}')
        I(f'v_cmp_eq_u32 vcc, 0, v{vL}'); I(f'v_cndmask_b32 v{SV+5}, v{ob}, 0, vcc')

    def pub_prog(s):
        e = s.e; NP = s.NP; SV = s.SV
        Ls = s.lab('nps'); Lr = s.lab('npr')
        def chk():
            e.wait_tag('NP')
            s.I(f'v_readfirstlane_b32 s{sNonce}, v{NP}'); s.I(f's_cmp_eq_u32 s{sNonce}, 0'); e.raw(f's_cbranch_scc1 {Ls}'); e.label(Lr)
        def slow():
            e.label(Ls); e.reset_hazards(); e.vm = []; e.lgk = []
            s.I(f's_mov_b32 s{sSpin}, 0')
            e.label(Ls + 'l'); e.reset_hazards()
            s.I(f'buffer_load_dword v{NP}, v{NP+1}, s[{sDBG}:{sDBG+3}], 0 offen sc1'); e.force_wait('vmcnt(0)')
            s.I(f'v_readfirstlane_b32 s{sNonce}, v{NP}'); s.I(f's_add_u32 s{sSpin}, s{sSpin}, 1')
            s.I(f's_cmp_gt_u32 s{sSpin}, {SPIN}'); e.raw(f's_cbranch_scc1 {Lr}')
            s.I(f's_cmp_eq_u32 s{sNonce}, 0'); e.raw(f's_cbranch_scc1 {Ls}l')
            e.raw('s_nop 4'); e.raw(f's_branch {Lr}')
        s.slow.append(slow)
        return [Fn(chk, 16), f'v_mov_b32 v{SV+1}, s{sNonce}', f'v_mov_b32 v{SV+3}, s{sNonce}', f'v_mov_b32 v{vNon}, s{sNonce}',
                f'buffer_store_dwordx2 v[{SV}:{SV+1}], v{SV+4}, s[{sWS}:{sWS+3}], s{sGa} offen sc1',
                f'buffer_store_dwordx2 v[{SV+2}:{SV+3}], v{SV+5}, s[{sWS}:{sWS+3}], s{sGb} offen sc1']

    def fcs_prog(s):
        AC, FR, ONE, Gq, vo = 96, 112, 128, 132, 134
        ops = [f'v_mov_b32 v{ONE+k}, 0x3f803f80' for k in range(4)]
        for ks in range(4):
            ops += [f'ds_read_b64_tr_b16 v[{FR+4*ks}:{FR+4*ks+1}], v{vCA} offset:{2048*ks}', f'ds_read_b64_tr_b16 v[{FR+4*ks+2}:{FR+4*ks+3}], v{vCA} offset:{2048*ks+512}']
        ops += [f'v_lshlrev_b32 v{vo}, 3, v{vL}', f'v_mov_b32 v{vo+1}, {OOB}', f'v_cndmask_b32 v{vo}, v{vo}, v{vo+1}, s[{sMhi}:{sMhi+1}]',
                f's_and_b32 s{sTmp}, s{sR}, 1', f's_mul_i32 s{sTmp}, s{sTmp}, {28*4096}',
                f's_lshl_b32 s{sTmp2}, s{sSo2}, 5', f's_add_u32 s{sTmp}, s{sTmp}, s{sTmp2}']
        if s.typ == 'H':
            ops += [f's_lshl_b32 s{sTmp2}, s{sCp}, 12', f's_add_u32 s{sTmp}, s{sTmp}, s{sTmp2}']
        ops += [f's_lshl_b32 s{sTmp2}, s{sRho}, 9', f's_add_u32 s{sTmp}, s{sTmp}, s{sTmp2}',
                f's_lshl_b32 s{sTmp2}, s{sTp}, 8', f's_add_u32 s{sTmp}, s{sTmp}, s{sTmp2}', f's_add_u32 s{sGa}, s{sTmp}, {WS_CSF}']
        if s.typ == 'L':
            ops += [s.atom([f's_cmp_eq_u32 s{sCp}, 0', f's_cselect_b32 s{sGa}, s{sGa}, {OOB}'])]
        ops += [f'v_mov_b32 v{Gq+1}, s{sNonce}']
        for ks in range(4):
            ops.append(f'v_mfma_f32_32x32x16_bf16 v[{AC}:{AC+15}], v[{ONE}:{ONE+3}], v[{FR+4*ks}:{FR+4*ks+3}], ' + ('0' if ks == 0 else f'v[{AC}:{AC+15}]'))
        return ops, [f'v_mov_b32 v{Gq}, v{AC}', f'buffer_store_dwordx2 v[{Gq}:{Gq+1}], v{vo}, s[{sWS}:{sWS+3}], s{sGa} offen sc1']

    def tagcheck(s, regs, loads, exp=None):
        e = s.e
        ops = []
        for i, r in enumerate(regs):
            src = f's{sNonce}' if exp is None else f'v{exp[i]}'
            if i == 0: ops.append(f'v_cmp_ne_u32 s[{sBad}:{sBad+1}], {src}, v{r}')
            else:
                ops.append(s.atom([f'v_cmp_ne_u32 vcc, {src}, v{r}', f's_or_b64 s[{sBad}:{sBad+1}], s[{sBad}:{sBad+1}], vcc']))
        Ls = s.lab('slow'); Lr = s.lab('ret')
        def br():
            s.I(f's_cmp_lg_u64 s[{sBad}:{sBad+1}], 0'); e.raw(f's_cbranch_scc1 {Ls}'); e.label(Lr)
        ops.append(Fn(br, 8))
        def slow():
            e.label(Ls); e.reset_hazards(); e.vm = []; e.lgk = []
            s.I(f's_mov_b32 s{sSpin}, 0')
            e.label(Ls + 'l'); e.reset_hazards()
            for x in loads: s.I(x)
            e.force_wait('vmcnt(0)')
            for i, r in enumerate(regs):
                src = f's{sNonce}' if exp is None else f'v{exp[i]}'
                if i == 0: s.I(f'v_cmp_ne_u32 s[{sBad}:{sBad+1}], {src}, v{r}')
                else:
                    s.I(f'v_cmp_ne_u32 vcc, {src}, v{r}'); s.I(f's_or_b64 s[{sBad}:{sBad+1}], s[{sBad}:{sBad+1}], vcc')
            s.I(f's_add_u32 s{sSpin}, s{sSpin}, 1'); s.I(f's_cmp_gt_u32 s{sSpin}, {SPIN}'); e.raw(f's_cbranch_scc1 {Lr}')
            s.I(f's_cmp_lg_u64 s[{sBad}:{sBad+1}], 0'); e.raw(f's_cbranch_scc1 {Ls}l')
            e.raw('s_nop 4'); e.raw(f's_branch {Lr}')
        s.slow.append(slow)
        return ops

    def pi_ops(s, d, t):
        return [f'v_bfe_u32 v{d}, v{vL}, 2, 1', f'v_lshlrev_b32 v{d}, 4, v{d}',
                f'v_and_b32 v{t}, 1, v{vL}', f'v_lshl_add_u32 v{d}, v{t}, 3, v{d}',
                f'v_bfe_u32 v{t}, v{vL}, 3, 2', f'v_lshl_add_u32 v{d}, v{t}, 1, v{d}',
                f'v_bfe_u32 v{t}, v{vL}, 1, 1', f'v_add_u32 v{d}, v{d}, v{t}']

    GA = 136
    def gA_issue(s):
        GA = s.GA; vp, va, vc = GA + 6, GA + 7, GA + 8
        ops = s.pi_ops(vp, va)
        ops += [f'v_lshlrev_b32 v{va}, 3, v{vp}',
                f's_lshl_b32 s{sTmp}, s{sR}, 10', f's_lshl_b32 s{sTmp2}, s{sTp}, 9', f's_add_u32 s{sTmp}, s{sTmp}, s{sTmp2}', f's_add_u32 s{sGa}, s{sTmp}, {WS_STATS}',
                f'v_and_b32 v{vc}, 31, v{vL}', f'v_lshlrev_b32 v{vc}, 3, v{vc}',
                f's_lshl_b32 s{sTmp}, s{sC}, 9', f's_lshl_b32 s{sTmp2}, s{sCp}, 8', f's_add_u32 s{sTmp}, s{sTmp}, s{sTmp2}', f's_add_u32 s{sGb}, s{sTmp}, {WS_CSS}']
        s.glA = [f'buffer_load_dwordx2 v[{GA}:{GA+1}], v{va}, s[{sWS}:{sWS+3}], s{sGa} offen sc1',
                 f'buffer_load_dwordx2 v[{GA+2}:{GA+3}], v{va}, s[{sWS}:{sWS+3}], s{sGa} offen offset:256 sc1',
                 f'buffer_load_dwordx2 v[{GA+4}:{GA+5}], v{vc}, s[{sWS}:{sWS+3}], s{sGb} offen sc1']
        ops += [(x, 'GA') for x in s.glA]
        return ops
    def split3(s, A, t0, t1, t2, o0, o1):
        return [f'v_cvt_pk_bf16_f32 v{t0}, v{A}, v{A}', f'v_and_b32 v{t0}, 0xffff0000, v{t0}',
                f'v_sub_f32 v{t1}, v{A}, v{t0}',
                f'v_cvt_pk_bf16_f32 v{t2}, v{t1}, v{t1}', f'v_and_b32 v{t2}, 0xffff0000, v{t2}',
                f'v_sub_f32 v{t1}, v{t1}, v{t2}',
                f'v_cvt_pk_bf16_f32 v{o1}, v{t1}, 0',
                f'v_lshrrev_b32 v{t0}, 16, v{t0}', f'v_or_b32 v{o0}, v{t0}, v{t2}']
    def gA_proc(s):
        GA = s.GA; vp = GA + 6
        ops = s.tagcheck([GA + 1, GA + 3, GA + 5], s.glA)
        t0, t1, t2, t3, ra = 145, 146, 147, 148, 149
        ops += [f'v_lshlrev_b32 v{ra}, 2, v{vp}', f's_lshl_b32 s{sTmp}, s{sTp}, 8', f's_add_u32 s{sTmp}, s{sTmp}, {L_RS}', f'v_add_u32 v{ra}, s{sTmp}, v{ra}']
        ops += [f's_mov_b32 s{sTmp2}, {NLOG2E:#x}']
        for t in range(2):
            ms = GA + 2 * t; xa = vXaug + 4 * t
            ops += [f'v_lshlrev_b32 v{t0}, 16, v{ms}',
                    f'v_and_b32 v{t1}, 0xffff0000, v{ms}', f'v_xor_b32 v{t1}, 0x80000000, v{t1}',
                    f'v_rcp_f32 v{t2}, v{t0}', f'v_mul_f32 v{vK2+t}, v{t0}, v{t0}',
                    f'v_lshrrev_b32 v{t3}, 16, v{t1}', f'v_or_b32 v{t1}, v{t1}, v{t3}',
                    f'v_cndmask_b32 v{xa}, v{t1}, 0, s[{sMhi}:{sMhi+1}]', f'v_cndmask_b32 v{xa+1}, v{t3}, 0, s[{sMhi}:{sMhi+1}]',
                    f'v_mov_b32 v{xa+2}, 0', f'v_mov_b32 v{xa+3}, 0',
                    f'v_mul_f32 v{vNRS+t}, s{sTmp2}, v{t2}',
                    f'ds_write_b32 v{ra}, v{t2} offset:{128*t}']
        ops += s.split3(GA + 4, t0, t1, t2, vSA, vSA + 1)
        ops += [f'v_mov_b32 v{vSA+2}, 0', f'v_mov_b32 v{vSA+3}, 0']
        return ops

    GB = 96
    def gB_issue(s):
        GB = s.GB
        ops = [f's_mul_i32 s{sTmp3}, s{sTp}, {28*4096}', f's_lshl_b32 s{sTmp2}, s{sSo2}, 5', f's_add_u32 s{sTmp3}, s{sTmp3}, s{sTmp2}']
        if s.typ == 'H': ops += [f's_lshl_b32 s{sTmp2}, s{sCp}, 12', f's_add_u32 s{sTmp3}, s{sTmp3}, s{sTmp2}']
        ops += [f's_add_u32 s{sTmp3}, s{sTmp3}, {WS_CSF}']
        s.glB = [f'buffer_load_dwordx4 v[{GB+4*n}:{GB+4*n+3}], v{vHB}, s[{sWS}:{sWS+3}], s{sMsel} offen offset:{1024*n} sc1' for n in range(4)]
        ops += [f's_mov_b32 s{sMsel}, s{sTmp3}']
        ops += [(x, 'GB') for x in s.glB]
        return ops
    def gB_proc(s):
        GB = s.GB
        regs = [GB + 4 * n + 1 + 2 * m for n in range(4) for m in range(2)]
        ops = s.tagcheck(regs, s.glB)
        t0, t1, t2, wa = 112, 113, 114, 115
        O = 116
        A, B = GB, GB + 2
        ops += [f'v_add_f32 v{A}, v{A}, v{GB+4}', f'v_add_f32 v{B}, v{B}, v{GB+6}',
                f'v_add_f32 v{GB+8}, v{GB+8}, v{GB+12}', f'v_add_f32 v{GB+10}, v{GB+10}, v{GB+14}',
                f'v_add_f32 v{A}, v{A}, v{GB+8}', f'v_add_f32 v{B}, v{B}, v{GB+10}',
                f'v_permlane32_swap_b32 v{A}, v{B}', f'v_add_f32 v{A}, v{A}, v{B}']
        ops += s.split3(A, t0, t1, t2, O, O + 1)
        ops += [f'v_and_b32 v{wa}, 31, v{vL}', f'v_lshlrev_b32 v{wa}, 4, v{wa}', f'v_lshrrev_b32 v{t0}, 5, v{vL}', f'v_lshl_add_u32 v{wa}, v{t0}, 3, v{wa}']
        if s.typ == 'H':
            ops += [f's_lshl_b32 s{sTmp}, s{sCp}, 10', f's_lshl_b32 s{sTmp2}, s{sTp}, 9', f's_add_u32 s{sTmp}, s{sTmp}, s{sTmp2}', f's_add_u32 s{sTmp}, s{sTmp}, {L_WAUG}']
        else:
            ops += [f's_lshl_b32 s{sTmp}, s{sTp}, 9', f's_add_u32 s{sTmp}, s{sTmp}, {L_WAUG}']
        ops += [f'v_add_u32 v{wa}, s{sTmp}, v{wa}', f'ds_write_b64 v{wa}, v[{O}:{O+1}]']
        return ops

    def g_part(s, G, t, T):
        ops = []
        for h in range(2):
            g = G + 8 * h
            for j in range(8): ops.append(f'v_mul_f32 v{T+j}, v{vNRS+t}, v{g+j}')
            for j in range(8): ops.append(f'v_exp_f32 v{T+j}, v{T+j}')
            for j in range(8): ops.append(f'v_fma_f32 v{T+j}, v{vK2+t}, v{T+j}, v{vK2+t}')
            for j in range(8): ops.append(f'v_rcp_f32 v{T+j}, v{T+j}')
            for j in range(8): ops.append(f'v_mul_f32 v{g+j}, v{g+j}, v{T+j}')
        return ops
    def u_part(s, G, U, t, line):
        ops = []
        for h in range(2):
            g = G + 8 * h; u = U + 8 * h
            for j in range(8): ops.append(f'v_mul_f32 v{u+j}, v{u+j}, v{g+j}')
            for j in range(4): ops.append(f'v_cvt_pk_bf16_f32 v{u+j}, v{u+2*j}, v{u+2*j+1}')
            add = t * TSTRIDE + line * 4096
            st = f'buffer_store_dwordx4 v[{u}:{u+3}], v{vHB}, s[{sWS}:{sWS+3}], s{sGb} offen offset:{1024*h} sc1'
            if add: ops.append(s.atom([f's_add_u32 s{sGb}, s{sHF}, {add}', (st, f'HF{line}')]))
            else: ops.append(s.atom([f's_mov_b32 s{sGb}, s{sHF}', (st, f'HF{line}')]))
        return ops

    def s_setup(s):
        a, b = 240, 241
        o = []
        o += [f'v_and_b32 v{a}, 15, v{vL}', f'v_lshlrev_b32 v{b}, 3, v{a}',
              f's_lshl_b32 s{sTmp}, s{sCp}, 11', f's_add_u32 s{sTmp}, s{sTmp}, {L_TAB}',
              f'v_add_u32 v{vCh}, s{sTmp}, v{b}',
              f'v_lshlrev_b32 v{vTg}, 3, v{vL}', f'v_add_u32 v{vTg}, s{sTmp}, v{vTg}',
              f's_lshl_b32 s{sTmp}, s{sCp}, 7', f's_lshl_b32 s{sTmp2}, s{sTp}, 9', f's_add_u32 s{sTmp}, s{sTmp}, s{sTmp2}', f's_add_u32 s{sTmp}, s{sTmp}, {L_TOTZ}',
              f'v_add_u32 v{vTo}, s{sTmp}, v{b}',
              f'v_lshrrev_b32 v{b}, 4, v{vL}', f'v_lshlrev_b32 v{vRs}, 5, v{b}', f's_lshl_b32 s{sTmp}, s{sTp}, 8', f's_add_u32 s{sTmp}, s{sTmp}, {L_RS}',
              f'v_add_u32 v{vRs}, s{sTmp}, v{vRs}',
              f's_mul_i32 s{sTmp}, s{sw}, 2560', f's_add_u32 s{sTmp}, s{sTmp}, {L_TR}',
              f'v_mul_u32_u24 v{vTw}, 80, v{a}', f'v_lshl_add_u32 v{vTw}, v{b}, 4, v{vTw}', f'v_add_u32 v{vTw}, s{sTmp}, v{vTw}',
              f'v_lshrrev_b32 v{vTr}, 5, v{vL}', f'v_lshlrev_b32 v{vTr}, 3, v{vTr}', f'v_bfe_u32 v{b}, v{vL}, 2, 2', f'v_add_u32 v{vTr}, v{vTr}, v{b}',
              f'v_mul_u32_u24 v{vTr}, 80, v{vTr}',
              f'v_and_b32 v{b}, 3, v{vL}', f'v_lshl_add_u32 v{vTr}, v{b}, 3, v{vTr}',
              f'v_bfe_u32 v{b}, v{vL}, 4, 1', f'v_lshl_add_u32 v{vTr}, v{b}, 5, v{vTr}',
              f'v_add_u32 v{vTr}, s{sTmp}, v{vTr}']
        o += [f'v_lshlrev_b32 v{a}, 4, v{a}', f's_lshl_b32 s{sTmp}, s{sR}, 8',
              s.atom([f's_cmp_eq_u32 s{sTp}, 1', f's_cselect_b32 s{sTmp}, s{sTmp}, {OOB}']),
              f'v_add_u32 v{a}, s{sTmp}, v{a}', f'v_mov_b32 v{b}, {OOB}',
              s.atom([f'v_cmp_gt_u32 vcc, 16, v{vL}', f'v_cndmask_b32 v{vEo}, v{b}, v{a}, vcc']),
              s.atom([f'v_cmp_eq_u32 vcc, 0, v{vL}', f'v_cndmask_b32 v{vFl}, v{b}, 0, vcc'])]
        return o
    def s1(s, t):
        A = aS + 16 * t; P = vPc + 2 * t
        R = 128; L1, L8, L16 = 136, 138, 140
        E, Z, X, Q, Y = 142, 144, 146, 148, 150
        def pr(r): return f'v[{r}:{r+1}]'
        ops = [f'ds_read_b128 v[{R}:{R+3}], v{vRs} offset:{128*t}', f'ds_read_b128 v[{R+4}:{R+7}], v{vRs} offset:{128*t+16}',
               f'ds_read_b64 {pr(L1)}, v{vCh} offset:1536', f'ds_read_b64 {pr(L8)}, v{vCh} offset:128', f'ds_read_b64 {pr(L16)}, v{vCh} offset:256']
        for m in range(8): ops.append(f'v_permlane16_swap_b32 v{A+2*m}, v{A+2*m+1}')
        for m in range(8):
            ops += [f'v_mul_f32 v{A+2*m}, v{R+m}, v{A+2*m}', f'v_mul_f32 v{A+2*m+1}, v{R+m}, v{A+2*m+1}']
        prev = A
        e0, e1 = E, Z
        for m in range(1, 8):
            ops += cmac(e0, L1, prev, A + 2 * m)
            prev = e0; e0, e1 = e1, e0
        E = prev; Z = e0
        ops += [f'v_mov_b32 v{Z}, 0', f'v_mov_b32 v{Z+1}, 0', f'v_mov_b32 v{X}, v{E}', f'v_mov_b32 v{X+1}, v{E+1}',
                f'v_cndmask_b32 v{Q}, 1.0, v{L8}, s[{sModd}:{sModd+1}]', f'v_cndmask_b32 v{Q+1}, 0, v{L8+1}, s[{sModd}:{sModd+1}]',
                f'v_permlane16_swap_b32 v{Z}, v{X}', f'v_permlane16_swap_b32 v{Z+1}, v{X+1}']
        ops += cmac(E, L8, Z, E)
        ops += [f'v_mov_b32 v{X}, v{E}', f'v_mov_b32 v{X+1}, v{E+1}', f'v_mov_b32 v{Y}, 0', f'v_mov_b32 v{Y+1}, 0',
                f'v_permlane16_swap_b32 v{E}, v{X}', f'v_permlane16_swap_b32 v{E+1}, v{X+1}',
                f'v_permlane32_swap_b32 v{Y}, v{X}', f'v_permlane32_swap_b32 v{Y+1}, v{X+1}']
        ops += cmac(X, L16, Y, X)
        ops += cmac(P, Q, Y, Z)
        ops += [s.atom([f's_mov_b64 exec, s[{sMhi}:{sMhi+1}]', f'ds_write_b64 v{vTo}, {pr(X)} offset:{(3+t)*256}', f's_mov_b64 exec, -1'])]
        return ops
    def s2(s):
        R = 240; L32 = 250; Gq = 240
        def pr(r): return f'v[{r}:{r+1}]'
        ops = []
        for k in range(5): ops.append(f'ds_read_b64 {pr(R+2*k)}, v{vTo} offset:{k*256}')
        ops.append(f'ds_read_b64 {pr(L32)}, v{vCh} offset:640')
        ops += [f's_lshl_b32 s{sTmp}, s{sC}, 13', f's_lshl_b32 s{sTmp2}, s{sCp}, 12', f's_add_u32 s{sTmp}, s{sTmp}, s{sTmp2}', f's_add_u32 s{sGa}, s{sTmp}, {WS_E}']
        ops += cmac(R + 2, L32, R, R + 2)
        ops += cmac(vPC, L32, R + 2, R + 4)
        ops += cmac(vPC + 2, L32, vPC, R + 6)
        ops += cmac(R + 8, L32, vPC + 2, R + 8)
        ops += [f'v_mov_b32 v{Gq}, v{R+8}', f'v_mov_b32 v{Gq+1}, s{sNonce}', f'v_mov_b32 v{Gq+2}, v{R+9}', f'v_mov_b32 v{Gq+3}, s{sNonce}']
        ops += [f'buffer_store_dwordx4 v[{Gq}:{Gq+3}], v{vEo}, s[{sWS}:{sWS+3}], s{sGa} offen sc1']
        return ops
    EG, vEg, vEx = 32, 48, 52
    def s3_issue(s):
        EG, vEg, vEx = s.EG, s.vEg, s.vEx
        a, b = 56, 57
        o = [f'v_and_b32 v{a}, 15, v{vL}', f'v_lshlrev_b32 v{a}, 4, v{a}', f'v_lshrrev_b32 v{b}, 4, v{vL}', f'v_sub_u32 v{b}, s{sR}, v{b}', f'v_add_u32 v{b}, -1, v{b}']
        for k in range(4):
            g = vEg + k; x = vEx + k
            if k: o.append(f'v_add_u32 v{b}, -4, v{b}')
            o += [f'v_lshl_add_u32 v{g}, v{b}, 8, v{a}', f'v_mov_b32 v{x}, {OOB}',
                  s.atom([f'v_cmp_le_i32 vcc, 0, v{b}', f'v_cndmask_b32 v{g}, v{x}, v{g}, vcc', f'v_cndmask_b32 v{x}, 0, v{vNon}, vcc'])]
        s.glE = [f'buffer_load_dwordx4 v[{EG+4*k}:{EG+4*k+3}], v{vEg+k}, s[{sWS}:{sWS+3}], s{sGa} offen sc1' for k in range(4)]
        o += [(x, 'EG') for x in s.glE]
        return o
    def s3(s):
        EG, vEx = s.EG, s.vEx
        L512, Q = 56, 58
        regs = [EG + 4 * k + 1 + 2 * m for k in range(4) for m in range(2)]
        exp = [vEx + k for k in range(4) for m in range(2)]
        ops = [f'ds_read_b64 v[{L512}:{L512+1}], v{vCh} offset:1664', f'ds_read_b64 v[{Q}:{Q+1}], v{vTg} offset:1024']
        ops += s.tagcheck(regs, s.glE, exp)
        def cm4(dr, di, ar, ai, br, bi, cr, ci):
            return [f'v_fmac_f32 v{dr}, v{ar}, v{br}', f'v_fmac_f32 v{di}, v{ar}, v{bi}',
                    f'v_fma_f32 v{dr}, -v{ai}, v{bi}, v{dr}', f'v_fmac_f32 v{di}, v{ai}, v{br}']
        for k in (2, 1, 0):
            ops += cm4(EG + 4 * k, EG + 4 * k + 2, L512, L512 + 1, EG + 4 * (k + 1), EG + 4 * (k + 1) + 2, EG + 4 * k, EG + 4 * k + 2)
        wr, wi = EG + 4, EG + 5; H = vH
        ops += [f'v_mul_f32 v{wr}, v{Q}, v{EG}', f'v_mul_f32 v{wi}, v{Q}, v{EG+2}', f'v_fma_f32 v{wr}, -v{Q+1}, v{EG+2}, v{wr}', f'v_fmac_f32 v{wi}, v{Q+1}, v{EG}',
                f'v_permlane16_swap_b32 v{wr}, v{wi}', f'v_add_f32 v{wr}, v{wr}, v{wi}', f'v_mov_b32 v{wi}, v{wr}',
                f'v_permlane32_swap_b32 v{wr}, v{wi}', f'v_add_f32 v{H}, v{wr}, v{wi}', f'v_mov_b32 v{H+1}, v{H}',
                f'v_permlane16_swap_b32 v{H}, v{H+1}']
        return ops
    def s4(s, t):
        A = aS + 16 * t; P = vPc + 2 * t; C = vPC + 2 * t
        L1, Q32, Q8, CF = 240, 242, 244, 246
        X = 248
        O = 184
        def pr(r): return f'v[{r}:{r+1}]'
        ops = [f's_lshl_b32 s{sTmp}, s{sTp}, 8', f'v_add_u32 v{O}, s{sTmp}, v{vCh}',
               f'ds_read_b64 {pr(Q32)}, v{O} offset:{512+128*t}', f'ds_read_b64 {pr(Q8)}, v{vTg}',
               f'ds_read_b64 {pr(L1)}, v{vCh} offset:1536', f'ds_read_b64 {pr(CF)}, v{vCh} offset:1792']
        ops += [f's_lshl_b32 s{sTmp}, s{sC}, 1', f's_add_u32 s{sTmp}, s{sTmp}, s{sCp}',
                f's_lshr_b32 s{sTmp2}, s{sTmp}, 2', f's_lshl_b32 s{sTmp2}, s{sTmp2}, 3', f's_and_b32 s{sTmp}, s{sTmp}, 3', f's_add_u32 s{sTmp}, s{sTmp}, s{sTmp2}',
                f's_add_u32 s{sTmp}, s{sTmp}, 112', f's_lshl_b32 s{sTmp}, s{sTmp}, 10', f's_add_u32 s{sTmp3}, s{sTmp}, s{sTg0}']
        if t: ops += [f's_add_u32 s{sTmp3}, s{sTmp3}, {TSTRIDE}']
        ops += cmac(C, Q32, vH, C)
        ops += cmac(P, Q8, C, P)
        prev = P
        def cf(m):
            x = X + 2 * (m & 1); r = A + 2 * m
            return [f'v_mul_f32 v{x}, v{r}, v{CF}', f'v_mul_f32 v{x+1}, v{r}, v{CF+1}',
                    f'v_fma_f32 v{r}, -v{r+1}, v{CF+1}, v{x}', f'v_fma_f32 v{r+1}, -v{r+1}, v{CF}, -v{x+1}']
        for m in range(8):
            ops += cmac(A + 2 * m, L1, prev, A + 2 * m); prev = A + 2 * m
            if m >= 1: ops += cf(m - 1)
        ops += cf(7)
        for k in range(4): ops.append(f'v_cvt_pk_bf16_f32 v{O+k}, v{A+4*k}, v{A+4*k+2}')
        for k in range(4): ops.append(f'v_cvt_pk_bf16_f32 v{O+4+k}, v{A+4*k+1}, v{A+4*k+3}')
        ops += [f'ds_write_b128 v{vTw}, v[{O}:{O+3}]', f'ds_write_b128 v{vTw}, v[{O+4}:{O+7}] offset:1280']
        for ri in range(2):
            d = A + 4 * ri
            ops += [f'ds_read_b64_tr_b16 v[{d}:{d+1}], v{vTr} offset:{1280*ri}', f'ds_read_b64_tr_b16 v[{d+2}:{d+3}], v{vTr} offset:{1280*ri+320}']
        ops += [(f'buffer_store_dwordx4 v[{A}:{A+3}], v{vHB}, s[{sWS}:{sWS+3}], s{sTmp3} offen sc1', 'HS'), f's_add_u32 s{sTmp3}, s{sTmp3}, 4096',
                (f'buffer_store_dwordx4 v[{A+4}:{A+7}], v{vHB}, s[{sWS}:{sWS+3}], s{sTmp3} offen sc1', 'HS')]
        return ops
    def aug_F(s, acc, idx):
        fa = 244
        return [f'v_and_b32 v{fa+2}, 31, v{vL}', f'v_lshlrev_b32 v{fa+2}, 3, v{fa+2}',
                f's_lshl_b32 s{sTmp}, s{sCp}, 8', f's_add_u32 s{sTmp}, s{sTmp}, {L_WAUG + 512*idx}', f'v_add_u32 v{fa+2}, s{sTmp}, v{fa+2}',
                f'ds_read_b64 v[{fa}:{fa+1}], v{fa+2}', f'v_mov_b32 v{fa+3}, 0', f'v_mov_b32 v{fa+2}, 0'] + \
               [f'v_mfma_f32_32x32x16_bf16 v[{acc+16*t}:{acc+16*t+15}], v[{fa}:{fa+3}], v[{vXaug+4*t}:{vXaug+4*t+3}], v[{acc+16*t}:{acc+16*t+15}]' for t in range(2)]
    def aug_S(s):
        return [f'v_mfma_f32_32x32x16_bf16 v[{aS+16*t}:{aS+16*t+15}], v[{vXaug+4*t}:{vXaug+4*t+3}], v[{vSA}:{vSA+3}], v[{aS+16*t}:{aS+16*t+15}]' for t in range(2)]
    def flag_prog(s, tag, phase):
        def f():
            s.e.wait_tag(tag)
            s.I(f'buffer_store_dword v{vNon}, v{vFl}, s[{sWS}:{sWS+3}], s{sFlP} offen offset:{32*phase} sc1')
        return [Fn(f, 8)]
    def poll_issue(s):
        return (f'buffer_load_dword v{vPo}, v{vPl}, s[{sWS}:{sWS+3}], s{sFlC} offen sc1', 'PL')
    def poll_check(s, mask):
        e = s.e
        Ls = s.lab('pslow'); Lr = s.lab('pret')
        def chk():
            s.I(f'v_cmp_eq_u32 vcc, s{sNonce}, v{vPo}'); s.I(f's_and_b32 s{sKa}, vcc_lo, {mask:#x}')
            s.I(f's_cmp_eq_u32 s{sKa}, {mask:#x}'); e.raw(f's_cbranch_scc0 {Ls}'); e.label(Lr)
        def slow():
            e.label(Ls); e.reset_hazards(); e.vm = []; e.lgk = []
            s.I(f's_mov_b32 s{sSpin}, 0')
            e.label(Ls + 'l'); e.reset_hazards()
            s.I(s.poll_issue()[0]); e.force_wait('vmcnt(0)')
            s.I(f'v_cmp_eq_u32 vcc, s{sNonce}, v{vPo}'); s.I(f's_and_b32 s{sKa}, vcc_lo, {mask:#x}')
            s.I(f's_add_u32 s{sSpin}, s{sSpin}, 1'); s.I(f's_cmp_gt_u32 s{sSpin}, {SPIN}'); e.raw(f's_cbranch_scc1 {Lr}')
            s.I(f's_cmp_eq_u32 s{sKa}, {mask:#x}'); e.raw(f's_cbranch_scc0 {Ls}l')
            e.raw('s_nop 4'); e.raw(f's_branch {Lr}')
        s.slow.append(slow)
        return chk

    TYPES = [('o', 0), ('o', 2), ('o', 4), ('o', 6), ('o', 1), ('o', 3), ('o', 5), ('y', 0), ('y', 1), ('y', 2), ('y', 3)]
    def issueB(s, q):
        ty, j = s.TYPES[q]
        S = (q & 3) * 32
        out = []
        for s_ in range(4):
            for t in range(2):
                r = S + 8 * s_ + 4 * t
                ins = f'buffer_load_dwordx4 a[{r}:{r+3}], v{vHB if t == 0 else vB1}, s[{sWS}:{sWS+3}], s{sKb} offen offset:{1024*s_} sc1'
                pre = [f's_add_u32 s{sKb}, s{sBE if ty == "o" else sBY}, {j*4096}'] if (s_ == 0 and t == 0) else []
                def f(pre=pre, ins=ins):
                    for p in pre: s.I(p)
                    s.I(ins, f'B{q}')
                out.append(f)
        return out
    def issueW(s, q):
        ty, j = s.TYPES[q]
        slot = (q + 2) & 3
        ops = []
        for half in range(2):
            for i in range(4):
                pre = []
                if i == 0:
                    pre.append(f's_add_u32 m0, s{sW13}, {slot*SLOT + half*4096}')
                    if ty == 'o': pre.append(f's_add_u32 s{sKc}, s{sRowW}, {j*65536 + half*32768}')
                    else: pre.append(f's_add_u32 s{sKc}, s{sCrow}, {(j >> 1)*128 + half*32768}')
                if ty == 'o': ins = f'buffer_load_dwordx4 v{vW+i}, s[{sW2}:{sW2+3}], s{sKc} offen offset:{1024*i} lds'
                else:
                    sr = sCIM if (j & 1) else sCRE
                    ins = f'buffer_load_dwordx4 v{vC+i}, s[{sr}:{sr+3}], s{sKc} offen offset:{1024*i} lds'
                ops.append((pre, ins))
        return s.mkdma(ops, f'W{q}')
    def readA(s, q, s_, buf):
        ty, j = s.TYPES[q]
        slot = (q + 2) & 3
        out = []
        for ee in range(2):
            r = WF + 8 * buf + 4 * ee
            if ty == 'o':
                va = vA0 if ee == 0 else vA1
                for k in range(2):
                    def f(va=va, r=r, k=k):
                        o = s.addr(va, slot)
                        s.I(f'ds_read_b64_tr_b16 v[{r+2*k}:{r+2*k+1}], v{va} offset:{o + s_*2048 + 1024*k}')
                    out.append(f)
            else:
                def f(r=r, ee=ee):
                    o = s.addr(vY + s_, slot)
                    s.I(f'ds_read_b128 v[{r}:{r+3}], v{vY+s_} offset:{o + ee*4096}')
                out.append(f)
        return out
    def sched_item(s, it):
        if it[0] == 'W': return s.issueW(int(it[1:]))
        if it[0] == 'B': return s.issueB(int(it[1:]))
        if it[0] == 'p': return [lambda: s.I(*s.poll_issue())]
        if it[0] == 'c': return [s.poll_check({'E': 0xff, 'Y': 0xff00, 'L': 0x3f0000}[it[1]])]
        raise ValueError(it)
    def p2_late(s):
        a, b, c = 240, 241, 242
        o = [f'v_lshrrev_b32 v{a}, 3, v{vL}', f'v_lshlrev_b32 v{a}, 10, v{a}', f'v_lshrrev_b32 v{b}, 4, v{vL}', f'v_and_b32 v{c}, 7, v{vL}',
             f'v_xor_b32 v{b}, v{b}, v{c}', f'v_lshl_add_u32 v{vC}, v{b}, 4, v{a}',
             f'v_xor_b32 v{vC+1}, 64, v{vC}', f'v_add_u32 v{vC+1}, 7168, v{vC+1}', f'v_add_u32 v{vC+2}, {7168*2}, v{vC}', f'v_add_u32 v{vC+3}, {7168*2}, v{vC+1}']
        return o
    def p2_late2(s):
        a, b, c = 240, 241, 242
        o = [f'v_and_b32 v{a}, 31, v{vL}', f'v_lshlrev_b32 v{a}, 7, v{a}', f'v_bfe_u32 v{c}, v{vL}, 1, 3', f'v_lshrrev_b32 v{b}, 5, v{vL}', f'v_xor_b32 v{c}, v{c}, v{b}',
             f'v_lshl_add_u32 v{a}, v{c}, 4, v{a}', f'v_add_u32 v{vY}, s{sW13}, v{a}']
        o += [f'v_xor_b32 v{vY+k}, {32*k}, v{vY}' for k in range(1, 4)]
        for k in range(4): s.half[vY + k] = 0
        return o
    tX, tS, tDk, tSo, tDo, tDf, tXf, tYi, tRo, tRy, tF, tXo, tOo = 32, 40, 48, 50, 51, 52, 56, 72, 88, 89, 90, 94, 95
    def tail_addr(s):
        a, b, c, d = 240, 241, 242, 243
        tRo, tRy, tF = s.tRo, s.tRy, s.tF
        def key(dst, row, tmp):
            return [f'v_bfe_u32 v{tmp}, v{row}, 3, 2', f'v_lshlrev_b32 v{tmp}, 1, v{tmp}', f'v_and_b32 v{dst}, 7, v{row}', f'v_xor_b32 v{dst}, v{dst}, v{tmp}']
        o = s.pi_ops(a, b) + key(c, a, b) + [f'v_lshrrev_b32 v{d}, 5, v{vL}', f'v_xor_b32 v{c}, v{c}, v{d}', f'v_lshlrev_b32 v{a}, 8, v{a}',
             f'v_lshl_add_u32 v{a}, v{c}, 4, v{a}', f's_add_u32 s{sTmp}, s{sW13}, {SLOT}', f'v_add_u32 v{tRo}, s{sTmp}, v{a}']
        o += [f'v_and_b32 v{a}, 31, v{vL}'] + key(c, a, b) + [f'v_xor_b32 v{c}, v{c}, v{d}', f'v_lshlrev_b32 v{a}, 8, v{a}',
             f'v_lshl_add_u32 v{a}, v{c}, 4, v{a}', f's_add_u32 s{sTmp}, s{sW13}, {3*SLOT}', f'v_add_u32 v{tRy}, s{sTmp}, v{a}']
        o += [f'v_lshrrev_b32 v{b}, 4, v{vL}', f'v_and_b32 v{c}, 15, v{vL}', f'v_xor_b32 v{a}, v{b}, v{c}', f's_lshl_b32 s{sTmp}, s{sTp}, 2', f'v_xor_b32 v{a}, s{sTmp}, v{a}',
              f'v_lshlrev_b32 v{a}, 4, v{a}', f'v_lshl_add_u32 v{a}, v{b}, 8, v{a}',
              f's_lshl_b32 s{sTmp}, s{sTp}, 12', f's_lshl_b32 s{sTmp2}, s{sCp}, 15', f's_add_u32 s{sTmp}, s{sTmp}, s{sTmp2}', f's_add_u32 s{sTmp}, s{sTmp}, {SLOT}',
              f'v_add_u32 v{tF}, s{sTmp}, v{a}', f'v_xor_b32 v{tF+1}, 64, v{tF}', f'v_xor_b32 v{tF+2}, 32, v{tF}', f'v_xor_b32 v{tF+3}, 96, v{tF}',
              f'v_lshlrev_b32 v{s.tOo}, 11, v{b}', f'v_lshl_add_u32 v{s.tOo}, v{c}, 4, v{s.tOo}',
              f'v_lshlrev_b32 v{s.tXo}, 10, v{b}', f'v_lshl_add_u32 v{s.tXo}, v{c}, 3, v{s.tXo}',
              f'v_lshlrev_b32 v{s.tSo}, 3, v{b}', f'v_lshlrev_b32 v{s.tDo}, 3, v{c}', f'v_add_u32 v{s.tDo}, s{sDko}, v{s.tDo}']
        return o
    def tail_loads(s):
        o = []
        for i in range(4):
            o.append(s.atom([f's_add_u32 s{sTmp}, s{sXb}, {4096*i}', (f'buffer_load_dwordx2 v[{s.tX+2*i}:{s.tX+2*i+1}], v{s.tXo}, s[{sX}:{sX+3}], s{sTmp} offen', 'TX')]))
        for i in range(4):
            o.append((f'buffer_load_dwordx2 v[{s.tS+2*i}:{s.tS+2*i+1}], v{s.tSo}, s[{sWS}:{sWS+3}], s{sSb} offen offset:{32*i} sc1', 'TX'))
        o.append((f'global_load_dwordx2 v[{s.tDk}:{s.tDk+1}], v{s.tDo}, s[{kDk}:{kDk+1}]', 'TX'))
        return o
    def tail_pre(s):
        tX, tS, tDk, tDf, tXf, tYi = s.tX, s.tS, s.tDk, s.tDf, s.tXf, s.tYi
        o = [f'v_lshlrev_b32 v{tDf}, 16, v{tDk}', f'v_and_b32 v{tDf+1}, 0xffff0000, v{tDk}', f'v_lshlrev_b32 v{tDf+2}, 16, v{tDk+1}', f'v_and_b32 v{tDf+3}, 0xffff0000, v{tDk+1}']
        for i in range(4):
            m = tS + 2 * i; rs = m + 1; x0 = tX + 2 * i; xf = tXf + 4 * i; y = tYi + 4 * i
            o += [f'v_lshlrev_b32 v{rs}, 16, v{m}', f'v_rcp_f32 v{rs}, v{rs}', f'v_and_b32 v{m}, 0xffff0000, v{m}',
                  f'v_lshlrev_b32 v{xf}, 16, v{x0}', f'v_and_b32 v{xf+1}, 0xffff0000, v{x0}', f'v_lshlrev_b32 v{xf+2}, 16, v{x0+1}', f'v_and_b32 v{xf+3}, 0xffff0000, v{x0+1}']
            o += [f'v_sub_f32 v{y+j}, v{xf+j}, v{m}' for j in range(4)]
            o += [f'v_mul_f32 v{y+j}, v{y+j}, v{rs}' for j in range(4)]
            o += [f'v_mul_f32 v{y+j}, v{y+j}, v{tDf+j}' for j in range(4)]
        return o
    def part_write(s, base, acc):
        o = []
        for ee in range(2):
            for A in range(4):
                k = (8 * ee + 2 * A) * 16
                tmp = 240 + (A & 1)
                if k: o.append(f'v_xor_b32 v{tmp}, {k}, v{base}')
                else: tmp = base
                for t in range(2):
                    r = acc + 16 * (2 * ee + t) + 4 * A
                    o.append(f'ds_write_b128 v{tmp}, a[{r}:{r+3}] offset:{t*SLOT}')
        return o
    tO = 96
    def o_gate(s):
        O = s.tO; T = 112
        o = []
        for i in range(4):
            for src in range(4):
                r = O + 16 * src + 4 * i
                o.append(f'ds_read_b128 v[{r}:{r+3}], v{s.tF+i} offset:{src*8192 + i*1024}')
        o += [f'v_add_u32 v{s.tF+i}, {HALF}, v{s.tF+i}' for i in range(4)]
        for i in range(4):
            for j in range(4):
                r = O + 4 * i + j
                o += [f'v_add_f32 v{r}, v{r}, v{r+16}', f'v_add_f32 v{r+32}, v{r+32}, v{r+48}']
            for j in range(4):
                r = O + 4 * i + j
                o += [f'v_add_f32 v{r}, v{r}, v{r+32}']
        for r in range(O, O + 16): o.append(f'v_mul_f32 v{r+16}, {NLOG2E:#x}, v{r}')
        for r in range(O, O + 16): o.append(f'v_exp_f32 v{r+16}, v{r+16}')
        for r in range(O, O + 16): o.append(f'v_add_f32 v{r+16}, 1.0, v{r+16}')
        for r in range(O, O + 16): o.append(f'v_rcp_f32 v{r+16}, v{r+16}')
        for r in range(O, O + 16): o.append(f'v_mul_f32 v{r}, v{r}, v{r+16}')
        return o

    def p2(s):
        e = s.e; I = s.I; cfg = s.cfg; H = s.typ == 'H'
        sched = cfg['sched']
        e.wait_tag('W0')
        for f in s.readA(0, 0, 0): f()
        buf = 0
        def acc(ty, ee, t):
            b = (ACCO if ty == 'o' else ACCY) + 16 * (2 * ee + t)
            return f'a[{b}:{b+15}]'
        started = set()
        dma = deque()
        for q in range(11):
            ty, j = s.TYPES[q]
            for it in sched[q]: dma.extend(s.sched_item(it))
            if q == 2: s.add(s.tail_addr())
            if q == 3:
                s.until('Sdone'); s.add(s.p2_late())
            if q == 4: s.drain(); s.add(s.p2_late2())
            if q == 6: s.drain()
            if q == 7: s.add(s.tail_loads())
            if q == 8: s.add(s.tail_pre())
            if q == 9: s.add(s.part_write(s.tRo, ACCO))
            if q == 10:
                s.drain(); s.barrier('BO'); s.add(s.o_gate())
            bud = cfg['budP0'] if q < 3 else cfg['budP']
            for s_ in range(4):
                if s_ < 3: aops = deque(s.readA(q, s_ + 1, buf ^ 1)); needw = None
                elif q + 1 < 11: aops = deque(s.readA(q + 1, 0, buf ^ 1)); needw = f'W{q+1}'
                else: aops = deque(); needw = None
                k = 0
                for ee in range(2):
                    for t in range(2):
                        r = WF + 8 * buf + 4 * ee
                        br = (q & 3) * 32 + 8 * s_ + 4 * t
                        A = acc(ty, ee, t)
                        cs = A if (ty, ee, t) in started else '0'
                        started.add((ty, ee, t))
                        I(f'v_mfma_f32_32x32x16_bf16 {A}, v[{r}:{r+3}], a[{br}:{br+3}], {cs}')
                        n0 = e.n
                        if k == 0 and needw: e.wait_tag(needw)
                        if aops: aops.popleft()()
                        left = 16 - (4 * s_ + k)
                        n = (len(dma) + left - 1) // left if dma else 0
                        for _ in range(n): dma.popleft()()
                        s.gap(n0, bud)
                        k += 1
                while aops: aops.popleft()()
                buf ^= 1
            while dma: dma.popleft()()
            s.stamp(f'q{q}e')
        s.drain()
        s.stamp('P2end')
        for x in s.part_write(s.tRy, ACCY): I(x)
        s.barrier('BY')
        Y = [0, 112, 128, 144]
        for i in range(4):
            for src in range(4):
                r = Y[src] + 4 * i
                I(f'ds_read_b128 v[{r}:{r+3}], v{s.tF+i} offset:{src*8192 + i*1024}')
        for i in range(4):
            for j in range(4):
                I(f'v_add_f32 v{Y[0]+4*i+j}, v{Y[0]+4*i+j}, v{s.tYi+4*i+j}'); I(f'v_add_f32 v{Y[1]+4*i+j}, v{Y[1]+4*i+j}, v{Y[2]+4*i+j}')
            for j in range(4):
                I(f'v_add_f32 v{Y[0]+4*i+j}, v{Y[0]+4*i+j}, v{Y[3]+4*i+j}')
            for j in range(4):
                I(f'v_add_f32 v{Y[0]+4*i+j}, v{Y[0]+4*i+j}, v{Y[1]+4*i+j}')
            for j in range(4):
                I(f'v_fma_f32 v{Y[0]+4*i+j}, v{Y[0]+4*i+j}, v{s.tO+4*i+j}, v{s.tXf+4*i+j}')
            I(f's_add_u32 s{sTmp}, s{sOb}, {8192*i}')
            I(f'buffer_store_dwordx4 v[{Y[0]+4*i}:{Y[0]+4*i+3}], v{s.tOo}, s[{sOUT}:{sOUT+3}], s{sTmp} offen')

    def body(s):
        e = s.e; I = s.I; cfg = s.cfg; typ = s.typ
        s.prologue()
        H = typ == 'H'
        st_ = s.capture(s.stats_x); ss_ = s.capture(s.stats_s); tb_ = s.capture(s.tab)
        s.add(zipl(st_, ss_ + tb_) + s.pub_prog() + [s.mark('tabdone')])
        o1, o2 = s.fcs_prog()
        s.add([s.gate(f'B{cfg["fcs"]}')] + o1 + o2)
        s.add([s.gate(f'B{cfg["gA_issue"]}')] + s.gA_issue() + s.s_setup())
        s.add([s.gate(f'B{cfg["gB_issue"]}')] + s.gB_issue() + s.gA_proc() + [s.mark('gAdone')])
        s.add([s.gate(f'B{cfg["gB_proc"]}')] + s.gB_proc() + [s.mark('gBdone')])
        def readsA(st, ks):
            b = WF + 8 * ((4 * st + ks) & 1)
            return s.rd_S(st, ks, b) + s.rd_x(st, ks, 0) + s.rd_x(st, ks, 1) + s.rd_W(st & 3, 24576 + 2048 * ks, b + 4)
        pf = cfg['pf']; NR = 4
        assert pf == 3
        npass = 3 if H else 1
        order = [(p, kk) for p in range(npass) for kk in range(32)]
        def rdP(idx):
            p, kk = order[idx]
            st = 8 + 2 * p + (kk >> 4)
            return s.rd_W(st & 3, (kk & 15) * 2048, WF + 4 * (idx % NR))
        dma = deque(s.dma_list(2) + s.dma_csc())
        for f in readsA(0, 0): f()
        nst = 8 + 2 * npass
        def next_dma(stb):
            l = []
            if stb == 1: l = s.dma_list(3) + s.dma_list(4)
            elif stb + 3 < nst: l = s.dma_list(stb + 3)
            elif H and cfg['p2'] and stb in (11, 12, 13): l = s.issueW(stb - 11)
            return l
        for st in range(8):
            for ks in range(4):
                kk = 4 * st + ks
                b = WF + 8 * (kk & 1)
                if ks < 3: nxt = readsA(st, ks + 1)
                elif st < 7: nxt = readsA(st + 1, 0)
                else: nxt = []
                nxt = deque(nxt)
                seq = [(aS, 0, True), (aS, 1, True), (aG0, 0, False), (aG0, 1, False)]
                for m, (base, t, isS) in enumerate(seq):
                    acc = base + 16 * t
                    xr = (kk * 2 + t) * 4
                    w = f'v[{b}:{b+3}]' if isS else f'v[{b+4}:{b+7}]'
                    c = '0' if kk == 0 else f'v[{acc}:{acc+15}]'
                    if isS: I(f'v_mfma_f32_32x32x16_bf16 v[{acc}:{acc+15}], a[{xr}:{xr+3}], {w}, {c}')
                    else: I(f'v_mfma_f32_32x32x16_bf16 v[{acc}:{acc+15}], {w}, a[{xr}:{xr+3}], {c}')
                    n0 = e.n
                    if ks == 3 and m == 0:
                        if st + 1 == 6: s.until('tabdone')
                        s.barrier(f'B{st+1}', f'D{st+1}')
                        while dma: dma.popleft()()
                        dma = deque(next_dma(st + 1))
                        if st == 7:
                            nxt = deque(rdP(0) + rdP(1))
                        n0 = e.n
                    nrd = 2 if m < 2 else 1
                    if m == 3: nrd = 9
                    for _ in range(nrd):
                        if nxt: nxt.popleft()()
                    left = 16 - (4 * ((ks + 1) & 3) + m)
                    n = (len(dma) + left - 1) // left if dma else 0
                    for _ in range(n): dma.popleft()()
                    s.gap(n0, cfg['budA'])
        s.stamp('Aend')
        s.until('gAdone')
        if H:
            s.add(s.aug_S() + s.s1(0) + [s.gate('B9'), s.gate_mark('gBdone')] + s.aug_F(aG0, 0) + s.g_part(aG0, 0, 152) + s.g_part(aG0 + 16, 1, 152) +
                  [s.gate('Bend')] + s.aug_F(aU0, 1) + s.u_part(aG0, aU0, 0, 0) + s.u_part(aG0 + 16, aU0 + 16, 1, 0) + [s.fstamp('F0st')] + s.s1(1) + [s.mark('s1done')] +
                  s.flag_prog('HF0', 0) + [s.mark('flEdone'), s.fstamp('flE')])
        else:
            s.add(s.aug_S() + s.s1(0) + [s.gate('B9'), s.gate_mark('gBdone')] + s.aug_F(aG0, 0) + s.g_part(aG0, 0, 152) + s.s1(1) + [s.mark('s1done')] + s.g_part(aG0 + 16, 1, 152))
        totb = cfg['totb'] if H else 10
        issued = 2
        for f in rdP(2): f()
        issued = 3
        for idx, (p, kk) in enumerate(order):
            st = 8 + 2 * p + (kk >> 4)
            fr = WF + 4 * (idx % NR)
            accb = [aU0, aG1, aU1][p]
            bud = [cfg['budB'], cfg['budC'], cfg['budD']][p]
            if (kk & 15) == 16 - pf and (st + 1 < nst or (H and cfg['p2'])):
                if st + 1 == 9: s.until('gBdone')
                if st + 1 == totb: s.until('s1done')
                s.barrier(f'B{st+1}', f'D{st+1}' if st + 1 < nst else None)
                if st + 1 == totb: s.addfront(s.s2() + [s.mark('s2done'), s.fstamp('s2')])
                while dma: dma.popleft()()
                dma = deque(next_dma(st + 1))
            if p == 2:
                if kk == 0:
                    s.add(s.aug_F(aG1, 2) + s.g_part(aG1, 0, 64)[:cfg['s3i'] * 8] + s.s3_issue() + s.g_part(aG1, 0, 64)[cfg['s3i'] * 8:] + s.g_part(aG1 + 16, 1, 64) + [s.mark('G1done'), s.fstamp('G1')])
                if cfg['p2']:
                    if kk == cfg['pE']: dma.appendleft(lambda: s.I(*s.poll_issue()))
                    if kk == cfg['cE']:
                        s.until('flEdone')
                        dma.append(s.poll_check(0xff))
                        for q in range(cfg.get('nEB', 2)): dma.extend(s.issueB(q))
            nxt = deque()
            if issued < len(order):
                nxt = deque(rdP(issued)); issued += 1
            for t in range(2):
                acc = accb + 16 * t
                xr = (kk * 2 + t) * 4
                c = '0' if kk == 0 else f'v[{acc}:{acc+15}]'
                I(f'v_mfma_f32_32x32x16_bf16 v[{acc}:{acc+15}], v[{fr}:{fr+3}], a[{xr}:{xr+3}], {c}')
                n0 = e.n
                if nxt: nxt.popleft()()
                if p == 2 and kk >= cfg['cE'] and cfg['p2']: left = 2 * (32 - kk) - t
                else: left = 32 - (2 * (((kk & 15) + pf) & 15) + t)
                n = (len(dma) + left - 1) // left if dma else 0
                for _ in range(n): dma.popleft()()
                s.gap(n0, bud)
            if kk == 31:
                s.stamp(['Bend', 'Cend', 'Dend'][p]); s.events.add(['Bend', 'Cend', 'Dend'][p])
        while dma: dma.popleft()()
        if not H:
            s.until('s1done')
            s.barrier('B10')
            if cfg['p2']:
                for q in range(3):
                    for f in s.issueW(q): f()
            s.addfront(s.s2())
            s.add(s.aug_F(aU0, 1) + s.u_part(aG0, aU0, 0, 0) + s.u_part(aG0 + 16, aU0 + 16, 1, 0))
            s.drain()
            s.add(s.s3_issue() + s.flag_prog('HF0', 0) + s.s3() + s.s4(0) + s.s4(1) + [s.mark('Sdone')] + s.flag_prog('HS', 1))
            s.drain()
            if cfg['p2']:
                I(*s.poll_issue()); s.poll_check(0xff)()
                for q in range(cfg.get('nEB', 2)):
                    for f in s.issueB(q): f()
        else:
            s.add(s.aug_F(aU1, 3) + s.u_part(aG1, aU1, 0, 1) + s.u_part(aG1 + 16, aU1 + 16, 1, 1) + [s.fstamp('F1st')] + s.s3() + s.s4(0) + s.flag_prog('HF1', 2) + [s.fstamp('flL')] +
                  s.s4(1) + [s.mark('Sdone'), s.fstamp('Sdone')] + ['s_nop 0'] * cfg.get('ydelay', 0) + s.flag_prog('HS', 1) + [s.fstamp('flY')])
        if cfg['p2']: s.p2()
        else: s.drain()
        s.stamp('end')
        s.final_stamps()
        e.raw('s_endpgm')
        for f in s.slow: f()
    def gate_mark(s, ev): return ('gate', ev)

def gen_fz(ts=False, cfg=None):
    e = Em(); I = e.I
    cfg = cfg or {}
    e.raw('s_cmp_ge_u32 s2, 256'); e.raw('s_cbranch_scc1 FZ_done')
    I(f's_load_dwordx16 s[64:79], s[0:1], 0')
    I(f's_load_dwordx8 s[80:87], s[0:1], 64')
    I(f's_load_dwordx8 s[88:95], s[0:1], 96')
    e.raw(f's_memrealtime s[96:97]')
    if ts: e.raw(f'{ts} s[98:99]')
    I(f'v_and_b32 v{vL}, 63, v0'); I(f'v_lshrrev_b32 v{vT}, 6, v0'); I(f'v_readfirstlane_b32 s{sw}, v{vT}')
    if cfg.get('codepf', 1):
        e.raw('s_getpc_b64 s[4:5]'); e.label('PF_base')
        I(f's_lshr_b32 s6, s2, 3'); I(f's_and_b32 s6, s6, 1'); I(f's_lshl_b32 s6, s6, 15')
        I(f'v_lshlrev_b32 v{vT+1}, 7, v0'); I(f'v_add_u32 v{vT+1}, s6, v{vT+1}')
        e.raw(f'v_min_u32 v{vT+1}, TEXT_END-PF_base-4, v{vT+1}')
        I(f'v_mov_b32 v{vT+4}, s4'); I(f'v_mov_b32 v{vT+5}, s5')
        I(f'v_add_co_u32 v{vT+4}, vcc, v{vT+4}, v{vT+1}'); I(f'v_addc_co_u32 v{vT+5}, vcc, 0, v{vT+5}, vcc')
        I(f'global_load_dword v{vDUM}, v[{vT+4}:{vT+5}], off')
    I(f's_and_b32 s{sTmp}, s2, 7'); I(f's_lshr_b32 s{sTmp2}, s2, 3')
    I(f's_lshr_b32 s{sRho}, s{sTmp2}, 2'); I(f's_and_b32 s{sU}, s{sTmp2}, 3')
    I(f's_and_b32 s{sTmp3}, s{sTmp}, 1'); I(f's_lshl_b32 s{sR}, s{sRho}, 1'); I(f's_add_u32 s{sR}, s{sR}, s{sTmp3}')
    I(f's_lshr_b32 s{sG}, s{sTmp}, 1'); I(f's_lshl_b32 s{sC}, s{sG}, 2'); I(f's_add_u32 s{sC}, s{sC}, s{sU}')
    I(f's_lshl_b32 s{sTmp}, s{sU}, 1'); I(f's_add_u32 s{sOff}, s{sRho}, s{sTmp}'); I(f's_and_b32 s{sOff}, s{sOff}, 7')
    I(f's_mul_i32 s{sSo2}, s{sG}, 7'); I(f's_add_u32 s{sSo2}, s{sSo2}, s{sTmp}'); I(f's_lshl_b32 s{sSo2}, s{sSo2}, 7')
    I(f's_and_b32 s{sTp}, s{sw}, 1'); I(f's_lshr_b32 s{sCp}, s{sw}, 1')
    for s_, n in [(sX, 2048*512*2), (sW1, 512*1792*2), (sW3, 512*1792*2), (sCSC, 512*1792*2), (sSB, 512*512*2), (sWS, WS_SIZE), (sDBG, 256)]:
        I(f's_mov_b32 s{s_+2}, {n}'); I(f's_mov_b32 s{s_+3}, 0x00020000')
    I(f's_lshl_b32 s{sXo}, s{sR}, 2'); I(f's_add_u32 s{sXo}, s{sXo}, s{sw}'); I(f's_lshl_b32 s{sXo}, s{sXo}, 15')
    I(f's_lshl_b32 s{sSo}, s{sC}, 15'); I(f's_lshl_b32 s{sTmp}, s{sTp}, 13'); I(f's_add_u32 s{sSo}, s{sSo}, s{sTmp}')
    I(f's_mul_i32 s{sFo}, s{sw}, {16*WROW}'); I(f's_add_u32 s{sFo}, s{sFo}, s{sSo2}')
    I(f's_lshl_b32 s{sW12}, s{sw}, 12'); I(f's_lshl_b32 s{sW11}, s{sw}, 11'); I(f's_lshl_b32 s{sW13}, s{sw}, 13')
    a, b, c, d = vT, vT + 1, vT + 2, vT + 3
    I(f'v_lshlrev_b32 v{vHB}, 4, v{vL}')
    I(f'v_lshrrev_b32 v{a}, 5, v{vL}'); I(f'v_lshlrev_b32 v{a}, 4, v{a}'); I(f'v_and_b32 v{b}, 8, v{vL}'); I(f'v_add_u32 v{a}, v{a}, v{b}')
    I(f'v_bfe_u32 v{b}, v{vL}, 4, 1'); I(f'v_add_u32 v{a}, v{a}, v{b}'); I(f'v_lshlrev_b32 v{a}, 10, v{a}')
    I(f'v_and_b32 v{b}, 7, v{vL}'); I(f'v_lshrrev_b32 v{c}, 4, v{vL}'); I(f'v_xor_b32 v{d}, v{b}, v{c}')
    I(f'v_lshl_add_u32 v{vDX}, v{d}, 4, v{a}')
    I(f'v_xor_b32 v{vDX+1}, 64, v{vDX}'); I(f'v_add_u32 v{vDX+1}, 1024, v{vDX+1}')
    I(f'v_add_u32 v{vDX+2}, 2048, v{vDX}'); I(f'v_add_u32 v{vDX+3}, 2048, v{vDX+1}')
    I(f'v_bfe_u32 v{a}, v{vL}, 4, 1'); I(f'v_lshlrev_b32 v{a}, 2, v{a}'); I(f'v_xor_b32 v{a}, v{a}, v{b}'); I(f'v_lshlrev_b32 v{a}, 4, v{a}')
    I(f'v_lshrrev_b32 v{d}, 3, v{vL}'); I(f'v_mul_u32_u24 v{vDF}, {WROW}, v{d}'); I(f'v_add_u32 v{vDF}, v{vDF}, v{a}')
    for i in range(1, 4): I(f'v_add_u32 v{vDF+i}, {27648*i}, v{vDF}')
    I(f's_lshl_b32 s{sTmp}, s{sTp}, 2'); I(f'v_add_u32 v{c}, s{sTmp}, v{c}'); I(f'v_xor_b32 v{a}, v{b}, v{c}')
    I(f'v_lshlrev_b32 v{a}, 4, v{a}'); I(f'v_lshl_add_u32 v{vDS}, v{d}, 10, v{a}'); I(f'v_add_u32 v{vDS+1}, 15360, v{vDS}')
    e.force_wait('lgkmcnt(0)')
    if ts: I(f'v_writelane_b32 v{vTS}, s98, 0')
    gH = Gen('H', e, ts, cfg); gL = Gen('L', e, ts, cfg)
    I(f's_cmp_eq_u32 s{sU}, 3'); e.raw('s_cbranch_scc1 FZ_L')
    sv = (dict(e.lastw), dict(e.lastsw))
    for g, lab in ((gH, None), (gL, 'FZ_L')):
        if lab: e.label(lab); e.reset_hazards(pad=2); e.lgk = []; e.vm = []
        g.body()
    e.label('FZ_done'); e.raw('s_endpgm')
    return e
```

```python
import sys
sys.path.insert(0, 'gen'); sys.path.insert(0, 'exp')
from build import assemble, KN
import fz
out = sys.argv[1] if len(sys.argv) > 1 else 't_fz.s'
cfg = eval(sys.argv[2]) if len(sys.argv) > 2 else {}
ts = cfg.pop('ts', False)
e = fz.gen_fz(ts=ts, cfg=cfg)
s = assemble([(KN, e.text(), 256, 256, 163840, 512, 256)])
open(out, 'w').write(s)
print(len(s), e.stats)
```

```python
from em import Em
from collections import deque
WS_STATS = 12 << 20
WS_CSS = (12 << 20) + (64 << 10)
WS_CSF = (12 << 20) + (128 << 10)
WS_E = 13 << 20
WS_FL = (13 << 20) + (512 << 10)
WS_TS = 14 << 20
WS_SIZE = 16 << 20
TSTRIDE = 176 * 1024
SLOT = 32768
HALF = 65536
MISC = 131072
L_RS = MISC
L_TOTZ = MISC + 512
L_TAB = MISC + 2304
L_WAUG = MISC + 6400
L_CSC = MISC + 16384
L_TR = MISC + 16384
OOB = 0x40000000
LOG2E = 0x3fb8aa3b
NLOG2E = 0xbfb8aa3b
INV2PI = 0x3e22f983
SPIN = 200000
WROW = 3584
WCH = 64 * WROW

sCSC, sX, sW1, sW3, sWS, sSB, sDBG = 4, 8, 12, 16, 20, 24, 28
sw, sR, sC, sOff, sNonce, sTp, sCp, sU, sG, sRho = 32, 33, 34, 35, 36, 37, 38, 39, 40, 41
sXo, sSo, sFo, sKa, sKb, sKc, sTmp, sTmp2, sTmp3 = 42, 43, 44, 45, 46, 47, 48, 49, 50
sW12, sW11, sW13, sTg0, sHF = 51, 52, 53, 54, 55
sMhi, sModd, sBad, sMsel = 56, 58, 60, 62
sSpin = 3
sGa, sGb = 96, 97
kX, kLre, kLim, kBre, kBim, kCre, kCim, kLdt = 64, 66, 68, 70, 72, 74, 76, 78
kDk, kBx, kW1, kW3, kW2, kOut, kDbg, kWs = 80, 82, 84, 86, 88, 90, 92, 94
TSPOOL = [98, 82, 0]
sSo2 = 101
sFlP = 100
sW2, sCRE, sCIM, sOUT = 64, 68, 84, 92
sBE, sBY, sFlC, sXb, sSb, sDko, sRowW, sCrow, sOb = 72, 73, 74, 75, 76, 77, 78, 79, 88
aS, aG0, aU0, aG1, aU1, WF = 0, 32, 64, 96, 128, 160
vW, vA0, vA1, vB1, vPl = 176, 180, 181, 182, 183
vXA, vSS, vG, vL, vHB, vCA = 184, 188, 192, 193, 194, 195
vDX, vDF, vDS = 196, 200, 204
vXaug, vNRS, vK2, vSA = 206, 214, 216, 218
vT = 222
vNon, vPo, vTS, vDUM = 252, 253, 254, 255
vCh, vTg, vRs, vTo, vTw, vTr, vEo, vFl = 222, 223, 224, 225, 226, 227, 228, 229
vPc, vPC, vH = 230, 234, 238
vC, vY = 196, 184
ACCO, ACCY = 128, 192
TRANS = ('v_exp_f32','v_log_f32','v_rcp_f32','v_rsq_f32','v_sqrt_f32','v_sin_f32','v_cos_f32')

VOP3 = ('v_fma_f32', 'v_lshl_add_u32', 'v_bfe_u32', 'v_cvt_pk_bf16_f32', 'v_mul_lo_u32', 'v_add3_u32', 'v_lshl_or_b32', 'v_and_or_b32', 'v_writelane_b32', 'v_mul_u32_u24')
def cost(txt):
    mn = txt.split()[0]
    if mn in TRANS or 'permlane' in mn: return 8
    if mn.startswith('v_mfma'): return 8
    if mn.startswith('v_pk_'): return 20
    if mn in VOP3 or (mn.startswith('v_cndmask') and 's[' in txt) or (mn.startswith('v_cmp') and ' s[' in txt[:30]) or '0x' in txt and mn.startswith('v_') or (mn.startswith('v_') and ' -v' in txt): return 5
    return 4

class Atom:
    def __init__(s, items):
        s.items = items; s.cost = sum(icost(x) for x in items)
class Fn:
    def __init__(s, f, c): s.f = f; s.cost = c
def icost(x):
    if isinstance(x, (Atom, Fn)): return x.cost
    return cost(x[0] if isinstance(x, tuple) else x)
def isctl(x, k): return isinstance(x, tuple) and x[0] == k

def cmac(d, a, b, c):
    if d == c:
        return [f'v_fmac_f32 v{d}, v{a}, v{b}', f'v_fmac_f32 v{d+1}, v{a}, v{b+1}',
                f'v_fma_f32 v{d}, -v{a+1}, v{b+1}, v{d}', f'v_fmac_f32 v{d+1}, v{a+1}, v{b}']
    return [f'v_fma_f32 v{d}, v{a}, v{b}, v{c}', f'v_fma_f32 v{d+1}, v{a}, v{b+1}, v{c+1}',
            f'v_fma_f32 v{d}, -v{a+1}, v{b+1}, v{d}', f'v_fmac_f32 v{d+1}, v{a+1}, v{b}']
def zipl(a, b):
    out = []; i = j = 0
    while i < len(a) or j < len(b):
        if j >= len(b) or (i < len(a) and i * len(b) <= j * len(a)): out.append(a[i]); i += 1
        else: out.append(b[j]); j += 1
    return out

DEF_SCHED = [['W3', 'B2', 'B3'], ['W4'], ['pL', 'W5'], ['W6', 'cL', 'B4', 'B5', 'B6'], ['pY', 'W7'], ['W8', 'cY', 'B7', 'B8'], ['W9', 'B9'], ['W10', 'B10'], [], [], []]
class Gen:
    def __init__(s, typ, e, ts=False, cfg=None):
        s.typ = typ; s.e = e; s.ts = ts
        s.cfg = dict(gA_issue=4, gB_issue=6, gB_proc=7, fcs=3, budA=30, budB=24, budC=24, budD=24, pf=3, p2=True, budP=40, budP0=64, slack=1,
                     pE=10, cE=16, s3i=10, sched=DEF_SCHED, totb=12)
        if cfg: s.cfg.update(cfg)
        s.fill = deque(); s.events = set(); s.half = {}
        s.slow = []
        s.pacc = 0.5
        s.nlab = 0
        s.P = f'FZ{typ}'
        s.pend = []
        s.names = s.cfg.get('stamps', [])
    def I(s, t, tag=None): s.e.I(t, tag)
    def lab(s, n):
        s.nlab += 1; return f'{s.P}_{n}{s.nlab}'
    def stamp(s, name):
        if not s.ts or name not in s.names: return
        k = s.names.index(name) + 1
        used = [p[0] for p in s.pend]
        free = [r for r in TSPOOL if r not in used]
        if not free:
            s.flush_stamps(); free = list(TSPOOL)
        r = free[0]
        s.e.raw(f'{s.ts} s[{r}:{r+1}]')
        s.pend.append((r, k))
    def fstamp(s, name):
        return Fn(lambda: s.stamp(name), 0)
    def flush_stamps(s):
        if not s.pend: return
        s.e.force_wait('lgkmcnt(0)')
        for r, k in s.pend: s.I(f'v_writelane_b32 v{vTS}, s{r}, {k}')
        s.pend = []
    def final_stamps(s):
        if not s.ts: return
        s.flush_stamps()
        I = s.I
        I(f's_lshl_b32 s{sTmp}, s2, 2'); I(f's_add_u32 s{sTmp}, s{sTmp}, s{sw}'); I(f's_lshl_b32 s{sTmp}, s{sTmp}, 8'); I(f's_add_u32 s{sTmp}, s{sTmp}, {WS_TS}')
        I(f'v_lshlrev_b32 v{vDUM}, 2, v{vL}')
        I(f'buffer_store_dword v{vTS}, v{vDUM}, s[{sWS}:{sWS+3}], s{sTmp} offen')
    def add(s, items):
        for x in items: s.fill.append(x)
    def addfront(s, items):
        for x in reversed(items): s.fill.appendleft(x)
    def gate(s, ev): return ('gate', ev)
    def mark(s, ev): return ('mark', ev)
    def emit1(s, x):
        if isinstance(x, Atom):
            for y in x.items: s.emit1(y)
        elif isinstance(x, Fn): x.f()
        elif isinstance(x, tuple): s.I(x[0], x[1])
        else: s.I(x)
    def run_fill(s, budget):
        while s.fill:
            x = s.fill[0]
            if isctl(x, 'gate'):
                if x[1] in s.events: s.fill.popleft(); continue
                return
            if isctl(x, 'mark'):
                s.fill.popleft(); s.events.add(x[1]); continue
            c = icost(x)
            if c > budget + s.cfg['slack'] and not (c > 20 and budget >= 12): return
            n0 = s.e.n
            s.fill.popleft(); s.emit1(x); budget -= max(c, 4 * (s.e.n - n0))
    def gap(s, n0, G):
        s.run_fill(G - 4 * (s.e.n - n0))
    def pace(s, dma, left):
        if not dma: s.pacc = s.cfg.get('pacc0', 0.5); return
        s.pacc += len(dma) / max(left, 1)
        n = int(s.pacc + 1e-9); s.pacc -= n
        for _ in range(min(n, len(dma))): dma.popleft()()
        if not dma: s.pacc = s.cfg.get('pacc0', 0.5)
    def atom(s, lst): return Atom(lst)
    def capture(s, fn):
        rec = []
        old = s.I
        s.I = lambda t, tag=None: rec.append((t, tag) if tag else t)
        fn()
        s.I = old
        out = []; i = 0
        txt = lambda x: x[0] if isinstance(x, tuple) else x
        while i < len(rec):
            t = txt(rec[i])
            if t.startswith(('s_cmp', 's_bitcmp')):
                j = i + 1
                while j < len(rec) and txt(rec[j]).startswith('s_cselect'): j += 1
                out.append(Atom(rec[i:j])); i = j
            elif t.startswith('v_cmp') and ' vcc,' in t:
                j = i + 1
                while j < len(rec) and txt(rec[j]).startswith('v_cndmask') and txt(rec[j]).endswith('vcc'): j += 1
                assert j > i + 1, t
                out.append(Atom(rec[i:j])); i = j
            else: out.append(rec[i]); i += 1
        return out
    def until(s, ev):
        while ev not in s.events:
            assert s.fill, ev
            x = s.fill[0]
            if isctl(x, 'gate'): assert x[1] in s.events, (ev, x)
            s.run_fill(64)
    def drain(s):
        while s.fill:
            x = s.fill[0]
            if isctl(x, 'gate'): assert x[1] in s.events, x
            s.run_fill(10**9)
    def addr(s, reg, slot):
        h = slot >> 1
        if s.half.get(reg, 0) != h:
            s.I(f'v_add_u32 v{reg}, {HALF}, v{reg}' if h else f'v_subrev_u32 v{reg}, {HALF}, v{reg}')
            s.half[reg] = h
        return (slot & 1) * SLOT
    def barrier(s, name, wait_tag=None):
        e = s.e
        s.stamp('pre' + name)
        if wait_tag: e.wait_tag(wait_tag)
        e.barrier()
        s.events.add(name)
        s.stamp(name)
        s.flush_stamps()
    def rd_x(s, st, ks, t):
        a = ((4 * st + ks) * 2 + t) * 4
        def f():
            o = s.addr(vXA + ks, st & 3)
            s.I(f'ds_read_b128 a[{a}:{a+3}], v{vXA+ks} offset:{o+4096*t}')
        return [f]
    def rd_S(s, st, ks, dst):
        def f():
            o = s.addr(vSS + ks, st & 3)
            s.I(f'ds_read_b128 v[{dst}:{dst+3}], v{vSS+ks} offset:{o}')
        return [f]
    def rd_W(s, slot, off, dst):
        def f1():
            o = s.addr(vG, slot)
            s.I(f'ds_read_b64_tr_b16 v[{dst}:{dst+1}], v{vG} offset:{o+off}')
        def f2():
            o = s.addr(vG, slot)
            s.I(f'ds_read_b64_tr_b16 v[{dst+2}:{dst+3}], v{vG} offset:{o+off+512}')
        return [f1, f2]
    def mkdma(s, ops, tag):
        out = []
        for pre, ins in ops:
            def f(pre=pre, ins=ins):
                for p in pre: s.I(p)
                s.I(ins, tag)
            out.append(f)
        return out
    def dma_list(s, st):
        ops = []
        slot = (st & 3) * SLOT
        if st < 8:
            pre = [f's_add_u32 s{sKa}, s{sOff}, {st}', f's_and_b32 s{sKa}, s{sKa}, 7', f's_lshl_b32 s{sKb}, s{sKa}, 7',
                   f's_add_u32 s{sKc}, s{sXo}, s{sKb}', f's_add_u32 m0, s{sW12}, {slot}']
            for A in range(4):
                ops.append((pre if A == 0 else [], f'buffer_load_dwordx4 v{vDX+A}, s[{sX}:{sX+3}], s{sKc} offen offset:{1024*A} lds'))
            pre = [f's_add_u32 s{sKc}, s{sSo}, s{sKb}', f's_add_u32 m0, s{sW11}, {slot+16384}']
            for i in range(2):
                ops.append((pre if i == 0 else [], f'buffer_load_dwordx4 v{vDS+i}, s[{sSB}:{sSB+3}], s{sKc} offen offset:{1024*i} lds'))
            pre = [f's_mul_i32 s{sKc}, s{sKa}, {WCH}', f's_add_u32 s{sKc}, s{sKc}, s{sFo}', f's_add_u32 m0, s{sW11}, {slot+24576}']
            for i in range(2):
                ops.append((pre if i == 0 else [], f'buffer_load_dwordx4 v{vDF+i}, s[{sW1}:{sW1+3}], s{sKc} offen offset:{1024*i} lds'))
        else:
            p = (st - 8) >> 1; vs = st & 1
            srd = sW1 if p == 1 else sW3
            line = 128 if p >= 1 else 0
            pre = [f's_add_u32 s{sKa}, s{sOff}, s{sw}', f's_add_u32 s{sKa}, s{sKa}, {4*vs}', f's_and_b32 s{sKa}, s{sKa}, 7',
                   f's_mul_i32 s{sKc}, s{sKa}, {WCH}', f's_add_u32 s{sKc}, s{sKc}, s{sSo2}']
            if line: pre.append(f's_add_u32 s{sKc}, s{sKc}, {line}')
            pre.append(f's_add_u32 m0, s{sW13}, {slot}')
            for i in range(4):
                ops.append((pre if i == 0 else [], f'buffer_load_dwordx4 v{vDF+i}, s[{srd}:{srd+3}], s{sKc} offen offset:{1024*i} lds'))
            pre = [f's_add_u32 s{sKc}, s{sKc}, {32*WROW}', f's_add_u32 m0, s{sW13}, {slot+4096}']
            for i in range(4):
                ops.append((pre if i == 0 else [], f'buffer_load_dwordx4 v{vDF+i}, s[{srd}:{srd+3}], s{sKc} offen offset:{1024*i} lds'))
        return s.mkdma(ops, f'D{st}')
    def dma_csc(s):
        ops = []
        nl = 2 if s.typ == 'H' else 1
        for X in range(nl):
            pre = [f's_mul_i32 s{sKc}, s{sRho}, {WCH}', f's_add_u32 s{sKc}, s{sKc}, s{sFo}']
            if X: pre.append(f's_add_u32 s{sKc}, s{sKc}, 128')
            pre.append(f's_add_u32 m0, s{sW11}, {L_CSC + X*8192}')
            for i in range(2):
                ops.append((pre if i == 0 else [], f'buffer_load_dwordx4 v{vDF+i}, s[{sCSC}:{sCSC+3}], s{sKc} offen offset:{1024*i} lds'))
        return s.mkdma(ops, 'CSC')

    XR, SR, PR, NP = 96, 104, 108, 114
    SV = 152
    def prologue(s):
        e = s.e; I = s.I; typ = s.typ
        a, b, c, d = vT, vT + 1, vT + 2, vT + 3
        XR, SR, PR, NP = s.XR, s.SR, s.PR, s.NP
        s.stamp('karg')
        I(f's_mov_b64 s[{sX}:{sX+1}], s[{kX}:{kX+1}]')
        I(f's_mov_b64 s[{sW1}:{sW1+1}], s[{kW1}:{kW1+1}]')
        I(f's_mov_b64 s[{sWS}:{sWS+1}], s[{kWs}:{kWs+1}]')
        I(f's_cmp_eq_u32 s{sCp}, 0'); I(f's_cselect_b64 s[{sSB}:{sSB+1}], s[{kBre}:{kBre+1}], s[{kBim}:{kBim+1}]')
        for f in s.dma_list(0): f()
        s.stamp('q0')
        I(f's_mov_b64 s[{sW3}:{sW3+1}], s[{kW3}:{kW3+1}]')
        I(f's_mov_b64 s[{sDBG}:{sDBG+1}], s[{kDbg}:{kDbg+1}]')
        I(f's_and_b32 s{sTmp}, s{sR}, 1'); I(f's_cmp_eq_u32 s{sTmp}, 0'); I(f's_cselect_b64 s[{sCSC}:{sCSC+1}], s[{kW1}:{kW1+1}], s[{kW3}:{kW3+1}]')
        I(f's_or_b32 s{sTmp}, s96, 1')
        I(f's_or_b32 s{sTmp2}, s2, s{sw}'); I(f's_cmp_eq_u32 s{sTmp2}, 0'); I(f's_cselect_b32 s{sTmp2}, 0, {OOB}')
        I(f'v_mov_b32 v{a}, s{sTmp}'); I(f'v_lshlrev_b32 v{b}, 10, v{vL}'); I(f'v_add_u32 v{b}, s{sTmp2}, v{b}')
        I(f'buffer_store_dword v{a}, v{b}, s[{sDBG}:{sDBG+3}], 0 offen sc1')
        I(f's_lshl_b32 s{sTmp}, s{sR}, 7'); I(f's_lshl_b32 s{sTmp2}, s{sC}, 3'); I(f's_add_u32 s{sTmp}, s{sTmp}, s{sTmp2}')
        I(f's_lshl_b32 s{sTmp2}, s{sw}, 1'); I(f's_add_u32 s{sTmp}, s{sTmp}, s{sTmp2}')
        I(f's_lshl_b32 s{sGa}, s{sTmp}, 3'); I(f's_add_u32 s{sGa}, s{sGa}, {WS_STATS}')
        I(f's_lshl_b32 s{sTmp}, s{sTmp}, 10')
        I(f'buffer_load_dwordx4 v[{XR}:{XR+3}], v{vHB}, s[{sX}:{sX+3}], s{sTmp} offen', 'XR')
        I(f'buffer_load_dwordx4 v[{XR+4}:{XR+7}], v{vHB}, s[{sX}:{sX+3}], s{sTmp} offen offset:1024', 'XR')
        I(f'v_and_b32 v{a}, 15, v{vL}'); I(f'v_lshlrev_b32 v{a}, 1, v{a}')
        I(f's_lshl_b32 s{sTmp}, s{sC}, 6'); I(f'v_add_u32 v{a}, s{sTmp}, v{a}')
        for t in range(2):
            I(f'global_load_ushort v{PR+3*t}, v{a}, s[{kLre}:{kLre+1}] offset:{32*t}', 'PR')
            I(f'global_load_ushort v{PR+3*t+1}, v{a}, s[{kLim}:{kLim+1}] offset:{32*t}', 'PR')
            I(f'global_load_ushort v{PR+3*t+2}, v{a}, s[{kLdt}:{kLdt+1}] offset:{32*t}', 'PR')
        I(f's_lshr_b32 s{sTmp3}, s{sR}, 3'); I(f's_lshl_b32 s{sTmp3}, s{sTmp3}, 4')
        I(f's_and_b32 s{sTmp}, s{sR}, 3'); I(f's_lshl_b32 s{sTmp}, s{sTmp}, 2'); I(f's_add_u32 s{sTmp3}, s{sTmp3}, s{sTmp}')
        I(f's_lshl_b32 s{sTmp}, s{sC}, 5'); I(f's_add_u32 s{sTmp3}, s{sTmp3}, s{sTmp}'); I(f's_add_u32 s{sTmp3}, s{sTmp3}, s{sw}')
        I(f's_lshl_b32 s{sTmp3}, s{sTmp3}, 10'); I(f'v_add_u32 v{a}, s{sTmp3}, v{vHB}')
        I(f's_bitcmp1_b32 s{sR}, 2'); I(f's_cselect_b64 s[{sTmp}:{sTmp+1}], s[{kBim}:{kBim+1}], s[{kBre}:{kBre+1}]')
        I(f'global_load_dwordx4 v[{SR}:{SR+3}], v{a}, s[{sTmp}:{sTmp+1}]', 'SR')
        I(f'v_mov_b32 v{NP+1}, 0')
        I(f'buffer_load_dword v{NP}, v{NP+1}, s[{sDBG}:{sDBG+3}], 0 offen sc1', 'NP')
        I(f's_lshl_b32 s{sGb}, s{sR}, 2'); I(f's_add_u32 s{sGb}, s{sGb}, s{sw}'); I(f's_lshl_b32 s{sGb}, s{sGb}, 3')
        I(f's_lshl_b32 s{sTmp3}, s{sC}, 9'); I(f's_add_u32 s{sGb}, s{sGb}, s{sTmp3}'); I(f's_add_u32 s{sGb}, s{sGb}, {WS_CSS}')
        s.stamp('q1')
        if s.cfg.get('linepf', 1):
            I(f'v_lshlrev_b32 v{a}, 10, v{vL}'); I(f'v_mul_u32_u24 v{b}, {WROW}, v{vL}')
            I(f's_add_u32 s{sTmp}, s{sOff}, 1'); I(f's_and_b32 s{sTmp}, s{sTmp}, 7'); I(f's_lshl_b32 s{sTmp}, s{sTmp}, 7')
            I(f's_lshl_b32 s{sTmp2}, s{sR}, 17'); I(f's_add_u32 s{sTmp}, s{sTmp}, s{sTmp2}'); I(f's_lshl_b32 s{sTmp2}, s{sw}, 16'); I(f's_add_u32 s{sTmp}, s{sTmp}, s{sTmp2}')
            I(f's_cmp_lt_u32 s{sw}, 2'); I(f's_cselect_b32 s{sTmp}, s{sTmp}, {OOB}')
            I(f'buffer_load_dword v{vDUM}, v{a}, s[{sX}:{sX+3}], s{sTmp} offen')
            I(f's_mul_i32 s{sTmp}, s{sOff}, {WCH}'); I(f's_add_u32 s{sTmp}, s{sTmp}, s{sSo2}')
            if typ == 'H':
                I(f's_add_u32 s{sTmp2}, s{sTmp}, 128')
                I(f's_cmp_eq_u32 s{sw}, 0'); I(f's_cselect_b32 s{sTmp3}, s{sTmp2}, {OOB}')
                I(f's_cmp_eq_u32 s{sw}, 2'); I(f's_cselect_b32 s{sTmp3}, s{sTmp}, s{sTmp3}')
                I(f'buffer_load_dword v{vDUM}, v{b}, s[{sW3}:{sW3+3}], s{sTmp3} offen')
                I(f's_cmp_eq_u32 s{sw}, 3'); I(f's_cselect_b32 s{sTmp3}, s{sTmp2}, {OOB}')
                I(f'buffer_load_dword v{vDUM}, v{b}, s[{sW1}:{sW1+3}], s{sTmp3} offen')
            else:
                I(f's_cmp_eq_u32 s{sw}, 2'); I(f's_cselect_b32 s{sTmp3}, s{sTmp}, {OOB}')
                I(f'buffer_load_dword v{vDUM}, v{b}, s[{sW3}:{sW3+3}], s{sTmp3} offen')
        s.stamp('q2')
        for f in s.dma_list(1): f()
        s.stamp('q3')
        s.lds_addrs()
        s.p2_early()
        s.stamp('q4')
        s.barrier('B0', 'D0')

    def p2_early(s):
        I = s.I; a, b, c, d = vT, vT + 1, vT + 2, vT + 3
        for dst, src, n in ((sW2, kW2, 1792*512*2), (sCRE, kCre, 512*512*2), (sCIM, kCim, 512*512*2), (sOUT, kOut, 2048*512*4)):
            I(f's_mov_b64 s[{dst}:{dst+1}], s[{src}:{src+1}]'); I(f's_mov_b32 s{dst+2}, {n}'); I(f's_mov_b32 s{dst+3}, 0x00020000')
        I(f's_and_b32 s{sTmp}, s2, 7'); I(f's_lshl_b32 s{sTmp}, s{sTmp}, 2'); I(f's_add_u32 s{sTmp}, s{sTmp}, s{sU}')
        I(f's_mul_i32 s{sTmp2}, s{sTmp}, {2*TSTRIDE}')
        I(f's_mul_i32 s{sBE}, s{sw}, 28672'); I(f's_add_u32 s{sBE}, s{sBE}, s{sTmp2}')
        I(f's_lshl_b32 s{sBY}, s{sw}, 14'); I(f's_add_u32 s{sBY}, s{sBY}, s{sTmp2}'); I(f's_add_u32 s{sBY}, s{sBY}, 114688')
        I(f's_mul_i32 s{sRowW}, s{sw}, {7*65536}'); I(f's_lshl_b32 s{sDko}, s{sRho}, 7'); I(f's_add_u32 s{sRowW}, s{sRowW}, s{sDko}')
        I(f's_lshl_b32 s{sCrow}, s{sRho}, 16'); I(f's_lshl_b32 s{sTmp2}, s{sw}, 8'); I(f's_add_u32 s{sCrow}, s{sCrow}, s{sTmp2}')
        I(f's_lshl_b32 s{sFlC}, s{sTmp}, 2'); I(f's_add_u32 s{sFlC}, s{sFlC}, s{sw}'); I(f's_lshl_b32 s{sFlC}, s{sFlC}, 7'); I(f's_add_u32 s{sFlC}, s{sFlC}, {WS_FL}')
        I(f's_lshl_b32 s{sTmp}, s{sTmp}, 6'); I(f's_lshl_b32 s{sTmp2}, s{sw}, 4'); I(f's_add_u32 s{sTmp}, s{sTmp}, s{sTmp2}')
        I(f's_lshl_b32 s{sXb}, s{sTmp}, 10'); I(f's_add_u32 s{sXb}, s{sXb}, s{sDko}')
        I(f's_lshl_b32 s{sOb}, s{sXb}, 1')
        I(f's_lshl_b32 s{sSb}, s{sTmp}, 3'); I(f's_add_u32 s{sSb}, s{sSb}, {WS_STATS}')
        I(f's_lshl_b32 s{sFlP}, s{sR}, 1'); I(f's_add_u32 s{sFlP}, s{sFlP}, s{sTp}'); I(f's_lshl_b32 s{sFlP}, s{sFlP}, 2'); I(f's_add_u32 s{sFlP}, s{sFlP}, s{sG}')
        I(f's_lshl_b32 s{sFlP}, s{sFlP}, 7'); I(f's_lshl_b32 s{sTmp}, s{sU}, 1'); I(f's_add_u32 s{sTmp}, s{sTmp}, s{sCp}'); I(f's_lshl_b32 s{sTmp}, s{sTmp}, 2')
        I(f's_add_u32 s{sFlP}, s{sFlP}, s{sTmp}'); I(f's_add_u32 s{sFlP}, s{sFlP}, {WS_FL}')
        I(f'v_bfe_u32 v{a}, v{vL}, 4, 1'); I(f'v_lshlrev_b32 v{a}, 2, v{a}'); I(f'v_and_b32 v{b}, 7, v{vL}'); I(f'v_xor_b32 v{a}, v{a}, v{b}')
        I(f'v_lshrrev_b32 v{c}, 3, v{vL}'); I(f'v_lshlrev_b32 v{c}, 10, v{c}'); I(f'v_lshl_add_u32 v{vW}, v{a}, 4, v{c}')
        for i in range(1, 4): I(f'v_add_u32 v{vW+i}, {7168*i}, v{vW}')
        I(f'v_lshrrev_b32 v{a}, 5, v{vL}'); I(f'v_lshlrev_b32 v{a}, 2, v{a}'); I(f'v_bfe_u32 v{c}, v{vL}, 2, 2'); I(f'v_add_u32 v{a}, v{a}, v{c}')
        I(f'v_lshlrev_b32 v{a}, 7, v{a}'); I(f'v_lshrrev_b32 v{c}, 1, v{c}'); I(f'v_lshlrev_b32 v{c}, 6, v{c}'); I(f'v_add_u32 v{a}, v{a}, v{c}')
        I(f'v_bfe_u32 v{c}, v{vL}, 4, 1'); I(f'v_lshl_add_u32 v{a}, v{c}, 5, v{a}'); I(f'v_and_b32 v{c}, 3, v{vL}'); I(f'v_lshl_add_u32 v{a}, v{c}, 3, v{a}')
        I(f'v_add_u32 v{vA0}, s{sW13}, v{a}'); I(f'v_xor_b32 v{vA1}, 64, v{vA0}')
        I(f'v_add_u32 v{vB1}, {TSTRIDE}, v{vHB}')
        I(f'v_and_b32 v{vPl}, 31, v{vL}'); I(f'v_lshlrev_b32 v{vPl}, 2, v{vPl}')

    def lds_addrs(s):
        I = s.I; a, b, c, d = vT, vT + 1, vT + 2, vT + 3
        I(f'v_and_b32 v{a}, 31, v{vL}'); I(f'v_bfe_u32 v{b}, v{vL}, 1, 3'); I(f'v_lshrrev_b32 v{c}, 5, v{vL}'); I(f'v_xor_b32 v{b}, v{b}, v{c}')
        I(f'v_lshlrev_b32 v{b}, 4, v{b}')
        I(f'v_lshl_add_u32 v{d}, v{a}, 7, v{b}')
        I(f's_lshl_b32 s{sTmp}, s{sTp}, 13')
        I(f'v_add_u32 v{vXA}, s{sTmp}, v{d}')
        for k in range(1, 4): I(f'v_xor_b32 v{vXA+k}, {32*k}, v{vXA}')
        I(f'v_lshrrev_b32 v{c}, 3, v{a}'); I(f'v_lshlrev_b32 v{c}, 11, v{c}'); I(f'v_and_b32 v{d}, 7, v{a}'); I(f'v_lshl_add_u32 v{c}, v{d}, 7, v{c}')
        I(f'v_add_u32 v{c}, v{c}, v{b}'); I(f's_lshl_b32 s{sTmp}, s{sCp}, 10'); I(f's_add_u32 s{sTmp}, s{sTmp}, 16384')
        I(f'v_add_u32 v{vSS}, s{sTmp}, v{c}')
        for k in range(1, 4): I(f'v_xor_b32 v{vSS+k}, {32*k}, v{vSS}')
        I(f'v_lshrrev_b32 v{b}, 5, v{vL}'); I(f'v_bfe_u32 v{c}, v{vL}, 2, 2'); I(f'v_lshl_add_u32 v{b}, v{b}, 3, v{c}')
        I(f'v_and_b32 v{d}, 3, v{vL}'); I(f'v_lshlrev_b32 v{d}, 3, v{d}'); I(f'v_lshl_add_u32 v{d}, v{b}, 7, v{d}')
        I(f'v_bfe_u32 v{a}, v{vL}, 4, 1'); I(f'v_lshl_add_u32 v{d}, v{a}, 5, v{d}')
        I(f'v_lshrrev_b32 v{c}, 1, v{c}'); I(f'v_lshlrev_b32 v{c}, 6, v{c}'); I(f'v_add_u32 v{d}, v{d}, v{c}')
        I(f's_lshl_b32 s{sTmp}, s{sCp}, 6'); I(f'v_xor_b32 v{vG}, s{sTmp}, v{d}')
        I(f's_lshl_b32 s{sTmp}, s{sTp}, 6'); I(f'v_xor_b32 v{vCA}, s{sTmp}, v{d}')
        if s.typ == 'H':
            I(f's_lshl_b32 s{sTmp}, s{sCp}, 13'); I(f's_add_u32 s{sTmp}, s{sTmp}, {L_CSC}')
        else:
            I(f's_mov_b32 s{sTmp}, {L_CSC}')
        I(f'v_add_u32 v{vCA}, s{sTmp}, v{vCA}')
        I(f's_mov_b32 s{sMhi}, 0'); I(f's_mov_b32 s{sMhi+1}, -1')
        I(f's_mov_b32 s{sModd}, 0xffff0000'); I(f's_mov_b32 s{sModd+1}, 0xffff0000')
        I(f's_lshl_b32 s{sTmp}, s{sR}, 2'); I(f's_lshl_b32 s{sTmp2}, s{sTp}, 1'); I(f's_add_u32 s{sTmp}, s{sTmp}, s{sTmp2}')
        I(f's_mul_i32 s{sTg0}, s{sTmp}, {TSTRIDE}')
        I(f's_lshl_b32 s{sTmp}, s{sSo2}, 5')
        I(f's_lshl_b32 s{sTmp2}, s{sCp}, 11'); I(f's_add_u32 s{sTmp}, s{sTmp}, s{sTmp2}'); I(f's_add_u32 s{sHF}, s{sTg0}, s{sTmp}')
        z = 116
        for k in range(4): I(f'v_mov_b32 v{z+k}, 0')
        I(f'v_add_u32 v{a}, {L_TOTZ}, v{vHB}'); I(f'ds_write_b128 v{a}, v[{z}:{z+3}]')

    def tab(s):
        I = s.I; PR = s.PR
        n, u, v_, lr, li, t0, t1, t2, t3 = range(116, 125)
        I(f'v_lshrrev_b32 v{t0}, 4, v{vL}')
        I(f's_lshl_b32 s{sTmp}, s{sw}, 1'); I(f's_lshl_b32 s{sTmp}, 8, s{sTmp}')
        I(f'v_mul_u32_u24 v{n}, s{sTmp}, v{t0}')
        I(f'v_mov_b32 v{t1}, 1'); I(f'v_mov_b32 v{t2}, 0x200')
        I(f's_cmp_eq_u32 s{sw}, 3'); I(f's_cselect_b64 s[{sBad}:{sBad+1}], -1, 0'); I(f's_cselect_b32 s{sMsel+1}, 0xffff, 0')
        I(f'v_cmp_eq_u32 vcc, 1, v{t0}'); I(f'v_cndmask_b32 v{t1}, v{t1}, v{t2}, vcc')
        I(f's_mov_b32 s{sMsel}, 0')
        I(f'v_cndmask_b32 v{n}, v{n}, v{t1}, s[{sBad}:{sBad+1}]'); I(f'v_cvt_f32_u32 v{n}, v{n}')
        wa = 125
        I(f's_lshl_b32 s{sTmp}, s{sw}, 9'); I(f's_add_u32 s{sTmp}, s{sTmp}, {L_TAB}')
        I(f'v_lshlrev_b32 v{wa}, 3, v{vL}'); I(f'v_add_u32 v{wa}, s{sTmp}, v{wa}')
        for t in range(2):
            p = PR + 3 * t
            I(f'v_lshlrev_b32 v{lr}, 16, v{p}'); I(f'v_lshlrev_b32 v{li}, 16, v{p+1}'); I(f'v_lshlrev_b32 v{t0}, 16, v{p+2}')
            I(f'v_mul_f32 v{t0}, {LOG2E:#x}, v{t0}'); I(f'v_exp_f32 v{t0}, v{t0}')
            I(f'v_cvt_pk_bf16_f32 v{t0}, v{t0}, v{t0}'); I(f'v_lshlrev_b32 v{t0}, 16, v{t0}')
            I(f'v_mul_f32 v{u}, v{t0}, v{lr}'); I(f'v_mul_f32 v{v_}, v{t0}, v{li}')
            I(f'v_mul_f32 v{u}, {LOG2E:#x}, v{u}'); I(f'v_mul_f32 v{v_}, {INV2PI:#x}, v{v_}')
            I(f'v_mul_f32 v{u}, v{n}, v{u}'); I(f'v_mul_f32 v{v_}, v{n}, v{v_}')
            I(f'v_exp_f32 v{u}, v{u}'); I(f'v_fract_f32 v{v_}, v{v_}')
            I(f'v_cos_f32 v{t0}, v{v_}'); I(f'v_sin_f32 v{t1}, v{v_}')
            P = 126
            I(f'v_mul_f32 v{P}, v{u}, v{t0}'); I(f'v_mul_f32 v{P+1}, v{u}, v{t1}')
            I(f'v_add_f32 v{t0}, -1.0, v{P}')
            I(f'v_mul_f32 v{t1}, v{lr}, v{lr}'); I(f'v_fma_f32 v{t1}, v{li}, v{li}, v{t1}'); I(f'v_rcp_f32 v{t1}, v{t1}')
            I(f'v_mul_f32 v{t2}, v{t0}, v{lr}'); I(f'v_fma_f32 v{t2}, v{P+1}, v{li}, v{t2}')
            I(f'v_mul_f32 v{t3}, v{P+1}, v{lr}'); I(f'v_fma_f32 v{t3}, -v{t0}, v{li}, v{t3}')
            I(f'v_add_f32 v{t1}, v{t1}, v{t1}')
            I(f'v_mul_f32 v{t2}, v{t2}, v{t1}'); I(f'v_mul_f32 v{t3}, v{t3}, v{t1}')
            I(f'v_cndmask_b32 v{P}, v{P}, v{t2}, s[{sMsel}:{sMsel+1}]'); I(f'v_cndmask_b32 v{P+1}, v{P+1}, v{t3}, s[{sMsel}:{sMsel+1}]')
            I(f'ds_write_b64 v{wa}, v[{P}:{P+1}] offset:{2048*t}')

    def stats_x(s):
        I = s.I; XR = s.XR; SV = s.SV
        F = 128
        for r in range(2):
            for k in range(4):
                I(f'v_lshlrev_b32 v{F+8*r+2*k}, 16, v{XR+4*r+k}'); I(f'v_and_b32 v{F+8*r+2*k+1}, 0xffff0000, v{XR+4*r+k}')
        pa, pb, t0, t1 = 144, 145, 146, 147
        def reduce2(pa, pb):
            I(f'v_permlane32_swap_b32 v{pa}, v{pb}'); I(f'v_add_f32 v{pa}, v{pa}, v{pb}')
            I(f'v_mov_b32 v{pb}, v{pa}'); I(f'v_permlane16_swap_b32 v{pa}, v{pb}'); I(f'v_add_f32 v{pa}, v{pa}, v{pb}')
            for k in (8, 4, 2, 1): I(f'v_add_f32_dpp v{pa}, v{pa}, v{pa} row_ror:{k} row_mask:0xf bank_mask:0xf')
            I(f'v_mov_b32 v{pb}, v{pa}'); I(f'v_permlane32_swap_b32 v{pa}, v{pb}')
        for k in range(1, 8):
            for r, p in ((0, pa), (1, pb)):
                if k == 1: I(f'v_add_f32 v{p}, v{F+8*r}, v{F+8*r+1}')
                else: I(f'v_add_f32 v{p}, v{p}, v{F+8*r+k}')
        reduce2(pa, pb)
        I(f'v_mul_f32 v{t0}, 0x3b000000, v{pa}'); I(f'v_mul_f32 v{t1}, 0x3b000000, v{pb}')
        for r, m in ((0, t0), (1, t1)):
            for k in range(8): I(f'v_sub_f32 v{F+8*r+k}, v{F+8*r+k}, v{m}')
        for k in range(8):
            for r, p in ((0, pa), (1, pb)):
                if k == 0: I(f'v_mul_f32 v{p}, v{F+8*r}, v{F+8*r}')
                else: I(f'v_fmac_f32 v{p}, v{F+8*r+k}, v{F+8*r+k}')
        reduce2(pa, pb)
        I(f'v_cndmask_b32 v{t0}, v{t0}, v{t1}, s[{sMhi}:{sMhi+1}]')
        I(f'v_cndmask_b32 v{pa}, v{pa}, v{pb}, s[{sMhi}:{sMhi+1}]')
        I(f'v_mul_f32 v{pa}, 0x3b000000, v{pa}')
        I(f'v_cvt_pk_bf16_f32 v{pa}, v{pa}, v{pa}'); I(f'v_lshlrev_b32 v{pa}, 16, v{pa}')
        I(f'v_add_f32 v{pa}, 0x3727c5ac, v{pa}')
        I(f'v_cvt_pk_bf16_f32 v{pa}, v{pa}, v{pa}'); I(f'v_lshlrev_b32 v{pa}, 16, v{pa}')
        I(f'v_sqrt_f32 v{pa}, v{pa}')
        I(f'v_cvt_pk_bf16_f32 v{SV}, v{pa}, v{t0}')
        I(f'v_and_b32 v{t1}, 31, v{vL}'); I(f'v_lshrrev_b32 v{t0}, 2, v{vL}'); I(f'v_mov_b32 v{pb}, {OOB}')
        I(f'v_cmp_eq_u32 vcc, 0, v{t1}'); I(f'v_cndmask_b32 v{SV+4}, v{pb}, v{t0}, vcc')
    def stats_s(s):
        I = s.I; SR = s.SR; SV = s.SV
        F = 158
        F = 64; q0, q1, ob = 72, 73, 74
        for k in range(4):
            I(f'v_lshlrev_b32 v{F+2*k}, 16, v{SR+k}'); I(f'v_and_b32 v{F+2*k+1}, 0xffff0000, v{SR+k}')
        for k in range(4): I(f'v_add_f32 v{F+k}, v{F+k}, v{F+4+k}')
        I(f'v_add_f32 v{F}, v{F}, v{F+2}'); I(f'v_add_f32 v{F+1}, v{F+1}, v{F+3}'); I(f'v_add_f32 v{q0}, v{F}, v{F+1}')
        I(f'v_mov_b32 v{q1}, v{q0}'); I(f'v_permlane32_swap_b32 v{q0}, v{q1}'); I(f'v_add_f32 v{q0}, v{q0}, v{q1}')
        I(f'v_mov_b32 v{q1}, v{q0}'); I(f'v_permlane16_swap_b32 v{q0}, v{q1}'); I(f'v_add_f32 v{q0}, v{q0}, v{q1}')
        for k in (8, 4, 2): I(f'v_add_f32_dpp v{q0}, v{q0}, v{q0} row_ror:{k} row_mask:0xf bank_mask:0xf')
        I(f'v_add_f32_dpp v{SV+2}, v{q0}, v{q0} row_ror:1 row_mask:0xf bank_mask:0xf')
        I(f'v_mov_b32 v{ob}, {OOB}')
        I(f'v_cmp_eq_u32 vcc, 0, v{vL}'); I(f'v_cndmask_b32 v{SV+5}, v{ob}, 0, vcc')

    def pub_prog(s):
        e = s.e; NP = s.NP; SV = s.SV
        Ls = s.lab('nps'); Lr = s.lab('npr')
        def chk():
            e.wait_tag('NP')
            s.I(f'v_readfirstlane_b32 s{sNonce}, v{NP}'); s.I(f's_cmp_eq_u32 s{sNonce}, 0'); e.raw(f's_cbranch_scc1 {Ls}'); e.label(Lr)
        def slow():
            e.label(Ls); e.reset_hazards(); e.vm = []; e.lgk = []
            s.I(f's_mov_b32 s{sSpin}, 0')
            e.label(Ls + 'l'); e.reset_hazards()
            s.I(f'buffer_load_dword v{NP}, v{NP+1}, s[{sDBG}:{sDBG+3}], 0 offen sc1'); e.force_wait('vmcnt(0)')
            s.I(f'v_readfirstlane_b32 s{sNonce}, v{NP}'); s.I(f's_add_u32 s{sSpin}, s{sSpin}, 1')
            s.I(f's_cmp_gt_u32 s{sSpin}, {SPIN}'); e.raw(f's_cbranch_scc1 {Lr}')
            s.I(f's_cmp_eq_u32 s{sNonce}, 0'); e.raw(f's_cbranch_scc1 {Ls}l')
            e.raw('s_nop 4'); e.raw(f's_branch {Lr}')
        s.slow.append(slow)
        return [Fn(chk, 16), f'v_mov_b32 v{SV+1}, s{sNonce}', f'v_mov_b32 v{SV+3}, s{sNonce}', f'v_mov_b32 v{vNon}, s{sNonce}',
                f'buffer_store_dwordx2 v[{SV}:{SV+1}], v{SV+4}, s[{sWS}:{sWS+3}], s{sGa} offen sc1',
                f'buffer_store_dwordx2 v[{SV+2}:{SV+3}], v{SV+5}, s[{sWS}:{sWS+3}], s{sGb} offen sc1']

    def fcs_prog(s):
        AC, FR, ONE, Gq, vo = 96, 112, 128, 132, 134
        ops = [f'v_mov_b32 v{ONE+k}, 0x3f803f80' for k in range(4)]
        for ks in range(4):
            ops += [f'ds_read_b64_tr_b16 v[{FR+4*ks}:{FR+4*ks+1}], v{vCA} offset:{2048*ks}', f'ds_read_b64_tr_b16 v[{FR+4*ks+2}:{FR+4*ks+3}], v{vCA} offset:{2048*ks+512}']
        ops += [f'v_lshlrev_b32 v{vo}, 3, v{vL}', f'v_mov_b32 v{vo+1}, {OOB}', f'v_cndmask_b32 v{vo}, v{vo}, v{vo+1}, s[{sMhi}:{sMhi+1}]',
                f's_and_b32 s{sTmp}, s{sR}, 1', f's_mul_i32 s{sTmp}, s{sTmp}, {28*4096}',
                f's_lshl_b32 s{sTmp2}, s{sSo2}, 5', f's_add_u32 s{sTmp}, s{sTmp}, s{sTmp2}']
        if s.typ == 'H':
            ops += [f's_lshl_b32 s{sTmp2}, s{sCp}, 12', f's_add_u32 s{sTmp}, s{sTmp}, s{sTmp2}']
        ops += [f's_lshl_b32 s{sTmp2}, s{sRho}, 9', f's_add_u32 s{sTmp}, s{sTmp}, s{sTmp2}',
                f's_lshl_b32 s{sTmp2}, s{sTp}, 8', f's_add_u32 s{sTmp}, s{sTmp}, s{sTmp2}', f's_add_u32 s{sGa}, s{sTmp}, {WS_CSF}']
        if s.typ == 'L':
            ops += [s.atom([f's_cmp_eq_u32 s{sCp}, 0', f's_cselect_b32 s{sGa}, s{sGa}, {OOB}'])]
        ops += [f'v_mov_b32 v{Gq+1}, s{sNonce}']
        for ks in range(4):
            ops.append(f'v_mfma_f32_32x32x16_bf16 v[{AC}:{AC+15}], v[{ONE}:{ONE+3}], v[{FR+4*ks}:{FR+4*ks+3}], ' + ('0' if ks == 0 else f'v[{AC}:{AC+15}]'))
        return ops, [f'v_mov_b32 v{Gq}, v{AC}', f'buffer_store_dwordx2 v[{Gq}:{Gq+1}], v{vo}, s[{sWS}:{sWS+3}], s{sGa} offen sc1']

    def tagcheck(s, regs, loads, exp=None):
        e = s.e
        ops = []
        for i, r in enumerate(regs):
            src = f's{sNonce}' if exp is None else f'v{exp[i]}'
            if i == 0: ops.append(f'v_cmp_ne_u32 s[{sBad}:{sBad+1}], {src}, v{r}')
            else:
                ops.append(s.atom([f'v_cmp_ne_u32 vcc, {src}, v{r}', f's_or_b64 s[{sBad}:{sBad+1}], s[{sBad}:{sBad+1}], vcc']))
        Ls = s.lab('slow'); Lr = s.lab('ret')
        def br():
            s.I(f's_cmp_lg_u64 s[{sBad}:{sBad+1}], 0'); e.raw(f's_cbranch_scc1 {Ls}'); e.label(Lr)
        ops.append(Fn(br, 8))
        def slow():
            e.label(Ls); e.reset_hazards(); e.vm = []; e.lgk = []
            s.I(f's_mov_b32 s{sSpin}, 0')
            e.label(Ls + 'l'); e.reset_hazards()
            for x in loads: s.I(x)
            e.force_wait('vmcnt(0)')
            for i, r in enumerate(regs):
                src = f's{sNonce}' if exp is None else f'v{exp[i]}'
                if i == 0: s.I(f'v_cmp_ne_u32 s[{sBad}:{sBad+1}], {src}, v{r}')
                else:
                    s.I(f'v_cmp_ne_u32 vcc, {src}, v{r}'); s.I(f's_or_b64 s[{sBad}:{sBad+1}], s[{sBad}:{sBad+1}], vcc')
            s.I(f's_add_u32 s{sSpin}, s{sSpin}, 1'); s.I(f's_cmp_gt_u32 s{sSpin}, {SPIN}'); e.raw(f's_cbranch_scc1 {Lr}')
            s.I(f's_cmp_lg_u64 s[{sBad}:{sBad+1}], 0'); e.raw(f's_cbranch_scc1 {Ls}l')
            e.raw('s_nop 4'); e.raw(f's_branch {Lr}')
        s.slow.append(slow)
        return ops

    def pi_ops(s, d, t):
        return [f'v_bfe_u32 v{d}, v{vL}, 2, 1', f'v_lshlrev_b32 v{d}, 4, v{d}',
                f'v_and_b32 v{t}, 1, v{vL}', f'v_lshl_add_u32 v{d}, v{t}, 3, v{d}',
                f'v_bfe_u32 v{t}, v{vL}, 3, 2', f'v_lshl_add_u32 v{d}, v{t}, 1, v{d}',
                f'v_bfe_u32 v{t}, v{vL}, 1, 1', f'v_add_u32 v{d}, v{d}, v{t}']

    GA = 136
    def gA_issue(s):
        GA = s.GA; vp, va, vc = GA + 6, GA + 7, GA + 8
        ops = s.pi_ops(vp, va)
        ops += [f'v_lshlrev_b32 v{va}, 3, v{vp}',
                f's_lshl_b32 s{sTmp}, s{sR}, 10', f's_lshl_b32 s{sTmp2}, s{sTp}, 9', f's_add_u32 s{sTmp}, s{sTmp}, s{sTmp2}', f's_add_u32 s{sGa}, s{sTmp}, {WS_STATS}',
                f'v_and_b32 v{vc}, 31, v{vL}', f'v_lshlrev_b32 v{vc}, 3, v{vc}',
                f's_lshl_b32 s{sTmp}, s{sC}, 9', f's_lshl_b32 s{sTmp2}, s{sCp}, 8', f's_add_u32 s{sTmp}, s{sTmp}, s{sTmp2}', f's_add_u32 s{sGb}, s{sTmp}, {WS_CSS}']
        s.glA = [f'buffer_load_dwordx2 v[{GA}:{GA+1}], v{va}, s[{sWS}:{sWS+3}], s{sGa} offen sc1',
                 f'buffer_load_dwordx2 v[{GA+2}:{GA+3}], v{va}, s[{sWS}:{sWS+3}], s{sGa} offen offset:256 sc1',
                 f'buffer_load_dwordx2 v[{GA+4}:{GA+5}], v{vc}, s[{sWS}:{sWS+3}], s{sGb} offen sc1']
        ops += [(x, 'GA') for x in s.glA]
        return ops
    def split3(s, A, t0, t1, t2, o0, o1):
        return [f'v_cvt_pk_bf16_f32 v{t0}, v{A}, v{A}', f'v_and_b32 v{t0}, 0xffff0000, v{t0}',
                f'v_sub_f32 v{t1}, v{A}, v{t0}',
                f'v_cvt_pk_bf16_f32 v{t2}, v{t1}, v{t1}', f'v_and_b32 v{t2}, 0xffff0000, v{t2}',
                f'v_sub_f32 v{t1}, v{t1}, v{t2}',
                f'v_cvt_pk_bf16_f32 v{o1}, v{t1}, 0',
                f'v_lshrrev_b32 v{t0}, 16, v{t0}', f'v_or_b32 v{o0}, v{t0}, v{t2}']
    def gA_proc(s):
        GA = s.GA; vp = GA + 6
        ops = s.tagcheck([GA + 1, GA + 3, GA + 5], s.glA)
        t0, t1, t2, t3, ra = 145, 146, 147, 148, 149
        ops += [f'v_lshlrev_b32 v{ra}, 2, v{vp}', f's_lshl_b32 s{sTmp}, s{sTp}, 8', f's_add_u32 s{sTmp}, s{sTmp}, {L_RS}', f'v_add_u32 v{ra}, s{sTmp}, v{ra}']
        ops += [f's_mov_b32 s{sTmp2}, {NLOG2E:#x}']
        for t in range(2):
            ms = GA + 2 * t; xa = vXaug + 4 * t
            ops += [f'v_lshlrev_b32 v{t0}, 16, v{ms}',
                    f'v_and_b32 v{t1}, 0xffff0000, v{ms}', f'v_xor_b32 v{t1}, 0x80000000, v{t1}',
                    f'v_rcp_f32 v{t2}, v{t0}', f'v_mul_f32 v{vK2+t}, v{t0}, v{t0}',
                    f'v_lshrrev_b32 v{t3}, 16, v{t1}', f'v_or_b32 v{t1}, v{t1}, v{t3}',
                    f'v_cndmask_b32 v{xa}, v{t1}, 0, s[{sMhi}:{sMhi+1}]', f'v_cndmask_b32 v{xa+1}, v{t3}, 0, s[{sMhi}:{sMhi+1}]',
                    f'v_mov_b32 v{xa+2}, 0', f'v_mov_b32 v{xa+3}, 0',
                    f'v_mul_f32 v{vNRS+t}, s{sTmp2}, v{t2}',
                    f'ds_write_b32 v{ra}, v{t2} offset:{128*t}']
        ops += s.split3(GA + 4, t0, t1, t2, vSA, vSA + 1)
        ops += [f'v_mov_b32 v{vSA+2}, 0', f'v_mov_b32 v{vSA+3}, 0']
        return ops

    GB = 96
    def gB_issue(s):
        GB = s.GB
        ops = [f's_mul_i32 s{sTmp3}, s{sTp}, {28*4096}', f's_lshl_b32 s{sTmp2}, s{sSo2}, 5', f's_add_u32 s{sTmp3}, s{sTmp3}, s{sTmp2}']
        if s.typ == 'H': ops += [f's_lshl_b32 s{sTmp2}, s{sCp}, 12', f's_add_u32 s{sTmp3}, s{sTmp3}, s{sTmp2}']
        ops += [f's_add_u32 s{sTmp3}, s{sTmp3}, {WS_CSF}']
        s.glB = [f'buffer_load_dwordx4 v[{GB+4*n}:{GB+4*n+3}], v{vHB}, s[{sWS}:{sWS+3}], s{sMsel} offen offset:{1024*n} sc1' for n in range(4)]
        ops += [f's_mov_b32 s{sMsel}, s{sTmp3}']
        ops += [(x, 'GB') for x in s.glB]
        return ops
    def gB_proc(s):
        GB = s.GB
        regs = [GB + 4 * n + 1 + 2 * m for n in range(4) for m in range(2)]
        ops = s.tagcheck(regs, s.glB)
        t0, t1, t2, wa = 112, 113, 114, 115
        O = 116
        A, B = GB, GB + 2
        ops += [f'v_add_f32 v{A}, v{A}, v{GB+4}', f'v_add_f32 v{B}, v{B}, v{GB+6}',
                f'v_add_f32 v{GB+8}, v{GB+8}, v{GB+12}', f'v_add_f32 v{GB+10}, v{GB+10}, v{GB+14}',
                f'v_add_f32 v{A}, v{A}, v{GB+8}', f'v_add_f32 v{B}, v{B}, v{GB+10}',
                f'v_permlane32_swap_b32 v{A}, v{B}', f'v_add_f32 v{A}, v{A}, v{B}']
        ops += s.split3(A, t0, t1, t2, O, O + 1)
        ops += [f'v_and_b32 v{wa}, 31, v{vL}', f'v_lshlrev_b32 v{wa}, 4, v{wa}', f'v_lshrrev_b32 v{t0}, 5, v{vL}', f'v_lshl_add_u32 v{wa}, v{t0}, 3, v{wa}']
        if s.typ == 'H':
            ops += [f's_lshl_b32 s{sTmp}, s{sCp}, 10', f's_lshl_b32 s{sTmp2}, s{sTp}, 9', f's_add_u32 s{sTmp}, s{sTmp}, s{sTmp2}', f's_add_u32 s{sTmp}, s{sTmp}, {L_WAUG}']
        else:
            ops += [f's_lshl_b32 s{sTmp}, s{sTp}, 9', f's_add_u32 s{sTmp}, s{sTmp}, {L_WAUG}']
        ops += [f'v_add_u32 v{wa}, s{sTmp}, v{wa}', f'ds_write_b64 v{wa}, v[{O}:{O+1}]']
        return ops

    def g_part(s, G, t, T):
        ops = []
        for h in range(2):
            g = G + 8 * h
            for j in range(8): ops.append(f'v_mul_f32 v{T+j}, v{vNRS+t}, v{g+j}')
            for j in range(8): ops.append(f'v_exp_f32 v{T+j}, v{T+j}')
            for j in range(8): ops.append(f'v_fma_f32 v{T+j}, v{vK2+t}, v{T+j}, v{vK2+t}')
            for j in range(8): ops.append(f'v_rcp_f32 v{T+j}, v{T+j}')
            for j in range(8): ops.append(f'v_mul_f32 v{g+j}, v{g+j}, v{T+j}')
        return ops
    def u_part(s, G, U, t, line):
        ops = []
        for h in range(2):
            g = G + 8 * h; u = U + 8 * h
            for j in range(8): ops.append(f'v_mul_f32 v{u+j}, v{u+j}, v{g+j}')
            for j in range(4): ops.append(f'v_cvt_pk_bf16_f32 v{u+j}, v{u+2*j}, v{u+2*j+1}')
            add = t * TSTRIDE + line * 4096
            st = f'buffer_store_dwordx4 v[{u}:{u+3}], v{vHB}, s[{sWS}:{sWS+3}], s{sGb} offen offset:{1024*h} sc1'
            if add: ops.append(s.atom([f's_add_u32 s{sGb}, s{sHF}, {add}', (st, f'HF{line}')]))
            else: ops.append(s.atom([f's_mov_b32 s{sGb}, s{sHF}', (st, f'HF{line}')]))
        return ops

    def s_setup(s):
        a, b = 240, 241
        o = []
        o += [f'v_and_b32 v{a}, 15, v{vL}', f'v_lshlrev_b32 v{b}, 3, v{a}',
              f's_lshl_b32 s{sTmp}, s{sCp}, 11', f's_add_u32 s{sTmp}, s{sTmp}, {L_TAB}',
              f'v_add_u32 v{vCh}, s{sTmp}, v{b}',
              f'v_lshlrev_b32 v{vTg}, 3, v{vL}', f'v_add_u32 v{vTg}, s{sTmp}, v{vTg}',
              f's_lshl_b32 s{sTmp}, s{sCp}, 7', f's_lshl_b32 s{sTmp2}, s{sTp}, 9', f's_add_u32 s{sTmp}, s{sTmp}, s{sTmp2}', f's_add_u32 s{sTmp}, s{sTmp}, {L_TOTZ}',
              f'v_add_u32 v{vTo}, s{sTmp}, v{b}',
              f'v_lshrrev_b32 v{b}, 4, v{vL}', f'v_lshlrev_b32 v{vRs}, 5, v{b}', f's_lshl_b32 s{sTmp}, s{sTp}, 8', f's_add_u32 s{sTmp}, s{sTmp}, {L_RS}',
              f'v_add_u32 v{vRs}, s{sTmp}, v{vRs}',
              f's_mul_i32 s{sTmp}, s{sw}, 2560', f's_add_u32 s{sTmp}, s{sTmp}, {L_TR}',
              f'v_mul_u32_u24 v{vTw}, 80, v{a}', f'v_lshl_add_u32 v{vTw}, v{b}, 4, v{vTw}', f'v_add_u32 v{vTw}, s{sTmp}, v{vTw}',
              f'v_lshrrev_b32 v{vTr}, 5, v{vL}', f'v_lshlrev_b32 v{vTr}, 3, v{vTr}', f'v_bfe_u32 v{b}, v{vL}, 2, 2', f'v_add_u32 v{vTr}, v{vTr}, v{b}',
              f'v_mul_u32_u24 v{vTr}, 80, v{vTr}',
              f'v_and_b32 v{b}, 3, v{vL}', f'v_lshl_add_u32 v{vTr}, v{b}, 3, v{vTr}',
              f'v_bfe_u32 v{b}, v{vL}, 4, 1', f'v_lshl_add_u32 v{vTr}, v{b}, 5, v{vTr}',
              f'v_add_u32 v{vTr}, s{sTmp}, v{vTr}']
        o += [f'v_lshlrev_b32 v{a}, 4, v{a}', f's_lshl_b32 s{sTmp}, s{sR}, 8',
              s.atom([f's_cmp_eq_u32 s{sTp}, 1', f's_cselect_b32 s{sTmp}, s{sTmp}, {OOB}']),
              f'v_add_u32 v{a}, s{sTmp}, v{a}', f'v_mov_b32 v{b}, {OOB}',
              s.atom([f'v_cmp_gt_u32 vcc, 16, v{vL}', f'v_cndmask_b32 v{vEo}, v{b}, v{a}, vcc']),
              s.atom([f'v_cmp_eq_u32 vcc, 0, v{vL}', f'v_cndmask_b32 v{vFl}, v{b}, 0, vcc'])]
        return o
    def s1(s, t):
        A = aS + 16 * t; P = vPc + 2 * t
        R = 128; L1, L8, L16 = 136, 138, 140
        E, Z, X, Q, Y = 142, 144, 146, 148, 150
        def pr(r): return f'v[{r}:{r+1}]'
        ops = [f'ds_read_b128 v[{R}:{R+3}], v{vRs} offset:{128*t}', f'ds_read_b128 v[{R+4}:{R+7}], v{vRs} offset:{128*t+16}',
               f'ds_read_b64 {pr(L1)}, v{vCh} offset:1536', f'ds_read_b64 {pr(L8)}, v{vCh} offset:128', f'ds_read_b64 {pr(L16)}, v{vCh} offset:256']
        for m in range(8): ops.append(f'v_permlane16_swap_b32 v{A+2*m}, v{A+2*m+1}')
        for m in range(8):
            ops += [f'v_mul_f32 v{A+2*m}, v{R+m}, v{A+2*m}', f'v_mul_f32 v{A+2*m+1}, v{R+m}, v{A+2*m+1}']
        prev = A
        e0, e1 = E, Z
        for m in range(1, 8):
            ops += cmac(e0, L1, prev, A + 2 * m)
            prev = e0; e0, e1 = e1, e0
        E = prev; Z = e0
        ops += [f'v_mov_b32 v{Z}, 0', f'v_mov_b32 v{Z+1}, 0', f'v_mov_b32 v{X}, v{E}', f'v_mov_b32 v{X+1}, v{E+1}',
                f'v_cndmask_b32 v{Q}, 1.0, v{L8}, s[{sModd}:{sModd+1}]', f'v_cndmask_b32 v{Q+1}, 0, v{L8+1}, s[{sModd}:{sModd+1}]',
                f'v_permlane16_swap_b32 v{Z}, v{X}', f'v_permlane16_swap_b32 v{Z+1}, v{X+1}']
        ops += cmac(E, L8, Z, E)
        ops += [f'v_mov_b32 v{X}, v{E}', f'v_mov_b32 v{X+1}, v{E+1}', f'v_mov_b32 v{Y}, 0', f'v_mov_b32 v{Y+1}, 0',
                f'v_permlane16_swap_b32 v{E}, v{X}', f'v_permlane16_swap_b32 v{E+1}, v{X+1}',
                f'v_permlane32_swap_b32 v{Y}, v{X}', f'v_permlane32_swap_b32 v{Y+1}, v{X+1}']
        ops += cmac(X, L16, Y, X)
        ops += cmac(P, Q, Y, Z)
        ops += [s.atom([f's_mov_b64 exec, s[{sMhi}:{sMhi+1}]', f'ds_write_b64 v{vTo}, {pr(X)} offset:{(3+t)*256}', f's_mov_b64 exec, -1'])]
        return ops
    def s2(s):
        R = 240; L32 = 250; Gq = 240
        def pr(r): return f'v[{r}:{r+1}]'
        ops = []
        for k in range(5): ops.append(f'ds_read_b64 {pr(R+2*k)}, v{vTo} offset:{k*256}')
        ops.append(f'ds_read_b64 {pr(L32)}, v{vCh} offset:640')
        ops += [f's_lshl_b32 s{sTmp}, s{sC}, 13', f's_lshl_b32 s{sTmp2}, s{sCp}, 12', f's_add_u32 s{sTmp}, s{sTmp}, s{sTmp2}', f's_add_u32 s{sGa}, s{sTmp}, {WS_E}']
        ops += cmac(R + 2, L32, R, R + 2)
        ops += cmac(vPC, L32, R + 2, R + 4)
        ops += cmac(vPC + 2, L32, vPC, R + 6)
        ops += cmac(R + 8, L32, vPC + 2, R + 8)
        ops += [f'v_mov_b32 v{Gq}, v{R+8}', f'v_mov_b32 v{Gq+1}, s{sNonce}', f'v_mov_b32 v{Gq+2}, v{R+9}', f'v_mov_b32 v{Gq+3}, s{sNonce}']
        ops += [f'buffer_store_dwordx4 v[{Gq}:{Gq+3}], v{vEo}, s[{sWS}:{sWS+3}], s{sGa} offen sc1']
        return ops
    EG, vEg, vEx = 32, 48, 52
    def s3_issue(s):
        EG, vEg, vEx = s.EG, s.vEg, s.vEx
        a, b = 56, 57
        o = [f'v_and_b32 v{a}, 15, v{vL}', f'v_lshlrev_b32 v{a}, 4, v{a}', f'v_lshrrev_b32 v{b}, 4, v{vL}', f'v_sub_u32 v{b}, s{sR}, v{b}', f'v_add_u32 v{b}, -1, v{b}']
        for k in range(4):
            g = vEg + k; x = vEx + k
            if k: o.append(f'v_add_u32 v{b}, -4, v{b}')
            o += [f'v_lshl_add_u32 v{g}, v{b}, 8, v{a}', f'v_mov_b32 v{x}, {OOB}',
                  s.atom([f'v_cmp_le_i32 vcc, 0, v{b}', f'v_cndmask_b32 v{g}, v{x}, v{g}, vcc', f'v_cndmask_b32 v{x}, 0, v{vNon}, vcc'])]
        s.glE = [f'buffer_load_dwordx4 v[{EG+4*k}:{EG+4*k+3}], v{vEg+k}, s[{sWS}:{sWS+3}], s{sGa} offen sc1' for k in range(4)]
        o += [(x, 'EG') for x in s.glE]
        return o
    def s3(s):
        EG, vEx = s.EG, s.vEx
        L512, Q = 56, 58
        regs = [EG + 4 * k + 1 + 2 * m for k in range(4) for m in range(2)]
        exp = [vEx + k for k in range(4) for m in range(2)]
        ops = [f'ds_read_b64 v[{L512}:{L512+1}], v{vCh} offset:1664', f'ds_read_b64 v[{Q}:{Q+1}], v{vTg} offset:1024']
        ops += s.tagcheck(regs, s.glE, exp)
        def cm4(dr, di, ar, ai, br, bi, cr, ci):
            return [f'v_fmac_f32 v{dr}, v{ar}, v{br}', f'v_fmac_f32 v{di}, v{ar}, v{bi}',
                    f'v_fma_f32 v{dr}, -v{ai}, v{bi}, v{dr}', f'v_fmac_f32 v{di}, v{ai}, v{br}']
        for k in (2, 1, 0):
            ops += cm4(EG + 4 * k, EG + 4 * k + 2, L512, L512 + 1, EG + 4 * (k + 1), EG + 4 * (k + 1) + 2, EG + 4 * k, EG + 4 * k + 2)
        wr, wi = EG + 4, EG + 5; H = vH
        ops += [f'v_mul_f32 v{wr}, v{Q}, v{EG}', f'v_mul_f32 v{wi}, v{Q}, v{EG+2}', f'v_fma_f32 v{wr}, -v{Q+1}, v{EG+2}, v{wr}', f'v_fmac_f32 v{wi}, v{Q+1}, v{EG}',
                f'v_permlane16_swap_b32 v{wr}, v{wi}', f'v_add_f32 v{wr}, v{wr}, v{wi}', f'v_mov_b32 v{wi}, v{wr}',
                f'v_permlane32_swap_b32 v{wr}, v{wi}', f'v_add_f32 v{H}, v{wr}, v{wi}', f'v_mov_b32 v{H+1}, v{H}',
                f'v_permlane16_swap_b32 v{H}, v{H+1}']
        return ops
    def s4(s, t):
        A = aS + 16 * t; P = vPc + 2 * t; C = vPC + 2 * t
        L1, Q32, Q8, CF = 240, 242, 244, 246
        X = 248
        O = 184
        def pr(r): return f'v[{r}:{r+1}]'
        ops = [f's_lshl_b32 s{sTmp}, s{sTp}, 8', f'v_add_u32 v{O}, s{sTmp}, v{vCh}',
               f'ds_read_b64 {pr(Q32)}, v{O} offset:{512+128*t}', f'ds_read_b64 {pr(Q8)}, v{vTg}',
               f'ds_read_b64 {pr(L1)}, v{vCh} offset:1536', f'ds_read_b64 {pr(CF)}, v{vCh} offset:1792']
        ops += [f's_lshl_b32 s{sTmp}, s{sC}, 1', f's_add_u32 s{sTmp}, s{sTmp}, s{sCp}',
                f's_lshr_b32 s{sTmp2}, s{sTmp}, 2', f's_lshl_b32 s{sTmp2}, s{sTmp2}, 3', f's_and_b32 s{sTmp}, s{sTmp}, 3', f's_add_u32 s{sTmp}, s{sTmp}, s{sTmp2}',
                f's_add_u32 s{sTmp}, s{sTmp}, 112', f's_lshl_b32 s{sTmp}, s{sTmp}, 10', f's_add_u32 s{sTmp3}, s{sTmp}, s{sTg0}']
        if t: ops += [f's_add_u32 s{sTmp3}, s{sTmp3}, {TSTRIDE}']
        ops += cmac(C, Q32, vH, C)
        ops += cmac(P, Q8, C, P)
        prev = P
        def cf(m):
            x = X + 2 * (m & 1); r = A + 2 * m
            return [f'v_mul_f32 v{x}, v{r}, v{CF}', f'v_mul_f32 v{x+1}, v{r}, v{CF+1}',
                    f'v_fma_f32 v{r}, -v{r+1}, v{CF+1}, v{x}', f'v_fma_f32 v{r+1}, -v{r+1}, v{CF}, -v{x+1}']
        for m in range(8):
            ops += cmac(A + 2 * m, L1, prev, A + 2 * m); prev = A + 2 * m
            if m >= 1: ops += cf(m - 1)
        ops += cf(7)
        for k in range(4): ops.append(f'v_cvt_pk_bf16_f32 v{O+k}, v{A+4*k}, v{A+4*k+2}')
        for k in range(4): ops.append(f'v_cvt_pk_bf16_f32 v{O+4+k}, v{A+4*k+1}, v{A+4*k+3}')
        ops += [f'ds_write_b128 v{vTw}, v[{O}:{O+3}]', f'ds_write_b128 v{vTw}, v[{O+4}:{O+7}] offset:1280']
        for ri in range(2):
            d = A + 4 * ri
            ops += [f'ds_read_b64_tr_b16 v[{d}:{d+1}], v{vTr} offset:{1280*ri}', f'ds_read_b64_tr_b16 v[{d+2}:{d+3}], v{vTr} offset:{1280*ri+320}']
        ops += [(f'buffer_store_dwordx4 v[{A}:{A+3}], v{vHB}, s[{sWS}:{sWS+3}], s{sTmp3} offen sc1', 'HS'), f's_add_u32 s{sTmp3}, s{sTmp3}, 4096',
                (f'buffer_store_dwordx4 v[{A+4}:{A+7}], v{vHB}, s[{sWS}:{sWS+3}], s{sTmp3} offen sc1', 'HS')]
        return ops
    def aug_F(s, acc, idx):
        fa = 244
        return [f'v_and_b32 v{fa+2}, 31, v{vL}', f'v_lshlrev_b32 v{fa+2}, 3, v{fa+2}',
                f's_lshl_b32 s{sTmp}, s{sCp}, 8', f's_add_u32 s{sTmp}, s{sTmp}, {L_WAUG + 512*idx}', f'v_add_u32 v{fa+2}, s{sTmp}, v{fa+2}',
                f'ds_read_b64 v[{fa}:{fa+1}], v{fa+2}', f'v_mov_b32 v{fa+3}, 0', f'v_mov_b32 v{fa+2}, 0'] + \
               [f'v_mfma_f32_32x32x16_bf16 v[{acc+16*t}:{acc+16*t+15}], v[{fa}:{fa+3}], v[{vXaug+4*t}:{vXaug+4*t+3}], v[{acc+16*t}:{acc+16*t+15}]' for t in range(2)]
    def aug_S(s):
        return [f'v_mfma_f32_32x32x16_bf16 v[{aS+16*t}:{aS+16*t+15}], v[{vXaug+4*t}:{vXaug+4*t+3}], v[{vSA}:{vSA+3}], v[{aS+16*t}:{aS+16*t+15}]' for t in range(2)]
    def flag_prog(s, tag, phase):
        def f():
            s.e.wait_tag(tag)
            s.I(f'buffer_store_dword v{vNon}, v{vFl}, s[{sWS}:{sWS+3}], s{sFlP} offen offset:{32*phase} sc1')
        return [Fn(f, 8)]
    def poll_issue(s):
        return (f'buffer_load_dword v{vPo}, v{vPl}, s[{sWS}:{sWS+3}], s{sFlC} offen sc1', 'PL')
    def poll_check(s, mask):
        e = s.e
        Ls = s.lab('pslow'); Lr = s.lab('pret')
        def chk():
            s.I(f'v_cmp_eq_u32 vcc, s{sNonce}, v{vPo}'); s.I(f's_and_b32 s{sKa}, vcc_lo, {mask:#x}')
            s.I(f's_cmp_eq_u32 s{sKa}, {mask:#x}'); e.raw(f's_cbranch_scc0 {Ls}'); e.label(Lr)
        def slow():
            e.label(Ls); e.reset_hazards(); e.vm = []; e.lgk = []
            s.I(f's_mov_b32 s{sSpin}, 0')
            e.label(Ls + 'l'); e.reset_hazards()
            s.I(s.poll_issue()[0]); e.force_wait('vmcnt(0)')
            s.I(f'v_cmp_eq_u32 vcc, s{sNonce}, v{vPo}'); s.I(f's_and_b32 s{sKa}, vcc_lo, {mask:#x}')
            s.I(f's_add_u32 s{sSpin}, s{sSpin}, 1'); s.I(f's_cmp_gt_u32 s{sSpin}, {SPIN}'); e.raw(f's_cbranch_scc1 {Lr}')
            s.I(f's_cmp_eq_u32 s{sKa}, {mask:#x}'); e.raw(f's_cbranch_scc0 {Ls}l')
            e.raw('s_nop 4'); e.raw(f's_branch {Lr}')
        s.slow.append(slow)
        return chk

    TYPES = [('o', 0), ('o', 2), ('o', 4), ('o', 6), ('o', 1), ('o', 3), ('o', 5), ('y', 0), ('y', 1), ('y', 2), ('y', 3)]
    def issueB(s, q):
        ty, j = s.TYPES[q]
        S = (q & 3) * 32
        out = []
        for s_ in range(4):
            for t in range(2):
                r = S + 8 * s_ + 4 * t
                ins = f'buffer_load_dwordx4 a[{r}:{r+3}], v{vHB if t == 0 else vB1}, s[{sWS}:{sWS+3}], s{sKb} offen offset:{1024*s_} sc1'
                pre = [f's_add_u32 s{sKb}, s{sBE if ty == "o" else sBY}, {j*4096}'] if (s_ == 0 and t == 0) else []
                def f(pre=pre, ins=ins):
                    for p in pre: s.I(p)
                    s.I(ins, f'B{q}')
                out.append(f)
        return out
    def issueW(s, q):
        ty, j = s.TYPES[q]
        slot = (q + 2) & 3
        ops = []
        for half in range(2):
            for i in range(4):
                pre = []
                if i == 0:
                    pre.append(f's_add_u32 m0, s{sW13}, {slot*SLOT + half*4096}')
                    if ty == 'o': pre.append(f's_add_u32 s{sKc}, s{sRowW}, {j*65536 + half*32768}')
                    else: pre.append(f's_add_u32 s{sKc}, s{sCrow}, {(j >> 1)*128 + half*32768}')
                if ty == 'o': ins = f'buffer_load_dwordx4 v{vW+i}, s[{sW2}:{sW2+3}], s{sKc} offen offset:{1024*i} lds'
                else:
                    sr = sCIM if (j & 1) else sCRE
                    ins = f'buffer_load_dwordx4 v{vC+i}, s[{sr}:{sr+3}], s{sKc} offen offset:{1024*i} lds'
                ops.append((pre, ins))
        return s.mkdma(ops, f'W{q}')
    def readA(s, q, s_, buf):
        ty, j = s.TYPES[q]
        slot = (q + 2) & 3
        out = []
        for ee in range(2):
            r = WF + 8 * buf + 4 * ee
            if ty == 'o':
                va = vA0 if ee == 0 else vA1
                for k in range(2):
                    def f(va=va, r=r, k=k):
                        o = s.addr(va, slot)
                        s.I(f'ds_read_b64_tr_b16 v[{r+2*k}:{r+2*k+1}], v{va} offset:{o + s_*2048 + 1024*k}')
                    out.append(f)
            else:
                def f(r=r, ee=ee):
                    o = s.addr(vY + s_, slot)
                    s.I(f'ds_read_b128 v[{r}:{r+3}], v{vY+s_} offset:{o + ee*4096}')
                out.append(f)
        return out
    def sched_item(s, it):
        if it[0] == 'W': return s.issueW(int(it[1:]))
        if it[0] == 'B': return s.issueB(int(it[1:]))
        if it[0] == 'p': return [lambda: s.I(*s.poll_issue())]
        if it[0] == 'c': return [s.poll_check({'E': 0xff, 'Y': 0xff00, 'L': 0x3f0000}[it[1]])]
        raise ValueError(it)
    def p2_late(s):
        a, b, c = 240, 241, 242
        o = [f'v_lshrrev_b32 v{a}, 3, v{vL}', f'v_lshlrev_b32 v{a}, 10, v{a}', f'v_lshrrev_b32 v{b}, 4, v{vL}', f'v_and_b32 v{c}, 7, v{vL}',
             f'v_xor_b32 v{b}, v{b}, v{c}', f'v_lshl_add_u32 v{vC}, v{b}, 4, v{a}',
             f'v_xor_b32 v{vC+1}, 64, v{vC}', f'v_add_u32 v{vC+1}, 7168, v{vC+1}', f'v_add_u32 v{vC+2}, {7168*2}, v{vC}', f'v_add_u32 v{vC+3}, {7168*2}, v{vC+1}']
        return o
    def p2_late2(s):
        a, b, c = 240, 241, 242
        o = [f'v_and_b32 v{a}, 31, v{vL}', f'v_lshlrev_b32 v{a}, 7, v{a}', f'v_bfe_u32 v{c}, v{vL}, 1, 3', f'v_lshrrev_b32 v{b}, 5, v{vL}', f'v_xor_b32 v{c}, v{c}, v{b}',
             f'v_lshl_add_u32 v{a}, v{c}, 4, v{a}', f'v_add_u32 v{vY}, s{sW13}, v{a}']
        o += [f'v_xor_b32 v{vY+k}, {32*k}, v{vY}' for k in range(1, 4)]
        for k in range(4): s.half[vY + k] = 0
        return o
    tX, tS, tDk, tSo, tDo, tDf, tXf, tYi, tRo, tRy, tF, tXo, tOo = 32, 40, 48, 50, 51, 52, 56, 72, 88, 89, 90, 94, 95
    def tail_addr(s):
        a, b, c, d = 240, 241, 242, 243
        tRo, tRy, tF = s.tRo, s.tRy, s.tF
        def key(dst, row, tmp):
            return [f'v_bfe_u32 v{tmp}, v{row}, 3, 2', f'v_lshlrev_b32 v{tmp}, 1, v{tmp}', f'v_and_b32 v{dst}, 7, v{row}', f'v_xor_b32 v{dst}, v{dst}, v{tmp}']
        o = s.pi_ops(a, b) + key(c, a, b) + [f'v_lshrrev_b32 v{d}, 5, v{vL}', f'v_xor_b32 v{c}, v{c}, v{d}', f'v_lshlrev_b32 v{a}, 8, v{a}',
             f'v_lshl_add_u32 v{a}, v{c}, 4, v{a}', f's_add_u32 s{sTmp}, s{sW13}, {SLOT}', f'v_add_u32 v{tRo}, s{sTmp}, v{a}']
        o += [f'v_and_b32 v{a}, 31, v{vL}'] + key(c, a, b) + [f'v_xor_b32 v{c}, v{c}, v{d}', f'v_lshlrev_b32 v{a}, 8, v{a}',
             f'v_lshl_add_u32 v{a}, v{c}, 4, v{a}', f's_add_u32 s{sTmp}, s{sW13}, {3*SLOT}', f'v_add_u32 v{tRy}, s{sTmp}, v{a}']
        o += [f'v_lshrrev_b32 v{b}, 4, v{vL}', f'v_and_b32 v{c}, 15, v{vL}', f'v_xor_b32 v{a}, v{b}, v{c}', f's_lshl_b32 s{sTmp}, s{sTp}, 2', f'v_xor_b32 v{a}, s{sTmp}, v{a}',
              f'v_lshlrev_b32 v{a}, 4, v{a}', f'v_lshl_add_u32 v{a}, v{b}, 8, v{a}',
              f's_lshl_b32 s{sTmp}, s{sTp}, 12', f's_lshl_b32 s{sTmp2}, s{sCp}, 15', f's_add_u32 s{sTmp}, s{sTmp}, s{sTmp2}', f's_add_u32 s{sTmp}, s{sTmp}, {SLOT}',
              f'v_add_u32 v{tF}, s{sTmp}, v{a}', f'v_xor_b32 v{tF+1}, 64, v{tF}', f'v_xor_b32 v{tF+2}, 32, v{tF}', f'v_xor_b32 v{tF+3}, 96, v{tF}',
              f'v_lshlrev_b32 v{s.tOo}, 11, v{b}', f'v_lshl_add_u32 v{s.tOo}, v{c}, 4, v{s.tOo}',
              f'v_lshlrev_b32 v{s.tXo}, 10, v{b}', f'v_lshl_add_u32 v{s.tXo}, v{c}, 3, v{s.tXo}',
              f'v_lshlrev_b32 v{s.tSo}, 3, v{b}', f'v_lshlrev_b32 v{s.tDo}, 3, v{c}', f'v_add_u32 v{s.tDo}, s{sDko}, v{s.tDo}']
        return o
    def tail_loads(s):
        o = []
        for i in range(4):
            o.append(s.atom([f's_add_u32 s{sTmp}, s{sXb}, {4096*i}', (f'buffer_load_dwordx2 v[{s.tX+2*i}:{s.tX+2*i+1}], v{s.tXo}, s[{sX}:{sX+3}], s{sTmp} offen', 'TX')]))
        for i in range(4):
            o.append((f'buffer_load_dwordx2 v[{s.tS+2*i}:{s.tS+2*i+1}], v{s.tSo}, s[{sWS}:{sWS+3}], s{sSb} offen offset:{32*i} sc1', 'TX'))
        o.append((f'global_load_dwordx2 v[{s.tDk}:{s.tDk+1}], v{s.tDo}, s[{kDk}:{kDk+1}]', 'TX'))
        return o
    def tail_pre(s):
        tX, tS, tDk, tDf, tXf, tYi = s.tX, s.tS, s.tDk, s.tDf, s.tXf, s.tYi
        o = [f'v_lshlrev_b32 v{tDf}, 16, v{tDk}', f'v_and_b32 v{tDf+1}, 0xffff0000, v{tDk}', f'v_lshlrev_b32 v{tDf+2}, 16, v{tDk+1}', f'v_and_b32 v{tDf+3}, 0xffff0000, v{tDk+1}']
        for i in range(4):
            m = tS + 2 * i; rs = m + 1; x0 = tX + 2 * i; xf = tXf + 4 * i; y = tYi + 4 * i
            o += [f'v_lshlrev_b32 v{rs}, 16, v{m}', f'v_rcp_f32 v{rs}, v{rs}', f'v_and_b32 v{m}, 0xffff0000, v{m}',
                  f'v_lshlrev_b32 v{xf}, 16, v{x0}', f'v_and_b32 v{xf+1}, 0xffff0000, v{x0}', f'v_lshlrev_b32 v{xf+2}, 16, v{x0+1}', f'v_and_b32 v{xf+3}, 0xffff0000, v{x0+1}']
            o += [f'v_sub_f32 v{y+j}, v{xf+j}, v{m}' for j in range(4)]
            o += [f'v_mul_f32 v{y+j}, v{y+j}, v{rs}' for j in range(4)]
            o += [f'v_mul_f32 v{y+j}, v{y+j}, v{tDf+j}' for j in range(4)]
        return o
    def part_write(s, base, acc):
        o = []
        for ee in range(2):
            for A in range(4):
                k = (8 * ee + 2 * A) * 16
                tmp = 240 + (A & 1)
                if k: o.append(f'v_xor_b32 v{tmp}, {k}, v{base}')
                else: tmp = base
                for t in range(2):
                    r = acc + 16 * (2 * ee + t) + 4 * A
                    o.append(f'ds_write_b128 v{tmp}, a[{r}:{r+3}] offset:{t*SLOT}')
        return o
    tO = 96
    def o_gate(s):
        O = s.tO; T = 112
        o = []
        for i in range(4):
            for src in range(4):
                r = O + 16 * src + 4 * i
                o.append(f'ds_read_b128 v[{r}:{r+3}], v{s.tF+i} offset:{src*8192 + i*1024}')
        o += [f'v_add_u32 v{s.tF+i}, {HALF}, v{s.tF+i}' for i in range(4)]
        for i in range(4):
            for j in range(4):
                r = O + 4 * i + j
                o += [f'v_add_f32 v{r}, v{r}, v{r+16}', f'v_add_f32 v{r+32}, v{r+32}, v{r+48}']
            for j in range(4):
                r = O + 4 * i + j
                o += [f'v_add_f32 v{r}, v{r}, v{r+32}']
        for r in range(O, O + 16): o.append(f'v_mul_f32 v{r+16}, {NLOG2E:#x}, v{r}')
        for r in range(O, O + 16): o.append(f'v_exp_f32 v{r+16}, v{r+16}')
        for r in range(O, O + 16): o.append(f'v_add_f32 v{r+16}, 1.0, v{r+16}')
        for r in range(O, O + 16): o.append(f'v_rcp_f32 v{r+16}, v{r+16}')
        for r in range(O, O + 16): o.append(f'v_mul_f32 v{r}, v{r}, v{r+16}')
        return o

    def p2(s):
        e = s.e; I = s.I; cfg = s.cfg; H = s.typ == 'H'
        sched = cfg['sched']
        e.wait_tag('W0')
        for f in s.readA(0, 0, 0): f()
        buf = 0
        def acc(ty, ee, t):
            b = (ACCO if ty == 'o' else ACCY) + 16 * (2 * ee + t)
            return f'a[{b}:{b+15}]'
        started = set()
        dma = deque()
        for q in range(11):
            ty, j = s.TYPES[q]
            for it in sched[q]: dma.extend(s.sched_item(it))
            if q == 2: s.add(s.tail_addr())
            if q == 3:
                s.until('Sdone'); s.add(s.p2_late())
            if q == 4: s.drain(); s.add(s.p2_late2())
            if q == 6: s.drain()
            if q == 7: s.add(s.tail_loads())
            if q == 8: s.add(s.tail_pre())
            if q == 9: s.add(s.part_write(s.tRo, ACCO))
            if q == 10:
                s.drain(); s.barrier('BO'); s.add(s.o_gate())
            bud = cfg['budP0'] if q < 3 else cfg['budP']
            for s_ in range(4):
                if s_ < 3: aops = deque(s.readA(q, s_ + 1, buf ^ 1)); needw = None
                elif q + 1 < 11: aops = deque(s.readA(q + 1, 0, buf ^ 1)); needw = f'W{q+1}'
                else: aops = deque(); needw = None
                k = 0
                for ee in range(2):
                    for t in range(2):
                        r = WF + 8 * buf + 4 * ee
                        br = (q & 3) * 32 + 8 * s_ + 4 * t
                        A = acc(ty, ee, t)
                        cs = A if (ty, ee, t) in started else '0'
                        started.add((ty, ee, t))
                        I(f'v_mfma_f32_32x32x16_bf16 {A}, v[{r}:{r+3}], a[{br}:{br+3}], {cs}')
                        n0 = e.n
                        if k == 0 and needw: e.wait_tag(needw)
                        if aops: aops.popleft()()
                        left = 16 - (4 * s_ + k)
                        s.pace(dma, left)
                        s.gap(n0, bud)
                        k += 1
                while aops: aops.popleft()()
                buf ^= 1
            while dma: dma.popleft()()
            s.stamp(f'q{q}e')
        s.drain()
        s.stamp('P2end')
        for x in s.part_write(s.tRy, ACCY): I(x)
        s.barrier('BY')
        Y = [0, 112, 128, 144]
        for i in range(4):
            for src in range(4):
                r = Y[src] + 4 * i
                I(f'ds_read_b128 v[{r}:{r+3}], v{s.tF+i} offset:{src*8192 + i*1024}')
        for i in range(4):
            for j in range(4):
                I(f'v_add_f32 v{Y[0]+4*i+j}, v{Y[0]+4*i+j}, v{s.tYi+4*i+j}'); I(f'v_add_f32 v{Y[1]+4*i+j}, v{Y[1]+4*i+j}, v{Y[2]+4*i+j}')
            for j in range(4):
                I(f'v_add_f32 v{Y[0]+4*i+j}, v{Y[0]+4*i+j}, v{Y[3]+4*i+j}')
            for j in range(4):
                I(f'v_add_f32 v{Y[0]+4*i+j}, v{Y[0]+4*i+j}, v{Y[1]+4*i+j}')
            for j in range(4):
                I(f'v_fma_f32 v{Y[0]+4*i+j}, v{Y[0]+4*i+j}, v{s.tO+4*i+j}, v{s.tXf+4*i+j}')
            I(f's_add_u32 s{sTmp}, s{sOb}, {8192*i}')
            I(f'buffer_store_dwordx4 v[{Y[0]+4*i}:{Y[0]+4*i+3}], v{s.tOo}, s[{sOUT}:{sOUT+3}], s{sTmp} offen')

    def body(s):
        e = s.e; I = s.I; cfg = s.cfg; typ = s.typ
        s.prologue()
        H = typ == 'H'
        st_ = s.capture(s.stats_x); ss_ = s.capture(s.stats_s); tb_ = s.capture(s.tab)
        skip = cfg.get('skip', ())
        K = lambda n, l: [] if n in skip else (l() if callable(l) else l)
        s.add(zipl(K('st', st_), K('ss', ss_) + K('tab', tb_)) + K('pub', s.pub_prog) + [s.mark('tabdone')])
        o1, o2 = s.fcs_prog()
        s.add([s.gate(f'B{cfg["fcs"]}')] + K('fcs', o1 + o2))
        s.add([s.gate(f'B{cfg["gA_issue"]}')] + K('gA', s.gA_issue) + K('setup', s.s_setup))
        s.add([s.gate(f'B{cfg["gB_issue"]}')] + K('gB', s.gB_issue) + K('gA', s.gA_proc) + [s.mark('gAdone')])
        s.add([s.gate(f'B{cfg["gB_proc"]}')] + K('gB', s.gB_proc) + [s.mark('gBdone')])
        if cfg.get('stopA'):
            s.stopA = True
        def readsA(st, ks):
            b = WF + 8 * ((4 * st + ks) & 1)
            xp = cfg.get('xp', '')
            return ([] if 'S' in xp else s.rd_S(st, ks, b)) + ([] if 'x' in xp else s.rd_x(st, ks, 0) + s.rd_x(st, ks, 1)) + ([] if 'W' in xp else s.rd_W(st & 3, 24576 + 2048 * ks, b + 4))
        pf = cfg['pf']; NR = 4
        assert pf == 3
        npass = 3 if H else 1
        order = [(p, kk) for p in range(npass) for kk in range(32)]
        def rdP(idx):
            p, kk = order[idx]
            st = 8 + 2 * p + (kk >> 4)
            return s.rd_W(st & 3, (kk & 15) * 2048, WF + 4 * (idx % NR))
        dma = deque(s.dma_list(2))
        for f in readsA(0, 0): f()
        nst = 8 + 2 * npass
        def next_dma(stb):
            l = []
            if 'D' in cfg.get('xp', ''): return l
            if 'H' in cfg.get('xp', ''): return s.dma_list(stb + 2)[:4]
            if stb == 1: l = s.dma_list(3) + s.dma_csc()
            elif stb < 8: l = s.dma_list(stb + 2)
            elif stb == 8: l = s.dma_list(10) + (s.dma_list(11) if nst > 11 else [])
            elif stb + 3 < nst: l = s.dma_list(stb + 3)
            elif H and cfg['p2'] and stb in (11, 12, 13): l = s.issueW(stb - 11)
            return l
        for st in range(8):
            for ks in range(4):
                kk = 4 * st + ks
                b = WF + 8 * (kk & 1)
                if ks < 3: nxt = readsA(st, ks + 1)
                elif st < 7: nxt = readsA(st + 1, 0)
                else: nxt = []
                nxt = deque(nxt)
                seq = [(aS, 0, True), (aS, 1, True), (aG0, 0, False), (aG0, 1, False)]
                for m, (base, t, isS) in enumerate(seq):
                    acc = base + 16 * t
                    xr = (kk * 2 + t) * 4
                    w = f'v[{b}:{b+3}]' if isS else f'v[{b+4}:{b+7}]'
                    c = '0' if kk == 0 else f'v[{acc}:{acc+15}]'
                    if isS: I(f'v_mfma_f32_32x32x16_bf16 v[{acc}:{acc+15}], a[{xr}:{xr+3}], {w}, {c}')
                    else: I(f'v_mfma_f32_32x32x16_bf16 v[{acc}:{acc+15}], {w}, a[{xr}:{xr+3}], {c}')
                    n0 = e.n
                    if ks == 3 and m == 0:
                        if st + 1 == 6: s.until('tabdone')
                        s.barrier(f'B{st+1}', f'D{st+1}')
                        while dma: dma.popleft()()
                        dma = deque(next_dma(st + 1))
                        if st == 7:
                            nxt = deque(rdP(0) + rdP(1))
                        n0 = e.n
                    nrd = 2 if m < 2 else 1
                    if m == 3: nrd = 9
                    for _ in range(nrd):
                        if nxt: nxt.popleft()()
                    left = 16 - (4 * ((ks + 1) & 3) + m)
                    s.pace(dma, left)
                    s.gap(n0, cfg['budA'])
        s.stamp('Aend')
        if cfg.get('stopA'):
            s.drain(); s.stamp('end'); s.final_stamps(); e.raw('s_endpgm')
            for f in s.slow: f()
            return
        s.until('gAdone')
        if H:
            s.add(s.aug_S() + s.s1(0) + [s.gate('B9'), s.gate_mark('gBdone')] + s.aug_F(aG0, 0) + s.g_part(aG0, 0, 152) + s.g_part(aG0 + 16, 1, 152) +
                  [s.gate('Bend')] + s.aug_F(aU0, 1) + s.u_part(aG0, aU0, 0, 0) + s.u_part(aG0 + 16, aU0 + 16, 1, 0) + [s.fstamp('F0st')] + s.s1(1) + [s.mark('s1done')] +
                  s.flag_prog('HF0', 0) + [s.mark('flEdone'), s.fstamp('flE')])
        else:
            s.add(s.aug_S() + s.s1(0) + [s.gate('B9'), s.gate_mark('gBdone')] + s.aug_F(aG0, 0) + s.g_part(aG0, 0, 152) + s.s1(1) + [s.mark('s1done')] + s.g_part(aG0 + 16, 1, 152))
        totb = cfg['totb'] if H else 10
        issued = 2
        for f in rdP(2): f()
        issued = 3
        for idx, (p, kk) in enumerate(order):
            st = 8 + 2 * p + (kk >> 4)
            fr = WF + 4 * (idx % NR)
            accb = [aU0, aG1, aU1][p]
            bud = [cfg['budB'], cfg['budC'], cfg['budD']][p]
            if (kk & 15) == 16 - pf and (st + 1 < nst or (H and cfg['p2'])):
                if st + 1 == 9: s.until('gBdone')
                if st + 1 == totb: s.until('s1done')
                s.barrier(f'B{st+1}', f'D{st+1}' if st + 1 < nst else None)
                if st + 1 == totb: s.addfront(s.s2() + [s.mark('s2done'), s.fstamp('s2')])
                while dma: dma.popleft()()
                dma = deque(next_dma(st + 1))
            if p == 2:
                if kk == 0:
                    s.add(s.aug_F(aG1, 2) + s.g_part(aG1, 0, 64)[:cfg['s3i'] * 8] + s.s3_issue() + s.g_part(aG1, 0, 64)[cfg['s3i'] * 8:] + s.g_part(aG1 + 16, 1, 64) + [s.mark('G1done'), s.fstamp('G1')])
                if cfg['p2']:
                    if kk == cfg['pE']: dma.appendleft(lambda: s.I(*s.poll_issue()))
                    if kk == cfg['cE']:
                        s.until('flEdone')
                        dma.append(s.poll_check(0xff))
                        for q in range(cfg.get('nEB', 2)): dma.extend(s.issueB(q))
            nxt = deque()
            if issued < len(order):
                nxt = deque(rdP(issued)); issued += 1
            for t in range(2):
                acc = accb + 16 * t
                xr = (kk * 2 + t) * 4
                c = '0' if kk == 0 else f'v[{acc}:{acc+15}]'
                I(f'v_mfma_f32_32x32x16_bf16 v[{acc}:{acc+15}], v[{fr}:{fr+3}], a[{xr}:{xr+3}], {c}')
                n0 = e.n
                if nxt: nxt.popleft()()
                if p == 2 and kk >= cfg['cE'] and cfg['p2']: left = 2 * (32 - kk) - t
                else: left = 32 - (2 * (((kk & 15) + pf) & 15) + t)
                s.pace(dma, left)
                s.gap(n0, bud)
            if kk == 31:
                s.stamp(['Bend', 'Cend', 'Dend'][p]); s.events.add(['Bend', 'Cend', 'Dend'][p])
        while dma: dma.popleft()()
        if not H:
            s.until('s1done')
            s.barrier('B10')
            if cfg['p2']:
                for q in range(3):
                    for f in s.issueW(q): f()
            s.addfront(s.s2())
            s.add(s.aug_F(aU0, 1) + s.u_part(aG0, aU0, 0, 0) + s.u_part(aG0 + 16, aU0 + 16, 1, 0))
            s.drain()
            s.add(s.s3_issue() + s.flag_prog('HF0', 0) + s.s3() + s.s4(0) + s.s4(1) + [s.mark('Sdone')] + s.flag_prog('HS', 1))
            s.drain()
            if cfg['p2']:
                I(*s.poll_issue()); s.poll_check(0xff)()
                for q in range(cfg.get('nEB', 2)):
                    for f in s.issueB(q): f()
        else:
            s.add(s.aug_F(aU1, 3) + s.u_part(aG1, aU1, 0, 1) + s.u_part(aG1 + 16, aU1 + 16, 1, 1) + [s.fstamp('F1st')] + s.s3() + s.s4(0) + s.flag_prog('HF1', 2) + [s.fstamp('flL')] +
                  s.s4(1) + [s.mark('Sdone'), s.fstamp('Sdone')] + ['s_nop 0'] * cfg.get('ydelay', 0) + s.flag_prog('HS', 1) + [s.fstamp('flY')])
        if cfg['p2']: s.p2()
        else: s.drain()
        s.stamp('end')
        s.final_stamps()
        e.raw('s_endpgm')
        for f in s.slow: f()
    def gate_mark(s, ev): return ('gate', ev)

def gen_fz(ts=False, cfg=None):
    e = Em(); I = e.I
    cfg = cfg or {}
    e.raw('s_cmp_ge_u32 s2, 256'); e.raw('s_cbranch_scc1 FZ_done')
    I(f's_load_dwordx16 s[64:79], s[0:1], 0')
    I(f's_load_dwordx8 s[80:87], s[0:1], 64')
    I(f's_load_dwordx8 s[88:95], s[0:1], 96')
    e.raw(f's_memrealtime s[96:97]')
    if ts: e.raw(f'{ts} s[98:99]')
    I(f'v_and_b32 v{vL}, 63, v0'); I(f'v_lshrrev_b32 v{vT}, 6, v0'); I(f'v_readfirstlane_b32 s{sw}, v{vT}')
    if cfg.get('codepf', 1):
        e.raw('s_getpc_b64 s[4:5]'); e.label('PF_base')
        I(f's_lshr_b32 s6, s2, 3'); I(f's_and_b32 s6, s6, 1'); I(f's_lshl_b32 s6, s6, 15')
        I(f'v_lshlrev_b32 v{vT+1}, 7, v0'); I(f'v_add_u32 v{vT+1}, s6, v{vT+1}')
        e.raw(f'v_min_u32 v{vT+1}, TEXT_END-PF_base-4, v{vT+1}')
        I(f'v_mov_b32 v{vT+4}, s4'); I(f'v_mov_b32 v{vT+5}, s5')
        I(f'v_add_co_u32 v{vT+4}, vcc, v{vT+4}, v{vT+1}'); I(f'v_addc_co_u32 v{vT+5}, vcc, 0, v{vT+5}, vcc')
        I(f'global_load_dword v{vDUM}, v[{vT+4}:{vT+5}], off')
    I(f's_and_b32 s{sTmp}, s2, 7'); I(f's_lshr_b32 s{sTmp2}, s2, 3')
    I(f's_lshr_b32 s{sRho}, s{sTmp2}, 2'); I(f's_and_b32 s{sU}, s{sTmp2}, 3')
    I(f's_and_b32 s{sTmp3}, s{sTmp}, 1'); I(f's_lshl_b32 s{sR}, s{sRho}, 1'); I(f's_add_u32 s{sR}, s{sR}, s{sTmp3}')
    I(f's_lshr_b32 s{sG}, s{sTmp}, 1'); I(f's_lshl_b32 s{sC}, s{sG}, 2'); I(f's_add_u32 s{sC}, s{sC}, s{sU}')
    I(f's_lshl_b32 s{sTmp}, s{sU}, 1')
    offm = cfg.get('offm', 'cur')
    if offm == 'cur': I(f's_add_u32 s{sOff}, s{sRho}, s{sTmp}'); I(f's_and_b32 s{sOff}, s{sOff}, 7')
    elif offm == 'zero': I(f's_mov_b32 s{sOff}, 0')
    elif offm == 'rho': I(f's_mov_b32 s{sOff}, s{sRho}')
    elif offm == 'u2': I(f's_mov_b32 s{sOff}, s{sTmp}')
    elif offm == 'rho4': I(f's_and_b32 s{sOff}, s{sRho}, 1'); I(f's_lshl_b32 s{sOff}, s{sOff}, 2')
    elif offm == 'rho2': I(f's_and_b32 s{sOff}, s{sRho}, 3'); I(f's_lshl_b32 s{sOff}, s{sOff}, 1')
    elif offm == 'xcd': I(f's_and_b32 s{sOff}, s2, 7')
    I(f's_mul_i32 s{sSo2}, s{sG}, 7'); I(f's_add_u32 s{sSo2}, s{sSo2}, s{sTmp}'); I(f's_lshl_b32 s{sSo2}, s{sSo2}, 7')
    I(f's_and_b32 s{sTp}, s{sw}, 1'); I(f's_lshr_b32 s{sCp}, s{sw}, 1')
    for s_, n in [(sX, 2048*512*2), (sW1, 512*1792*2), (sW3, 512*1792*2), (sCSC, 512*1792*2), (sSB, 512*512*2), (sWS, WS_SIZE), (sDBG, 256)]:
        I(f's_mov_b32 s{s_+2}, {n}'); I(f's_mov_b32 s{s_+3}, 0x00020000')
    I(f's_lshl_b32 s{sXo}, s{sR}, 2'); I(f's_add_u32 s{sXo}, s{sXo}, s{sw}'); I(f's_lshl_b32 s{sXo}, s{sXo}, 15')
    I(f's_lshl_b32 s{sSo}, s{sC}, 15'); I(f's_lshl_b32 s{sTmp}, s{sTp}, 13'); I(f's_add_u32 s{sSo}, s{sSo}, s{sTmp}')
    I(f's_mul_i32 s{sFo}, s{sw}, {16*WROW}'); I(f's_add_u32 s{sFo}, s{sFo}, s{sSo2}')
    I(f's_lshl_b32 s{sW12}, s{sw}, 12'); I(f's_lshl_b32 s{sW11}, s{sw}, 11'); I(f's_lshl_b32 s{sW13}, s{sw}, 13')
    a, b, c, d = vT, vT + 1, vT + 2, vT + 3
    I(f'v_lshlrev_b32 v{vHB}, 4, v{vL}')
    I(f'v_lshrrev_b32 v{a}, 5, v{vL}'); I(f'v_lshlrev_b32 v{a}, 4, v{a}'); I(f'v_and_b32 v{b}, 8, v{vL}'); I(f'v_add_u32 v{a}, v{a}, v{b}')
    I(f'v_bfe_u32 v{b}, v{vL}, 4, 1'); I(f'v_add_u32 v{a}, v{a}, v{b}'); I(f'v_lshlrev_b32 v{a}, 10, v{a}')
    I(f'v_and_b32 v{b}, 7, v{vL}'); I(f'v_lshrrev_b32 v{c}, 4, v{vL}'); I(f'v_xor_b32 v{d}, v{b}, v{c}')
    I(f'v_lshl_add_u32 v{vDX}, v{d}, 4, v{a}')
    I(f'v_xor_b32 v{vDX+1}, 64, v{vDX}'); I(f'v_add_u32 v{vDX+1}, 1024, v{vDX+1}')
    I(f'v_add_u32 v{vDX+2}, 2048, v{vDX}'); I(f'v_add_u32 v{vDX+3}, 2048, v{vDX+1}')
    I(f'v_bfe_u32 v{a}, v{vL}, 4, 1'); I(f'v_lshlrev_b32 v{a}, 2, v{a}'); I(f'v_xor_b32 v{a}, v{a}, v{b}'); I(f'v_lshlrev_b32 v{a}, 4, v{a}')
    I(f'v_lshrrev_b32 v{d}, 3, v{vL}'); I(f'v_mul_u32_u24 v{vDF}, {WROW}, v{d}'); I(f'v_add_u32 v{vDF}, v{vDF}, v{a}')
    for i in range(1, 4): I(f'v_add_u32 v{vDF+i}, {27648*i}, v{vDF}')
    I(f's_lshl_b32 s{sTmp}, s{sTp}, 2'); I(f'v_add_u32 v{c}, s{sTmp}, v{c}'); I(f'v_xor_b32 v{a}, v{b}, v{c}')
    I(f'v_lshlrev_b32 v{a}, 4, v{a}'); I(f'v_lshl_add_u32 v{vDS}, v{d}, 10, v{a}'); I(f'v_add_u32 v{vDS+1}, 15360, v{vDS}')
    e.force_wait('lgkmcnt(0)')
    if ts: I(f'v_writelane_b32 v{vTS}, s98, 0')
    gH = Gen('H', e, ts, cfg); gL = Gen('L', e, ts, cfg)
    I(f's_cmp_eq_u32 s{sU}, 3'); e.raw('s_cbranch_scc1 FZ_L')
    sv = (dict(e.lastw), dict(e.lastsw))
    for g, lab in ((gH, None), (gL, 'FZ_L')):
        if lab: e.label(lab); e.reset_hazards(pad=2); e.lgk = []; e.vm = []
        g.body()
    e.label('FZ_done'); e.raw('s_endpgm')
    return e
```

```python
from em import Em
from collections import deque
WS_STATS = 12 << 20
WS_CSS = (12 << 20) + (64 << 10)
WS_CSF = (12 << 20) + (128 << 10)
WS_E = 13 << 20
WS_FL = (13 << 20) + (512 << 10)
WS_TS = 14 << 20
WS_SIZE = 16 << 20
TSTRIDE = 176 * 1024
SLOT = 32768
HALF = 65536
MISC = 131072
L_RS = MISC
L_TOTZ = MISC + 512
L_TAB = MISC + 2304
L_WAUG = MISC + 6400
L_CSC = MISC + 16384
L_TR = MISC + 16384
OOB = 0x40000000
LOG2E = 0x3fb8aa3b
NLOG2E = 0xbfb8aa3b
INV2PI = 0x3e22f983
SPIN = 100000
WROW = 3584
WCH = 64 * WROW

sCSC, sX, sW1, sW3, sWS, sSB, sDBG = 4, 8, 12, 16, 20, 24, 28
sw, sR, sC, sOff, sNonce, sTp, sCp, sU, sG, sRho = 32, 33, 34, 35, 36, 37, 38, 39, 40, 41
sXo, sSo, sFo, sKa, sKb, sKc, sTmp, sTmp2, sTmp3 = 42, 43, 44, 45, 46, 47, 48, 49, 50
sW12, sW11, sW13, sTg0, sHF = 51, 52, 53, 54, 55
sMhi, sModd, sBad, sMsel = 56, 58, 60, 62
sSpin = 3
sGa, sGb = 96, 97
kX, kLre, kLim, kBre, kBim, kCre, kCim, kLdt = 64, 66, 68, 70, 72, 74, 76, 78
kDk, kBx, kW1, kW3, kW2, kOut, kDbg, kWs = 80, 82, 84, 86, 88, 90, 92, 94
TSPOOL = [98, 82, 0]
sSo2 = 101
sFlP = 100
sW2, sCRE, sCIM, sOUT = 64, 68, 84, 92
sBE, sBY, sFlC, sXb, sSb, sDko, sRowW, sCrow, sOb = 72, 73, 74, 75, 76, 77, 78, 79, 88
aS, aG0, aU0, aG1, aU1, WF = 0, 32, 64, 96, 128, 160
vW, vA0, vA1, vB1, vPl = 176, 180, 181, 182, 183
vXA, vSS, vG, vL, vHB, vCA = 184, 188, 192, 193, 194, 195
vDX, vDF, vDS = 196, 200, 204
vXaug, vNRS, vK2, vSA = 206, 214, 216, 218
vT = 222
vNon, vPo, vTS, vDUM = 252, 253, 254, 255
vCh, vTg, vRs, vTo, vTw, vTr, vEo, vFl = 222, 223, 224, 225, 226, 227, 228, 229
vPc, vPC, vH = 230, 234, 238
vC, vY = 196, 184
ACCO, ACCY = 128, 192
TRANS = ('v_exp_f32','v_log_f32','v_rcp_f32','v_rsq_f32','v_sqrt_f32','v_sin_f32','v_cos_f32')

VOP3 = ('v_fma_f32', 'v_lshl_add_u32', 'v_bfe_u32', 'v_cvt_pk_bf16_f32', 'v_mul_lo_u32', 'v_add3_u32', 'v_lshl_or_b32', 'v_and_or_b32', 'v_writelane_b32', 'v_mul_u32_u24')
def cost(txt):
    mn = txt.split()[0]
    if mn in TRANS or 'permlane' in mn: return 8
    if mn.startswith('v_mfma'): return 8
    if mn.startswith('v_pk_'): return 20
    if mn in VOP3 or (mn.startswith('v_cndmask') and 's[' in txt) or (mn.startswith('v_cmp') and ' s[' in txt[:30]) or '0x' in txt and mn.startswith('v_') or (mn.startswith('v_') and ' -v' in txt): return 5
    return 4

class Atom:
    def __init__(s, items):
        s.items = items; s.cost = sum(icost(x) for x in items)
class Fn:
    def __init__(s, f, c): s.f = f; s.cost = c
def icost(x):
    if isinstance(x, (Atom, Fn)): return x.cost
    return cost(x[0] if isinstance(x, tuple) else x)
def isctl(x, k): return isinstance(x, tuple) and x[0] == k

def cmac(d, a, b, c):
    if d == c:
        return [f'v_fmac_f32 v{d}, v{a}, v{b}', f'v_fmac_f32 v{d+1}, v{a}, v{b+1}',
                f'v_fma_f32 v{d}, -v{a+1}, v{b+1}, v{d}', f'v_fmac_f32 v{d+1}, v{a+1}, v{b}']
    return [f'v_fma_f32 v{d}, v{a}, v{b}, v{c}', f'v_fma_f32 v{d+1}, v{a}, v{b+1}, v{c+1}',
            f'v_fma_f32 v{d}, -v{a+1}, v{b+1}, v{d}', f'v_fmac_f32 v{d+1}, v{a+1}, v{b}']
def zipl(a, b):
    out = []; i = j = 0
    while i < len(a) or j < len(b):
        if j >= len(b) or (i < len(a) and i * len(b) <= j * len(a)): out.append(a[i]); i += 1
        else: out.append(b[j]); j += 1
    return out

DEF_SCHED = [['W3', 'B2', 'B3'], ['W4'], ['pL', 'W5'], ['W6', 'cL', 'B4', 'B5', 'B6'], ['pY', 'W7'], ['W8', 'cY', 'B7', 'B8'], ['W9', 'B9'], ['W10', 'B10'], [], [], []]
SCHED3 = [['W3', 'B2', 'B3'], ['fY', 'W4'], ['fL', 'pY', 'W5'], ['W6', 'cY', 'B4', 'B5', 'pL'], ['W7', 'cL', 'B6', 'B7'], ['W8', 'B8'], ['W9', 'B9'], ['W10', 'B10'], [], [], []]
class Gen:
    def __init__(s, typ, e, ts=False, cfg=None):
        s.typ = typ; s.e = e; s.ts = ts
        s.cfg = dict(gA_issue=5, gB_issue=6, gA_proc=7, gB_proc=7, gBbar=8, offm='zero', fcs=3, budA=30, budB=24, budC=24, budD=24, pf=3, p2=True, budP=40, budP0=64, slack=1,
                     pE=10, cE=16, s3b=14, flEb=12, sched=DEF_SCHED, totb=12)
        if cfg: s.cfg.update(cfg)
        s.fill = deque(); s.events = set(); s.half = {}
        s.slow = []
        s.pacc = 0.5
        s.nlab = 0
        s.P = f'FZ{typ}'
        s.pend = []
        s.names = s.cfg.get('stamps', [])
        if s.cfg.get('sc3'):
            d = dict(types=[('o', 0), ('o', 2), ('o', 4), ('o', 6), ('y', 0), ('y', 1), ('o', 1), ('o', 3), ('o', 5), ('y', 2), ('y', 3)],
                     sched=SCHED3, totk=20, flEk=(1, 28), s3ik=None, s3pk=(1, 26), g1pos=2, pE=6, cE=14, nEB=2, tq=1)
            for k, v in d.items():
                if not cfg or k not in cfg: s.cfg[k] = v
        s.TYPES = s.cfg.get('types', Gen.TYPES)
    def I(s, t, tag=None): s.e.I(t, tag)
    def lab(s, n):
        s.nlab += 1; return f'{s.P}_{n}{s.nlab}'
    def stamp(s, name):
        if not s.ts or name not in s.names: return
        k = s.names.index(name) + 1
        used = [p[0] for p in s.pend]
        free = [r for r in TSPOOL if r not in used]
        if not free:
            s.flush_stamps(); free = list(TSPOOL)
        r = free[0]
        s.e.raw(f'{s.ts} s[{r}:{r+1}]')
        s.pend.append((r, k))
    def fstamp(s, name):
        return Fn(lambda: s.stamp(name), 0)
    def flush_stamps(s):
        if not s.pend: return
        s.e.force_wait('lgkmcnt(0)')
        for r, k in s.pend: s.I(f'v_writelane_b32 v{vTS}, s{r}, {k}')
        s.pend = []
    def final_stamps(s):
        if not s.ts: return
        s.flush_stamps()
        I = s.I
        I(f's_lshl_b32 s{sTmp}, s2, 2'); I(f's_add_u32 s{sTmp}, s{sTmp}, s{sw}'); I(f's_lshl_b32 s{sTmp}, s{sTmp}, 8'); I(f's_add_u32 s{sTmp}, s{sTmp}, {WS_TS}')
        I(f'v_lshlrev_b32 v{vDUM}, 2, v{vL}')
        I(f'buffer_store_dword v{vTS}, v{vDUM}, s[{sWS}:{sWS+3}], s{sTmp} offen')
    def add(s, items):
        for x in items: s.fill.append(x)
    def addfront(s, items):
        for x in reversed(items): s.fill.appendleft(x)
    def gate(s, ev): return ('gate', ev)
    def mark(s, ev): return ('mark', ev)
    def emit1(s, x):
        if isinstance(x, Atom):
            for y in x.items: s.emit1(y)
        elif isinstance(x, Fn): x.f()
        elif isinstance(x, tuple): s.I(x[0], x[1])
        else: s.I(x)
    def run_fill(s, budget):
        while s.fill:
            x = s.fill[0]
            if isctl(x, 'gate'):
                if x[1] in s.events: s.fill.popleft(); continue
                return
            if isctl(x, 'mark'):
                s.fill.popleft(); s.events.add(x[1]); continue
            c = icost(x)
            if c > budget + s.cfg['slack'] and not (c > 20 and budget >= 12): return
            n0 = s.e.n
            s.fill.popleft(); s.emit1(x); budget -= max(c, 4 * (s.e.n - n0))
    def gap(s, n0, G):
        s.run_fill(G - 4 * (s.e.n - n0))
    def pace(s, dma, left):
        if not dma: s.pacc = s.cfg.get('pacc0', 0.5); return
        s.pacc += len(dma) / max(left, 1)
        n = int(s.pacc + 1e-9); s.pacc -= n
        for _ in range(min(n, len(dma))): dma.popleft()()
        if not dma: s.pacc = s.cfg.get('pacc0', 0.5)
    def atom(s, lst): return Atom(lst)
    def capture(s, fn):
        rec = []
        old = s.I
        s.I = lambda t, tag=None: rec.append((t, tag) if tag else t)
        fn()
        s.I = old
        out = []; i = 0
        txt = lambda x: x[0] if isinstance(x, tuple) else x
        while i < len(rec):
            t = txt(rec[i])
            if t.startswith(('s_cmp', 's_bitcmp')):
                j = i + 1
                while j < len(rec) and txt(rec[j]).startswith('s_cselect'): j += 1
                out.append(Atom(rec[i:j])); i = j
            elif t.startswith('v_cmp') and ' vcc,' in t:
                j = i + 1
                while j < len(rec) and txt(rec[j]).startswith('v_cndmask') and txt(rec[j]).endswith('vcc'): j += 1
                assert j > i + 1, t
                out.append(Atom(rec[i:j])); i = j
            else: out.append(rec[i]); i += 1
        return out
    def until(s, ev):
        while ev not in s.events:
            assert s.fill, ev
            x = s.fill[0]
            if isctl(x, 'gate'): assert x[1] in s.events, (ev, x)
            s.run_fill(64)
    def drain(s):
        while s.fill:
            x = s.fill[0]
            if isctl(x, 'gate'): assert x[1] in s.events, x
            s.run_fill(10**9)
    def addr(s, reg, slot):
        h = slot >> 1
        if s.half.get(reg, 0) != h:
            s.I(f'v_add_u32 v{reg}, {HALF}, v{reg}' if h else f'v_subrev_u32 v{reg}, {HALF}, v{reg}')
            s.half[reg] = h
        return (slot & 1) * SLOT
    def barrier(s, name, wait_tag=None):
        e = s.e
        s.stamp('pre' + name)
        if wait_tag: e.wait_tag(wait_tag)
        e.barrier()
        s.events.add(name)
        s.stamp(name)
        s.flush_stamps()
    def rd_x(s, st, ks, t):
        a = ((4 * st + ks) * 2 + t) * 4
        def f():
            o = s.addr(vXA + ks, st & 3)
            s.I(f'ds_read_b128 a[{a}:{a+3}], v{vXA+ks} offset:{o+4096*t}')
        return [f]
    def rd_S(s, st, ks, dst):
        def f():
            o = s.addr(vSS + ks, st & 3)
            s.I(f'ds_read_b128 v[{dst}:{dst+3}], v{vSS+ks} offset:{o}')
        return [f]
    def rd_W(s, slot, off, dst):
        def f1():
            o = s.addr(vG, slot)
            s.I(f'ds_read_b64_tr_b16 v[{dst}:{dst+1}], v{vG} offset:{o+off}')
        def f2():
            o = s.addr(vG, slot)
            s.I(f'ds_read_b64_tr_b16 v[{dst+2}:{dst+3}], v{vG} offset:{o+off+512}')
        return [f1, f2]
    def mkdma(s, ops, tag):
        out = []
        for pre, ins in ops:
            def f(pre=pre, ins=ins):
                for p in pre: s.I(p)
                s.I(ins, tag)
            out.append(f)
        return out
    def dma_list(s, st):
        ops = []
        slot = (st & 3) * SLOT
        if st < 8:
            pre = [f's_add_u32 s{sKa}, s{sOff}, {st}', f's_and_b32 s{sKa}, s{sKa}, 7', f's_lshl_b32 s{sKb}, s{sKa}, 7',
                   f's_add_u32 s{sKc}, s{sXo}, s{sKb}', f's_add_u32 m0, s{sW12}, {slot}']
            for A in range(4):
                ops.append((pre if A == 0 else [], f'buffer_load_dwordx4 v{vDX+A}, s[{sX}:{sX+3}], s{sKc} offen offset:{1024*A} lds'))
            pre = [f's_add_u32 s{sKc}, s{sSo}, s{sKb}', f's_add_u32 m0, s{sW11}, {slot+16384}']
            for i in range(2):
                ops.append((pre if i == 0 else [], f'buffer_load_dwordx4 v{vDS+i}, s[{sSB}:{sSB+3}], s{sKc} offen offset:{1024*i} lds'))
            pre = [f's_mul_i32 s{sKc}, s{sKa}, {WCH}', f's_add_u32 s{sKc}, s{sKc}, s{sFo}', f's_add_u32 m0, s{sW11}, {slot+24576}']
            for i in range(2):
                ops.append((pre if i == 0 else [], f'buffer_load_dwordx4 v{vDF+i}, s[{sW1}:{sW1+3}], s{sKc} offen offset:{1024*i} lds'))
        else:
            p = (st - 8) >> 1; vs = st & 1
            srd = sW1 if p == 1 else sW3
            line = 128 if p >= 1 else 0
            pre = [f's_add_u32 s{sKa}, s{sOff}, s{sw}', f's_add_u32 s{sKa}, s{sKa}, {4*vs}', f's_and_b32 s{sKa}, s{sKa}, 7',
                   f's_mul_i32 s{sKc}, s{sKa}, {WCH}', f's_add_u32 s{sKc}, s{sKc}, s{sSo2}']
            if line: pre.append(f's_add_u32 s{sKc}, s{sKc}, {line}')
            pre.append(f's_add_u32 m0, s{sW13}, {slot}')
            for i in range(4):
                ops.append((pre if i == 0 else [], f'buffer_load_dwordx4 v{vDF+i}, s[{srd}:{srd+3}], s{sKc} offen offset:{1024*i} lds'))
            pre = [f's_add_u32 s{sKc}, s{sKc}, {32*WROW}', f's_add_u32 m0, s{sW13}, {slot+4096}']
            for i in range(4):
                ops.append((pre if i == 0 else [], f'buffer_load_dwordx4 v{vDF+i}, s[{srd}:{srd+3}], s{sKc} offen offset:{1024*i} lds'))
        return s.mkdma(ops, f'D{st}')
    def dma_csc(s):
        ops = []
        nl = 2 if s.typ == 'H' else 1
        for X in range(nl):
            pre = [f's_mul_i32 s{sKc}, s{sRho}, {WCH}', f's_add_u32 s{sKc}, s{sKc}, s{sFo}']
            if X: pre.append(f's_add_u32 s{sKc}, s{sKc}, 128')
            pre.append(f's_add_u32 m0, s{sW11}, {L_CSC + X*8192}')
            for i in range(2):
                ops.append((pre if i == 0 else [], f'buffer_load_dwordx4 v{vDF+i}, s[{sCSC}:{sCSC+3}], s{sKc} offen offset:{1024*i} lds'))
        return s.mkdma(ops, 'CSC')

    XR, SR, PR, NP = 96, 104, 108, 114
    SV = 152
    def inter(s, vms, alus, per):
        alus = deque(alus)
        for f in vms:
            f()
            bud = per
            while alus and bud > 0:
                x = alus.popleft(); n0 = s.e.n; s.emit1(x); bud -= max(icost(x), 4 * (s.e.n - n0))
        while alus: s.emit1(alus.popleft())
    def prologue(s):
        e = s.e; I = s.I; typ = s.typ; cfg = s.cfg
        a, b, c, d = 240, 241, 242, 243
        XR, SR, PR, NP = s.XR, s.SR, s.PR, s.NP
        s.stamp('karg')
        I(f's_mov_b64 s[{sX}:{sX+1}], s[{kX}:{kX+1}]')
        I(f's_mov_b64 s[{sDBG}:{sDBG+1}], s[{kDbg}:{kDbg+1}]')
        Ln = s.lab('nn')
        I(f's_or_b32 s{sTmp2}, s2, s{sw}'); I(f's_cmp_eq_u32 s{sTmp2}, 0'); e.raw(f's_cbranch_scc0 {Ln}')
        I(f's_or_b32 s{sTmp}, s{sSB}, 1')
        I(f'v_mov_b32 v{a}, s{sTmp}'); I(f'v_lshlrev_b32 v{b}, 10, v{vL}')
        I(f'buffer_store_dword v{a}, v{b}, s[{sDBG}:{sDBG+3}], 0 offen sc1')
        e.label(Ln)
        I(f'buffer_load_dwordx4 v[{XR}:{XR+3}], v{vHB}, s[{sX}:{sX+3}], s{sGa} offen', 'XR')
        I(f'buffer_load_dwordx4 v[{XR+4}:{XR+7}], v{vHB}, s[{sX}:{sX+3}], s{sGa} offen offset:1024', 'XR')
        I(f's_mov_b64 s[{sW1}:{sW1+1}], s[{kW1}:{kW1+1}]')
        I(f's_cmp_eq_u32 s{sCp}, 0'); I(f's_cselect_b64 s[{sSB}:{sSB+1}], s[{kBre}:{kBre+1}], s[{kBim}:{kBim+1}]')
        I(f's_bitcmp1_b32 s{sR}, 2'); I(f's_cselect_b64 s[{sTmp}:{sTmp+1}], s[{kBim}:{kBim+1}], s[{kBre}:{kBre+1}]')
        I(f'global_load_dwordx4 v[{SR}:{SR+3}], v{SR}, s[{sTmp}:{sTmp+1}]', 'SR')
        for k, src in enumerate((kLre, kLim, kLdt)): I(f'global_load_ushort v{PR+k}, v{PR+3}, s[{src}:{src+1}]', 'PR')
        I(f's_mov_b64 s[{sWS}:{sWS+1}], s[{kWs}:{kWs+1}]')
        I(f's_mov_b64 s[{sW3}:{sW3+1}], s[{kW3}:{kW3+1}]')
        I(f's_and_b32 s{sTmp}, s{sR}, 1'); I(f's_cmp_eq_u32 s{sTmp}, 0'); I(f's_cselect_b64 s[{sCSC}:{sCSC+1}], s[{kW1}:{kW1+1}], s[{kW3}:{kW3+1}]')
        s.stamp('q0')
        pe = s.capture(s.p2_srd) + s.capture(s.p2_early)
        s.inter(s.dma_list(0), pe + s.s_setup(), cfg.get('per0', 56))
        s.stamp('q1')
        I(f's_lshr_b32 s{sGa}, s{sGa}, 7'); I(f's_add_u32 s{sGa}, s{sGa}, {WS_STATS}')
        I(f'v_mov_b32 v{NP+1}, 0')
        def np_():
            I(f'buffer_load_dword v{NP}, v{NP+1}, s[{sDBG}:{sDBG+3}], 0 offen sc1', 'NP')
        e.wait_tag('XR')
        s.stamp('q2')
        st_ = s.capture(s.stats_x); ss_ = s.capture(s.stats_s)
        s.inter([np_] + s.dma_list(1) + s.pf1_list(), st_ + ss_, cfg.get('per1', 56))
        s.stamp('q4')
        s.barrier('B0', 'D0')

    def pf1_list(s):
        m = s.cfg.get('pf1', 0); I = s.I; out = []
        va, vb = 244, 245
        if m & 1:
            def fx():
                I(f'v_lshlrev_b32 v{va}, 3, v{vHB}')
                I(f's_lshl_b32 s{sKa}, s{sR}, 17'); I(f's_lshl_b32 s{sKb}, s{sU}, 15'); I(f's_add_u32 s{sKa}, s{sKa}, s{sKb}')
                I(f's_lshl_b32 s{sKb}, s{sw}, 13'); I(f's_add_u32 s{sKa}, s{sKa}, s{sKb}')
                I(f'buffer_load_dword v{vDUM}, v{va}, s[{sX}:{sX+3}], s{sKa} offen', 'PF')
            out.append(fx)
        if m & 2:
            def fs():
                I(f'v_lshlrev_b32 v{vb}, 3, v{vHB}'); I(f'v_mov_b32 v{va}, {OOB}')
                I(f'v_cndmask_b32 v{vb}, v{vb}, v{va}, s[{sMhi}:{sMhi+1}]')
                I(f's_lshl_b32 s{sKa}, s{sC}, 15'); I(f's_lshl_b32 s{sKb}, s{sRho}, 12'); I(f's_add_u32 s{sKa}, s{sKa}, s{sKb}')
                I(f's_cmp_eq_u32 s{sTp}, 0'); I(f's_cselect_b32 s{sKa}, s{sKa}, {OOB}')
                I(f'buffer_load_dword v{vDUM}, v{vb}, s[{sSB}:{sSB+3}], s{sKa} offen', 'PF')
            out.append(fs)
        if m & 4:
            def fw():
                I(f'v_mul_u32_u24 v{va}, {WROW}, v{vL}')
                I(f's_cmp_eq_u32 s{sCp}, 0'); I(f's_cselect_b64 s[{sBad}:{sBad+1}], s[{sW1}:{sW1+1}], s[{sW3}:{sW3+1}]')
                I(f's_mov_b32 s{sBad+2}, {512*1792*2}'); I(f's_mov_b32 s{sBad+3}, 0x00020000')
                I(f's_mul_i32 s{sKa}, s{sRho}, {WCH}'); I(f's_add_u32 s{sKa}, s{sKa}, s{sSo2}')
                I(f's_add_u32 s{sKb}, s{sKa}, 128')
                if s.typ == 'L': I(f's_mov_b32 s{sKb}, {OOB}')
                I(f's_cmp_eq_u32 s{sTp}, 0'); I(f's_cselect_b32 s{sKa}, s{sKb}, s{sKa}')
                I(f'buffer_load_dword v{vDUM}, v{va}, s[{sBad}:{sBad+3}], s{sKa} offen', 'PF')
            out.append(fw)
        return out
    def pf2_item(s, unit, k):
        I = s.I
        def f():
            I(f'v_lshlrev_b32 v{vPo}, 3, v{vHB}')
            I(f's_mul_i32 s{sKa}, s{sRho}, 3'); I(f's_add_u32 s{sKa}, s{sKa}, s{sU}'); I(f's_lshl_b32 s{sKa}, s{sKa}, 2'); I(f's_add_u32 s{sKa}, s{sKa}, s{sw}')
            if k % 3:
                I(f's_add_u32 s{sKa}, s{sKa}, {32 * (k % 3)}'); I(f's_sub_u32 s{sKb}, s{sKa}, 96'); I(f's_cmp_ge_u32 s{sKa}, 96'); I(f's_cselect_b32 s{sKa}, s{sKb}, s{sKa}')
            if unit in ('r', 'i'):
                I(f's_lshl_b32 s{sKa}, s{sKa}, 13'); srd = sCRE if unit == 'r' else sCIM
            else:
                j = unit
                I(f's_lshr_b32 s{sKb}, s{sKa}, 3'); I(f's_mul_i32 s{sKb}, s{sKb}, {7*65536}'); I(f's_and_b32 s{sKa}, s{sKa}, 7'); I(f's_lshl_b32 s{sKa}, s{sKa}, 13')
                I(f's_add_u32 s{sKa}, s{sKa}, s{sKb}')
                if j: I(f's_add_u32 s{sKa}, s{sKa}, {j*65536}')
                srd = sW2
            I(f'buffer_load_dword v{vDUM}, v{vPo}, s[{srd}:{srd+3}], s{sKa} offen', 'PF')
        return f
    def pfL(s, pos):
        I = s.I; out = []
        va, vb = 100, 101
        for unit in s.cfg.get('pfL', {}).get(pos, ()):
            def f(unit=unit):
                if not getattr(s, 'pfl_init', False):
                    s.pfl_init = True
                    I(f'v_lshlrev_b32 v{va}, 3, v{vHB}')
                    I(f'v_lshrrev_b32 v{vb}, 2, v{vL}'); I(f'v_lshlrev_b32 v{vb}, 10, v{vb}'); I(f'v_and_b32 v{va+2}, 3, v{vL}'); I(f'v_lshl_add_u32 v{vb}, v{va+2}, 8, v{vb}')
                I(f's_lshl_b32 s{sKa}, s{sRho}, 2'); I(f's_add_u32 s{sKa}, s{sKa}, s{sw}')
                if isinstance(unit, str):
                    I(f's_lshl_b32 s{sKa}, s{sKa}, 14')
                    if unit[1] == '1': I(f's_add_u32 s{sKa}, s{sKa}, 128')
                    srd = sCRE if unit[0] == 'r' else sCIM; v = vb
                else:
                    I(f's_lshr_b32 s{sKb}, s{sKa}, 3'); I(f's_mul_i32 s{sKb}, s{sKb}, {7*65536}'); I(f's_and_b32 s{sKa}, s{sKa}, 7'); I(f's_lshl_b32 s{sKa}, s{sKa}, 13')
                    I(f's_add_u32 s{sKa}, s{sKa}, s{sKb}')
                    if unit: I(f's_add_u32 s{sKa}, s{sKa}, {unit*65536}')
                    srd = sW2; v = va
                I(f'buffer_load_dword v{vDUM}, v{v}, s[{srd}:{srd+3}], s{sKa} offen', 'PF')
            out.append(f)
        return out
    def pre_karg(s):
        I = s.I; a = 240
        SR, PR = s.SR, s.PR
        I(f's_lshl_b32 s{sTmp}, s{sR}, 7'); I(f's_lshl_b32 s{sTmp2}, s{sC}, 3'); I(f's_add_u32 s{sTmp}, s{sTmp}, s{sTmp2}')
        I(f's_lshl_b32 s{sTmp2}, s{sw}, 1'); I(f's_add_u32 s{sTmp}, s{sTmp}, s{sTmp2}')
        I(f's_lshl_b32 s{sGa}, s{sTmp}, 10')
        I(f's_lshr_b32 s{sTmp3}, s{sR}, 3'); I(f's_lshl_b32 s{sTmp3}, s{sTmp3}, 4')
        I(f's_and_b32 s{sTmp}, s{sR}, 3'); I(f's_lshl_b32 s{sTmp}, s{sTmp}, 2'); I(f's_add_u32 s{sTmp3}, s{sTmp3}, s{sTmp}')
        I(f's_lshl_b32 s{sTmp}, s{sC}, 5'); I(f's_add_u32 s{sTmp3}, s{sTmp3}, s{sTmp}'); I(f's_add_u32 s{sTmp3}, s{sTmp3}, s{sw}')
        I(f's_lshl_b32 s{sTmp3}, s{sTmp3}, 10'); I(f'v_add_u32 v{SR}, s{sTmp3}, v{vHB}')
        I(f's_lshl_b32 s{sGb}, s{sR}, 2'); I(f's_add_u32 s{sGb}, s{sGb}, s{sw}'); I(f's_lshl_b32 s{sGb}, s{sGb}, 3')
        I(f's_lshl_b32 s{sTmp3}, s{sC}, 9'); I(f's_add_u32 s{sGb}, s{sGb}, s{sTmp3}'); I(f's_add_u32 s{sGb}, s{sGb}, {WS_CSS}')
        I(f'v_and_b32 v{a}, 31, v{vL}'); I(f'v_lshlrev_b32 v{a}, 1, v{a}')
        I(f's_lshl_b32 s{sTmp}, s{sC}, 6'); I(f'v_add_u32 v{PR+3}, s{sTmp}, v{a}')

    def p2_srd(s):
        I = s.I
        for dst, src, n in ((sW2, kW2, 1792*512*2), (sCRE, kCre, 512*512*2), (sCIM, kCim, 512*512*2), (sOUT, kOut, 2048*512*4)):
            I(f's_mov_b64 s[{dst}:{dst+1}], s[{src}:{src+1}]'); I(f's_mov_b32 s{dst+2}, {n}'); I(f's_mov_b32 s{dst+3}, 0x00020000')
    def p2_early(s):
        I = s.I; a, b, c, d = 240, 241, 242, 243
        I(f's_and_b32 s{sTmp}, s2, 7'); I(f's_lshl_b32 s{sTmp}, s{sTmp}, 2'); I(f's_add_u32 s{sTmp}, s{sTmp}, s{sU}')
        I(f's_mul_i32 s{sTmp2}, s{sTmp}, {2*TSTRIDE}')
        I(f's_mul_i32 s{sBE}, s{sw}, 28672'); I(f's_add_u32 s{sBE}, s{sBE}, s{sTmp2}')
        I(f's_lshl_b32 s{sBY}, s{sw}, 14'); I(f's_add_u32 s{sBY}, s{sBY}, s{sTmp2}'); I(f's_add_u32 s{sBY}, s{sBY}, 114688')
        sDt = sRho
        if s.cfg.get('dtx', 0):
            sDt = sTmp3; I(f's_xor_b32 s{sDt}, s{sRho}, {s.cfg["dtx"]}')
        I(f's_mul_i32 s{sRowW}, s{sw}, {7*65536}'); I(f's_lshl_b32 s{sDko}, s{sDt}, 7'); I(f's_add_u32 s{sRowW}, s{sRowW}, s{sDko}')
        I(f's_lshl_b32 s{sCrow}, s{sDt}, 16'); I(f's_lshl_b32 s{sTmp2}, s{sw}, 8'); I(f's_add_u32 s{sCrow}, s{sCrow}, s{sTmp2}')
        I(f's_lshl_b32 s{sFlC}, s{sTmp}, 2'); I(f's_add_u32 s{sFlC}, s{sFlC}, s{sw}'); I(f's_lshl_b32 s{sFlC}, s{sFlC}, 7'); I(f's_add_u32 s{sFlC}, s{sFlC}, {WS_FL + s.cfg.get("floff", 0)}')
        I(f's_lshl_b32 s{sTmp}, s{sTmp}, 6'); I(f's_lshl_b32 s{sTmp2}, s{sw}, 4'); I(f's_add_u32 s{sTmp}, s{sTmp}, s{sTmp2}')
        I(f's_lshl_b32 s{sXb}, s{sTmp}, 10'); I(f's_add_u32 s{sXb}, s{sXb}, s{sDko}')
        I(f's_lshl_b32 s{sOb}, s{sXb}, 1')
        I(f's_lshl_b32 s{sSb}, s{sTmp}, 3'); I(f's_add_u32 s{sSb}, s{sSb}, {WS_STATS}')
        I(f's_lshl_b32 s{sFlP}, s{sR}, 1'); I(f's_add_u32 s{sFlP}, s{sFlP}, s{sTp}'); I(f's_lshl_b32 s{sFlP}, s{sFlP}, 2'); I(f's_add_u32 s{sFlP}, s{sFlP}, s{sG}')
        I(f's_lshl_b32 s{sFlP}, s{sFlP}, 7'); I(f's_lshl_b32 s{sTmp}, s{sU}, 1'); I(f's_add_u32 s{sTmp}, s{sTmp}, s{sCp}'); I(f's_lshl_b32 s{sTmp}, s{sTmp}, 2')
        I(f's_add_u32 s{sFlP}, s{sFlP}, s{sTmp}'); I(f's_add_u32 s{sFlP}, s{sFlP}, {WS_FL + s.cfg.get("floff", 0)}')
        I(f'v_bfe_u32 v{a}, v{vL}, 4, 1'); I(f'v_lshlrev_b32 v{a}, 2, v{a}'); I(f'v_and_b32 v{b}, 7, v{vL}'); I(f'v_xor_b32 v{a}, v{a}, v{b}')
        I(f'v_lshrrev_b32 v{c}, 3, v{vL}'); I(f'v_lshlrev_b32 v{c}, 10, v{c}'); I(f'v_lshl_add_u32 v{vW}, v{a}, 4, v{c}')
        for i in range(1, 4): I(f'v_add_u32 v{vW+i}, {7168*i}, v{vW}')
        I(f'v_lshrrev_b32 v{a}, 5, v{vL}'); I(f'v_lshlrev_b32 v{a}, 2, v{a}'); I(f'v_bfe_u32 v{c}, v{vL}, 2, 2'); I(f'v_add_u32 v{a}, v{a}, v{c}')
        I(f'v_lshlrev_b32 v{a}, 7, v{a}'); I(f'v_lshrrev_b32 v{c}, 1, v{c}'); I(f'v_lshlrev_b32 v{c}, 6, v{c}'); I(f'v_add_u32 v{a}, v{a}, v{c}')
        I(f'v_bfe_u32 v{c}, v{vL}, 4, 1'); I(f'v_lshl_add_u32 v{a}, v{c}, 5, v{a}'); I(f'v_and_b32 v{c}, 3, v{vL}'); I(f'v_lshl_add_u32 v{a}, v{c}, 3, v{a}')
        I(f'v_add_u32 v{vA0}, s{sW13}, v{a}'); I(f'v_xor_b32 v{vA1}, 64, v{vA0}')
        I(f'v_add_u32 v{vB1}, {TSTRIDE}, v{vHB}')
        I(f'v_and_b32 v{vPl}, 31, v{vL}'); I(f'v_lshlrev_b32 v{vPl}, 2, v{vPl}')

    def lds_addrs(s):
        I = s.I; a, b, c, d = 240, 241, 242, 243
        I(f'v_and_b32 v{a}, 31, v{vL}'); I(f'v_bfe_u32 v{b}, v{vL}, 1, 3'); I(f'v_lshrrev_b32 v{c}, 5, v{vL}'); I(f'v_xor_b32 v{b}, v{b}, v{c}')
        I(f'v_lshlrev_b32 v{b}, 4, v{b}')
        I(f'v_lshl_add_u32 v{d}, v{a}, 7, v{b}')
        I(f's_lshl_b32 s{sTmp}, s{sTp}, 13')
        I(f'v_add_u32 v{vXA}, s{sTmp}, v{d}')
        for k in range(1, 4): I(f'v_xor_b32 v{vXA+k}, {32*k}, v{vXA}')
        I(f'v_lshrrev_b32 v{c}, 3, v{a}'); I(f'v_lshlrev_b32 v{c}, 11, v{c}'); I(f'v_and_b32 v{d}, 7, v{a}'); I(f'v_lshl_add_u32 v{c}, v{d}, 7, v{c}')
        I(f'v_add_u32 v{c}, v{c}, v{b}'); I(f's_lshl_b32 s{sTmp}, s{sCp}, 10'); I(f's_add_u32 s{sTmp}, s{sTmp}, 16384')
        I(f'v_add_u32 v{vSS}, s{sTmp}, v{c}')
        for k in range(1, 4): I(f'v_xor_b32 v{vSS+k}, {32*k}, v{vSS}')
        I(f'v_lshrrev_b32 v{b}, 5, v{vL}'); I(f'v_bfe_u32 v{c}, v{vL}, 2, 2'); I(f'v_lshl_add_u32 v{b}, v{b}, 3, v{c}')
        I(f'v_and_b32 v{d}, 3, v{vL}'); I(f'v_lshlrev_b32 v{d}, 3, v{d}'); I(f'v_lshl_add_u32 v{d}, v{b}, 7, v{d}')
        I(f'v_bfe_u32 v{a}, v{vL}, 4, 1'); I(f'v_lshl_add_u32 v{d}, v{a}, 5, v{d}')
        I(f'v_lshrrev_b32 v{c}, 1, v{c}'); I(f'v_lshlrev_b32 v{c}, 6, v{c}'); I(f'v_add_u32 v{d}, v{d}, v{c}')
        I(f's_lshl_b32 s{sTmp}, s{sCp}, 6'); I(f'v_xor_b32 v{vG}, s{sTmp}, v{d}')
        I(f's_lshl_b32 s{sTmp}, s{sTp}, 6'); I(f'v_xor_b32 v{vCA}, s{sTmp}, v{d}')
        I(f's_lshl_b32 s{sTmp}, s{sCp}, 13'); I(f's_cmp_eq_u32 s{sU}, 3'); I(f's_cselect_b32 s{sTmp}, 0, s{sTmp}'); I(f's_add_u32 s{sTmp}, s{sTmp}, {L_CSC}')
        I(f'v_add_u32 v{vCA}, s{sTmp}, v{vCA}')
        I(f's_mov_b32 s{sMhi}, 0'); I(f's_mov_b32 s{sMhi+1}, -1')
        I(f's_mov_b32 s{sModd}, 0xffff0000'); I(f's_mov_b32 s{sModd+1}, 0xffff0000')
        I(f's_lshl_b32 s{sTmp}, s{sR}, 2'); I(f's_lshl_b32 s{sTmp2}, s{sTp}, 1'); I(f's_add_u32 s{sTmp}, s{sTmp}, s{sTmp2}')
        I(f's_mul_i32 s{sTg0}, s{sTmp}, {TSTRIDE}')
        I(f's_lshl_b32 s{sTmp}, s{sSo2}, 5')
        I(f's_lshl_b32 s{sTmp2}, s{sCp}, 11'); I(f's_add_u32 s{sTmp}, s{sTmp}, s{sTmp2}'); I(f's_add_u32 s{sHF}, s{sTg0}, s{sTmp}')
        z = 116
        for k in range(4): I(f'v_mov_b32 v{z+k}, 0')
        I(f'v_add_u32 v{a}, {L_TOTZ}, v{vHB}'); I(f'ds_write_b128 v{a}, v[{z}:{z+3}]')

    def tab(s):
        I = s.I; PR = s.PR
        n, u, v_, lr, li, t0, t1, t2, t3, wa, un, vn = range(116, 128)
        P = 148
        I(f'v_lshrrev_b32 v{t0}, 5, v{vL}')
        I(f's_lshl_b32 s{sTmp}, s{sw}, 1'); I(f's_lshl_b32 s{sTmp}, 8, s{sTmp}')
        I(f'v_mul_u32_u24 v{n}, s{sTmp}, v{t0}')
        I(f's_cmp_eq_u32 s{sw}, 3'); I(f's_cselect_b64 s[{sBad}:{sBad+1}], -1, 0'); I(f's_cselect_b32 s{sMsel}, -1, 0')
        I(f's_mov_b32 s{sMsel+1}, 0')
        I(f'v_mul_u32_u24 v{t1}, 511, v{t0}'); I(f'v_add_u32 v{t1}, 1, v{t1}')
        I(f'v_cndmask_b32 v{t1}, v{n}, v{t1}, s[{sBad}:{sBad+1}]'); I(f'v_cvt_f32_u32 v{t1}, v{t1}')
        I(f's_lshl_b32 s{sTmp}, s{sTmp}, 1'); I(f'v_add_u32 v{n}, s{sTmp}, v{n}')
        I(f'v_cndmask_b32 v{n}, v{n}, 1, s[{sBad}:{sBad+1}]'); I(f'v_cvt_f32_u32 v{n}, v{n}')
        I(f'v_bfe_u32 v{wa}, v{vL}, 4, 1'); I(f'v_lshlrev_b32 v{wa}, 11, v{wa}'); I(f'v_lshl_add_u32 v{wa}, v{t0}, 7, v{wa}')
        I(f'v_and_b32 v{t0}, 15, v{vL}'); I(f'v_lshl_add_u32 v{wa}, v{t0}, 3, v{wa}')
        I(f's_lshl_b32 s{sTmp}, s{sw}, 9'); I(f's_add_u32 s{sTmp}, s{sTmp}, {L_TAB}'); I(f'v_add_u32 v{wa}, s{sTmp}, v{wa}')
        I(f'v_lshlrev_b32 v{lr}, 16, v{PR}'); I(f'v_lshlrev_b32 v{li}, 16, v{PR+1}'); I(f'v_lshlrev_b32 v{t0}, 16, v{PR+2}')
        I(f'v_mul_f32 v{t0}, {LOG2E:#x}, v{t0}'); I(f'v_exp_f32 v{t0}, v{t0}')
        I(f'v_cvt_pk_bf16_f32 v{t0}, v{t0}, v{t0}'); I(f'v_lshlrev_b32 v{t0}, 16, v{t0}')
        I(f'v_mul_f32 v{u}, v{t0}, v{lr}'); I(f'v_mul_f32 v{v_}, v{t0}, v{li}')
        I(f'v_mul_f32 v{u}, {LOG2E:#x}, v{u}'); I(f'v_mul_f32 v{v_}, {INV2PI:#x}, v{v_}')
        for j, nn in ((0, t1), (1, n)):
            I(f'v_mul_f32 v{un}, v{nn}, v{u}'); I(f'v_mul_f32 v{vn}, v{nn}, v{v_}')
            I(f'v_exp_f32 v{un}, v{un}'); I(f'v_fract_f32 v{vn}, v{vn}')
            I(f'v_cos_f32 v{t0}, v{vn}'); I(f'v_sin_f32 v{t2}, v{vn}')
            I(f'v_mul_f32 v{P}, v{un}, v{t0}'); I(f'v_mul_f32 v{P+1}, v{un}, v{t2}')
            if j == 1:
                I(f'v_add_f32 v{t0}, -1.0, v{P}')
                I(f'v_mul_f32 v{t1}, v{lr}, v{lr}'); I(f'v_fma_f32 v{t1}, v{li}, v{li}, v{t1}'); I(f'v_rcp_f32 v{t1}, v{t1}')
                I(f'v_mul_f32 v{t2}, v{t0}, v{lr}'); I(f'v_fma_f32 v{t2}, v{P+1}, v{li}, v{t2}')
                I(f'v_mul_f32 v{t3}, v{P+1}, v{lr}'); I(f'v_fma_f32 v{t3}, -v{t0}, v{li}, v{t3}')
                I(f'v_add_f32 v{t1}, v{t1}, v{t1}')
                I(f'v_mul_f32 v{t2}, v{t2}, v{t1}'); I(f'v_mul_f32 v{t3}, v{t3}, v{t1}')
                I(f'v_cndmask_b32 v{P}, v{P}, v{t2}, s[{sMsel}:{sMsel+1}]'); I(f'v_cndmask_b32 v{P+1}, v{P+1}, v{t3}, s[{sMsel}:{sMsel+1}]')
            I(f'ds_write_b64 v{wa}, v[{P}:{P+1}] offset:{256*j}')

    def stats_x(s):
        I = s.I; XR = s.XR; SV = s.SV
        F = 128
        for r in range(2):
            for k in range(4):
                I(f'v_lshlrev_b32 v{F+8*r+2*k}, 16, v{XR+4*r+k}'); I(f'v_and_b32 v{F+8*r+2*k+1}, 0xffff0000, v{XR+4*r+k}')
        pa, pb, t0, t1 = 144, 145, 146, 147
        def reduce2(pa, pb):
            I(f'v_permlane32_swap_b32 v{pa}, v{pb}'); I(f'v_add_f32 v{pa}, v{pa}, v{pb}')
            I(f'v_mov_b32 v{pb}, v{pa}'); I(f'v_permlane16_swap_b32 v{pa}, v{pb}'); I(f'v_add_f32 v{pa}, v{pa}, v{pb}')
            for k in (8, 4, 2, 1): I(f'v_add_f32_dpp v{pa}, v{pa}, v{pa} row_ror:{k} row_mask:0xf bank_mask:0xf')
            I(f'v_mov_b32 v{pb}, v{pa}'); I(f'v_permlane32_swap_b32 v{pa}, v{pb}')
        for k in range(1, 8):
            for r, p in ((0, pa), (1, pb)):
                if k == 1: I(f'v_add_f32 v{p}, v{F+8*r}, v{F+8*r+1}')
                else: I(f'v_add_f32 v{p}, v{p}, v{F+8*r+k}')
        reduce2(pa, pb)
        I(f'v_mul_f32 v{t0}, 0x3b000000, v{pa}'); I(f'v_mul_f32 v{t1}, 0x3b000000, v{pb}')
        for r, m in ((0, t0), (1, t1)):
            for k in range(8): I(f'v_sub_f32 v{F+8*r+k}, v{F+8*r+k}, v{m}')
        for k in range(8):
            for r, p in ((0, pa), (1, pb)):
                if k == 0: I(f'v_mul_f32 v{p}, v{F+8*r}, v{F+8*r}')
                else: I(f'v_fmac_f32 v{p}, v{F+8*r+k}, v{F+8*r+k}')
        reduce2(pa, pb)
        I(f'v_cndmask_b32 v{t0}, v{t0}, v{t1}, s[{sMhi}:{sMhi+1}]')
        I(f'v_cndmask_b32 v{pa}, v{pa}, v{pb}, s[{sMhi}:{sMhi+1}]')
        I(f'v_mul_f32 v{pa}, 0x3b000000, v{pa}')
        I(f'v_cvt_pk_bf16_f32 v{pa}, v{pa}, v{pa}'); I(f'v_lshlrev_b32 v{pa}, 16, v{pa}')
        I(f'v_add_f32 v{pa}, 0x3727c5ac, v{pa}')
        I(f'v_cvt_pk_bf16_f32 v{pa}, v{pa}, v{pa}'); I(f'v_lshlrev_b32 v{pa}, 16, v{pa}')
        I(f'v_sqrt_f32 v{pa}, v{pa}')
        I(f'v_cvt_pk_bf16_f32 v{SV}, v{pa}, v{t0}')
        I(f'v_and_b32 v{t1}, 31, v{vL}'); I(f'v_lshrrev_b32 v{t0}, 2, v{vL}'); I(f'v_mov_b32 v{pb}, {OOB}')
        I(f'v_cmp_eq_u32 vcc, 0, v{t1}'); I(f'v_cndmask_b32 v{SV+4}, v{pb}, v{t0}, vcc')
    def stats_s(s):
        I = s.I; SR = s.SR; SV = s.SV
        F = 158
        F = 64; q0, q1, ob = 72, 73, 74
        for k in range(4):
            I(f'v_lshlrev_b32 v{F+2*k}, 16, v{SR+k}'); I(f'v_and_b32 v{F+2*k+1}, 0xffff0000, v{SR+k}')
        for k in range(4): I(f'v_add_f32 v{F+k}, v{F+k}, v{F+4+k}')
        I(f'v_add_f32 v{F}, v{F}, v{F+2}'); I(f'v_add_f32 v{F+1}, v{F+1}, v{F+3}'); I(f'v_add_f32 v{q0}, v{F}, v{F+1}')
        I(f'v_mov_b32 v{q1}, v{q0}'); I(f'v_permlane32_swap_b32 v{q0}, v{q1}'); I(f'v_add_f32 v{q0}, v{q0}, v{q1}')
        I(f'v_mov_b32 v{q1}, v{q0}'); I(f'v_permlane16_swap_b32 v{q0}, v{q1}'); I(f'v_add_f32 v{q0}, v{q0}, v{q1}')
        for k in (8, 4, 2): I(f'v_add_f32_dpp v{q0}, v{q0}, v{q0} row_ror:{k} row_mask:0xf bank_mask:0xf')
        I(f'v_add_f32_dpp v{SV+2}, v{q0}, v{q0} row_ror:1 row_mask:0xf bank_mask:0xf')
        I(f'v_mov_b32 v{ob}, {OOB}')
        I(f'v_cmp_eq_u32 vcc, 0, v{vL}'); I(f'v_cndmask_b32 v{SV+5}, v{ob}, 0, vcc')

    def pub_prog(s):
        e = s.e; NP = s.NP; SV = s.SV
        Ls = s.lab('nps'); Lr = s.lab('npr')
        def chk():
            e.wait_tag('NP')
            s.I(f'v_readfirstlane_b32 s{sNonce}, v{NP}'); s.I(f's_cmp_eq_u32 s{sNonce}, 0'); e.raw(f's_cbranch_scc1 {Ls}'); e.label(Lr)
        def slow():
            e.label(Ls); e.reset_hazards(); e.vm = []; e.lgk = []
            s.I(f's_mov_b32 s{sSpin}, 0')
            e.label(Ls + 'l'); e.reset_hazards()
            s.I(f'buffer_load_dword v{NP}, v{NP+1}, s[{sDBG}:{sDBG+3}], 0 offen sc1'); e.force_wait('vmcnt(0)')
            s.I(f'v_readfirstlane_b32 s{sNonce}, v{NP}'); s.I(f's_add_u32 s{sSpin}, s{sSpin}, 1')
            s.I(f's_cmp_gt_u32 s{sSpin}, {SPIN}'); e.raw(f's_cbranch_scc1 {Lr}')
            s.I(f's_cmp_eq_u32 s{sNonce}, 0'); e.raw(f's_cbranch_scc1 {Ls}l')
            e.raw('s_nop 4'); e.raw(f's_branch {Lr}')
        s.slow.append(slow)
        return [Fn(chk, 16), f'v_mov_b32 v{SV+1}, s{sNonce}', f'v_mov_b32 v{SV+3}, s{sNonce}', f'v_mov_b32 v{vNon}, s{sNonce}',
                f'buffer_store_dwordx2 v[{SV}:{SV+1}], v{SV+4}, s[{sWS}:{sWS+3}], s{sGa} offen sc1',
                f'buffer_store_dwordx2 v[{SV+2}:{SV+3}], v{SV+5}, s[{sWS}:{sWS+3}], s{sGb} offen sc1']

    def fcs_prog(s):
        AC, FR, ONE, Gq, vo = 96, 112, 128, 132, 134
        ops = [f'v_mov_b32 v{ONE+k}, 0x3f803f80' for k in range(4)]
        for ks in range(4):
            ops += [f'ds_read_b64_tr_b16 v[{FR+4*ks}:{FR+4*ks+1}], v{vCA} offset:{2048*ks}', f'ds_read_b64_tr_b16 v[{FR+4*ks+2}:{FR+4*ks+3}], v{vCA} offset:{2048*ks+512}']
        ops += [f'v_lshlrev_b32 v{vo}, 3, v{vL}', f'v_mov_b32 v{vo+1}, {OOB}', f'v_cndmask_b32 v{vo}, v{vo}, v{vo+1}, s[{sMhi}:{sMhi+1}]',
                f's_and_b32 s{sTmp}, s{sR}, 1', f's_mul_i32 s{sTmp}, s{sTmp}, {28*4096}',
                f's_lshl_b32 s{sTmp2}, s{sSo2}, 5', f's_add_u32 s{sTmp}, s{sTmp}, s{sTmp2}']
        if s.typ == 'H':
            ops += [f's_lshl_b32 s{sTmp2}, s{sCp}, 12', f's_add_u32 s{sTmp}, s{sTmp}, s{sTmp2}']
        ops += [f's_lshl_b32 s{sTmp2}, s{sRho}, 9', f's_add_u32 s{sTmp}, s{sTmp}, s{sTmp2}',
                f's_lshl_b32 s{sTmp2}, s{sTp}, 8', f's_add_u32 s{sTmp}, s{sTmp}, s{sTmp2}', f's_add_u32 s{sGa}, s{sTmp}, {WS_CSF}']
        if s.typ == 'L':
            ops += [s.atom([f's_cmp_eq_u32 s{sCp}, 0', f's_cselect_b32 s{sGa}, s{sGa}, {OOB}'])]
        ops += [f'v_mov_b32 v{Gq+1}, s{sNonce}']
        for ks in range(4):
            ops.append(f'v_mfma_f32_32x32x16_bf16 v[{AC}:{AC+15}], v[{ONE}:{ONE+3}], v[{FR+4*ks}:{FR+4*ks+3}], ' + ('0' if ks == 0 else f'v[{AC}:{AC+15}]'))
        return ops, [f'v_mov_b32 v{Gq}, v{AC}', f'buffer_store_dwordx2 v[{Gq}:{Gq+1}], v{vo}, s[{sWS}:{sWS+3}], s{sGa} offen sc1']

    def tagcheck(s, regs, loads, exp=None):
        e = s.e
        ops = []
        for i, r in enumerate(regs):
            src = f's{sNonce}' if exp is None else f'v{exp[i]}'
            if i == 0: ops.append(f'v_cmp_ne_u32 s[{sBad}:{sBad+1}], {src}, v{r}')
            else:
                ops.append(s.atom([f'v_cmp_ne_u32 vcc, {src}, v{r}', f's_or_b64 s[{sBad}:{sBad+1}], s[{sBad}:{sBad+1}], vcc']))
        Ls = s.lab('slow'); Lr = s.lab('ret')
        def br():
            s.I(f's_cmp_lg_u64 s[{sBad}:{sBad+1}], 0'); e.raw(f's_cbranch_scc1 {Ls}'); e.label(Lr)
        ops.append(Fn(br, 8))
        def slow():
            e.label(Ls); e.reset_hazards(); e.vm = []; e.lgk = []
            s.I(f's_mov_b32 s{sSpin}, 0')
            e.label(Ls + 'l'); e.reset_hazards()
            for x in loads: s.I(x)
            e.force_wait('vmcnt(0)')
            for i, r in enumerate(regs):
                src = f's{sNonce}' if exp is None else f'v{exp[i]}'
                if i == 0: s.I(f'v_cmp_ne_u32 s[{sBad}:{sBad+1}], {src}, v{r}')
                else:
                    s.I(f'v_cmp_ne_u32 vcc, {src}, v{r}'); s.I(f's_or_b64 s[{sBad}:{sBad+1}], s[{sBad}:{sBad+1}], vcc')
            s.I(f's_add_u32 s{sSpin}, s{sSpin}, 1'); s.I(f's_cmp_gt_u32 s{sSpin}, {SPIN}'); e.raw(f's_cbranch_scc1 {Lr}')
            s.I(f's_cmp_lg_u64 s[{sBad}:{sBad+1}], 0'); e.raw(f's_cbranch_scc1 {Ls}l')
            e.raw('s_nop 4'); e.raw(f's_branch {Lr}')
        s.slow.append(slow)
        return ops

    def pi_ops(s, d, t):
        return [f'v_bfe_u32 v{d}, v{vL}, 2, 1', f'v_lshlrev_b32 v{d}, 4, v{d}',
                f'v_and_b32 v{t}, 1, v{vL}', f'v_lshl_add_u32 v{d}, v{t}, 3, v{d}',
                f'v_bfe_u32 v{t}, v{vL}, 3, 2', f'v_lshl_add_u32 v{d}, v{t}, 1, v{d}',
                f'v_bfe_u32 v{t}, v{vL}, 1, 1', f'v_add_u32 v{d}, v{d}, v{t}']

    GA = 136
    def gA_issue(s):
        GA = s.GA; vp, va, vc = GA + 6, GA + 7, GA + 8
        ops = s.pi_ops(vp, va)
        ops += [f'v_lshlrev_b32 v{va}, 3, v{vp}',
                f's_lshl_b32 s{sTmp}, s{sR}, 10', f's_lshl_b32 s{sTmp2}, s{sTp}, 9', f's_add_u32 s{sTmp}, s{sTmp}, s{sTmp2}', f's_add_u32 s{sGa}, s{sTmp}, {WS_STATS}',
                f'v_and_b32 v{vc}, 31, v{vL}', f'v_lshlrev_b32 v{vc}, 3, v{vc}',
                f's_lshl_b32 s{sTmp}, s{sC}, 9', f's_lshl_b32 s{sTmp2}, s{sCp}, 8', f's_add_u32 s{sTmp}, s{sTmp}, s{sTmp2}', f's_add_u32 s{sGb}, s{sTmp}, {WS_CSS}']
        s.glA = [f'buffer_load_dwordx2 v[{GA}:{GA+1}], v{va}, s[{sWS}:{sWS+3}], s{sGa} offen sc1',
                 f'buffer_load_dwordx2 v[{GA+2}:{GA+3}], v{va}, s[{sWS}:{sWS+3}], s{sGa} offen offset:256 sc1',
                 f'buffer_load_dwordx2 v[{GA+4}:{GA+5}], v{vc}, s[{sWS}:{sWS+3}], s{sGb} offen sc1']
        ops += [(x, 'GA') for x in s.glA]
        return ops
    def split3(s, A, t0, t1, t2, o0, o1):
        return [f'v_cvt_pk_bf16_f32 v{t0}, v{A}, v{A}', f'v_and_b32 v{t0}, 0xffff0000, v{t0}',
                f'v_sub_f32 v{t1}, v{A}, v{t0}',
                f'v_cvt_pk_bf16_f32 v{t2}, v{t1}, v{t1}', f'v_and_b32 v{t2}, 0xffff0000, v{t2}',
                f'v_sub_f32 v{t1}, v{t1}, v{t2}',
                f'v_cvt_pk_bf16_f32 v{o1}, v{t1}, 0',
                f'v_lshrrev_b32 v{t0}, 16, v{t0}', f'v_or_b32 v{o0}, v{t0}, v{t2}']
    def gA_proc(s):
        GA = s.GA; vp = GA + 6
        ops = s.tagcheck([GA + 1, GA + 3, GA + 5], s.glA)
        t0, t1, t2, t3, ra = 145, 146, 147, 148, 149
        ops += [f'v_lshlrev_b32 v{ra}, 2, v{vp}', f's_lshl_b32 s{sTmp}, s{sTp}, 8', f's_add_u32 s{sTmp}, s{sTmp}, {L_RS}', f'v_add_u32 v{ra}, s{sTmp}, v{ra}']
        ops += [f's_mov_b32 s{sTmp2}, {NLOG2E:#x}']
        for t in range(2):
            ms = GA + 2 * t; xa = vXaug + 4 * t
            ops += [f'v_lshlrev_b32 v{t0}, 16, v{ms}',
                    f'v_and_b32 v{t1}, 0xffff0000, v{ms}', f'v_xor_b32 v{t1}, 0x80000000, v{t1}',
                    f'v_rcp_f32 v{t2}, v{t0}', f'v_mul_f32 v{vK2+t}, v{t0}, v{t0}',
                    f'v_lshrrev_b32 v{t3}, 16, v{t1}', f'v_or_b32 v{t1}, v{t1}, v{t3}',
                    f'v_cndmask_b32 v{xa}, v{t1}, 0, s[{sMhi}:{sMhi+1}]', f'v_cndmask_b32 v{xa+1}, v{t3}, 0, s[{sMhi}:{sMhi+1}]',
                    f'v_mov_b32 v{xa+2}, 0', f'v_mov_b32 v{xa+3}, 0',
                    f'v_mul_f32 v{vNRS+t}, s{sTmp2}, v{t2}',
                    f'ds_write_b32 v{ra}, v{t2} offset:{128*t}']
        ops += s.split3(GA + 4, t0, t1, t2, vSA, vSA + 1)
        ops += [f'v_mov_b32 v{vSA+2}, 0', f'v_mov_b32 v{vSA+3}, 0']
        return ops

    GB = 96
    def gB_issue(s):
        GB = s.GB
        ops = [f's_mul_i32 s{sTmp3}, s{sTp}, {28*4096}', f's_lshl_b32 s{sTmp2}, s{sSo2}, 5', f's_add_u32 s{sTmp3}, s{sTmp3}, s{sTmp2}']
        if s.typ == 'H': ops += [f's_lshl_b32 s{sTmp2}, s{sCp}, 12', f's_add_u32 s{sTmp3}, s{sTmp3}, s{sTmp2}']
        ops += [f's_add_u32 s{sTmp3}, s{sTmp3}, {WS_CSF}']
        s.glB = [f'buffer_load_dwordx4 v[{GB+4*n}:{GB+4*n+3}], v{vHB}, s[{sWS}:{sWS+3}], s{sMsel} offen offset:{1024*n} sc1' for n in range(4)]
        ops += [f's_mov_b32 s{sMsel}, s{sTmp3}']
        ops += [(x, 'GB') for x in s.glB]
        return ops
    def gB_proc(s):
        GB = s.GB
        regs = [GB + 4 * n + 1 + 2 * m for n in range(4) for m in range(2)]
        ops = s.tagcheck(regs, s.glB)
        t0, t1, t2, wa = 112, 113, 114, 115
        O = 116
        A, B = GB, GB + 2
        ops += [f'v_add_f32 v{A}, v{A}, v{GB+4}', f'v_add_f32 v{B}, v{B}, v{GB+6}',
                f'v_add_f32 v{GB+8}, v{GB+8}, v{GB+12}', f'v_add_f32 v{GB+10}, v{GB+10}, v{GB+14}',
                f'v_add_f32 v{A}, v{A}, v{GB+8}', f'v_add_f32 v{B}, v{B}, v{GB+10}',
                f'v_permlane32_swap_b32 v{A}, v{B}', f'v_add_f32 v{A}, v{A}, v{B}']
        ops += s.split3(A, t0, t1, t2, O, O + 1)
        ops += [f'v_and_b32 v{wa}, 31, v{vL}', f'v_lshlrev_b32 v{wa}, 4, v{wa}', f'v_lshrrev_b32 v{t0}, 5, v{vL}', f'v_lshl_add_u32 v{wa}, v{t0}, 3, v{wa}']
        if s.typ == 'H':
            ops += [f's_lshl_b32 s{sTmp}, s{sCp}, 10', f's_lshl_b32 s{sTmp2}, s{sTp}, 9', f's_add_u32 s{sTmp}, s{sTmp}, s{sTmp2}', f's_add_u32 s{sTmp}, s{sTmp}, {L_WAUG}']
        else:
            ops += [f's_lshl_b32 s{sTmp}, s{sTp}, 9', f's_add_u32 s{sTmp}, s{sTmp}, {L_WAUG}']
        ops += [f'v_add_u32 v{wa}, s{sTmp}, v{wa}', f'ds_write_b64 v{wa}, v[{O}:{O+1}]']
        return ops

    def g_part(s, G, t, T):
        ops = []
        for h in range(2):
            g = G + 8 * h
            for j in range(8): ops.append(f'v_mul_f32 v{T+j}, v{vNRS+t}, v{g+j}')
            for j in range(8): ops.append(f'v_exp_f32 v{T+j}, v{T+j}')
            for j in range(8): ops.append(f'v_fma_f32 v{T+j}, v{vK2+t}, v{T+j}, v{vK2+t}')
            for j in range(8): ops.append(f'v_rcp_f32 v{T+j}, v{T+j}')
            for j in range(8): ops.append(f'v_mul_f32 v{g+j}, v{g+j}, v{T+j}')
        return ops
    def u_part(s, G, U, t, line):
        ops = []
        for h in range(2):
            g = G + 8 * h; u = U + 8 * h
            for j in range(8): ops.append(f'v_mul_f32 v{u+j}, v{u+j}, v{g+j}')
            for j in range(4): ops.append(f'v_cvt_pk_bf16_f32 v{u+j}, v{u+2*j}, v{u+2*j+1}')
            add = t * TSTRIDE + line * 4096
            st = f'buffer_store_dwordx4 v[{u}:{u+3}], v{vHB}, s[{sWS}:{sWS+3}], s{sGb} offen offset:{1024*h} sc1'
            if add: ops.append(s.atom([f's_add_u32 s{sGb}, s{sHF}, {add}', (st, f'HF{line}')]))
            else: ops.append(s.atom([f's_mov_b32 s{sGb}, s{sHF}', (st, f'HF{line}')]))
        return ops

    def s_setup(s):
        a, b = 240, 241
        o = []
        o += [f'v_and_b32 v{a}, 15, v{vL}', f'v_lshlrev_b32 v{b}, 3, v{a}',
              f's_lshl_b32 s{sTmp}, s{sCp}, 11', f's_add_u32 s{sTmp}, s{sTmp}, {L_TAB}',
              f'v_add_u32 v{vCh}, s{sTmp}, v{b}',
              f'v_lshlrev_b32 v{vTg}, 3, v{vL}', f'v_add_u32 v{vTg}, s{sTmp}, v{vTg}',
              f's_lshl_b32 s{sTmp}, s{sCp}, 7', f's_lshl_b32 s{sTmp2}, s{sTp}, 9', f's_add_u32 s{sTmp}, s{sTmp}, s{sTmp2}', f's_add_u32 s{sTmp}, s{sTmp}, {L_TOTZ}',
              f'v_add_u32 v{vTo}, s{sTmp}, v{b}',
              f'v_lshrrev_b32 v{b}, 4, v{vL}', f'v_lshlrev_b32 v{vRs}, 5, v{b}', f's_lshl_b32 s{sTmp}, s{sTp}, 8', f's_add_u32 s{sTmp}, s{sTmp}, {L_RS}',
              f'v_add_u32 v{vRs}, s{sTmp}, v{vRs}',
              f's_mul_i32 s{sTmp}, s{sw}, 2560', f's_add_u32 s{sTmp}, s{sTmp}, {L_TR}',
              f'v_mul_u32_u24 v{vTw}, 80, v{a}', f'v_lshl_add_u32 v{vTw}, v{b}, 4, v{vTw}', f'v_add_u32 v{vTw}, s{sTmp}, v{vTw}',
              f'v_lshrrev_b32 v{vTr}, 5, v{vL}', f'v_lshlrev_b32 v{vTr}, 3, v{vTr}', f'v_bfe_u32 v{b}, v{vL}, 2, 2', f'v_add_u32 v{vTr}, v{vTr}, v{b}',
              f'v_mul_u32_u24 v{vTr}, 80, v{vTr}',
              f'v_and_b32 v{b}, 3, v{vL}', f'v_lshl_add_u32 v{vTr}, v{b}, 3, v{vTr}',
              f'v_bfe_u32 v{b}, v{vL}, 4, 1', f'v_lshl_add_u32 v{vTr}, v{b}, 5, v{vTr}',
              f'v_add_u32 v{vTr}, s{sTmp}, v{vTr}']
        o += [f'v_lshlrev_b32 v{a}, 4, v{a}', f's_lshl_b32 s{sTmp}, s{sR}, 8',
              s.atom([f's_cmp_eq_u32 s{sTp}, 1', f's_cselect_b32 s{sTmp}, s{sTmp}, {OOB}']),
              f'v_add_u32 v{a}, s{sTmp}, v{a}', f'v_mov_b32 v{b}, {OOB}',
              s.atom([f'v_cmp_gt_u32 vcc, 16, v{vL}', f'v_cndmask_b32 v{vEo}, v{b}, v{a}, vcc']),
              s.atom([f'v_cmp_eq_u32 vcc, 0, v{vL}', f'v_cndmask_b32 v{vFl}, v{b}, 0, vcc'])]
        return o
    def s1(s, t):
        A = aS + 16 * t; P = vPc + 2 * t
        R = 128; L1, L8, L16 = 136, 138, 140
        E, Z, X, Q, Y = 142, 144, 146, 148, 150
        def pr(r): return f'v[{r}:{r+1}]'
        ops = [f'ds_read_b128 v[{R}:{R+3}], v{vRs} offset:{128*t}', f'ds_read_b128 v[{R+4}:{R+7}], v{vRs} offset:{128*t+16}',
               f'ds_read_b64 {pr(L1)}, v{vCh} offset:1536', f'ds_read_b64 {pr(L8)}, v{vCh} offset:128', f'ds_read_b64 {pr(L16)}, v{vCh} offset:256']
        for m in range(8): ops.append(f'v_permlane16_swap_b32 v{A+2*m}, v{A+2*m+1}')
        for m in range(8):
            ops += [f'v_mul_f32 v{A+2*m}, v{R+m}, v{A+2*m}', f'v_mul_f32 v{A+2*m+1}, v{R+m}, v{A+2*m+1}']
        prev = A
        e0, e1 = E, Z
        for m in range(1, 8):
            ops += cmac(e0, L1, prev, A + 2 * m)
            prev = e0; e0, e1 = e1, e0
        E = prev; Z = e0
        ops += [f'v_mov_b32 v{Z}, 0', f'v_mov_b32 v{Z+1}, 0', f'v_mov_b32 v{X}, v{E}', f'v_mov_b32 v{X+1}, v{E+1}',
                f'v_cndmask_b32 v{Q}, 1.0, v{L8}, s[{sModd}:{sModd+1}]', f'v_cndmask_b32 v{Q+1}, 0, v{L8+1}, s[{sModd}:{sModd+1}]',
                f'v_permlane16_swap_b32 v{Z}, v{X}', f'v_permlane16_swap_b32 v{Z+1}, v{X+1}']
        ops += cmac(E, L8, Z, E)
        ops += [f'v_mov_b32 v{X}, v{E}', f'v_mov_b32 v{X+1}, v{E+1}', f'v_mov_b32 v{Y}, 0', f'v_mov_b32 v{Y+1}, 0',
                f'v_permlane16_swap_b32 v{E}, v{X}', f'v_permlane16_swap_b32 v{E+1}, v{X+1}',
                f'v_permlane32_swap_b32 v{Y}, v{X}', f'v_permlane32_swap_b32 v{Y+1}, v{X+1}']
        ops += cmac(X, L16, Y, X)
        ops += cmac(P, Q, Y, Z)
        ops += [s.atom([f's_mov_b64 exec, s[{sMhi}:{sMhi+1}]', f'ds_write_b64 v{vTo}, {pr(X)} offset:{(3+t)*256}', f's_mov_b64 exec, -1'])]
        return ops
    def s2(s):
        R = 240; L32 = 250; Gq = 240
        def pr(r): return f'v[{r}:{r+1}]'
        ops = []
        for k in range(5): ops.append(f'ds_read_b64 {pr(R+2*k)}, v{vTo} offset:{k*256}')
        ops.append(f'ds_read_b64 {pr(L32)}, v{vCh} offset:640')
        ops += [f's_lshl_b32 s{sTmp}, s{sC}, 13', f's_lshl_b32 s{sTmp2}, s{sCp}, 12', f's_add_u32 s{sTmp}, s{sTmp}, s{sTmp2}', f's_add_u32 s{sGa}, s{sTmp}, {WS_E}']
        ops += cmac(R + 2, L32, R, R + 2)
        ops += cmac(vPC, L32, R + 2, R + 4)
        ops += cmac(vPC + 2, L32, vPC, R + 6)
        ops += cmac(R + 8, L32, vPC + 2, R + 8)
        ops += [f'v_mov_b32 v{Gq}, v{R+8}', f'v_mov_b32 v{Gq+1}, s{sNonce}', f'v_mov_b32 v{Gq+2}, v{R+9}', f'v_mov_b32 v{Gq+3}, s{sNonce}']
        ops += [f'buffer_store_dwordx4 v[{Gq}:{Gq+3}], v{vEo}, s[{sWS}:{sWS+3}], s{sGa} offen sc1']
        return ops
    EG, vEg, vEx = 32, 48, 52
    def s3_issue(s):
        EG, vEg, vEx = s.EG, s.vEg, s.vEx
        a, b = 56, 57
        o = [f'v_and_b32 v{a}, 15, v{vL}', f'v_lshlrev_b32 v{a}, 4, v{a}', f'v_lshrrev_b32 v{b}, 4, v{vL}', f'v_sub_u32 v{b}, s{sR}, v{b}', f'v_add_u32 v{b}, -1, v{b}']
        for k in range(4):
            g = vEg + k; x = vEx + k
            if k: o.append(f'v_add_u32 v{b}, -4, v{b}')
            o += [f'v_lshl_add_u32 v{g}, v{b}, 8, v{a}', f'v_mov_b32 v{x}, {OOB}',
                  s.atom([f'v_cmp_le_i32 vcc, 0, v{b}', f'v_cndmask_b32 v{g}, v{x}, v{g}, vcc', f'v_cndmask_b32 v{x}, 0, v{vNon}, vcc'])]
        s.glE = [f'buffer_load_dwordx4 v[{EG+4*k}:{EG+4*k+3}], v{vEg+k}, s[{sWS}:{sWS+3}], s{sGa} offen sc1' for k in range(4)]
        o += [(x, 'EG') for x in s.glE]
        return o
    def s3(s):
        EG, vEx = s.EG, s.vEx
        L512, Q = 56, 58
        regs = [EG + 4 * k + 1 + 2 * m for k in range(4) for m in range(2)]
        exp = [vEx + k for k in range(4) for m in range(2)]
        ops = [f'ds_read_b64 v[{L512}:{L512+1}], v{vCh} offset:1664', f'ds_read_b64 v[{Q}:{Q+1}], v{vTg} offset:1024']
        ops += s.tagcheck(regs, s.glE, exp)
        def cm4(dr, di, ar, ai, br, bi, cr, ci):
            return [f'v_fmac_f32 v{dr}, v{ar}, v{br}', f'v_fmac_f32 v{di}, v{ar}, v{bi}',
                    f'v_fma_f32 v{dr}, -v{ai}, v{bi}, v{dr}', f'v_fmac_f32 v{di}, v{ai}, v{br}']
        for k in (2, 1, 0):
            ops += cm4(EG + 4 * k, EG + 4 * k + 2, L512, L512 + 1, EG + 4 * (k + 1), EG + 4 * (k + 1) + 2, EG + 4 * k, EG + 4 * k + 2)
        wr, wi = EG + 4, EG + 5; H = vH
        ops += [f'v_mul_f32 v{wr}, v{Q}, v{EG}', f'v_mul_f32 v{wi}, v{Q}, v{EG+2}', f'v_fma_f32 v{wr}, -v{Q+1}, v{EG+2}, v{wr}', f'v_fmac_f32 v{wi}, v{Q+1}, v{EG}',
                f'v_permlane16_swap_b32 v{wr}, v{wi}', f'v_add_f32 v{wr}, v{wr}, v{wi}', f'v_mov_b32 v{wi}, v{wr}',
                f'v_permlane32_swap_b32 v{wr}, v{wi}', f'v_add_f32 v{H}, v{wr}, v{wi}', f'v_mov_b32 v{H+1}, v{H}',
                f'v_permlane16_swap_b32 v{H}, v{H+1}']
        return ops
    def s4(s, t):
        A = aS + 16 * t; P = vPc + 2 * t; C = vPC + 2 * t
        L1, Q32, Q8, CF = 240, 242, 244, 246
        X = 248
        O = 184
        def pr(r): return f'v[{r}:{r+1}]'
        ops = [f's_lshl_b32 s{sTmp}, s{sTp}, 8', f'v_add_u32 v{O}, s{sTmp}, v{vCh}',
               f'ds_read_b64 {pr(Q32)}, v{O} offset:{512+128*t}', f'ds_read_b64 {pr(Q8)}, v{vTg}',
               f'ds_read_b64 {pr(L1)}, v{vCh} offset:1536', f'ds_read_b64 {pr(CF)}, v{vCh} offset:1792']
        ops += [f's_lshl_b32 s{sTmp}, s{sC}, 1', f's_add_u32 s{sTmp}, s{sTmp}, s{sCp}',
                f's_lshr_b32 s{sTmp2}, s{sTmp}, 2', f's_lshl_b32 s{sTmp2}, s{sTmp2}, 3', f's_and_b32 s{sTmp}, s{sTmp}, 3', f's_add_u32 s{sTmp}, s{sTmp}, s{sTmp2}',
                f's_add_u32 s{sTmp}, s{sTmp}, 112', f's_lshl_b32 s{sTmp}, s{sTmp}, 10', f's_add_u32 s{sTmp3}, s{sTmp}, s{sTg0}']
        if t: ops += [f's_add_u32 s{sTmp3}, s{sTmp3}, {TSTRIDE}']
        ops += cmac(C, Q32, vH, C)
        ops += cmac(P, Q8, C, P)
        prev = P
        def cf(m):
            x = X + 2 * (m & 1); r = A + 2 * m
            return [f'v_mul_f32 v{x}, v{r}, v{CF}', f'v_mul_f32 v{x+1}, v{r}, v{CF+1}',
                    f'v_fma_f32 v{r}, -v{r+1}, v{CF+1}, v{x}', f'v_fma_f32 v{r+1}, -v{r+1}, v{CF}, -v{x+1}']
        for m in range(8):
            ops += cmac(A + 2 * m, L1, prev, A + 2 * m); prev = A + 2 * m
            if m >= 1: ops += cf(m - 1)
        ops += cf(7)
        for k in range(4): ops.append(f'v_cvt_pk_bf16_f32 v{O+k}, v{A+4*k}, v{A+4*k+2}')
        for k in range(4): ops.append(f'v_cvt_pk_bf16_f32 v{O+4+k}, v{A+4*k+1}, v{A+4*k+3}')
        ops += [f'ds_write_b128 v{vTw}, v[{O}:{O+3}]', f'ds_write_b128 v{vTw}, v[{O+4}:{O+7}] offset:1280']
        for ri in range(2):
            d = A + 4 * ri
            ops += [f'ds_read_b64_tr_b16 v[{d}:{d+1}], v{vTr} offset:{1280*ri}', f'ds_read_b64_tr_b16 v[{d+2}:{d+3}], v{vTr} offset:{1280*ri+320}']
        ops += [(f'buffer_store_dwordx4 v[{A}:{A+3}], v{vHB}, s[{sWS}:{sWS+3}], s{sTmp3} offen sc1', 'HS'), f's_add_u32 s{sTmp3}, s{sTmp3}, 4096',
                (f'buffer_store_dwordx4 v[{A+4}:{A+7}], v{vHB}, s[{sWS}:{sWS+3}], s{sTmp3} offen sc1', 'HS')]
        return ops
    def aug_F(s, acc, idx):
        fa = 244
        return [f'v_and_b32 v{fa+2}, 31, v{vL}', f'v_lshlrev_b32 v{fa+2}, 3, v{fa+2}',
                f's_lshl_b32 s{sTmp}, s{sCp}, 8', f's_add_u32 s{sTmp}, s{sTmp}, {L_WAUG + 512*idx}', f'v_add_u32 v{fa+2}, s{sTmp}, v{fa+2}',
                f'ds_read_b64 v[{fa}:{fa+1}], v{fa+2}', f'v_mov_b32 v{fa+3}, 0', f'v_mov_b32 v{fa+2}, 0'] + \
               [f'v_mfma_f32_32x32x16_bf16 v[{acc+16*t}:{acc+16*t+15}], v[{fa}:{fa+3}], v[{vXaug+4*t}:{vXaug+4*t+3}], v[{acc+16*t}:{acc+16*t+15}]' for t in range(2)]
    def aug_S(s):
        return [f'v_mfma_f32_32x32x16_bf16 v[{aS+16*t}:{aS+16*t+15}], v[{vXaug+4*t}:{vXaug+4*t+3}], v[{vSA}:{vSA+3}], v[{aS+16*t}:{aS+16*t+15}]' for t in range(2)]
    def flag_prog(s, tag, phase):
        def f():
            s.e.wait_tag(tag)
            s.I(f'buffer_store_dword v{vNon}, v{vFl}, s[{sWS}:{sWS+3}], s{sFlP} offen offset:{32*phase} sc1')
        return [Fn(f, 8)]
    def poll_issue(s):
        return (f'buffer_load_dword v{vPo}, v{vPl}, s[{sWS}:{sWS+3}], s{sFlC} offen sc1', 'PL')
    def poll_check(s, mask):
        e = s.e
        Ls = s.lab('pslow'); Lr = s.lab('pret')
        def chk():
            s.I(f'v_cmp_eq_u32 vcc, s{sNonce}, v{vPo}'); s.I(f's_and_b32 s{sKa}, vcc_lo, {mask:#x}')
            s.I(f's_cmp_eq_u32 s{sKa}, {mask:#x}'); e.raw(f's_cbranch_scc0 {Ls}'); e.label(Lr)
        def slow():
            e.label(Ls); e.reset_hazards(); e.vm = []; e.lgk = []
            s.I(f's_mov_b32 s{sSpin}, 0')
            e.label(Ls + 'l'); e.reset_hazards()
            s.I(s.poll_issue()[0]); e.force_wait('vmcnt(0)')
            s.I(f'v_cmp_eq_u32 vcc, s{sNonce}, v{vPo}'); s.I(f's_and_b32 s{sKa}, vcc_lo, {mask:#x}')
            s.I(f's_add_u32 s{sSpin}, s{sSpin}, 1'); s.I(f's_cmp_gt_u32 s{sSpin}, {SPIN}'); e.raw(f's_cbranch_scc1 {Lr}')
            s.I(f's_cmp_eq_u32 s{sKa}, {mask:#x}'); e.raw(f's_cbranch_scc0 {Ls}l')
            e.raw('s_nop 4'); e.raw(f's_branch {Lr}')
        s.slow.append(slow)
        return chk

    TYPES = [('o', 0), ('o', 2), ('o', 4), ('o', 6), ('o', 1), ('o', 3), ('o', 5), ('y', 0), ('y', 1), ('y', 2), ('y', 3)]
    def issueB(s, q):
        ty, j = s.TYPES[q]
        S = (q & 3) * 32
        out = []
        for s_ in range(4):
            for t in range(2):
                r = S + 8 * s_ + 4 * t
                ins = f'buffer_load_dwordx4 a[{r}:{r+3}], v{vHB if t == 0 else vB1}, s[{sWS}:{sWS+3}], s{sKb} offen offset:{1024*s_}' + s.cfg.get('bsc', ' sc1')
                pre = [f's_add_u32 s{sKb}, s{sBE if ty == "o" else sBY}, {j*4096}'] if (s_ == 0 and t == 0) else []
                def f(pre=pre, ins=ins):
                    for p in pre: s.I(p)
                    s.I(ins, f'B{q}')
                out.append(f)
        return out
    def issueW(s, q):
        ty, j = s.TYPES[q]
        slot = (q + 2) & 3
        ops = []
        for half in range(2):
            for i in range(4):
                pre = []
                if i == 0:
                    pre.append(f's_add_u32 m0, s{sW13}, {slot*SLOT + half*4096}')
                    if ty == 'o': pre.append(f's_add_u32 s{sKc}, s{sRowW}, {j*65536 + half*32768}')
                    else: pre.append(f's_add_u32 s{sKc}, s{sCrow}, {(j >> 1)*128 + half*32768}')
                if ty == 'o': ins = f'buffer_load_dwordx4 v{vW+i}, s[{sW2}:{sW2+3}], s{sKc} offen offset:{1024*i} lds'
                else:
                    sr = sCIM if (j & 1) else sCRE
                    ins = f'buffer_load_dwordx4 v{vC+i}, s[{sr}:{sr+3}], s{sKc} offen offset:{1024*i} lds'
                ops.append((pre, ins))
        return s.mkdma(ops, f'W{q}')
    def readA(s, q, s_, buf):
        ty, j = s.TYPES[q]
        slot = (q + 2) & 3
        out = []
        for ee in range(2):
            r = WF + 8 * buf + 4 * ee
            if ty == 'o':
                va = vA0 if ee == 0 else vA1
                for k in range(2):
                    def f(va=va, r=r, k=k):
                        o = s.addr(va, slot)
                        s.I(f'ds_read_b64_tr_b16 v[{r+2*k}:{r+2*k+1}], v{va} offset:{o + s_*2048 + 1024*k}')
                    out.append(f)
            else:
                def f(r=r, ee=ee):
                    o = s.addr(vY + s_, slot)
                    s.I(f'ds_read_b128 v[{r}:{r+3}], v{vY+s_} offset:{o + ee*4096}')
                out.append(f)
        return out
    def sched_item(s, it):
        if it[0] == 'W': return s.issueW(int(it[1:]))
        if it[0] == 'B': return s.issueB(int(it[1:]))
        if it[0] == 'p': return [lambda: s.I(*s.poll_issue())]
        if it[0] == 'c': return [s.poll_check({'E': 0xff, 'Y': 0xff00, 'L': 0x3f0000}[it[1]]), lambda: s.stamp('ok' + it[1])]
        if it[0] == 'f':
            if s.typ != 'H': return []
            ev, tag, ph = {'Y': ('Sdone', 'HS', 1), 'L': ('F1done', 'HF1', 2)}[it[1]]
            def ff():
                s.until(ev); s.stamp('pfl' + it[1]); s.flag_prog(tag, ph)[0].f(); s.stamp('fl' + it[1])
            return [ff]
        raise ValueError(it)
    def p2_late(s):
        a, b, c = 240, 241, 242
        o = [f'v_lshrrev_b32 v{a}, 3, v{vL}', f'v_lshlrev_b32 v{a}, 10, v{a}', f'v_lshrrev_b32 v{b}, 4, v{vL}', f'v_and_b32 v{c}, 7, v{vL}',
             f'v_xor_b32 v{b}, v{b}, v{c}', f'v_lshl_add_u32 v{vC}, v{b}, 4, v{a}',
             f'v_xor_b32 v{vC+1}, 64, v{vC}', f'v_add_u32 v{vC+1}, 7168, v{vC+1}', f'v_add_u32 v{vC+2}, {7168*2}, v{vC}', f'v_add_u32 v{vC+3}, {7168*2}, v{vC+1}']
        return o
    def p2_late2(s):
        a, b, c = 240, 241, 242
        o = [f'v_and_b32 v{a}, 31, v{vL}', f'v_lshlrev_b32 v{a}, 7, v{a}', f'v_bfe_u32 v{c}, v{vL}, 1, 3', f'v_lshrrev_b32 v{b}, 5, v{vL}', f'v_xor_b32 v{c}, v{c}, v{b}',
             f'v_lshl_add_u32 v{a}, v{c}, 4, v{a}', f'v_add_u32 v{vY}, s{sW13}, v{a}']
        o += [f'v_xor_b32 v{vY+k}, {32*k}, v{vY}' for k in range(1, 4)]
        for k in range(4): s.half[vY + k] = 0
        return o
    tX, tS, tDk, tSo, tDo, tDf, tXf, tYi, tRo, tRy, tF, tXo, tOo = 32, 40, 48, 50, 51, 52, 56, 72, 88, 89, 90, 94, 95
    def tail_addr(s):
        a, b, c, d = 240, 241, 242, 243
        tRo, tRy, tF = s.tRo, s.tRy, s.tF
        def key(dst, row, tmp):
            return [f'v_bfe_u32 v{tmp}, v{row}, 3, 2', f'v_lshlrev_b32 v{tmp}, 1, v{tmp}', f'v_and_b32 v{dst}, 7, v{row}', f'v_xor_b32 v{dst}, v{dst}, v{tmp}']
        o = s.pi_ops(a, b) + key(c, a, b) + [f'v_lshrrev_b32 v{d}, 5, v{vL}', f'v_xor_b32 v{c}, v{c}, v{d}', f'v_lshlrev_b32 v{a}, 8, v{a}',
             f'v_lshl_add_u32 v{a}, v{c}, 4, v{a}', f's_add_u32 s{sTmp}, s{sW13}, {SLOT}', f'v_add_u32 v{tRo}, s{sTmp}, v{a}']
        o += [f'v_and_b32 v{a}, 31, v{vL}'] + key(c, a, b) + [f'v_xor_b32 v{c}, v{c}, v{d}', f'v_lshlrev_b32 v{a}, 8, v{a}',
             f'v_lshl_add_u32 v{a}, v{c}, 4, v{a}', f's_add_u32 s{sTmp}, s{sW13}, {3*SLOT}', f'v_add_u32 v{tRy}, s{sTmp}, v{a}']
        o += [f'v_lshrrev_b32 v{b}, 4, v{vL}', f'v_and_b32 v{c}, 15, v{vL}', f'v_xor_b32 v{a}, v{b}, v{c}', f's_lshl_b32 s{sTmp}, s{sTp}, 2', f'v_xor_b32 v{a}, s{sTmp}, v{a}',
              f'v_lshlrev_b32 v{a}, 4, v{a}', f'v_lshl_add_u32 v{a}, v{b}, 8, v{a}',
              f's_lshl_b32 s{sTmp}, s{sTp}, 12', f's_lshl_b32 s{sTmp2}, s{sCp}, 15', f's_add_u32 s{sTmp}, s{sTmp}, s{sTmp2}', f's_add_u32 s{sTmp}, s{sTmp}, {SLOT}',
              f'v_add_u32 v{tF}, s{sTmp}, v{a}', f'v_xor_b32 v{tF+1}, 64, v{tF}', f'v_xor_b32 v{tF+2}, 32, v{tF}', f'v_xor_b32 v{tF+3}, 96, v{tF}',
              f'v_lshlrev_b32 v{s.tOo}, 11, v{b}', f'v_lshl_add_u32 v{s.tOo}, v{c}, 4, v{s.tOo}',
              f'v_lshlrev_b32 v{s.tXo}, 10, v{b}', f'v_lshl_add_u32 v{s.tXo}, v{c}, 3, v{s.tXo}',
              f'v_lshlrev_b32 v{s.tSo}, 3, v{b}', f'v_lshlrev_b32 v{s.tDo}, 3, v{c}', f'v_add_u32 v{s.tDo}, s{sDko}, v{s.tDo}']
        return o
    def tail_loads(s):
        o = []
        for i in range(4):
            o.append(s.atom([f's_add_u32 s{sTmp}, s{sXb}, {4096*i}', (f'buffer_load_dwordx2 v[{s.tX+2*i}:{s.tX+2*i+1}], v{s.tXo}, s[{sX}:{sX+3}], s{sTmp} offen', 'TX')]))
        for i in range(4):
            o.append((f'buffer_load_dwordx2 v[{s.tS+2*i}:{s.tS+2*i+1}], v{s.tSo}, s[{sWS}:{sWS+3}], s{sSb} offen offset:{32*i} sc1', 'TX'))
        o.append((f'global_load_dwordx2 v[{s.tDk}:{s.tDk+1}], v{s.tDo}, s[{kDk}:{kDk+1}]', 'TX'))
        return o
    def tail_pre(s):
        tX, tS, tDk, tDf, tXf, tYi = s.tX, s.tS, s.tDk, s.tDf, s.tXf, s.tYi
        o = [f'v_lshlrev_b32 v{tDf}, 16, v{tDk}', f'v_and_b32 v{tDf+1}, 0xffff0000, v{tDk}', f'v_lshlrev_b32 v{tDf+2}, 16, v{tDk+1}', f'v_and_b32 v{tDf+3}, 0xffff0000, v{tDk+1}']
        for i in range(4):
            m = tS + 2 * i; rs = m + 1; x0 = tX + 2 * i; xf = tXf + 4 * i; y = tYi + 4 * i
            o += [f'v_lshlrev_b32 v{rs}, 16, v{m}', f'v_rcp_f32 v{rs}, v{rs}', f'v_and_b32 v{m}, 0xffff0000, v{m}',
                  f'v_lshlrev_b32 v{xf}, 16, v{x0}', f'v_and_b32 v{xf+1}, 0xffff0000, v{x0}', f'v_lshlrev_b32 v{xf+2}, 16, v{x0+1}', f'v_and_b32 v{xf+3}, 0xffff0000, v{x0+1}']
            o += [f'v_sub_f32 v{y+j}, v{xf+j}, v{m}' for j in range(4)]
            o += [f'v_mul_f32 v{y+j}, v{y+j}, v{rs}' for j in range(4)]
            o += [f'v_mul_f32 v{y+j}, v{y+j}, v{tDf+j}' for j in range(4)]
        return o
    def part_write(s, base, acc):
        o = []
        for ee in range(2):
            for A in range(4):
                k = (8 * ee + 2 * A) * 16
                tmp = 240 + (A & 1)
                if k: o.append(f'v_xor_b32 v{tmp}, {k}, v{base}')
                else: tmp = base
                for t in range(2):
                    r = acc + 16 * (2 * ee + t) + 4 * A
                    o.append(f'ds_write_b128 v{tmp}, a[{r}:{r+3}] offset:{t*SLOT}')
        return o
    tO = 96
    def o_gate(s):
        O = s.tO; T = 112
        o = []
        for i in range(4):
            for src in range(4):
                r = O + 16 * src + 4 * i
                o.append(f'ds_read_b128 v[{r}:{r+3}], v{s.tF+i} offset:{src*8192 + i*1024}')
        o += [f'v_add_u32 v{s.tF+i}, {HALF}, v{s.tF+i}' for i in range(4)]
        for i in range(4):
            for j in range(4):
                r = O + 4 * i + j
                o += [f'v_add_f32 v{r}, v{r}, v{r+16}', f'v_add_f32 v{r+32}, v{r+32}, v{r+48}']
            for j in range(4):
                r = O + 4 * i + j
                o += [f'v_add_f32 v{r}, v{r}, v{r+32}']
        for r in range(O, O + 16): o.append(f'v_mul_f32 v{r+16}, {NLOG2E:#x}, v{r}')
        for r in range(O, O + 16): o.append(f'v_exp_f32 v{r+16}, v{r+16}')
        for r in range(O, O + 16): o.append(f'v_add_f32 v{r+16}, 1.0, v{r+16}')
        for r in range(O, O + 16): o.append(f'v_rcp_f32 v{r+16}, v{r+16}')
        for r in range(O, O + 16): o.append(f'v_mul_f32 v{r}, v{r}, v{r+16}')
        return o

    def p2(s):
        e = s.e; I = s.I; cfg = s.cfg; H = s.typ == 'H'
        sched = cfg['sched']
        e.wait_tag('W0')
        for f in s.readA(0, 0, 0): f()
        buf = 0
        def acc(ty, ee, t):
            b = (ACCO if ty == 'o' else ACCY) + 16 * (2 * ee + t)
            return f'a[{b}:{b+15}]'
        started = set()
        dma = deque()
        for q in range(11):
            ty, j = s.TYPES[q]
            if cfg.get('sc3'):
                ity = lambda n: s.TYPES[n][0] == 'y'
                if any(it[0] == 'W' and ity(int(it[1:])) for it in sched[q]) or (q + 1 < 11 and ity(q + 1)): s.until('late')
                if q == cfg['tq']: s.add(s.tail_addr())
                if q == 6: s.drain()
            for it in sched[q]: dma.extend(s.sched_item(it))
            if s.typ == 'L': dma.extend(s.pfL(f'q{q}'))
            if not cfg.get('sc3'):
                if q == 2: s.add(s.tail_addr())
                if q == 3:
                    s.until('Sdone'); s.add(s.p2_late())
                if q == 4: s.drain(); s.add(s.p2_late2())
                if q == 6: s.drain()
            if q == 7: s.add(s.tail_loads())
            if q == 8: s.add(s.tail_pre())
            if q == 9: s.add(s.part_write(s.tRo, ACCO))
            if q == 10:
                s.drain(); s.barrier('BO'); s.add(s.o_gate())
            bud = cfg['budP0'] if q < 3 else cfg['budP']
            for s_ in range(4):
                if s_ < 3: aops = deque(s.readA(q, s_ + 1, buf ^ 1)); needw = None
                elif q + 1 < 11: aops = deque(s.readA(q + 1, 0, buf ^ 1)); needw = f'W{q+1}'
                else: aops = deque(); needw = None
                k = 0
                for ee in range(2):
                    for t in range(2):
                        r = WF + 8 * buf + 4 * ee
                        br = (q & 3) * 32 + 8 * s_ + 4 * t
                        A = acc(ty, ee, t)
                        cs = A if (ty, ee, t) in started else '0'
                        started.add((ty, ee, t))
                        I(f'v_mfma_f32_32x32x16_bf16 {A}, v[{r}:{r+3}], a[{br}:{br+3}], {cs}')
                        n0 = e.n
                        if k == 0 and needw: e.wait_tag(needw)
                        if aops: aops.popleft()()
                        left = 16 - (4 * s_ + k)
                        s.pace(dma, left)
                        s.gap(n0, bud)
                        k += 1
                while aops: aops.popleft()()
                buf ^= 1
            while dma: dma.popleft()()
            s.stamp(f'q{q}e')
        s.drain()
        s.stamp('P2end')
        for x in s.part_write(s.tRy, ACCY): I(x)
        s.barrier('BY')
        Y = [0, 112, 128, 144]
        for i in range(4):
            for src in range(4):
                r = Y[src] + 4 * i
                I(f'ds_read_b128 v[{r}:{r+3}], v{s.tF+i} offset:{src*8192 + i*1024}')
        for i in range(4):
            for j in range(4):
                I(f'v_add_f32 v{Y[0]+4*i+j}, v{Y[0]+4*i+j}, v{s.tYi+4*i+j}'); I(f'v_add_f32 v{Y[1]+4*i+j}, v{Y[1]+4*i+j}, v{Y[2]+4*i+j}')
            for j in range(4):
                I(f'v_add_f32 v{Y[0]+4*i+j}, v{Y[0]+4*i+j}, v{Y[3]+4*i+j}')
            for j in range(4):
                I(f'v_add_f32 v{Y[0]+4*i+j}, v{Y[0]+4*i+j}, v{Y[1]+4*i+j}')
            for j in range(4):
                I(f'v_fma_f32 v{Y[0]+4*i+j}, v{Y[0]+4*i+j}, v{s.tO+4*i+j}, v{s.tXf+4*i+j}')
            I(f's_add_u32 s{sTmp}, s{sOb}, {8192*i}')
            I(f'buffer_store_dwordx4 v[{Y[0]+4*i}:{Y[0]+4*i+3}], v{s.tOo}, s[{sOUT}:{sOUT+3}], s{sTmp} offen' + s.cfg.get('osc', ''))

    def body(s):
        e = s.e; I = s.I; cfg = s.cfg; typ = s.typ
        s.prologue()
        H = typ == 'H'
        tb_ = s.capture(s.tab)
        skip = cfg.get('skip', ())
        K = lambda n, l: [] if n in skip else (l() if callable(l) else l)
        s.add(K('pub', s.pub_prog) + [s.fstamp('pub')] + K('tab', tb_) + [s.mark('tabdone')])
        o1, o2 = s.fcs_prog()
        s.add([s.gate(f'B{cfg["fcs"]}')] + K('fcs', o1 + o2) + [s.fstamp('fcs')])
        s.add([s.gate(f'B{cfg["gA_issue"]}')] + K('gA', s.gA_issue))
        s.add([s.gate(f'B{cfg["gB_issue"]}')] + K('gB', s.gB_issue))
        s.add([s.gate(f'B{cfg["gA_proc"]}')] + K('gA', s.gA_proc) + [s.mark('gAdone'), s.fstamp('gA')])
        s.add([s.gate(f'B{cfg["gB_proc"]}')] + K('gB', s.gB_proc) + [s.mark('gBdone'), s.fstamp('gB')])
        if cfg.get('stopA'):
            s.stopA = True
        def readsA(st, ks):
            b = WF + 8 * ((4 * st + ks) & 1)
            xp = cfg.get('xp', '')
            return ([] if 'S' in xp else s.rd_S(st, ks, b)) + ([] if 'x' in xp else s.rd_x(st, ks, 0) + s.rd_x(st, ks, 1)) + ([] if 'W' in xp else s.rd_W(st & 3, 24576 + 2048 * ks, b + 4))
        pf = cfg['pf']; NR = 4
        assert pf == 3
        npass = 3 if H else 1
        order = [(p, kk) for p in range(npass) for kk in range(32)]
        def rdP(idx):
            p, kk = order[idx]
            st = 8 + 2 * p + (kk >> 4)
            return s.rd_W(st & 3, (kk & 15) * 2048, WF + 4 * (idx % NR))
        dma = deque(s.dma_list(2))
        for f in readsA(0, 0): f()
        nst = 8 + 2 * npass
        def next_dma(stb):
            l = next_dma0(stb)
            if H:
                for k, (b, unit) in enumerate(cfg.get('pf2', ())):
                    if b == stb: l = l + [s.pf2_item(unit, k)]
            else: l = l + s.pfL(f'B{stb}')
            return l
        def next_dma0(stb):
            l = []
            if 'D' in cfg.get('xp', ''): return l
            if 'H' in cfg.get('xp', ''): return s.dma_list(stb + 2)[:4]
            if stb == 1: l = (s.dma_csc() + s.dma_list(3)) if cfg['fcs'] <= 3 else (s.dma_list(3) + s.dma_csc())
            elif stb < 8: l = s.dma_list(stb + 2)
            elif stb == 8: l = (s.dma_list(10) + s.dma_list(11)) if nst > 11 else []
            elif stb + 3 < nst: l = s.dma_list(stb + 3)
            elif H and cfg['p2'] and stb in (11, 12, 13): l = s.issueW(stb - 11)
            return l
        for st in range(8):
            for ks in range(4):
                kk = 4 * st + ks
                b = WF + 8 * (kk & 1)
                if ks < 3: nxt = readsA(st, ks + 1)
                elif st < 7: nxt = readsA(st + 1, 0)
                else: nxt = []
                nxt = deque(nxt)
                seq = [(aS, 0, True), (aS, 1, True), (aG0, 0, False), (aG0, 1, False)]
                for m, (base, t, isS) in enumerate(seq):
                    acc = base + 16 * t
                    xr = (kk * 2 + t) * 4
                    w = f'v[{b}:{b+3}]' if isS else f'v[{b+4}:{b+7}]'
                    c = '0' if kk == 0 else f'v[{acc}:{acc+15}]'
                    if isS: I(f'v_mfma_f32_32x32x16_bf16 v[{acc}:{acc+15}], a[{xr}:{xr+3}], {w}, {c}')
                    else: I(f'v_mfma_f32_32x32x16_bf16 v[{acc}:{acc+15}], {w}, a[{xr}:{xr+3}], {c}')
                    n0 = e.n
                    if ks == 3 and m == 0:
                        if st + 1 == 6: s.until('tabdone')
                        if st + 1 == cfg['gBbar'] and not cfg.get('stopA'): s.until('gBdone')
                        s.barrier(f'B{st+1}', f'D{st+1}')
                        while dma: dma.popleft()()
                        dma = deque(next_dma(st + 1))
                        if st == 7:
                            nxt = deque(rdP(0) + rdP(1))
                        n0 = e.n
                    nrd = 2 if m < 2 else 1
                    if m == 3: nrd = 9
                    for _ in range(nrd):
                        if nxt: nxt.popleft()()
                    left = 16 - (4 * ((ks + 1) & 3) + m)
                    s.pace(dma, left)
                    s.gap(n0, cfg['budA'])
        s.stamp('Aend')
        if cfg.get('stopA'):
            s.drain(); s.stamp('end'); s.final_stamps(); e.raw('s_endpgm')
            for f in s.slow: f()
            return
        s.until('gAdone')
        gb = s.gate(f'B{cfg["gBbar"]}')
        totb = cfg['totb'] if H else 10
        sc3 = H and cfg.get('sc3')
        if sc3:
            totb = None
            G1p = [s.gate('Cend')] + s.aug_F(aG1, 2) + s.g_part(aG1, 0, 64) + s.g_part(aG1 + 16, 1, 64) + [s.mark('G1done'), s.fstamp('G1')]
            gk = lambda k: [s.gate(f'p{cfg[k][0]}k{cfg[k][1]}')] if cfg.get(k) else []
            G0p = [gb] + s.aug_F(aG0, 0) + s.g_part(aG0, 0, 152) + s.g_part(aG0 + 16, 1, 152) + [s.fstamp('G0')]
            S1p = s.aug_S() + s.s1(0) + s.s1(1) + [s.mark('s1done'), s.fstamp('s1'), s.gate('TOT')] + s.s2() + [s.fstamp('s2')]
            prog = (G0p + S1p) if cfg.get('g0first') else (S1p + G0p)
            prog += [s.gate('Bend')] + s.aug_F(aU0, 1) + s.u_part(aG0, aU0, 0, 0) + s.u_part(aG0 + 16, aU0 + 16, 1, 0) + [s.mark('F0done'), s.fstamp('F0st')]
            prog += gk('s3ik') + s.s3_issue() + [s.fstamp('s3i')] + gk('s3pk') + s.s3() + [s.mark('s3done'), s.fstamp('s3')]
            gp = cfg['g1pos']
            prog += (G1p if gp == 0 else []) + s.s4(0) + (G1p if gp == 1 else []) + s.s4(1) + [s.mark('Sdone'), s.fstamp('Sdone')]
            prog += s.p2_late() + s.p2_late2() + [s.mark('late')] + (G1p if gp == 2 else [])
            prog += [s.gate('Dend')] + s.aug_F(aU1, 3) + s.u_part(aG1, aU1, 0, 1) + s.u_part(aG1 + 16, aU1 + 16, 1, 1) + [s.mark('F1done'), s.fstamp('F1st')]
            s.add(prog)
        elif H:
            s.add([gb] + s.aug_F(aG0, 0) + s.g_part(aG0, 0, 152) + s.g_part(aG0 + 16, 1, 152) + [s.fstamp('G0')] +
                  [s.gate('Bend')] + s.aug_F(aU0, 1) + s.u_part(aG0, aU0, 0, 0) + s.u_part(aG0 + 16, aU0 + 16, 1, 0) + [s.mark('F0done'), s.fstamp('F0st')] +
                  s.aug_S() + s.s1(0) + s.s1(1) + [s.mark('s1done')])
        else:
            s.add(s.aug_S() + s.s1(0) + [gb] + s.aug_F(aG0, 0) + s.g_part(aG0, 0, 152) + s.s1(1) + [s.mark('s1done')] + s.g_part(aG0 + 16, 1, 152))
        issued = 2
        for f in rdP(2): f()
        issued = 3
        for idx, (p, kk) in enumerate(order):
            st = 8 + 2 * p + (kk >> 4)
            fr = WF + 4 * (idx % NR)
            accb = [aU0, aG1, aU1][p]
            bud = [cfg['budB'], cfg['budC'], cfg['budD']][p]
            s.events.add(f'p{p}k{kk}')
            if sc3 and p == 0 and kk == cfg['totk']:
                s.until('s1done'); s.barrier('TOT')
            if sc3 and (p, kk) == tuple(cfg['flEk']):
                s.until('F0done'); s.addfront(s.flag_prog('HF0', 0) + [s.mark('flEdone'), s.fstamp('flE')])
            if sc3 and cfg.get('fYk') and (p, kk) == tuple(cfg['fYk']):
                s.until('Sdone'); s.addfront(s.flag_prog('HS', 1) + [s.fstamp('flY')])
            if (kk & 15) == 16 - pf and (st + 1 < nst or (H and cfg['p2'])):
                if st + 1 == cfg['gBbar']: s.until('gBdone')
                if st + 1 == totb: s.until('s1done')
                if H and not sc3 and st + 1 == cfg['flEb']: s.until('F0done')
                s.barrier(f'B{st+1}', f'D{st+1}' if st + 1 < nst else None)
                if H and not sc3 and st + 1 == cfg['s3b']: s.addfront(s.s3_issue())
                if st + 1 == totb: s.addfront(s.s2() + [s.mark('s2done'), s.fstamp('s2')])
                if H and not sc3 and st + 1 == cfg['flEb']: s.addfront(s.flag_prog('HF0', 0) + [s.mark('flEdone'), s.fstamp('flE')])
                while dma: dma.popleft()()
                dma = deque(next_dma(st + 1))
            if p == 2:
                if kk == 0 and not sc3:
                    s.add(s.aug_F(aG1, 2) + s.g_part(aG1, 0, 64) + s.g_part(aG1 + 16, 1, 64) + [s.mark('G1done'), s.fstamp('G1')])
                if cfg['p2']:
                    if kk == cfg['pE']: dma.appendleft(lambda: s.I(*s.poll_issue()))
                    if kk == cfg['cE']:
                        s.until('flEdone')
                        dma.append(lambda: s.stamp('epre'))
                        dma.append(s.poll_check(0xff))
                        dma.append(lambda: s.stamp('eok'))
                        for q in range(cfg.get('nEB', 2)): dma.extend(s.issueB(q))
            nxt = deque()
            if issued < len(order):
                nxt = deque(rdP(issued)); issued += 1
            for t in range(2):
                acc = accb + 16 * t
                xr = (kk * 2 + t) * 4
                c = '0' if kk == 0 else f'v[{acc}:{acc+15}]'
                I(f'v_mfma_f32_32x32x16_bf16 v[{acc}:{acc+15}], v[{fr}:{fr+3}], a[{xr}:{xr+3}], {c}')
                n0 = e.n
                if nxt: nxt.popleft()()
                if p == 2 and kk >= cfg['cE'] and cfg['p2']: left = 2 * (32 - kk) - t
                else: left = 32 - (2 * (((kk & 15) + pf) & 15) + t)
                s.pace(dma, left)
                s.gap(n0, bud)
            if kk == 31:
                s.stamp(['Bend', 'Cend', 'Dend'][p]); s.events.add(['Bend', 'Cend', 'Dend'][p])
        while dma: dma.popleft()()
        if not H:
            s.until('s1done')
            s.barrier('B10')
            if cfg['p2'] and not cfg.get('Lw', 1):
                for q in range(3):
                    for f in s.issueW(q): f()
            s.addfront(s.s2())
            s.add(s.aug_F(aU0, 1) + s.u_part(aG0, aU0, 0, 0) + s.u_part(aG0 + 16, aU0 + 16, 1, 0))
            s.drain()
            for f in s.pfL('F0'): f()
            if cfg['p2'] and cfg.get('Lw', 1) == 1:
                for q in range(3):
                    for f in s.issueW(q): f()
            s.stamp('F1st')
            fE = s.flag_prog('HF0', 0) + [s.fstamp('flE')]
            post = [Fn(f, 8) for f in s.pfL('s3i')]
            if cfg['p2'] and cfg.get('Lw', 1) == 2:
                post += [Fn(f, 8) for q in range(3) for f in s.issueW(q)]
            s.add((fE + s.s3_issue() + post if cfg.get('LfE', 0) else s.s3_issue() + post + fE) + s.s3() + [s.fstamp('s3')] + s.s4(0) + s.s4(1) + [s.mark('Sdone'), s.fstamp('Sdone')] + [Fn(f, 8) for f in s.pfL('S')] + s.flag_prog('HS', 1) + [s.fstamp('flY')])
            if cfg['p2'] and cfg.get('Lw', 1) == 3: s.add([Fn(f, 8) for q in range(3) for f in s.issueW(q)])
            if cfg.get('sc3'): s.add(s.p2_late() + s.p2_late2() + [s.mark('late')])
            s.drain()
            if cfg['p2']:
                I(*s.poll_issue()); s.poll_check(0xff)(); s.stamp('eok')
                for q in range(cfg.get('nEB', 2)):
                    for f in s.issueB(q): f()
        elif not sc3:
            s.add(s.aug_F(aU1, 3) + s.u_part(aG1, aU1, 0, 1) + s.u_part(aG1 + 16, aU1 + 16, 1, 1) + [s.fstamp('F1st')] + s.s3() + [s.fstamp('s3')] + s.s4(0) + s.flag_prog('HF1', 2) + [s.fstamp('flL')] +
                  s.s4(1) + [s.mark('Sdone'), s.fstamp('Sdone')] + ['s_nop 0'] * cfg.get('ydelay', 0) + s.flag_prog('HS', 1) + [s.fstamp('flY')])
        if sc3 and cfg.get('f1first', 1):
            s.until('F1done')
        if cfg['p2']: s.p2()
        else: s.drain()
        s.stamp('end')
        s.final_stamps()
        e.raw('s_endpgm')
        for f in s.slow: f()
    def gate_mark(s, ev): return ('gate', ev)

def gen_fz(ts=False, cfg=None):
    e = Em(); I = e.I
    cfg = cfg or {}
    e.raw('s_cmp_ge_u32 s2, 256'); e.raw('s_cbranch_scc1 FZ_done')
    I(f's_load_dwordx16 s[64:79], s[0:1], 0')
    I(f's_load_dwordx8 s[80:87], s[0:1], 64')
    I(f's_load_dwordx8 s[88:95], s[0:1], 96')
    e.raw(f's_memrealtime s[{sSB}:{sSB+1}]')
    if ts: e.raw(f'{ts} s[98:99]')
    I(f'v_and_b32 v{vL}, 63, v0'); I(f'v_lshrrev_b32 v{vT}, 6, v0'); I(f'v_readfirstlane_b32 s{sw}, v{vT}')
    if cfg.get('codepf', 1):
        e.raw('s_getpc_b64 s[4:5]'); e.label('PF_base')
        I(f's_lshr_b32 s6, s2, 3'); I(f's_and_b32 s6, s6, 1'); I(f's_lshl_b32 s6, s6, 15')
        I(f'v_lshlrev_b32 v{vT+1}, 7, v0'); I(f'v_add_u32 v{vT+1}, s6, v{vT+1}')
        e.raw(f'v_min_u32 v{vT+1}, TEXT_END-PF_base-4, v{vT+1}')
        I(f'v_mov_b32 v{vT+4}, s4'); I(f'v_mov_b32 v{vT+5}, s5')
        I(f'v_add_co_u32 v{vT+4}, vcc, v{vT+4}, v{vT+1}'); I(f'v_addc_co_u32 v{vT+5}, vcc, 0, v{vT+5}, vcc')
        I(f'global_load_dword v{vDUM}, v[{vT+4}:{vT+5}], off')
    I(f's_and_b32 s{sTmp}, s2, 7'); I(f's_lshr_b32 s{sTmp2}, s2, 3')
    I(f's_lshr_b32 s{sRho}, s{sTmp2}, 2'); I(f's_and_b32 s{sU}, s{sTmp2}, 3')
    I(f's_and_b32 s{sTmp3}, s{sTmp}, 1'); I(f's_lshl_b32 s{sR}, s{sRho}, 1'); I(f's_add_u32 s{sR}, s{sR}, s{sTmp3}')
    I(f's_lshr_b32 s{sG}, s{sTmp}, 1'); I(f's_lshl_b32 s{sC}, s{sG}, 2'); I(f's_add_u32 s{sC}, s{sC}, s{sU}')
    I(f's_lshl_b32 s{sTmp}, s{sU}, 1')
    offm = cfg.get('offm', 'zero')
    if offm == 'cur': I(f's_add_u32 s{sOff}, s{sRho}, s{sTmp}'); I(f's_and_b32 s{sOff}, s{sOff}, 7')
    elif offm == 'zero': I(f's_mov_b32 s{sOff}, 0')
    elif offm == 'rho': I(f's_mov_b32 s{sOff}, s{sRho}')
    elif offm == 'u2': I(f's_mov_b32 s{sOff}, s{sTmp}')
    elif offm == 'rho4': I(f's_and_b32 s{sOff}, s{sRho}, 1'); I(f's_lshl_b32 s{sOff}, s{sOff}, 2')
    elif offm == 'rho2': I(f's_and_b32 s{sOff}, s{sRho}, 3'); I(f's_lshl_b32 s{sOff}, s{sOff}, 1')
    elif offm == 'xcd': I(f's_and_b32 s{sOff}, s2, 7')
    I(f's_mul_i32 s{sSo2}, s{sG}, 7'); I(f's_add_u32 s{sSo2}, s{sSo2}, s{sTmp}'); I(f's_lshl_b32 s{sSo2}, s{sSo2}, 7')
    I(f's_and_b32 s{sTp}, s{sw}, 1'); I(f's_lshr_b32 s{sCp}, s{sw}, 1')
    for s_, n in [(sX, 2048*512*2), (sW1, 512*1792*2), (sW3, 512*1792*2), (sCSC, 512*1792*2), (sSB, 512*512*2), (sWS, WS_SIZE), (sDBG, 256)]:
        I(f's_mov_b32 s{s_+2}, {n}'); I(f's_mov_b32 s{s_+3}, 0x00020000')
    I(f's_lshl_b32 s{sXo}, s{sR}, 2'); I(f's_add_u32 s{sXo}, s{sXo}, s{sw}'); I(f's_lshl_b32 s{sXo}, s{sXo}, 15')
    I(f's_lshl_b32 s{sSo}, s{sC}, 15'); I(f's_lshl_b32 s{sTmp}, s{sTp}, 13'); I(f's_add_u32 s{sSo}, s{sSo}, s{sTmp}')
    I(f's_mul_i32 s{sFo}, s{sw}, {16*WROW}'); I(f's_add_u32 s{sFo}, s{sFo}, s{sSo2}')
    I(f's_lshl_b32 s{sW12}, s{sw}, 12'); I(f's_lshl_b32 s{sW11}, s{sw}, 11'); I(f's_lshl_b32 s{sW13}, s{sw}, 13')
    a, b, c, d = vT, vT + 1, vT + 2, vT + 3
    I(f'v_lshlrev_b32 v{vHB}, 4, v{vL}')
    I(f'v_lshrrev_b32 v{a}, 5, v{vL}'); I(f'v_lshlrev_b32 v{a}, 4, v{a}'); I(f'v_and_b32 v{b}, 8, v{vL}'); I(f'v_add_u32 v{a}, v{a}, v{b}')
    I(f'v_bfe_u32 v{b}, v{vL}, 4, 1'); I(f'v_add_u32 v{a}, v{a}, v{b}'); I(f'v_lshlrev_b32 v{a}, 10, v{a}')
    I(f'v_and_b32 v{b}, 7, v{vL}'); I(f'v_lshrrev_b32 v{c}, 4, v{vL}'); I(f'v_xor_b32 v{d}, v{b}, v{c}')
    I(f'v_lshl_add_u32 v{vDX}, v{d}, 4, v{a}')
    I(f'v_xor_b32 v{vDX+1}, 64, v{vDX}'); I(f'v_add_u32 v{vDX+1}, 1024, v{vDX+1}')
    I(f'v_add_u32 v{vDX+2}, 2048, v{vDX}'); I(f'v_add_u32 v{vDX+3}, 2048, v{vDX+1}')
    I(f'v_bfe_u32 v{a}, v{vL}, 4, 1'); I(f'v_lshlrev_b32 v{a}, 2, v{a}'); I(f'v_xor_b32 v{a}, v{a}, v{b}'); I(f'v_lshlrev_b32 v{a}, 4, v{a}')
    I(f'v_lshrrev_b32 v{d}, 3, v{vL}'); I(f'v_mul_u32_u24 v{vDF}, {WROW}, v{d}'); I(f'v_add_u32 v{vDF}, v{vDF}, v{a}')
    for i in range(1, 4): I(f'v_add_u32 v{vDF+i}, {27648*i}, v{vDF}')
    I(f's_lshl_b32 s{sTmp}, s{sTp}, 2'); I(f'v_add_u32 v{c}, s{sTmp}, v{c}'); I(f'v_xor_b32 v{a}, v{b}, v{c}')
    I(f'v_lshlrev_b32 v{a}, 4, v{a}'); I(f'v_lshl_add_u32 v{vDS}, v{d}, 10, v{a}'); I(f'v_add_u32 v{vDS+1}, 15360, v{vDS}')
    gH = Gen('H', e, ts, cfg); gL = Gen('L', e, ts, cfg)
    gH.lds_addrs(); gH.pre_karg()
    e.force_wait('lgkmcnt(0)')
    if ts: I(f'v_writelane_b32 v{vTS}, s98, 0')
    I(f's_cmp_eq_u32 s{sU}, 3'); e.raw('s_cbranch_scc1 FZ_L')
    sv = (dict(e.lastw), dict(e.lastsw))
    for g, lab in ((gH, None), (gL, 'FZ_L')):
        if lab: e.label(lab); e.reset_hazards(pad=2); e.lgk = []; e.vm = []
        g.body()
    e.label('FZ_done'); e.raw('s_endpgm')
    return e
```

```python
from em import Em
from collections import deque
WS_STATS = 12 << 20
WS_CSS = (12 << 20) + (64 << 10)
WS_CSF = (12 << 20) + (128 << 10)
WS_E = 13 << 20
WS_FL = (13 << 20) + (512 << 10)
WS_TS = 14 << 20
WS_SIZE = 16 << 20
TSTRIDE = 176 * 1024
SLOT = 32768
HALF = 65536
MISC = 131072
L_RS = MISC
L_TOTZ = MISC + 512
L_TAB = MISC + 2304
L_WAUG = MISC + 6400
L_CSC = MISC + 16384
L_TR = MISC + 16384
OOB = 0x40000000
LOG2E = 0x3fb8aa3b
NLOG2E = 0xbfb8aa3b
INV2PI = 0x3e22f983
SPIN = 100000
WROW = 3584
WCH = 64 * WROW

sCSC, sX, sW1, sW3, sWS, sSB, sDBG = 4, 8, 12, 16, 20, 24, 28
sw, sR, sC, sOff, sNonce, sTp, sCp, sU, sG, sRho = 32, 33, 34, 35, 36, 37, 38, 39, 40, 41
sXo, sSo, sFo, sKa, sKb, sKc, sTmp, sTmp2, sTmp3 = 42, 43, 44, 45, 46, 47, 48, 49, 50
sW12, sW11, sW13, sTg0, sHF = 51, 52, 53, 54, 55
sMhi, sModd, sBad, sMsel = 56, 58, 60, 62
sSpin = 3
sGa, sGb = 96, 97
kX, kLre, kLim, kBre, kBim, kCre, kCim, kLdt = 64, 66, 68, 70, 72, 74, 76, 78
kDk, kBx, kW1, kW3, kW2, kOut, kDbg, kWs = 80, 82, 84, 86, 88, 90, 92, 94
TSPOOL = [98, 82, 0]
sSo2 = 101
sFlP = 100
sW2, sCRE, sCIM, sOUT = 64, 68, 84, 92
sBE, sBY, sFlC, sXb, sSb, sDko, sRowW, sCrow, sOb = 72, 73, 74, 75, 76, 77, 78, 79, 88
aS, aG0, aU0, aG1, aU1, WF = 0, 32, 64, 96, 128, 160
vW, vA0, vA1, vB1, vPl = 176, 180, 181, 182, 183
vXA, vSS, vG, vL, vHB, vCA = 184, 188, 192, 193, 194, 195
vDX, vDF, vDS = 196, 200, 204
vXaug, vNRS, vK2, vSA = 206, 214, 216, 218
vT = 222
vNon, vPo, vTS, vDUM = 252, 253, 254, 255
vCh, vTg, vRs, vTo, vTw, vTr, vEo, vFl = 222, 223, 224, 225, 226, 227, 228, 229
vPc, vPC, vH = 230, 234, 238
vC, vY = 196, 184
ACCO, ACCY = 128, 192
TRANS = ('v_exp_f32','v_log_f32','v_rcp_f32','v_rsq_f32','v_sqrt_f32','v_sin_f32','v_cos_f32')

VOP3 = ('v_fma_f32', 'v_lshl_add_u32', 'v_bfe_u32', 'v_cvt_pk_bf16_f32', 'v_mul_lo_u32', 'v_add3_u32', 'v_lshl_or_b32', 'v_and_or_b32', 'v_writelane_b32', 'v_mul_u32_u24')
def cost(txt):
    mn = txt.split()[0]
    if mn in TRANS or 'permlane' in mn: return 8
    if mn.startswith('v_mfma'): return 8
    if mn.startswith('v_pk_'): return 20
    if mn in VOP3 or (mn.startswith('v_cndmask') and 's[' in txt) or (mn.startswith('v_cmp') and ' s[' in txt[:30]) or '0x' in txt and mn.startswith('v_') or (mn.startswith('v_') and ' -v' in txt): return 5
    return 4

class Atom:
    def __init__(s, items):
        s.items = items; s.cost = sum(icost(x) for x in items)
class Fn:
    def __init__(s, f, c): s.f = f; s.cost = c
def icost(x):
    if isinstance(x, (Atom, Fn)): return x.cost
    return cost(x[0] if isinstance(x, tuple) else x)
def isctl(x, k): return isinstance(x, tuple) and x[0] == k

def cmac(d, a, b, c):
    if d == c:
        return [f'v_fmac_f32 v{d}, v{a}, v{b}', f'v_fmac_f32 v{d+1}, v{a}, v{b+1}',
                f'v_fma_f32 v{d}, -v{a+1}, v{b+1}, v{d}', f'v_fmac_f32 v{d+1}, v{a+1}, v{b}']
    return [f'v_fma_f32 v{d}, v{a}, v{b}, v{c}', f'v_fma_f32 v{d+1}, v{a}, v{b+1}, v{c+1}',
            f'v_fma_f32 v{d}, -v{a+1}, v{b+1}, v{d}', f'v_fmac_f32 v{d+1}, v{a+1}, v{b}']
def zipl(a, b):
    out = []; i = j = 0
    while i < len(a) or j < len(b):
        if j >= len(b) or (i < len(a) and i * len(b) <= j * len(a)): out.append(a[i]); i += 1
        else: out.append(b[j]); j += 1
    return out

DEF_SCHED = [['W3', 'B2', 'B3'], ['W4'], ['pL', 'W5'], ['W6', 'cL', 'B4', 'B5', 'B6'], ['pY', 'W7'], ['W8', 'cY', 'B7', 'B8'], ['W9', 'B9'], ['W10', 'B10'], [], [], []]
SCHED3 = [['W3', 'B2', 'B3'], ['fY', 'W4'], ['fL', 'pY', 'W5'], ['W6', 'cY', 'B4', 'B5', 'pL'], ['W7', 'cL', 'B6', 'B7'], ['W8', 'B8'], ['W9', 'B9'], ['W10', 'B10'], [], [], []]
S4 = [['W3', 'B2'], ['fL', 'pY', 'W4', 'B3', 'cY', 'h4.5.9.10'], ['W5', 'B4'], ['pL', 'W6', 'B5', 'cL', 'h6.7.8'], ['W7', 'B6'], ['W8', 'B7'], ['W9', 'B8'], ['W10', 'B9'], ['B10'], [], []]
S5 = [['W3', 'B2', 'B3'], ['fL', 'pY', 'W4', 'cY', 'h4.5.9.10'], ['W5', 'B4'], ['pL', 'W6', 'B5', 'cL', 'h6.7.8'], ['W7', 'B6'], ['W8', 'B7'], ['W9', 'B8'], ['W10', 'B9'], ['B10'], [], []]
S6 = [['W3', 'B2', 'B3'], ['fL', 'pY', 'W4'], ['cY', 'h4.5.9.10', 'W5', 'B4', 'pL'], ['W6', 'B5', 'cL', 'h6.7.8'], ['W7', 'B6'], ['W8', 'B7'], ['W9', 'B8'], ['W10', 'B9'], ['B10'], [], []]
S7 = [['W3', 'B2', 'B3'], ['fL', 'pY', 'W4'], ['cY', 'B4', 'B5', 'W5'], ['pL', 'W6'], ['cL', 'B6', 'B7', 'W7'], ['W8', 'B8'], ['W9', 'B9'], ['W10', 'B10'], [], [], []]
S8 = [['W3', 'B2'], ['pY', 'W4', 'B3', 'cY', 'h4.5.9.10'], ['fL', 'W5', 'B4'], ['W6', 'B5', 'pL'], ['cL', 'h6.7.8', 'W7', 'B6'], ['W8', 'B7'], ['W9', 'B8'], ['W10', 'B9'], ['B10'], [], []]
S9 = [['W3', 'B2'], ['pY', 'W4', 'B3', 'cY', 'h4.5.9.10', 'fL'], ['W5', 'B4'], ['W6', 'pL', 'B5'], ['cL', 'h6.7.8', 'W7', 'B6'], ['W8', 'B7'], ['W9', 'B8'], ['W10', 'B9'], ['B10'], [], []]
def addit(S, q, items, front=True):
    S = [list(x) for x in S]
    S[q] = (list(items) + S[q]) if front else (S[q] + list(items))
    return S
class Gen:
    def __init__(s, typ, e, ts=False, cfg=None):
        s.typ = typ; s.e = e; s.ts = ts
        s.cfg = dict(gA_issue=5, gB_issue=6, gA_proc=7, gB_proc=7, gBbar=8, offm='zero', fcs=3, budA=30, budB=24, budC=24, budD=24, pf=3, p2=True, budP=40, budP0=64, slack=1,
                     pE=10, cE=16, s3b=14, flEb=12, sched=DEF_SCHED, totb=12)
        if cfg: s.cfg.update(cfg)
        s.fill = deque(); s.events = set(); s.half = {}
        s.slow = []
        s.pacc = 0.5
        s.nlab = 0
        s.P = f'FZ{typ}'
        s.pend = []
        s.names = s.cfg.get('stamps', [])
        if s.cfg.get('sc3'):
            d = dict(types=[('o', 0), ('o', 2), ('o', 4), ('o', 6), ('y', 0), ('y', 1), ('o', 1), ('o', 3), ('o', 5), ('y', 2), ('y', 3)],
                     sched=SCHED3, totk=20, flEk=(1, 28), s3ik=None, s3pk=(1, 26), g1pos=2, pE=6, cE=14, nEB=2, tq=1)
            for k, v in d.items():
                if not cfg or k not in cfg: s.cfg[k] = v
        s.TYPES = s.cfg.get('types', Gen.TYPES)
    def I(s, t, tag=None): s.e.I(t, tag)
    def lab(s, n):
        s.nlab += 1; return f'{s.P}_{n}{s.nlab}'
    def stamp(s, name):
        if not s.ts or name not in s.names: return
        k = s.names.index(name) + 1
        used = [p[0] for p in s.pend]
        free = [r for r in TSPOOL if r not in used]
        if not free:
            s.flush_stamps(); free = list(TSPOOL)
        r = free[0]
        s.e.raw(f'{s.ts} s[{r}:{r+1}]')
        s.pend.append((r, k))
    def fstamp(s, name):
        return Fn(lambda: s.stamp(name), 0)
    def flush_stamps(s):
        if not s.pend: return
        s.e.force_wait('lgkmcnt(0)')
        for r, k in s.pend: s.I(f'v_writelane_b32 v{vTS}, s{r}, {k}')
        s.pend = []
    def final_stamps(s):
        if not s.ts: return
        s.flush_stamps()
        I = s.I
        I(f's_lshl_b32 s{sTmp}, s2, 2'); I(f's_add_u32 s{sTmp}, s{sTmp}, s{sw}'); I(f's_lshl_b32 s{sTmp}, s{sTmp}, 8'); I(f's_add_u32 s{sTmp}, s{sTmp}, {WS_TS}')
        I(f'v_lshlrev_b32 v{vDUM}, 2, v{vL}')
        I(f'buffer_store_dword v{vTS}, v{vDUM}, s[{sWS}:{sWS+3}], s{sTmp} offen')
    def add(s, items):
        for x in items: s.fill.append(x)
    def addfront(s, items):
        for x in reversed(items): s.fill.appendleft(x)
    def gate(s, ev): return ('gate', ev)
    def mark(s, ev): return ('mark', ev)
    def emit1(s, x):
        if isinstance(x, Atom):
            for y in x.items: s.emit1(y)
        elif isinstance(x, Fn): x.f()
        elif isinstance(x, tuple): s.I(x[0], x[1])
        else: s.I(x)
    def run_fill(s, budget):
        while s.fill:
            x = s.fill[0]
            if isctl(x, 'gate'):
                if x[1] in s.events: s.fill.popleft(); continue
                return
            if isctl(x, 'mark'):
                s.fill.popleft(); s.events.add(x[1]); continue
            c = icost(x)
            if c > budget + s.cfg['slack'] and not (c > 20 and budget >= 12): return
            n0 = s.e.n
            s.fill.popleft(); s.emit1(x); budget -= max(c, 4 * (s.e.n - n0))
    def gap(s, n0, G):
        s.run_fill(G - 4 * (s.e.n - n0))
    def pace(s, dma, left):
        if not dma: s.pacc = s.cfg.get('pacc0', 0.5); return
        s.pacc += len(dma) / max(left, 1)
        n = int(s.pacc + 1e-9); s.pacc -= n
        for _ in range(min(n, len(dma))): dma.popleft()()
        if not dma: s.pacc = s.cfg.get('pacc0', 0.5)
    def atom(s, lst): return Atom(lst)
    def capture(s, fn):
        rec = []
        old = s.I
        s.I = lambda t, tag=None: rec.append((t, tag) if tag else t)
        fn()
        s.I = old
        out = []; i = 0
        txt = lambda x: x[0] if isinstance(x, tuple) else x
        while i < len(rec):
            t = txt(rec[i])
            if t.startswith(('s_cmp', 's_bitcmp')):
                j = i + 1
                while j < len(rec) and txt(rec[j]).startswith('s_cselect'): j += 1
                out.append(Atom(rec[i:j])); i = j
            elif t.startswith('v_cmp') and ' vcc,' in t:
                j = i + 1
                while j < len(rec) and txt(rec[j]).startswith('v_cndmask') and txt(rec[j]).endswith('vcc'): j += 1
                assert j > i + 1, t
                out.append(Atom(rec[i:j])); i = j
            else: out.append(rec[i]); i += 1
        return out
    def until(s, ev):
        while ev not in s.events:
            assert s.fill, ev
            x = s.fill[0]
            if isctl(x, 'gate'): assert x[1] in s.events, (ev, x)
            s.run_fill(64)
    def drain(s):
        while s.fill:
            x = s.fill[0]
            if isctl(x, 'gate'): assert x[1] in s.events, x
            s.run_fill(10**9)
    def addr(s, reg, slot):
        h = slot >> 1
        if s.half.get(reg, 0) != h:
            s.I(f'v_add_u32 v{reg}, {HALF}, v{reg}' if h else f'v_subrev_u32 v{reg}, {HALF}, v{reg}')
            s.half[reg] = h
        return (slot & 1) * SLOT
    def barrier(s, name, wait_tag=None):
        e = s.e
        s.stamp('pre' + name)
        if wait_tag: e.wait_tag(wait_tag)
        e.barrier()
        s.events.add(name)
        s.stamp(name)
        s.flush_stamps()
    def rd_x(s, st, ks, t):
        a = ((4 * st + ks) * 2 + t) * 4
        def f():
            o = s.addr(vXA + ks, st & 3)
            s.I(f'ds_read_b128 a[{a}:{a+3}], v{vXA+ks} offset:{o+4096*t}')
        return [f]
    def rd_S(s, st, ks, dst):
        def f():
            o = s.addr(vSS + ks, st & 3)
            s.I(f'ds_read_b128 v[{dst}:{dst+3}], v{vSS+ks} offset:{o}')
        return [f]
    def rd_W(s, slot, off, dst):
        def f1():
            o = s.addr(vG, slot)
            s.I(f'ds_read_b64_tr_b16 v[{dst}:{dst+1}], v{vG} offset:{o+off}')
        def f2():
            o = s.addr(vG, slot)
            s.I(f'ds_read_b64_tr_b16 v[{dst+2}:{dst+3}], v{vG} offset:{o+off+512}')
        return [f1, f2]
    def mkdma(s, ops, tag):
        out = []
        for pre, ins in ops:
            def f(pre=pre, ins=ins):
                for p in pre: s.I(p)
                s.I(ins, tag)
            out.append(f)
        return out
    def dma_list(s, st):
        ops = []
        slot = (st & 3) * SLOT
        if st < 8:
            pre = [f's_add_u32 s{sKa}, s{sOff}, {st}', f's_and_b32 s{sKa}, s{sKa}, 7', f's_lshl_b32 s{sKb}, s{sKa}, 7',
                   f's_add_u32 s{sKc}, s{sXo}, s{sKb}', f's_add_u32 m0, s{sW12}, {slot}']
            for A in range(4):
                ops.append((pre if A == 0 else [], f'buffer_load_dwordx4 v{vDX+A}, s[{sX}:{sX+3}], s{sKc} offen offset:{1024*A} lds'))
            pre = [f's_add_u32 s{sKc}, s{sSo}, s{sKb}', f's_add_u32 m0, s{sW11}, {slot+16384}']
            for i in range(2):
                ops.append((pre if i == 0 else [], f'buffer_load_dwordx4 v{vDS+i}, s[{sSB}:{sSB+3}], s{sKc} offen offset:{1024*i} lds'))
            pre = [f's_mul_i32 s{sKc}, s{sKa}, {WCH}', f's_add_u32 s{sKc}, s{sKc}, s{sFo}', f's_add_u32 m0, s{sW11}, {slot+24576}']
            for i in range(2):
                ops.append((pre if i == 0 else [], f'buffer_load_dwordx4 v{vDF+i}, s[{sW1}:{sW1+3}], s{sKc} offen offset:{1024*i} lds'))
        else:
            p = (st - 8) >> 1; vs = st & 1
            srd = sW1 if p == 1 else sW3
            line = 128 if p >= 1 else 0
            pre = [f's_add_u32 s{sKa}, s{sOff}, s{sw}', f's_add_u32 s{sKa}, s{sKa}, {4*vs}', f's_and_b32 s{sKa}, s{sKa}, 7',
                   f's_mul_i32 s{sKc}, s{sKa}, {WCH}', f's_add_u32 s{sKc}, s{sKc}, s{sSo2}']
            if line: pre.append(f's_add_u32 s{sKc}, s{sKc}, {line}')
            pre.append(f's_add_u32 m0, s{sW13}, {slot}')
            for i in range(4):
                ops.append((pre if i == 0 else [], f'buffer_load_dwordx4 v{vDF+i}, s[{srd}:{srd+3}], s{sKc} offen offset:{1024*i} lds'))
            pre = [f's_add_u32 s{sKc}, s{sKc}, {32*WROW}', f's_add_u32 m0, s{sW13}, {slot+4096}']
            for i in range(4):
                ops.append((pre if i == 0 else [], f'buffer_load_dwordx4 v{vDF+i}, s[{srd}:{srd+3}], s{sKc} offen offset:{1024*i} lds'))
        return s.mkdma(ops, f'D{st}')
    def dma_csc(s):
        ops = []
        nl = 2 if s.typ == 'H' else 1
        for X in range(nl):
            pre = [f's_mul_i32 s{sKc}, s{sRho}, {WCH}', f's_add_u32 s{sKc}, s{sKc}, s{sFo}']
            if X: pre.append(f's_add_u32 s{sKc}, s{sKc}, 128')
            pre.append(f's_add_u32 m0, s{sW11}, {L_CSC + X*8192}')
            for i in range(2):
                ops.append((pre if i == 0 else [], f'buffer_load_dwordx4 v{vDF+i}, s[{sCSC}:{sCSC+3}], s{sKc} offen offset:{1024*i} lds'))
        return s.mkdma(ops, 'CSC')

    XR, SR, PR, NP = 96, 104, 108, 114
    SV = 152
    def inter(s, vms, alus, per):
        alus = deque(alus)
        for f in vms:
            f()
            bud = per
            while alus and bud > 0:
                x = alus.popleft(); n0 = s.e.n; s.emit1(x); bud -= max(icost(x), 4 * (s.e.n - n0))
        while alus: s.emit1(alus.popleft())
    def prologue(s):
        e = s.e; I = s.I; typ = s.typ; cfg = s.cfg
        a, b, c, d = 240, 241, 242, 243
        XR, SR, PR, NP = s.XR, s.SR, s.PR, s.NP
        s.stamp('karg')
        I(f's_mov_b64 s[{sX}:{sX+1}], s[{kX}:{kX+1}]')
        I(f's_mov_b64 s[{sDBG}:{sDBG+1}], s[{kDbg}:{kDbg+1}]')
        Ln = s.lab('nn')
        I(f's_or_b32 s{sTmp2}, s2, s{sw}'); I(f's_cmp_eq_u32 s{sTmp2}, 0'); e.raw(f's_cbranch_scc0 {Ln}')
        I(f's_or_b32 s{sTmp}, s{sSB}, 1')
        I(f'v_mov_b32 v{a}, s{sTmp}'); I(f'v_lshlrev_b32 v{b}, 10, v{vL}')
        I(f'buffer_store_dword v{a}, v{b}, s[{sDBG}:{sDBG+3}], 0 offen sc1')
        e.label(Ln)
        I(f'buffer_load_dwordx4 v[{XR}:{XR+3}], v{vHB}, s[{sX}:{sX+3}], s{sGa} offen', 'XR')
        I(f'buffer_load_dwordx4 v[{XR+4}:{XR+7}], v{vHB}, s[{sX}:{sX+3}], s{sGa} offen offset:1024', 'XR')
        I(f's_mov_b64 s[{sW1}:{sW1+1}], s[{kW1}:{kW1+1}]')
        I(f's_cmp_eq_u32 s{sCp}, 0'); I(f's_cselect_b64 s[{sSB}:{sSB+1}], s[{kBre}:{kBre+1}], s[{kBim}:{kBim+1}]')
        I(f's_bitcmp1_b32 s{sR}, 2'); I(f's_cselect_b64 s[{sTmp}:{sTmp+1}], s[{kBim}:{kBim+1}], s[{kBre}:{kBre+1}]')
        I(f'global_load_dwordx4 v[{SR}:{SR+3}], v{SR}, s[{sTmp}:{sTmp+1}]', 'SR')
        for k, src in enumerate((kLre, kLim, kLdt)): I(f'global_load_ushort v{PR+k}, v{PR+3}, s[{src}:{src+1}]', 'PR')
        I(f's_mov_b64 s[{sWS}:{sWS+1}], s[{kWs}:{kWs+1}]')
        I(f's_mov_b64 s[{sW3}:{sW3+1}], s[{kW3}:{kW3+1}]')
        I(f's_and_b32 s{sTmp}, s{sR}, 1'); I(f's_cmp_eq_u32 s{sTmp}, 0'); I(f's_cselect_b64 s[{sCSC}:{sCSC+1}], s[{kW1}:{kW1+1}], s[{kW3}:{kW3+1}]')
        s.stamp('q0')
        pe = s.capture(s.p2_srd) + s.capture(s.p2_early)
        s.inter(s.dma_list(0), pe + s.s_setup(), cfg.get('per0', 56))
        s.stamp('q1')
        I(f's_lshr_b32 s{sGa}, s{sGa}, 7'); I(f's_add_u32 s{sGa}, s{sGa}, {WS_STATS}')
        I(f'v_mov_b32 v{NP+1}, 0')
        def np_():
            I(f'buffer_load_dword v{NP}, v{NP+1}, s[{sDBG}:{sDBG+3}], 0 offen sc1', 'NP')
        e.wait_tag('XR')
        s.stamp('q2')
        st_ = s.capture(s.stats_x); ss_ = s.capture(s.stats_s)
        s.inter([np_] + s.dma_list(1) + s.pf1_list(), st_ + ss_, cfg.get('per1', 56))
        s.stamp('q4')
        s.barrier('B0', 'D0')

    def pf1_list(s):
        m = s.cfg.get('pf1', 0); I = s.I; out = []
        va, vb = 244, 245
        if m & 1:
            def fx():
                I(f'v_lshlrev_b32 v{va}, 3, v{vHB}')
                I(f's_lshl_b32 s{sKa}, s{sR}, 17'); I(f's_lshl_b32 s{sKb}, s{sU}, 15'); I(f's_add_u32 s{sKa}, s{sKa}, s{sKb}')
                I(f's_lshl_b32 s{sKb}, s{sw}, 13'); I(f's_add_u32 s{sKa}, s{sKa}, s{sKb}')
                I(f'buffer_load_dword v{vDUM}, v{va}, s[{sX}:{sX+3}], s{sKa} offen', 'PF')
            out.append(fx)
        if m & 2:
            def fs():
                I(f'v_lshlrev_b32 v{vb}, 3, v{vHB}'); I(f'v_mov_b32 v{va}, {OOB}')
                I(f'v_cndmask_b32 v{vb}, v{vb}, v{va}, s[{sMhi}:{sMhi+1}]')
                I(f's_lshl_b32 s{sKa}, s{sC}, 15'); I(f's_lshl_b32 s{sKb}, s{sRho}, 12'); I(f's_add_u32 s{sKa}, s{sKa}, s{sKb}')
                I(f's_cmp_eq_u32 s{sTp}, 0'); I(f's_cselect_b32 s{sKa}, s{sKa}, {OOB}')
                I(f'buffer_load_dword v{vDUM}, v{vb}, s[{sSB}:{sSB+3}], s{sKa} offen', 'PF')
            out.append(fs)
        if m & 4:
            def fw():
                I(f'v_mul_u32_u24 v{va}, {WROW}, v{vL}')
                I(f's_cmp_eq_u32 s{sCp}, 0'); I(f's_cselect_b64 s[{sBad}:{sBad+1}], s[{sW1}:{sW1+1}], s[{sW3}:{sW3+1}]')
                I(f's_mov_b32 s{sBad+2}, {512*1792*2}'); I(f's_mov_b32 s{sBad+3}, 0x00020000')
                I(f's_mul_i32 s{sKa}, s{sRho}, {WCH}'); I(f's_add_u32 s{sKa}, s{sKa}, s{sSo2}')
                I(f's_add_u32 s{sKb}, s{sKa}, 128')
                if s.typ == 'L': I(f's_mov_b32 s{sKb}, {OOB}')
                I(f's_cmp_eq_u32 s{sTp}, 0'); I(f's_cselect_b32 s{sKa}, s{sKb}, s{sKa}')
                I(f'buffer_load_dword v{vDUM}, v{va}, s[{sBad}:{sBad+3}], s{sKa} offen', 'PF')
            out.append(fw)
        return out
    def pf2_item(s, unit, k):
        I = s.I
        def f():
            I(f'v_lshlrev_b32 v{vPo}, 3, v{vHB}')
            I(f's_mul_i32 s{sKa}, s{sRho}, 3'); I(f's_add_u32 s{sKa}, s{sKa}, s{sU}'); I(f's_lshl_b32 s{sKa}, s{sKa}, 2'); I(f's_add_u32 s{sKa}, s{sKa}, s{sw}')
            if k % 3:
                I(f's_add_u32 s{sKa}, s{sKa}, {32 * (k % 3)}'); I(f's_sub_u32 s{sKb}, s{sKa}, 96'); I(f's_cmp_ge_u32 s{sKa}, 96'); I(f's_cselect_b32 s{sKa}, s{sKb}, s{sKa}')
            if unit in ('r', 'i'):
                I(f's_lshl_b32 s{sKa}, s{sKa}, 13'); srd = sCRE if unit == 'r' else sCIM
            else:
                j = unit
                I(f's_lshr_b32 s{sKb}, s{sKa}, 3'); I(f's_mul_i32 s{sKb}, s{sKb}, {7*65536}'); I(f's_and_b32 s{sKa}, s{sKa}, 7'); I(f's_lshl_b32 s{sKa}, s{sKa}, 13')
                I(f's_add_u32 s{sKa}, s{sKa}, s{sKb}')
                if j: I(f's_add_u32 s{sKa}, s{sKa}, {j*65536}')
                srd = sW2
            I(f'buffer_load_dword v{vDUM}, v{vPo}, s[{srd}:{srd+3}], s{sKa} offen', 'PF')
        return f
    def pfL(s, pos):
        I = s.I; out = []
        va, vb = 100, 101
        for unit in s.cfg.get('pfL', {}).get(pos, ()):
            def f(unit=unit):
                if not getattr(s, 'pfl_init', False):
                    s.pfl_init = True
                    I(f'v_lshlrev_b32 v{va}, 3, v{vHB}')
                    I(f'v_lshrrev_b32 v{vb}, 2, v{vL}'); I(f'v_lshlrev_b32 v{vb}, 10, v{vb}'); I(f'v_and_b32 v{va+2}, 3, v{vL}'); I(f'v_lshl_add_u32 v{vb}, v{va+2}, 8, v{vb}')
                I(f's_lshl_b32 s{sKa}, s{sRho}, 2'); I(f's_add_u32 s{sKa}, s{sKa}, s{sw}')
                if isinstance(unit, str):
                    I(f's_lshl_b32 s{sKa}, s{sKa}, 14')
                    if unit[1] == '1': I(f's_add_u32 s{sKa}, s{sKa}, 128')
                    srd = sCRE if unit[0] == 'r' else sCIM; v = vb
                else:
                    I(f's_lshr_b32 s{sKb}, s{sKa}, 3'); I(f's_mul_i32 s{sKb}, s{sKb}, {7*65536}'); I(f's_and_b32 s{sKa}, s{sKa}, 7'); I(f's_lshl_b32 s{sKa}, s{sKa}, 13')
                    I(f's_add_u32 s{sKa}, s{sKa}, s{sKb}')
                    if unit: I(f's_add_u32 s{sKa}, s{sKa}, {unit*65536}')
                    srd = sW2; v = va
                I(f'buffer_load_dword v{vDUM}, v{v}, s[{srd}:{srd+3}], s{sKa} offen', 'PF')
            out.append(f)
        return out
    def pre_karg(s):
        I = s.I; a = 240
        SR, PR = s.SR, s.PR
        I(f's_lshl_b32 s{sTmp}, s{sR}, 7'); I(f's_lshl_b32 s{sTmp2}, s{sC}, 3'); I(f's_add_u32 s{sTmp}, s{sTmp}, s{sTmp2}')
        I(f's_lshl_b32 s{sTmp2}, s{sw}, 1'); I(f's_add_u32 s{sTmp}, s{sTmp}, s{sTmp2}')
        I(f's_lshl_b32 s{sGa}, s{sTmp}, 10')
        I(f's_lshr_b32 s{sTmp3}, s{sR}, 3'); I(f's_lshl_b32 s{sTmp3}, s{sTmp3}, 4')
        I(f's_and_b32 s{sTmp}, s{sR}, 3'); I(f's_lshl_b32 s{sTmp}, s{sTmp}, 2'); I(f's_add_u32 s{sTmp3}, s{sTmp3}, s{sTmp}')
        I(f's_lshl_b32 s{sTmp}, s{sC}, 5'); I(f's_add_u32 s{sTmp3}, s{sTmp3}, s{sTmp}'); I(f's_add_u32 s{sTmp3}, s{sTmp3}, s{sw}')
        I(f's_lshl_b32 s{sTmp3}, s{sTmp3}, 10'); I(f'v_add_u32 v{SR}, s{sTmp3}, v{vHB}')
        I(f's_lshl_b32 s{sGb}, s{sR}, 2'); I(f's_add_u32 s{sGb}, s{sGb}, s{sw}'); I(f's_lshl_b32 s{sGb}, s{sGb}, 3')
        I(f's_lshl_b32 s{sTmp3}, s{sC}, 9'); I(f's_add_u32 s{sGb}, s{sGb}, s{sTmp3}'); I(f's_add_u32 s{sGb}, s{sGb}, {WS_CSS}')
        I(f'v_and_b32 v{a}, 31, v{vL}'); I(f'v_lshlrev_b32 v{a}, 1, v{a}')
        I(f's_lshl_b32 s{sTmp}, s{sC}, 6'); I(f'v_add_u32 v{PR+3}, s{sTmp}, v{a}')

    def p2_srd(s):
        I = s.I
        for dst, src, n in ((sW2, kW2, 1792*512*2), (sCRE, kCre, 512*512*2), (sCIM, kCim, 512*512*2), (sOUT, kOut, 2048*512*4)):
            I(f's_mov_b64 s[{dst}:{dst+1}], s[{src}:{src+1}]'); I(f's_mov_b32 s{dst+2}, {n}'); I(f's_mov_b32 s{dst+3}, 0x00020000')
    def p2_early(s):
        I = s.I; a, b, c, d = 240, 241, 242, 243
        I(f's_and_b32 s{sTmp}, s2, 7'); I(f's_lshl_b32 s{sTmp}, s{sTmp}, 2'); I(f's_add_u32 s{sTmp}, s{sTmp}, s{sU}')
        I(f's_mul_i32 s{sTmp2}, s{sTmp}, {2*TSTRIDE}')
        I(f's_mul_i32 s{sBE}, s{sw}, 28672'); I(f's_add_u32 s{sBE}, s{sBE}, s{sTmp2}')
        I(f's_lshl_b32 s{sBY}, s{sw}, 14'); I(f's_add_u32 s{sBY}, s{sBY}, s{sTmp2}'); I(f's_add_u32 s{sBY}, s{sBY}, 114688')
        sDt = sRho
        if s.cfg.get('dtx', 0):
            sDt = sTmp3; I(f's_xor_b32 s{sDt}, s{sRho}, {s.cfg["dtx"]}')
        I(f's_mul_i32 s{sRowW}, s{sw}, {7*65536}'); I(f's_lshl_b32 s{sDko}, s{sDt}, 7'); I(f's_add_u32 s{sRowW}, s{sRowW}, s{sDko}')
        I(f's_lshl_b32 s{sCrow}, s{sDt}, 16'); I(f's_lshl_b32 s{sTmp2}, s{sw}, 8'); I(f's_add_u32 s{sCrow}, s{sCrow}, s{sTmp2}')
        I(f's_lshl_b32 s{sFlC}, s{sTmp}, 2'); I(f's_add_u32 s{sFlC}, s{sFlC}, s{sw}'); I(f's_lshl_b32 s{sFlC}, s{sFlC}, 7'); I(f's_add_u32 s{sFlC}, s{sFlC}, {WS_FL + s.cfg.get("floff", 0)}')
        I(f's_lshl_b32 s{sTmp}, s{sTmp}, 6'); I(f's_lshl_b32 s{sTmp2}, s{sw}, 4'); I(f's_add_u32 s{sTmp}, s{sTmp}, s{sTmp2}')
        I(f's_lshl_b32 s{sXb}, s{sTmp}, 10'); I(f's_add_u32 s{sXb}, s{sXb}, s{sDko}')
        I(f's_lshl_b32 s{sOb}, s{sXb}, 1')
        I(f's_lshl_b32 s{sSb}, s{sTmp}, 3'); I(f's_add_u32 s{sSb}, s{sSb}, {WS_STATS}')
        I(f's_lshl_b32 s{sFlP}, s{sR}, 1'); I(f's_add_u32 s{sFlP}, s{sFlP}, s{sTp}'); I(f's_lshl_b32 s{sFlP}, s{sFlP}, 2'); I(f's_add_u32 s{sFlP}, s{sFlP}, s{sG}')
        I(f's_lshl_b32 s{sFlP}, s{sFlP}, 7'); I(f's_lshl_b32 s{sTmp}, s{sU}, 1'); I(f's_add_u32 s{sTmp}, s{sTmp}, s{sCp}'); I(f's_lshl_b32 s{sTmp}, s{sTmp}, 2')
        I(f's_add_u32 s{sFlP}, s{sFlP}, s{sTmp}'); I(f's_add_u32 s{sFlP}, s{sFlP}, {WS_FL + s.cfg.get("floff", 0)}')
        I(f'v_bfe_u32 v{a}, v{vL}, 4, 1'); I(f'v_lshlrev_b32 v{a}, 2, v{a}'); I(f'v_and_b32 v{b}, 7, v{vL}'); I(f'v_xor_b32 v{a}, v{a}, v{b}')
        I(f'v_lshrrev_b32 v{c}, 3, v{vL}'); I(f'v_lshlrev_b32 v{c}, 10, v{c}'); I(f'v_lshl_add_u32 v{vW}, v{a}, 4, v{c}')
        for i in range(1, 4): I(f'v_add_u32 v{vW+i}, {7168*i}, v{vW}')
        I(f'v_lshrrev_b32 v{a}, 5, v{vL}'); I(f'v_lshlrev_b32 v{a}, 2, v{a}'); I(f'v_bfe_u32 v{c}, v{vL}, 2, 2'); I(f'v_add_u32 v{a}, v{a}, v{c}')
        I(f'v_lshlrev_b32 v{a}, 7, v{a}'); I(f'v_lshrrev_b32 v{c}, 1, v{c}'); I(f'v_lshlrev_b32 v{c}, 6, v{c}'); I(f'v_add_u32 v{a}, v{a}, v{c}')
        I(f'v_bfe_u32 v{c}, v{vL}, 4, 1'); I(f'v_lshl_add_u32 v{a}, v{c}, 5, v{a}'); I(f'v_and_b32 v{c}, 3, v{vL}'); I(f'v_lshl_add_u32 v{a}, v{c}, 3, v{a}')
        I(f'v_add_u32 v{vA0}, s{sW13}, v{a}'); I(f'v_xor_b32 v{vA1}, 64, v{vA0}')
        I(f'v_add_u32 v{vB1}, {TSTRIDE}, v{vHB}')
        I(f'v_and_b32 v{vPl}, 31, v{vL}'); I(f'v_lshlrev_b32 v{vPl}, 2, v{vPl}')

    def lds_addrs(s):
        I = s.I; a, b, c, d = 240, 241, 242, 243
        I(f'v_and_b32 v{a}, 31, v{vL}'); I(f'v_bfe_u32 v{b}, v{vL}, 1, 3'); I(f'v_lshrrev_b32 v{c}, 5, v{vL}'); I(f'v_xor_b32 v{b}, v{b}, v{c}')
        I(f'v_lshlrev_b32 v{b}, 4, v{b}')
        I(f'v_lshl_add_u32 v{d}, v{a}, 7, v{b}')
        I(f's_lshl_b32 s{sTmp}, s{sTp}, 13')
        I(f'v_add_u32 v{vXA}, s{sTmp}, v{d}')
        for k in range(1, 4): I(f'v_xor_b32 v{vXA+k}, {32*k}, v{vXA}')
        I(f'v_lshrrev_b32 v{c}, 3, v{a}'); I(f'v_lshlrev_b32 v{c}, 11, v{c}'); I(f'v_and_b32 v{d}, 7, v{a}'); I(f'v_lshl_add_u32 v{c}, v{d}, 7, v{c}')
        I(f'v_add_u32 v{c}, v{c}, v{b}'); I(f's_lshl_b32 s{sTmp}, s{sCp}, 10'); I(f's_add_u32 s{sTmp}, s{sTmp}, 16384')
        I(f'v_add_u32 v{vSS}, s{sTmp}, v{c}')
        for k in range(1, 4): I(f'v_xor_b32 v{vSS+k}, {32*k}, v{vSS}')
        I(f'v_lshrrev_b32 v{b}, 5, v{vL}'); I(f'v_bfe_u32 v{c}, v{vL}, 2, 2'); I(f'v_lshl_add_u32 v{b}, v{b}, 3, v{c}')
        I(f'v_and_b32 v{d}, 3, v{vL}'); I(f'v_lshlrev_b32 v{d}, 3, v{d}'); I(f'v_lshl_add_u32 v{d}, v{b}, 7, v{d}')
        I(f'v_bfe_u32 v{a}, v{vL}, 4, 1'); I(f'v_lshl_add_u32 v{d}, v{a}, 5, v{d}')
        I(f'v_lshrrev_b32 v{c}, 1, v{c}'); I(f'v_lshlrev_b32 v{c}, 6, v{c}'); I(f'v_add_u32 v{d}, v{d}, v{c}')
        I(f's_lshl_b32 s{sTmp}, s{sCp}, 6'); I(f'v_xor_b32 v{vG}, s{sTmp}, v{d}')
        I(f's_lshl_b32 s{sTmp}, s{sTp}, 6'); I(f'v_xor_b32 v{vCA}, s{sTmp}, v{d}')
        I(f's_lshl_b32 s{sTmp}, s{sCp}, 13'); I(f's_cmp_eq_u32 s{sU}, 3'); I(f's_cselect_b32 s{sTmp}, 0, s{sTmp}'); I(f's_add_u32 s{sTmp}, s{sTmp}, {L_CSC}')
        I(f'v_add_u32 v{vCA}, s{sTmp}, v{vCA}')
        I(f's_mov_b32 s{sMhi}, 0'); I(f's_mov_b32 s{sMhi+1}, -1')
        I(f's_mov_b32 s{sModd}, 0xffff0000'); I(f's_mov_b32 s{sModd+1}, 0xffff0000')
        I(f's_lshl_b32 s{sTmp}, s{sR}, 2'); I(f's_lshl_b32 s{sTmp2}, s{sTp}, 1'); I(f's_add_u32 s{sTmp}, s{sTmp}, s{sTmp2}')
        I(f's_mul_i32 s{sTg0}, s{sTmp}, {TSTRIDE}')
        I(f's_lshl_b32 s{sTmp}, s{sSo2}, 5')
        I(f's_lshl_b32 s{sTmp2}, s{sCp}, 11'); I(f's_add_u32 s{sTmp}, s{sTmp}, s{sTmp2}'); I(f's_add_u32 s{sHF}, s{sTg0}, s{sTmp}')
        z = 116
        for k in range(4): I(f'v_mov_b32 v{z+k}, 0')
        I(f'v_add_u32 v{a}, {L_TOTZ}, v{vHB}'); I(f'ds_write_b128 v{a}, v[{z}:{z+3}]')

    def tab(s):
        I = s.I; PR = s.PR
        n, u, v_, lr, li, t0, t1, t2, t3, wa, un, vn = range(116, 128)
        P = 148
        I(f'v_lshrrev_b32 v{t0}, 5, v{vL}')
        I(f's_lshl_b32 s{sTmp}, s{sw}, 1'); I(f's_lshl_b32 s{sTmp}, 8, s{sTmp}')
        I(f'v_mul_u32_u24 v{n}, s{sTmp}, v{t0}')
        I(f's_cmp_eq_u32 s{sw}, 3'); I(f's_cselect_b64 s[{sBad}:{sBad+1}], -1, 0'); I(f's_cselect_b32 s{sMsel}, -1, 0')
        I(f's_mov_b32 s{sMsel+1}, 0')
        I(f'v_mul_u32_u24 v{t1}, 511, v{t0}'); I(f'v_add_u32 v{t1}, 1, v{t1}')
        I(f'v_cndmask_b32 v{t1}, v{n}, v{t1}, s[{sBad}:{sBad+1}]'); I(f'v_cvt_f32_u32 v{t1}, v{t1}')
        I(f's_lshl_b32 s{sTmp}, s{sTmp}, 1'); I(f'v_add_u32 v{n}, s{sTmp}, v{n}')
        I(f'v_cndmask_b32 v{n}, v{n}, 1, s[{sBad}:{sBad+1}]'); I(f'v_cvt_f32_u32 v{n}, v{n}')
        I(f'v_bfe_u32 v{wa}, v{vL}, 4, 1'); I(f'v_lshlrev_b32 v{wa}, 11, v{wa}'); I(f'v_lshl_add_u32 v{wa}, v{t0}, 7, v{wa}')
        I(f'v_and_b32 v{t0}, 15, v{vL}'); I(f'v_lshl_add_u32 v{wa}, v{t0}, 3, v{wa}')
        I(f's_lshl_b32 s{sTmp}, s{sw}, 9'); I(f's_add_u32 s{sTmp}, s{sTmp}, {L_TAB}'); I(f'v_add_u32 v{wa}, s{sTmp}, v{wa}')
        I(f'v_lshlrev_b32 v{lr}, 16, v{PR}'); I(f'v_lshlrev_b32 v{li}, 16, v{PR+1}'); I(f'v_lshlrev_b32 v{t0}, 16, v{PR+2}')
        I(f'v_mul_f32 v{t0}, {LOG2E:#x}, v{t0}'); I(f'v_exp_f32 v{t0}, v{t0}')
        I(f'v_cvt_pk_bf16_f32 v{t0}, v{t0}, v{t0}'); I(f'v_lshlrev_b32 v{t0}, 16, v{t0}')
        I(f'v_mul_f32 v{u}, v{t0}, v{lr}'); I(f'v_mul_f32 v{v_}, v{t0}, v{li}')
        I(f'v_mul_f32 v{u}, {LOG2E:#x}, v{u}'); I(f'v_mul_f32 v{v_}, {INV2PI:#x}, v{v_}')
        for j, nn in ((0, t1), (1, n)):
            I(f'v_mul_f32 v{un}, v{nn}, v{u}'); I(f'v_mul_f32 v{vn}, v{nn}, v{v_}')
            I(f'v_exp_f32 v{un}, v{un}'); I(f'v_fract_f32 v{vn}, v{vn}')
            I(f'v_cos_f32 v{t0}, v{vn}'); I(f'v_sin_f32 v{t2}, v{vn}')
            I(f'v_mul_f32 v{P}, v{un}, v{t0}'); I(f'v_mul_f32 v{P+1}, v{un}, v{t2}')
            if j == 1:
                I(f'v_add_f32 v{t0}, -1.0, v{P}')
                I(f'v_mul_f32 v{t1}, v{lr}, v{lr}'); I(f'v_fma_f32 v{t1}, v{li}, v{li}, v{t1}'); I(f'v_rcp_f32 v{t1}, v{t1}')
                I(f'v_mul_f32 v{t2}, v{t0}, v{lr}'); I(f'v_fma_f32 v{t2}, v{P+1}, v{li}, v{t2}')
                I(f'v_mul_f32 v{t3}, v{P+1}, v{lr}'); I(f'v_fma_f32 v{t3}, -v{t0}, v{li}, v{t3}')
                I(f'v_add_f32 v{t1}, v{t1}, v{t1}')
                I(f'v_mul_f32 v{t2}, v{t2}, v{t1}'); I(f'v_mul_f32 v{t3}, v{t3}, v{t1}')
                I(f'v_cndmask_b32 v{P}, v{P}, v{t2}, s[{sMsel}:{sMsel+1}]'); I(f'v_cndmask_b32 v{P+1}, v{P+1}, v{t3}, s[{sMsel}:{sMsel+1}]')
            I(f'ds_write_b64 v{wa}, v[{P}:{P+1}] offset:{256*j}')

    def stats_x(s):
        I = s.I; XR = s.XR; SV = s.SV
        F = 128
        for r in range(2):
            for k in range(4):
                I(f'v_lshlrev_b32 v{F+8*r+2*k}, 16, v{XR+4*r+k}'); I(f'v_and_b32 v{F+8*r+2*k+1}, 0xffff0000, v{XR+4*r+k}')
        pa, pb, t0, t1 = 144, 145, 146, 147
        def reduce2(pa, pb):
            I(f'v_permlane32_swap_b32 v{pa}, v{pb}'); I(f'v_add_f32 v{pa}, v{pa}, v{pb}')
            I(f'v_mov_b32 v{pb}, v{pa}'); I(f'v_permlane16_swap_b32 v{pa}, v{pb}'); I(f'v_add_f32 v{pa}, v{pa}, v{pb}')
            for k in (8, 4, 2, 1): I(f'v_add_f32_dpp v{pa}, v{pa}, v{pa} row_ror:{k} row_mask:0xf bank_mask:0xf')
            I(f'v_mov_b32 v{pb}, v{pa}'); I(f'v_permlane32_swap_b32 v{pa}, v{pb}')
        for k in range(1, 8):
            for r, p in ((0, pa), (1, pb)):
                if k == 1: I(f'v_add_f32 v{p}, v{F+8*r}, v{F+8*r+1}')
                else: I(f'v_add_f32 v{p}, v{p}, v{F+8*r+k}')
        reduce2(pa, pb)
        I(f'v_mul_f32 v{t0}, 0x3b000000, v{pa}'); I(f'v_mul_f32 v{t1}, 0x3b000000, v{pb}')
        for r, m in ((0, t0), (1, t1)):
            for k in range(8): I(f'v_sub_f32 v{F+8*r+k}, v{F+8*r+k}, v{m}')
        for k in range(8):
            for r, p in ((0, pa), (1, pb)):
                if k == 0: I(f'v_mul_f32 v{p}, v{F+8*r}, v{F+8*r}')
                else: I(f'v_fmac_f32 v{p}, v{F+8*r+k}, v{F+8*r+k}')
        reduce2(pa, pb)
        I(f'v_cndmask_b32 v{t0}, v{t0}, v{t1}, s[{sMhi}:{sMhi+1}]')
        I(f'v_cndmask_b32 v{pa}, v{pa}, v{pb}, s[{sMhi}:{sMhi+1}]')
        I(f'v_mul_f32 v{pa}, 0x3b000000, v{pa}')
        I(f'v_cvt_pk_bf16_f32 v{pa}, v{pa}, v{pa}'); I(f'v_lshlrev_b32 v{pa}, 16, v{pa}')
        I(f'v_add_f32 v{pa}, 0x3727c5ac, v{pa}')
        I(f'v_cvt_pk_bf16_f32 v{pa}, v{pa}, v{pa}'); I(f'v_lshlrev_b32 v{pa}, 16, v{pa}')
        I(f'v_sqrt_f32 v{pa}, v{pa}')
        I(f'v_cvt_pk_bf16_f32 v{SV}, v{pa}, v{t0}')
        I(f'v_and_b32 v{t1}, 31, v{vL}'); I(f'v_lshrrev_b32 v{t0}, 2, v{vL}'); I(f'v_mov_b32 v{pb}, {OOB}')
        I(f'v_cmp_eq_u32 vcc, 0, v{t1}'); I(f'v_cndmask_b32 v{SV+4}, v{pb}, v{t0}, vcc')
    def stats_s(s):
        I = s.I; SR = s.SR; SV = s.SV
        F = 158
        F = 64; q0, q1, ob = 72, 73, 74
        for k in range(4):
            I(f'v_lshlrev_b32 v{F+2*k}, 16, v{SR+k}'); I(f'v_and_b32 v{F+2*k+1}, 0xffff0000, v{SR+k}')
        for k in range(4): I(f'v_add_f32 v{F+k}, v{F+k}, v{F+4+k}')
        I(f'v_add_f32 v{F}, v{F}, v{F+2}'); I(f'v_add_f32 v{F+1}, v{F+1}, v{F+3}'); I(f'v_add_f32 v{q0}, v{F}, v{F+1}')
        I(f'v_mov_b32 v{q1}, v{q0}'); I(f'v_permlane32_swap_b32 v{q0}, v{q1}'); I(f'v_add_f32 v{q0}, v{q0}, v{q1}')
        I(f'v_mov_b32 v{q1}, v{q0}'); I(f'v_permlane16_swap_b32 v{q0}, v{q1}'); I(f'v_add_f32 v{q0}, v{q0}, v{q1}')
        for k in (8, 4, 2): I(f'v_add_f32_dpp v{q0}, v{q0}, v{q0} row_ror:{k} row_mask:0xf bank_mask:0xf')
        I(f'v_add_f32_dpp v{SV+2}, v{q0}, v{q0} row_ror:1 row_mask:0xf bank_mask:0xf')
        I(f'v_mov_b32 v{ob}, {OOB}')
        I(f'v_cmp_eq_u32 vcc, 0, v{vL}'); I(f'v_cndmask_b32 v{SV+5}, v{ob}, 0, vcc')

    def pub_prog(s):
        e = s.e; NP = s.NP; SV = s.SV
        Ls = s.lab('nps'); Lr = s.lab('npr')
        def chk():
            e.wait_tag('NP')
            s.I(f'v_readfirstlane_b32 s{sNonce}, v{NP}'); s.I(f's_cmp_eq_u32 s{sNonce}, 0'); e.raw(f's_cbranch_scc1 {Ls}'); e.label(Lr)
        def slow():
            e.label(Ls); e.reset_hazards(); e.vm = []; e.lgk = []
            s.I(f's_mov_b32 s{sSpin}, 0')
            e.label(Ls + 'l'); e.reset_hazards()
            s.I(f'buffer_load_dword v{NP}, v{NP+1}, s[{sDBG}:{sDBG+3}], 0 offen sc1'); e.force_wait('vmcnt(0)')
            s.I(f'v_readfirstlane_b32 s{sNonce}, v{NP}'); s.I(f's_add_u32 s{sSpin}, s{sSpin}, 1')
            s.I(f's_cmp_gt_u32 s{sSpin}, {SPIN}'); e.raw(f's_cbranch_scc1 {Lr}')
            s.I(f's_cmp_eq_u32 s{sNonce}, 0'); e.raw(f's_cbranch_scc1 {Ls}l')
            e.raw('s_nop 4'); e.raw(f's_branch {Lr}')
        s.slow.append(slow)
        return [Fn(chk, 16), f'v_mov_b32 v{SV+1}, s{sNonce}', f'v_mov_b32 v{SV+3}, s{sNonce}', f'v_mov_b32 v{vNon}, s{sNonce}',
                f'buffer_store_dwordx2 v[{SV}:{SV+1}], v{SV+4}, s[{sWS}:{sWS+3}], s{sGa} offen sc1',
                f'buffer_store_dwordx2 v[{SV+2}:{SV+3}], v{SV+5}, s[{sWS}:{sWS+3}], s{sGb} offen sc1']

    def fcs_prog(s):
        AC, FR, ONE, Gq, vo = 96, 112, 128, 132, 134
        ops = [f'v_mov_b32 v{ONE+k}, 0x3f803f80' for k in range(4)]
        for ks in range(4):
            ops += [f'ds_read_b64_tr_b16 v[{FR+4*ks}:{FR+4*ks+1}], v{vCA} offset:{2048*ks}', f'ds_read_b64_tr_b16 v[{FR+4*ks+2}:{FR+4*ks+3}], v{vCA} offset:{2048*ks+512}']
        ops += [f'v_lshlrev_b32 v{vo}, 3, v{vL}', f'v_mov_b32 v{vo+1}, {OOB}', f'v_cndmask_b32 v{vo}, v{vo}, v{vo+1}, s[{sMhi}:{sMhi+1}]',
                f's_and_b32 s{sTmp}, s{sR}, 1', f's_mul_i32 s{sTmp}, s{sTmp}, {28*4096}',
                f's_lshl_b32 s{sTmp2}, s{sSo2}, 5', f's_add_u32 s{sTmp}, s{sTmp}, s{sTmp2}']
        if s.typ == 'H':
            ops += [f's_lshl_b32 s{sTmp2}, s{sCp}, 12', f's_add_u32 s{sTmp}, s{sTmp}, s{sTmp2}']
        ops += [f's_lshl_b32 s{sTmp2}, s{sRho}, 9', f's_add_u32 s{sTmp}, s{sTmp}, s{sTmp2}',
                f's_lshl_b32 s{sTmp2}, s{sTp}, 8', f's_add_u32 s{sTmp}, s{sTmp}, s{sTmp2}', f's_add_u32 s{sGa}, s{sTmp}, {WS_CSF}']
        if s.typ == 'L':
            ops += [s.atom([f's_cmp_eq_u32 s{sCp}, 0', f's_cselect_b32 s{sGa}, s{sGa}, {OOB}'])]
        ops += [f'v_mov_b32 v{Gq+1}, s{sNonce}']
        for ks in range(4):
            ops.append(f'v_mfma_f32_32x32x16_bf16 v[{AC}:{AC+15}], v[{ONE}:{ONE+3}], v[{FR+4*ks}:{FR+4*ks+3}], ' + ('0' if ks == 0 else f'v[{AC}:{AC+15}]'))
        return ops, [f'v_mov_b32 v{Gq}, v{AC}', f'buffer_store_dwordx2 v[{Gq}:{Gq+1}], v{vo}, s[{sWS}:{sWS+3}], s{sGa} offen sc1']

    def tagcheck(s, regs, loads, exp=None):
        e = s.e
        ops = []
        for i, r in enumerate(regs):
            src = f's{sNonce}' if exp is None else f'v{exp[i]}'
            if i == 0: ops.append(f'v_cmp_ne_u32 s[{sBad}:{sBad+1}], {src}, v{r}')
            else:
                ops.append(s.atom([f'v_cmp_ne_u32 vcc, {src}, v{r}', f's_or_b64 s[{sBad}:{sBad+1}], s[{sBad}:{sBad+1}], vcc']))
        Ls = s.lab('slow'); Lr = s.lab('ret')
        def br():
            s.I(f's_cmp_lg_u64 s[{sBad}:{sBad+1}], 0'); e.raw(f's_cbranch_scc1 {Ls}'); e.label(Lr)
        ops.append(Fn(br, 8))
        def slow():
            e.label(Ls); e.reset_hazards(); e.vm = []; e.lgk = []
            s.I(f's_mov_b32 s{sSpin}, 0')
            e.label(Ls + 'l'); e.reset_hazards()
            for x in loads: s.I(x)
            e.force_wait('vmcnt(0)')
            for i, r in enumerate(regs):
                src = f's{sNonce}' if exp is None else f'v{exp[i]}'
                if i == 0: s.I(f'v_cmp_ne_u32 s[{sBad}:{sBad+1}], {src}, v{r}')
                else:
                    s.I(f'v_cmp_ne_u32 vcc, {src}, v{r}'); s.I(f's_or_b64 s[{sBad}:{sBad+1}], s[{sBad}:{sBad+1}], vcc')
            s.I(f's_add_u32 s{sSpin}, s{sSpin}, 1'); s.I(f's_cmp_gt_u32 s{sSpin}, {SPIN}'); e.raw(f's_cbranch_scc1 {Lr}')
            s.I(f's_cmp_lg_u64 s[{sBad}:{sBad+1}], 0'); e.raw(f's_cbranch_scc1 {Ls}l')
            e.raw('s_nop 4'); e.raw(f's_branch {Lr}')
        s.slow.append(slow)
        return ops

    def pi_ops(s, d, t):
        return [f'v_bfe_u32 v{d}, v{vL}, 2, 1', f'v_lshlrev_b32 v{d}, 4, v{d}',
                f'v_and_b32 v{t}, 1, v{vL}', f'v_lshl_add_u32 v{d}, v{t}, 3, v{d}',
                f'v_bfe_u32 v{t}, v{vL}, 3, 2', f'v_lshl_add_u32 v{d}, v{t}, 1, v{d}',
                f'v_bfe_u32 v{t}, v{vL}, 1, 1', f'v_add_u32 v{d}, v{d}, v{t}']

    GA = 136
    def gA_issue(s):
        GA = s.GA; vp, va, vc = GA + 6, GA + 7, GA + 8
        ops = s.pi_ops(vp, va)
        ops += [f'v_lshlrev_b32 v{va}, 3, v{vp}',
                f's_lshl_b32 s{sTmp}, s{sR}, 10', f's_lshl_b32 s{sTmp2}, s{sTp}, 9', f's_add_u32 s{sTmp}, s{sTmp}, s{sTmp2}', f's_add_u32 s{sGa}, s{sTmp}, {WS_STATS}',
                f'v_and_b32 v{vc}, 31, v{vL}', f'v_lshlrev_b32 v{vc}, 3, v{vc}',
                f's_lshl_b32 s{sTmp}, s{sC}, 9', f's_lshl_b32 s{sTmp2}, s{sCp}, 8', f's_add_u32 s{sTmp}, s{sTmp}, s{sTmp2}', f's_add_u32 s{sGb}, s{sTmp}, {WS_CSS}']
        s.glA = [f'buffer_load_dwordx2 v[{GA}:{GA+1}], v{va}, s[{sWS}:{sWS+3}], s{sGa} offen sc1',
                 f'buffer_load_dwordx2 v[{GA+2}:{GA+3}], v{va}, s[{sWS}:{sWS+3}], s{sGa} offen offset:256 sc1',
                 f'buffer_load_dwordx2 v[{GA+4}:{GA+5}], v{vc}, s[{sWS}:{sWS+3}], s{sGb} offen sc1']
        ops += [(x, 'GA') for x in s.glA]
        return ops
    def split3(s, A, t0, t1, t2, o0, o1):
        return [f'v_cvt_pk_bf16_f32 v{t0}, v{A}, v{A}', f'v_and_b32 v{t0}, 0xffff0000, v{t0}',
                f'v_sub_f32 v{t1}, v{A}, v{t0}',
                f'v_cvt_pk_bf16_f32 v{t2}, v{t1}, v{t1}', f'v_and_b32 v{t2}, 0xffff0000, v{t2}',
                f'v_sub_f32 v{t1}, v{t1}, v{t2}',
                f'v_cvt_pk_bf16_f32 v{o1}, v{t1}, 0',
                f'v_lshrrev_b32 v{t0}, 16, v{t0}', f'v_or_b32 v{o0}, v{t0}, v{t2}']
    def gA_proc(s):
        GA = s.GA; vp = GA + 6
        ops = s.tagcheck([GA + 1, GA + 3, GA + 5], s.glA)
        t0, t1, t2, t3, ra = 145, 146, 147, 148, 149
        ops += [f'v_lshlrev_b32 v{ra}, 2, v{vp}', f's_lshl_b32 s{sTmp}, s{sTp}, 8', f's_add_u32 s{sTmp}, s{sTmp}, {L_RS}', f'v_add_u32 v{ra}, s{sTmp}, v{ra}']
        ops += [f's_mov_b32 s{sTmp2}, {NLOG2E:#x}']
        for t in range(2):
            ms = GA + 2 * t; xa = vXaug + 4 * t
            ops += [f'v_lshlrev_b32 v{t0}, 16, v{ms}',
                    f'v_and_b32 v{t1}, 0xffff0000, v{ms}', f'v_xor_b32 v{t1}, 0x80000000, v{t1}',
                    f'v_rcp_f32 v{t2}, v{t0}', f'v_mul_f32 v{vK2+t}, v{t0}, v{t0}',
                    f'v_lshrrev_b32 v{t3}, 16, v{t1}', f'v_or_b32 v{t1}, v{t1}, v{t3}',
                    f'v_cndmask_b32 v{xa}, v{t1}, 0, s[{sMhi}:{sMhi+1}]', f'v_cndmask_b32 v{xa+1}, v{t3}, 0, s[{sMhi}:{sMhi+1}]',
                    f'v_mov_b32 v{xa+2}, 0', f'v_mov_b32 v{xa+3}, 0',
                    f'v_mul_f32 v{vNRS+t}, s{sTmp2}, v{t2}',
                    f'ds_write_b32 v{ra}, v{t2} offset:{128*t}']
        ops += s.split3(GA + 4, t0, t1, t2, vSA, vSA + 1)
        ops += [f'v_mov_b32 v{vSA+2}, 0', f'v_mov_b32 v{vSA+3}, 0']
        return ops

    GB = 96
    def gB_issue(s):
        GB = s.GB
        ops = [f's_mul_i32 s{sTmp3}, s{sTp}, {28*4096}', f's_lshl_b32 s{sTmp2}, s{sSo2}, 5', f's_add_u32 s{sTmp3}, s{sTmp3}, s{sTmp2}']
        if s.typ == 'H': ops += [f's_lshl_b32 s{sTmp2}, s{sCp}, 12', f's_add_u32 s{sTmp3}, s{sTmp3}, s{sTmp2}']
        ops += [f's_add_u32 s{sTmp3}, s{sTmp3}, {WS_CSF}']
        s.glB = [f'buffer_load_dwordx4 v[{GB+4*n}:{GB+4*n+3}], v{vHB}, s[{sWS}:{sWS+3}], s{sMsel} offen offset:{1024*n} sc1' for n in range(4)]
        ops += [f's_mov_b32 s{sMsel}, s{sTmp3}']
        ops += [(x, 'GB') for x in s.glB]
        return ops
    def gB_proc(s):
        GB = s.GB
        regs = [GB + 4 * n + 1 + 2 * m for n in range(4) for m in range(2)]
        ops = s.tagcheck(regs, s.glB)
        t0, t1, t2, wa = 112, 113, 114, 115
        O = 116
        A, B = GB, GB + 2
        ops += [f'v_add_f32 v{A}, v{A}, v{GB+4}', f'v_add_f32 v{B}, v{B}, v{GB+6}',
                f'v_add_f32 v{GB+8}, v{GB+8}, v{GB+12}', f'v_add_f32 v{GB+10}, v{GB+10}, v{GB+14}',
                f'v_add_f32 v{A}, v{A}, v{GB+8}', f'v_add_f32 v{B}, v{B}, v{GB+10}',
                f'v_permlane32_swap_b32 v{A}, v{B}', f'v_add_f32 v{A}, v{A}, v{B}']
        ops += s.split3(A, t0, t1, t2, O, O + 1)
        ops += [f'v_and_b32 v{wa}, 31, v{vL}', f'v_lshlrev_b32 v{wa}, 4, v{wa}', f'v_lshrrev_b32 v{t0}, 5, v{vL}', f'v_lshl_add_u32 v{wa}, v{t0}, 3, v{wa}']
        if s.typ == 'H':
            ops += [f's_lshl_b32 s{sTmp}, s{sCp}, 10', f's_lshl_b32 s{sTmp2}, s{sTp}, 9', f's_add_u32 s{sTmp}, s{sTmp}, s{sTmp2}', f's_add_u32 s{sTmp}, s{sTmp}, {L_WAUG}']
        else:
            ops += [f's_lshl_b32 s{sTmp}, s{sTp}, 9', f's_add_u32 s{sTmp}, s{sTmp}, {L_WAUG}']
        ops += [f'v_add_u32 v{wa}, s{sTmp}, v{wa}', f'ds_write_b64 v{wa}, v[{O}:{O+1}]']
        return ops

    def g_part(s, G, t, T):
        ops = []
        for h in range(2):
            g = G + 8 * h
            for j in range(8): ops.append(f'v_mul_f32 v{T+j}, v{vNRS+t}, v{g+j}')
            for j in range(8): ops.append(f'v_exp_f32 v{T+j}, v{T+j}')
            for j in range(8): ops.append(f'v_fma_f32 v{T+j}, v{vK2+t}, v{T+j}, v{vK2+t}')
            for j in range(8): ops.append(f'v_rcp_f32 v{T+j}, v{T+j}')
            for j in range(8): ops.append(f'v_mul_f32 v{g+j}, v{g+j}, v{T+j}')
        return ops
    def u_part(s, G, U, t, line):
        ops = []
        for h in range(2):
            g = G + 8 * h; u = U + 8 * h
            for j in range(8): ops.append(f'v_mul_f32 v{u+j}, v{u+j}, v{g+j}')
            for j in range(4): ops.append(f'v_cvt_pk_bf16_f32 v{u+j}, v{u+2*j}, v{u+2*j+1}')
            add = t * TSTRIDE + line * 4096
            st = f'buffer_store_dwordx4 v[{u}:{u+3}], v{vHB}, s[{sWS}:{sWS+3}], s{sGb} offen offset:{1024*h} sc1'
            if add: ops.append(s.atom([f's_add_u32 s{sGb}, s{sHF}, {add}', (st, f'HF{line}')]))
            else: ops.append(s.atom([f's_mov_b32 s{sGb}, s{sHF}', (st, f'HF{line}')]))
        return ops

    def s_setup(s):
        a, b = 240, 241
        o = []
        o += [f'v_and_b32 v{a}, 15, v{vL}', f'v_lshlrev_b32 v{b}, 3, v{a}',
              f's_lshl_b32 s{sTmp}, s{sCp}, 11', f's_add_u32 s{sTmp}, s{sTmp}, {L_TAB}',
              f'v_add_u32 v{vCh}, s{sTmp}, v{b}',
              f'v_lshlrev_b32 v{vTg}, 3, v{vL}', f'v_add_u32 v{vTg}, s{sTmp}, v{vTg}',
              f's_lshl_b32 s{sTmp}, s{sCp}, 7', f's_lshl_b32 s{sTmp2}, s{sTp}, 9', f's_add_u32 s{sTmp}, s{sTmp}, s{sTmp2}', f's_add_u32 s{sTmp}, s{sTmp}, {L_TOTZ}',
              f'v_add_u32 v{vTo}, s{sTmp}, v{b}',
              f'v_lshrrev_b32 v{b}, 4, v{vL}', f'v_lshlrev_b32 v{vRs}, 5, v{b}', f's_lshl_b32 s{sTmp}, s{sTp}, 8', f's_add_u32 s{sTmp}, s{sTmp}, {L_RS}',
              f'v_add_u32 v{vRs}, s{sTmp}, v{vRs}',
              f's_mul_i32 s{sTmp}, s{sw}, 2560', f's_add_u32 s{sTmp}, s{sTmp}, {L_TR}',
              f'v_mul_u32_u24 v{vTw}, 80, v{a}', f'v_lshl_add_u32 v{vTw}, v{b}, 4, v{vTw}', f'v_add_u32 v{vTw}, s{sTmp}, v{vTw}',
              f'v_lshrrev_b32 v{vTr}, 5, v{vL}', f'v_lshlrev_b32 v{vTr}, 3, v{vTr}', f'v_bfe_u32 v{b}, v{vL}, 2, 2', f'v_add_u32 v{vTr}, v{vTr}, v{b}',
              f'v_mul_u32_u24 v{vTr}, 80, v{vTr}',
              f'v_and_b32 v{b}, 3, v{vL}', f'v_lshl_add_u32 v{vTr}, v{b}, 3, v{vTr}',
              f'v_bfe_u32 v{b}, v{vL}, 4, 1', f'v_lshl_add_u32 v{vTr}, v{b}, 5, v{vTr}',
              f'v_add_u32 v{vTr}, s{sTmp}, v{vTr}']
        o += [f'v_lshlrev_b32 v{a}, 4, v{a}', f's_lshl_b32 s{sTmp}, s{sR}, 8',
              s.atom([f's_cmp_eq_u32 s{sTp}, 1', f's_cselect_b32 s{sTmp}, s{sTmp}, {OOB}']),
              f'v_add_u32 v{a}, s{sTmp}, v{a}', f'v_mov_b32 v{b}, {OOB}',
              s.atom([f'v_cmp_gt_u32 vcc, 16, v{vL}', f'v_cndmask_b32 v{vEo}, v{b}, v{a}, vcc']),
              s.atom([f'v_cmp_eq_u32 vcc, 0, v{vL}', f'v_cndmask_b32 v{vFl}, v{b}, 0, vcc'])]
        return o
    def s1(s, t):
        A = aS + 16 * t; P = vPc + 2 * t
        R = 128; L1, L8, L16 = 136, 138, 140
        E, Z, X, Q, Y = 142, 144, 146, 148, 150
        def pr(r): return f'v[{r}:{r+1}]'
        ops = [f'ds_read_b128 v[{R}:{R+3}], v{vRs} offset:{128*t}', f'ds_read_b128 v[{R+4}:{R+7}], v{vRs} offset:{128*t+16}',
               f'ds_read_b64 {pr(L1)}, v{vCh} offset:1536', f'ds_read_b64 {pr(L8)}, v{vCh} offset:128', f'ds_read_b64 {pr(L16)}, v{vCh} offset:256']
        for m in range(8): ops.append(f'v_permlane16_swap_b32 v{A+2*m}, v{A+2*m+1}')
        for m in range(8):
            ops += [f'v_mul_f32 v{A+2*m}, v{R+m}, v{A+2*m}', f'v_mul_f32 v{A+2*m+1}, v{R+m}, v{A+2*m+1}']
        prev = A
        e0, e1 = E, Z
        for m in range(1, 8):
            ops += cmac(e0, L1, prev, A + 2 * m)
            prev = e0; e0, e1 = e1, e0
        E = prev; Z = e0
        ops += [f'v_mov_b32 v{Z}, 0', f'v_mov_b32 v{Z+1}, 0', f'v_mov_b32 v{X}, v{E}', f'v_mov_b32 v{X+1}, v{E+1}',
                f'v_cndmask_b32 v{Q}, 1.0, v{L8}, s[{sModd}:{sModd+1}]', f'v_cndmask_b32 v{Q+1}, 0, v{L8+1}, s[{sModd}:{sModd+1}]',
                f'v_permlane16_swap_b32 v{Z}, v{X}', f'v_permlane16_swap_b32 v{Z+1}, v{X+1}']
        ops += cmac(E, L8, Z, E)
        ops += [f'v_mov_b32 v{X}, v{E}', f'v_mov_b32 v{X+1}, v{E+1}', f'v_mov_b32 v{Y}, 0', f'v_mov_b32 v{Y+1}, 0',
                f'v_permlane16_swap_b32 v{E}, v{X}', f'v_permlane16_swap_b32 v{E+1}, v{X+1}',
                f'v_permlane32_swap_b32 v{Y}, v{X}', f'v_permlane32_swap_b32 v{Y+1}, v{X+1}']
        ops += cmac(X, L16, Y, X)
        ops += cmac(P, Q, Y, Z)
        ops += [s.atom([f's_mov_b64 exec, s[{sMhi}:{sMhi+1}]', f'ds_write_b64 v{vTo}, {pr(X)} offset:{(3+t)*256}', f's_mov_b64 exec, -1'])]
        return ops
    def s2(s):
        R = 240; L32 = 250; Gq = 240
        def pr(r): return f'v[{r}:{r+1}]'
        ops = []
        for k in range(5): ops.append(f'ds_read_b64 {pr(R+2*k)}, v{vTo} offset:{k*256}')
        ops.append(f'ds_read_b64 {pr(L32)}, v{vCh} offset:640')
        ops += [f's_lshl_b32 s{sTmp}, s{sC}, 13', f's_lshl_b32 s{sTmp2}, s{sCp}, 12', f's_add_u32 s{sTmp}, s{sTmp}, s{sTmp2}', f's_add_u32 s{sGa}, s{sTmp}, {WS_E}']
        ops += cmac(R + 2, L32, R, R + 2)
        ops += cmac(vPC, L32, R + 2, R + 4)
        ops += cmac(vPC + 2, L32, vPC, R + 6)
        ops += cmac(R + 8, L32, vPC + 2, R + 8)
        ops += [f'v_mov_b32 v{Gq}, v{R+8}', f'v_mov_b32 v{Gq+1}, s{sNonce}', f'v_mov_b32 v{Gq+2}, v{R+9}', f'v_mov_b32 v{Gq+3}, s{sNonce}']
        ops += [f'buffer_store_dwordx4 v[{Gq}:{Gq+3}], v{vEo}, s[{sWS}:{sWS+3}], s{sGa} offen sc1']
        return ops
    EG, vEg, vEx = 32, 48, 52
    def s3_issue(s):
        EG, vEg, vEx = s.EG, s.vEg, s.vEx
        a, b = 56, 57
        o = [f'v_and_b32 v{a}, 15, v{vL}', f'v_lshlrev_b32 v{a}, 4, v{a}', f'v_lshrrev_b32 v{b}, 4, v{vL}', f'v_sub_u32 v{b}, s{sR}, v{b}', f'v_add_u32 v{b}, -1, v{b}']
        for k in range(4):
            g = vEg + k; x = vEx + k
            if k: o.append(f'v_add_u32 v{b}, -4, v{b}')
            o += [f'v_lshl_add_u32 v{g}, v{b}, 8, v{a}', f'v_mov_b32 v{x}, {OOB}',
                  s.atom([f'v_cmp_le_i32 vcc, 0, v{b}', f'v_cndmask_b32 v{g}, v{x}, v{g}, vcc', f'v_cndmask_b32 v{x}, 0, v{vNon}, vcc'])]
        s.glE = [f'buffer_load_dwordx4 v[{EG+4*k}:{EG+4*k+3}], v{vEg+k}, s[{sWS}:{sWS+3}], s{sGa} offen sc1' for k in range(4)]
        o += [(x, 'EG') for x in s.glE]
        return o
    def s3(s):
        EG, vEx = s.EG, s.vEx
        L512, Q = 56, 58
        regs = [EG + 4 * k + 1 + 2 * m for k in range(4) for m in range(2)]
        exp = [vEx + k for k in range(4) for m in range(2)]
        ops = [f'ds_read_b64 v[{L512}:{L512+1}], v{vCh} offset:1664', f'ds_read_b64 v[{Q}:{Q+1}], v{vTg} offset:1024']
        ops += s.tagcheck(regs, s.glE, exp)
        def cm4(dr, di, ar, ai, br, bi, cr, ci):
            return [f'v_fmac_f32 v{dr}, v{ar}, v{br}', f'v_fmac_f32 v{di}, v{ar}, v{bi}',
                    f'v_fma_f32 v{dr}, -v{ai}, v{bi}, v{dr}', f'v_fmac_f32 v{di}, v{ai}, v{br}']
        for k in (2, 1, 0):
            ops += cm4(EG + 4 * k, EG + 4 * k + 2, L512, L512 + 1, EG + 4 * (k + 1), EG + 4 * (k + 1) + 2, EG + 4 * k, EG + 4 * k + 2)
        wr, wi = EG + 4, EG + 5; H = vH
        ops += [f'v_mul_f32 v{wr}, v{Q}, v{EG}', f'v_mul_f32 v{wi}, v{Q}, v{EG+2}', f'v_fma_f32 v{wr}, -v{Q+1}, v{EG+2}, v{wr}', f'v_fmac_f32 v{wi}, v{Q+1}, v{EG}',
                f'v_permlane16_swap_b32 v{wr}, v{wi}', f'v_add_f32 v{wr}, v{wr}, v{wi}', f'v_mov_b32 v{wi}, v{wr}',
                f'v_permlane32_swap_b32 v{wr}, v{wi}', f'v_add_f32 v{H}, v{wr}, v{wi}', f'v_mov_b32 v{H+1}, v{H}',
                f'v_permlane16_swap_b32 v{H}, v{H+1}']
        return ops
    def s4(s, t):
        A = aS + 16 * t; P = vPc + 2 * t; C = vPC + 2 * t
        L1, Q32, Q8, CF = 240, 242, 244, 246
        X = 248
        O = 184
        def pr(r): return f'v[{r}:{r+1}]'
        ops = [f's_lshl_b32 s{sTmp}, s{sTp}, 8', f'v_add_u32 v{O}, s{sTmp}, v{vCh}',
               f'ds_read_b64 {pr(Q32)}, v{O} offset:{512+128*t}', f'ds_read_b64 {pr(Q8)}, v{vTg}',
               f'ds_read_b64 {pr(L1)}, v{vCh} offset:1536', f'ds_read_b64 {pr(CF)}, v{vCh} offset:1792']
        ops += [f's_lshl_b32 s{sTmp}, s{sC}, 1', f's_add_u32 s{sTmp}, s{sTmp}, s{sCp}',
                f's_lshr_b32 s{sTmp2}, s{sTmp}, 2', f's_lshl_b32 s{sTmp2}, s{sTmp2}, 3', f's_and_b32 s{sTmp}, s{sTmp}, 3', f's_add_u32 s{sTmp}, s{sTmp}, s{sTmp2}',
                f's_add_u32 s{sTmp}, s{sTmp}, 112', f's_lshl_b32 s{sTmp}, s{sTmp}, 10', f's_add_u32 s{sTmp3}, s{sTmp}, s{sTg0}']
        if t: ops += [f's_add_u32 s{sTmp3}, s{sTmp3}, {TSTRIDE}']
        ops += cmac(C, Q32, vH, C)
        ops += cmac(P, Q8, C, P)
        prev = P
        def cf(m):
            x = X + 2 * (m & 1); r = A + 2 * m
            return [f'v_mul_f32 v{x}, v{r}, v{CF}', f'v_mul_f32 v{x+1}, v{r}, v{CF+1}',
                    f'v_fma_f32 v{r}, -v{r+1}, v{CF+1}, v{x}', f'v_fma_f32 v{r+1}, -v{r+1}, v{CF}, -v{x+1}']
        for m in range(8):
            ops += cmac(A + 2 * m, L1, prev, A + 2 * m); prev = A + 2 * m
            if m >= 1: ops += cf(m - 1)
        ops += cf(7)
        for k in range(4): ops.append(f'v_cvt_pk_bf16_f32 v{O+k}, v{A+4*k}, v{A+4*k+2}')
        for k in range(4): ops.append(f'v_cvt_pk_bf16_f32 v{O+4+k}, v{A+4*k+1}, v{A+4*k+3}')
        ops += [f'ds_write_b128 v{vTw}, v[{O}:{O+3}]', f'ds_write_b128 v{vTw}, v[{O+4}:{O+7}] offset:1280']
        for ri in range(2):
            d = A + 4 * ri
            ops += [f'ds_read_b64_tr_b16 v[{d}:{d+1}], v{vTr} offset:{1280*ri}', f'ds_read_b64_tr_b16 v[{d+2}:{d+3}], v{vTr} offset:{1280*ri+320}']
        ops += [(f'buffer_store_dwordx4 v[{A}:{A+3}], v{vHB}, s[{sWS}:{sWS+3}], s{sTmp3} offen sc1', 'HS'), f's_add_u32 s{sTmp3}, s{sTmp3}, 4096',
                (f'buffer_store_dwordx4 v[{A+4}:{A+7}], v{vHB}, s[{sWS}:{sWS+3}], s{sTmp3} offen sc1', 'HS')]
        return ops
    def aug_F(s, acc, idx):
        fa = 244
        return [f'v_and_b32 v{fa+2}, 31, v{vL}', f'v_lshlrev_b32 v{fa+2}, 3, v{fa+2}',
                f's_lshl_b32 s{sTmp}, s{sCp}, 8', f's_add_u32 s{sTmp}, s{sTmp}, {L_WAUG + 512*idx}', f'v_add_u32 v{fa+2}, s{sTmp}, v{fa+2}',
                f'ds_read_b64 v[{fa}:{fa+1}], v{fa+2}', f'v_mov_b32 v{fa+3}, 0', f'v_mov_b32 v{fa+2}, 0'] + \
               [f'v_mfma_f32_32x32x16_bf16 v[{acc+16*t}:{acc+16*t+15}], v[{fa}:{fa+3}], v[{vXaug+4*t}:{vXaug+4*t+3}], v[{acc+16*t}:{acc+16*t+15}]' for t in range(2)]
    def aug_S(s):
        return [f'v_mfma_f32_32x32x16_bf16 v[{aS+16*t}:{aS+16*t+15}], v[{vXaug+4*t}:{vXaug+4*t+3}], v[{vSA}:{vSA+3}], v[{aS+16*t}:{aS+16*t+15}]' for t in range(2)]
    def flag_prog(s, tag, phase):
        def f():
            s.e.wait_tag(tag)
            s.I(f'buffer_store_dword v{vNon}, v{vFl}, s[{sWS}:{sWS+3}], s{sFlP} offen offset:{32*phase} sc1')
        return [Fn(f, 8)]
    def poll_issue(s):
        return (f'buffer_load_dword v{vPo}, v{vPl}, s[{sWS}:{sWS+3}], s{sFlC} offen sc1', 'PL')
    def poll_check(s, mask):
        e = s.e
        Ls = s.lab('pslow'); Lr = s.lab('pret')
        def chk():
            s.I(f'v_cmp_eq_u32 vcc, s{sNonce}, v{vPo}'); s.I(f's_and_b32 s{sKa}, vcc_lo, {mask:#x}')
            s.I(f's_cmp_eq_u32 s{sKa}, {mask:#x}'); e.raw(f's_cbranch_scc0 {Ls}'); e.label(Lr)
        def slow():
            e.label(Ls); e.reset_hazards(); e.vm = []; e.lgk = []
            s.I(f's_mov_b32 s{sSpin}, 0')
            e.label(Ls + 'l'); e.reset_hazards()
            s.I(s.poll_issue()[0]); e.force_wait('vmcnt(0)')
            s.I(f'v_cmp_eq_u32 vcc, s{sNonce}, v{vPo}'); s.I(f's_and_b32 s{sKa}, vcc_lo, {mask:#x}')
            s.I(f's_add_u32 s{sSpin}, s{sSpin}, 1'); s.I(f's_cmp_gt_u32 s{sSpin}, {SPIN}'); e.raw(f's_cbranch_scc1 {Lr}')
            s.I(f's_cmp_eq_u32 s{sKa}, {mask:#x}'); e.raw(f's_cbranch_scc0 {Ls}l')
            e.raw('s_nop 4'); e.raw(f's_branch {Lr}')
        s.slow.append(slow)
        return chk

    TYPES = [('o', 0), ('o', 2), ('o', 4), ('o', 6), ('o', 1), ('o', 3), ('o', 5), ('y', 0), ('y', 1), ('y', 2), ('y', 3)]
    def issueB(s, q):
        ty, j = s.TYPES[q]
        if 'b' in s.cfg.get('xp3', ''): ty, j = 'o', 0
        S = (q & 3) * 32
        out = []
        for s_ in range(4):
            for t in range(2):
                r = S + 8 * s_ + 4 * t
                ins = f'buffer_load_dwordx4 a[{r}:{r+3}], v{vHB if t == 0 else vB1}, s[{sWS}:{sWS+3}], s{sKb} offen offset:{1024*s_}' + s.cfg.get('bsc', ' sc1')
                pre = [f's_add_u32 s{sKb}, s{sBE if ty == "o" else sBY}, {j*4096}'] if (s_ == 0 and t == 0) else []
                def f(pre=pre, ins=ins):
                    for p in pre: s.I(p)
                    s.I(ins, f'B{q}')
                out.append(f)
        return out
    def issueH(s, qs):
        ty, j0 = s.TYPES[qs[0]]
        stride = (s.TYPES[qs[1]][1] - j0) * 4096 if len(qs) > 1 else 0
        for k, q in enumerate(qs): assert s.TYPES[q] == (ty, j0 + k * stride // 4096), (qs, q)
        va, vb = 200, 201
        def f():
            I = s.I
            I(f'v_lshrrev_b32 v{vb}, 3, v{vL}'); I(f'v_cmp_gt_u32 vcc, {len(qs)}, v{vb}')
            I(f'v_mul_u32_u24 v{vb}, {stride}, v{vb}') if stride else I(f'v_mov_b32 v{vb}, 0')
            I(f'v_and_b32 v{va}, 7, v{vL}'); I(f'v_lshl_add_u32 v{va}, v{va}, 7, v{vb}')
            I(f'v_mov_b32 v{vb}, {OOB}'); I(f'v_cndmask_b32 v{va}, v{vb}, v{va}, vcc')
            I(f's_lshr_b32 s{sKa}, s{sRho}, 2'); I(f's_mul_i32 s{sKa}, s{sKa}, {TSTRIDE}')
            I(f's_and_b32 s{sKb}, s{sRho}, 3'); I(f's_lshl_b32 s{sKb}, s{sKb}, 10'); I(f's_add_u32 s{sKa}, s{sKa}, s{sKb}')
            I(f's_add_u32 s{sKa}, s{sKa}, s{sBE if ty == "o" else sBY}')
            if j0: I(f's_add_u32 s{sKa}, s{sKa}, {j0*4096}')
            I(f'buffer_load_dword v{vDUM}, v{va}, s[{sWS}:{sWS+3}], s{sKa} offen' + s.cfg.get('hsc', ' sc1'), 'PF')
        return f
    def issueG(s, qs):
        va, vb = 202, 203
        def f():
            I = s.I
            I(f'v_cmp_gt_u32 vcc, 16, v{vL}'); I(f's_lshl_b32 s{sKa}, s{sU}, 4'); I(f'v_add_u32 v{va}, s{sKa}, v{vL}'); I(f'v_lshlrev_b32 v{va}, 10, v{va}')
            I(f'v_mov_b32 v{vb}, {OOB}'); I(f'v_cndmask_b32 v{va}, v{vb}, v{va}, vcc')
            for q in qs:
                ty, j = s.TYPES[q]
                if ty == 'o': I(f's_add_u32 s{sKa}, s{sRowW}, {j*65536}'); sr = sW2
                else: I(f's_add_u32 s{sKa}, s{sCrow}, {(j >> 1)*128}'); sr = sCIM if (j & 1) else sCRE
                I(f'buffer_load_dword v{vDUM}, v{va}, s[{sr}:{sr+3}], s{sKa} offen', 'PF')
        return f
    def issueW(s, q):
        ty, j = s.TYPES[q]
        if 'w' in s.cfg.get('xp3', ''): ty, j = 'o', 0
        slot = (q + 2) & 3
        ops = []
        for half in range(2):
            for i in range(4):
                pre = []
                if i == 0:
                    pre.append(f's_add_u32 m0, s{sW13}, {slot*SLOT + half*4096}')
                    if ty == 'o': pre.append(f's_add_u32 s{sKc}, s{sRowW}, {j*65536 + half*32768}')
                    else: pre.append(f's_add_u32 s{sKc}, s{sCrow}, {(j >> 1)*128 + half*32768}')
                if ty == 'o': ins = f'buffer_load_dwordx4 v{vW+i}, s[{sW2}:{sW2+3}], s{sKc} offen offset:{1024*i} lds'
                else:
                    sr = sCIM if (j & 1) else sCRE
                    ins = f'buffer_load_dwordx4 v{vC+i}, s[{sr}:{sr+3}], s{sKc} offen offset:{1024*i} lds'
                ops.append((pre, ins))
        return s.mkdma(ops, f'W{q}')
    def readA(s, q, s_, buf):
        ty, j = s.TYPES[q]
        slot = (q + 2) & 3
        out = []
        for ee in range(2):
            r = WF + 8 * buf + 4 * ee
            if ty == 'o':
                va = vA0 if ee == 0 else vA1
                for k in range(2):
                    def f(va=va, r=r, k=k):
                        o = s.addr(va, slot)
                        s.I(f'ds_read_b64_tr_b16 v[{r+2*k}:{r+2*k+1}], v{va} offset:{o + s_*2048 + 1024*k}')
                    out.append(f)
            else:
                def f(r=r, ee=ee):
                    o = s.addr(vY + s_, slot)
                    s.I(f'ds_read_b128 v[{r}:{r+3}], v{vY+s_} offset:{o + ee*4096}')
                out.append(f)
        return out
    def sched_item(s, it):
        xp2 = s.cfg.get('xp2', '')
        if it[0] in xp2 and it[0] in 'WB': return []
        if it[0] == 'c' and 'c' in xp2: return []
        if it[0] == 'W': return s.issueW(int(it[1:]))
        if it[0] == 'B': return s.issueB(int(it[1:]))
        if it[0] == 'h': return [s.issueH([int(x) for x in it[1:].split('.')])]
        if it[0] == 'g': return [s.issueG([int(x) for x in it[1:].split('.')])]
        if it[0] == 'p': return [lambda: s.I(*s.poll_issue())]
        if it[0] == 'c': return [s.poll_check({'E': 0xff, 'Y': 0xff00, 'L': 0x3f0000}[it[1]]), lambda: s.stamp('ok' + it[1])]
        if it[0] == 'f':
            if s.typ != 'H': return []
            ev, tag, ph = {'Y': ('Sdone', 'HS', 1), 'L': ('F1done', 'HF1', 2)}[it[1]]
            def ff():
                s.until(ev); s.stamp('pfl' + it[1]); s.flag_prog(tag, ph)[0].f(); s.stamp('fl' + it[1])
            return [ff]
        raise ValueError(it)
    def p2_late(s):
        a, b, c = 240, 241, 242
        o = [f'v_lshrrev_b32 v{a}, 3, v{vL}', f'v_lshlrev_b32 v{a}, 10, v{a}', f'v_lshrrev_b32 v{b}, 4, v{vL}', f'v_and_b32 v{c}, 7, v{vL}',
             f'v_xor_b32 v{b}, v{b}, v{c}', f'v_lshl_add_u32 v{vC}, v{b}, 4, v{a}',
             f'v_xor_b32 v{vC+1}, 64, v{vC}', f'v_add_u32 v{vC+1}, 7168, v{vC+1}', f'v_add_u32 v{vC+2}, {7168*2}, v{vC}', f'v_add_u32 v{vC+3}, {7168*2}, v{vC+1}']
        return o
    def p2_late2(s):
        a, b, c = 240, 241, 242
        o = [f'v_and_b32 v{a}, 31, v{vL}', f'v_lshlrev_b32 v{a}, 7, v{a}', f'v_bfe_u32 v{c}, v{vL}, 1, 3', f'v_lshrrev_b32 v{b}, 5, v{vL}', f'v_xor_b32 v{c}, v{c}, v{b}',
             f'v_lshl_add_u32 v{a}, v{c}, 4, v{a}', f'v_add_u32 v{vY}, s{sW13}, v{a}']
        o += [f'v_xor_b32 v{vY+k}, {32*k}, v{vY}' for k in range(1, 4)]
        for k in range(4): s.half[vY + k] = 0
        return o
    tX, tS, tDk, tSo, tDo, tDf, tXf, tYi, tRo, tRy, tF, tXo, tOo = 32, 40, 48, 50, 51, 52, 56, 72, 88, 89, 90, 94, 95
    def tail_addr(s):
        a, b, c, d = 240, 241, 242, 243
        tRo, tRy, tF = s.tRo, s.tRy, s.tF
        def key(dst, row, tmp):
            return [f'v_bfe_u32 v{tmp}, v{row}, 3, 2', f'v_lshlrev_b32 v{tmp}, 1, v{tmp}', f'v_and_b32 v{dst}, 7, v{row}', f'v_xor_b32 v{dst}, v{dst}, v{tmp}']
        o = s.pi_ops(a, b) + key(c, a, b) + [f'v_lshrrev_b32 v{d}, 5, v{vL}', f'v_xor_b32 v{c}, v{c}, v{d}', f'v_lshlrev_b32 v{a}, 8, v{a}',
             f'v_lshl_add_u32 v{a}, v{c}, 4, v{a}', f's_add_u32 s{sTmp}, s{sW13}, {SLOT}', f'v_add_u32 v{tRo}, s{sTmp}, v{a}']
        o += [f'v_and_b32 v{a}, 31, v{vL}'] + key(c, a, b) + [f'v_xor_b32 v{c}, v{c}, v{d}', f'v_lshlrev_b32 v{a}, 8, v{a}',
             f'v_lshl_add_u32 v{a}, v{c}, 4, v{a}', f's_add_u32 s{sTmp}, s{sW13}, {3*SLOT}', f'v_add_u32 v{tRy}, s{sTmp}, v{a}']
        o += [f'v_lshrrev_b32 v{b}, 4, v{vL}', f'v_and_b32 v{c}, 15, v{vL}', f'v_xor_b32 v{a}, v{b}, v{c}', f's_lshl_b32 s{sTmp}, s{sTp}, 2', f'v_xor_b32 v{a}, s{sTmp}, v{a}',
              f'v_lshlrev_b32 v{a}, 4, v{a}', f'v_lshl_add_u32 v{a}, v{b}, 8, v{a}',
              f's_lshl_b32 s{sTmp}, s{sTp}, 12', f's_lshl_b32 s{sTmp2}, s{sCp}, 15', f's_add_u32 s{sTmp}, s{sTmp}, s{sTmp2}', f's_add_u32 s{sTmp}, s{sTmp}, {SLOT}',
              f'v_add_u32 v{tF}, s{sTmp}, v{a}', f'v_xor_b32 v{tF+1}, 64, v{tF}', f'v_xor_b32 v{tF+2}, 32, v{tF}', f'v_xor_b32 v{tF+3}, 96, v{tF}',
              f'v_lshlrev_b32 v{s.tOo}, 11, v{b}', f'v_lshl_add_u32 v{s.tOo}, v{c}, 4, v{s.tOo}',
              f'v_lshlrev_b32 v{s.tXo}, 10, v{b}', f'v_lshl_add_u32 v{s.tXo}, v{c}, 3, v{s.tXo}',
              f'v_lshlrev_b32 v{s.tSo}, 3, v{b}', f'v_lshlrev_b32 v{s.tDo}, 3, v{c}', f'v_add_u32 v{s.tDo}, s{sDko}, v{s.tDo}']
        return o
    def tail_loads(s):
        o = []
        for i in range(4):
            o.append(s.atom([f's_add_u32 s{sTmp}, s{sXb}, {4096*i}', (f'buffer_load_dwordx2 v[{s.tX+2*i}:{s.tX+2*i+1}], v{s.tXo}, s[{sX}:{sX+3}], s{sTmp} offen', 'TX')]))
        for i in range(4):
            o.append((f'buffer_load_dwordx2 v[{s.tS+2*i}:{s.tS+2*i+1}], v{s.tSo}, s[{sWS}:{sWS+3}], s{sSb} offen offset:{32*i} sc1', 'TX'))
        o.append((f'global_load_dwordx2 v[{s.tDk}:{s.tDk+1}], v{s.tDo}, s[{kDk}:{kDk+1}]', 'TX'))
        return o
    def tail_early(s):
        eX, eS, eD, b, c = 204, 205, 218, 219, 220
        def f():
            I = s.I
            if s.typ == 'H': s.until('s3done')
            I(f'v_lshrrev_b32 v{b}, 4, v{vL}'); I(f'v_and_b32 v{c}, 15, v{vL}')
            I(f'v_lshlrev_b32 v{eX}, 10, v{b}'); I(f'v_lshl_add_u32 v{eX}, v{c}, 3, v{eX}')
            I(f'v_lshlrev_b32 v{eS}, 3, v{b}'); I(f'v_lshlrev_b32 v{eD}, 3, v{c}'); I(f'v_add_u32 v{eD}, s{sDko}, v{eD}')
            for i in range(4):
                I(f's_add_u32 s{sKa}, s{sXb}, {4096*i}')
                I(f'buffer_load_dwordx2 v[{s.tX+2*i}:{s.tX+2*i+1}], v{eX}, s[{sX}:{sX+3}], s{sKa} offen', 'TX')
            for i in range(4):
                I(f'buffer_load_dwordx2 v[{s.tS+2*i}:{s.tS+2*i+1}], v{eS}, s[{sWS}:{sWS+3}], s{sSb} offen offset:{32*i} sc1', 'TX')
            I(f'global_load_dwordx2 v[{s.tDk}:{s.tDk+1}], v{eD}, s[{kDk}:{kDk+1}]', 'TX')
        return f
    def tail_pre(s):
        tX, tS, tDk, tDf, tXf, tYi = s.tX, s.tS, s.tDk, s.tDf, s.tXf, s.tYi
        o = [f'v_lshlrev_b32 v{tDf}, 16, v{tDk}', f'v_and_b32 v{tDf+1}, 0xffff0000, v{tDk}', f'v_lshlrev_b32 v{tDf+2}, 16, v{tDk+1}', f'v_and_b32 v{tDf+3}, 0xffff0000, v{tDk+1}']
        for i in range(4):
            m = tS + 2 * i; rs = m + 1; x0 = tX + 2 * i; xf = tXf + 4 * i; y = tYi + 4 * i
            o += [f'v_lshlrev_b32 v{rs}, 16, v{m}', f'v_rcp_f32 v{rs}, v{rs}', f'v_and_b32 v{m}, 0xffff0000, v{m}',
                  f'v_lshlrev_b32 v{xf}, 16, v{x0}', f'v_and_b32 v{xf+1}, 0xffff0000, v{x0}', f'v_lshlrev_b32 v{xf+2}, 16, v{x0+1}', f'v_and_b32 v{xf+3}, 0xffff0000, v{x0+1}']
            o += [f'v_sub_f32 v{y+j}, v{xf+j}, v{m}' for j in range(4)]
            o += [f'v_mul_f32 v{y+j}, v{y+j}, v{rs}' for j in range(4)]
            o += [f'v_mul_f32 v{y+j}, v{y+j}, v{tDf+j}' for j in range(4)]
        return o
    def part_write(s, base, acc):
        o = []
        for ee in range(2):
            for A in range(4):
                k = (8 * ee + 2 * A) * 16
                tmp = 240 + (A & 1)
                if k: o.append(f'v_xor_b32 v{tmp}, {k}, v{base}')
                else: tmp = base
                for t in range(2):
                    r = acc + 16 * (2 * ee + t) + 4 * A
                    o.append(f'ds_write_b128 v{tmp}, a[{r}:{r+3}] offset:{t*SLOT}')
        return o
    tO = 96
    def o_gate(s):
        O = s.tO; T = 112
        o = []
        for i in range(4):
            for src in range(4):
                r = O + 16 * src + 4 * i
                o.append(f'ds_read_b128 v[{r}:{r+3}], v{s.tF+i} offset:{src*8192 + i*1024}')
        o += [f'v_add_u32 v{s.tF+i}, {HALF}, v{s.tF+i}' for i in range(4)]
        for i in range(4):
            for j in range(4):
                r = O + 4 * i + j
                o += [f'v_add_f32 v{r}, v{r}, v{r+16}', f'v_add_f32 v{r+32}, v{r+32}, v{r+48}']
            for j in range(4):
                r = O + 4 * i + j
                o += [f'v_add_f32 v{r}, v{r}, v{r+32}']
        for r in range(O, O + 16): o.append(f'v_mul_f32 v{r+16}, {NLOG2E:#x}, v{r}')
        for r in range(O, O + 16): o.append(f'v_exp_f32 v{r+16}, v{r+16}')
        for r in range(O, O + 16): o.append(f'v_add_f32 v{r+16}, 1.0, v{r+16}')
        for r in range(O, O + 16): o.append(f'v_rcp_f32 v{r+16}, v{r+16}')
        for r in range(O, O + 16): o.append(f'v_mul_f32 v{r}, v{r}, v{r+16}')
        return o

    def p2(s):
        e = s.e; I = s.I; cfg = s.cfg; H = s.typ == 'H'
        sched = cfg['sched']
        e.wait_tag('W0')
        for f in s.readA(0, 0, 0): f()
        buf = 0
        def acc(ty, ee, t):
            b = (ACCO if ty == 'o' else ACCY) + 16 * (2 * ee + t)
            return f'a[{b}:{b+15}]'
        started = set()
        dma = deque()
        for q in range(11):
            ty, j = s.TYPES[q]
            if cfg.get('sc3'):
                ity = lambda n: s.TYPES[n][0] == 'y'
                if any(it[0] == 'W' and ity(int(it[1:])) for it in sched[q]) or (q + 1 < 11 and ity(q + 1)): s.until('late')
                if q == cfg['tq']: s.add(s.tail_addr())
                if q == 6: s.drain()
            for it in sched[q]: dma.extend(s.sched_item(it))
            if s.typ == 'L': dma.extend(s.pfL(f'q{q}'))
            if not cfg.get('sc3'):
                if q == 2: s.add(s.tail_addr())
                if q == 3:
                    s.until('Sdone'); s.add(s.p2_late())
                if q == 4: s.drain(); s.add(s.p2_late2())
                if q == 6: s.drain()
            if q == 7 and not cfg.get('tearly'): s.add(s.tail_loads())
            if q == cfg.get('tpq', 8): s.add(s.tail_pre())
            if q == 9: s.add(s.part_write(s.tRo, ACCO))
            if q == 10:
                s.drain(); s.barrier('BO'); s.add(s.o_gate())
            bud = cfg['budP0'] if q < 3 else cfg['budP']
            for s_ in range(4):
                if s_ < 3: aops = deque(s.readA(q, s_ + 1, buf ^ 1)); needw = None
                elif q + 1 < 11: aops = deque(s.readA(q + 1, 0, buf ^ 1)); needw = f'W{q+1}'
                else: aops = deque(); needw = None
                k = 0
                for ee in range(2):
                    for t in range(2):
                        r = WF + 8 * buf + 4 * ee
                        br = (q & 3) * 32 + 8 * s_ + 4 * t
                        A = acc(ty, ee, t)
                        cs = A if (ty, ee, t) in started else '0'
                        started.add((ty, ee, t))
                        I(f'v_mfma_f32_32x32x16_bf16 {A}, v[{r}:{r+3}], a[{br}:{br+3}], {cs}')
                        n0 = e.n
                        if k == 0 and needw: e.wait_tag(needw)
                        if aops: aops.popleft()()
                        left = 16 - (4 * s_ + k)
                        s.pace(dma, left)
                        s.gap(n0, bud)
                        k += 1
                while aops: aops.popleft()()
                buf ^= 1
            while dma: dma.popleft()()
            s.stamp(f'q{q}e')
        s.drain()
        s.stamp('P2end')
        for x in s.part_write(s.tRy, ACCY): I(x)
        s.barrier('BY')
        Y = [0, 112, 128, 144]
        for i in range(4):
            for src in range(4):
                r = Y[src] + 4 * i
                I(f'ds_read_b128 v[{r}:{r+3}], v{s.tF+i} offset:{src*8192 + i*1024}')
        for i in range(4):
            for j in range(4):
                I(f'v_add_f32 v{Y[0]+4*i+j}, v{Y[0]+4*i+j}, v{s.tYi+4*i+j}'); I(f'v_add_f32 v{Y[1]+4*i+j}, v{Y[1]+4*i+j}, v{Y[2]+4*i+j}')
            for j in range(4):
                I(f'v_add_f32 v{Y[0]+4*i+j}, v{Y[0]+4*i+j}, v{Y[3]+4*i+j}')
            for j in range(4):
                I(f'v_add_f32 v{Y[0]+4*i+j}, v{Y[0]+4*i+j}, v{Y[1]+4*i+j}')
            for j in range(4):
                I(f'v_fma_f32 v{Y[0]+4*i+j}, v{Y[0]+4*i+j}, v{s.tO+4*i+j}, v{s.tXf+4*i+j}')
            I(f's_add_u32 s{sTmp}, s{sOb}, {8192*i}')
            I(f'buffer_store_dwordx4 v[{Y[0]+4*i}:{Y[0]+4*i+3}], v{s.tOo}, s[{sOUT}:{sOUT+3}], s{sTmp} offen' + s.cfg.get('osc', ''))

    def body(s):
        e = s.e; I = s.I; cfg = s.cfg; typ = s.typ
        s.prologue()
        H = typ == 'H'
        tb_ = s.capture(s.tab)
        skip = cfg.get('skip', ())
        K = lambda n, l: [] if n in skip else (l() if callable(l) else l)
        s.add(K('pub', s.pub_prog) + [s.fstamp('pub')] + K('tab', tb_) + [s.mark('tabdone')])
        o1, o2 = s.fcs_prog()
        s.add([s.gate(f'B{cfg["fcs"]}')] + K('fcs', o1 + o2) + [s.fstamp('fcs')])
        s.add([s.gate(f'B{cfg["gA_issue"]}')] + K('gA', s.gA_issue))
        s.add([s.gate(f'B{cfg["gB_issue"]}')] + K('gB', s.gB_issue))
        s.add([s.gate(f'B{cfg["gA_proc"]}')] + K('gA', s.gA_proc) + [s.mark('gAdone'), s.fstamp('gA')])
        s.add([s.gate(f'B{cfg["gB_proc"]}')] + K('gB', s.gB_proc) + [s.mark('gBdone'), s.fstamp('gB')])
        if cfg.get('stopA'):
            s.stopA = True
        def readsA(st, ks):
            b = WF + 8 * ((4 * st + ks) & 1)
            xp = cfg.get('xp', '')
            return ([] if 'S' in xp else s.rd_S(st, ks, b)) + ([] if 'x' in xp else s.rd_x(st, ks, 0) + s.rd_x(st, ks, 1)) + ([] if 'W' in xp else s.rd_W(st & 3, 24576 + 2048 * ks, b + 4))
        pf = cfg['pf']; NR = 4
        assert pf == 3
        npass = 3 if H else 1
        order = [(p, kk) for p in range(npass) for kk in range(32)]
        def rdP(idx):
            p, kk = order[idx]
            st = 8 + 2 * p + (kk >> 4)
            return s.rd_W(st & 3, (kk & 15) * 2048, WF + 4 * (idx % NR))
        dma = deque(s.dma_list(2))
        for f in readsA(0, 0): f()
        nst = 8 + 2 * npass
        def next_dma(stb):
            l = next_dma0(stb)
            if H:
                for k, (b, unit) in enumerate(cfg.get('pf2', ())):
                    if b == stb: l = l + [s.pf2_item(unit, k)]
            else: l = l + s.pfL(f'B{stb}')
            return l
        def next_dma0(stb):
            l = []
            if 'D' in cfg.get('xp', ''): return l
            if 'H' in cfg.get('xp', ''): return s.dma_list(stb + 2)[:4]
            if stb == 1: l = (s.dma_csc() + s.dma_list(3)) if cfg['fcs'] <= 3 else (s.dma_list(3) + s.dma_csc())
            elif stb < 8: l = s.dma_list(stb + 2)
            elif stb == 8: l = (s.dma_list(10) + s.dma_list(11)) if nst > 11 else []
            elif stb + 3 < nst: l = s.dma_list(stb + 3)
            elif H and cfg['p2'] and stb in (11, 12, 13): l = s.issueW(stb - 11)
            return l
        for st in range(8):
            for ks in range(4):
                kk = 4 * st + ks
                b = WF + 8 * (kk & 1)
                if ks < 3: nxt = readsA(st, ks + 1)
                elif st < 7: nxt = readsA(st + 1, 0)
                else: nxt = []
                nxt = deque(nxt)
                seq = [(aS, 0, True), (aS, 1, True), (aG0, 0, False), (aG0, 1, False)]
                for m, (base, t, isS) in enumerate(seq):
                    acc = base + 16 * t
                    xr = (kk * 2 + t) * 4
                    w = f'v[{b}:{b+3}]' if isS else f'v[{b+4}:{b+7}]'
                    c = '0' if kk == 0 else f'v[{acc}:{acc+15}]'
                    if isS: I(f'v_mfma_f32_32x32x16_bf16 v[{acc}:{acc+15}], a[{xr}:{xr+3}], {w}, {c}')
                    else: I(f'v_mfma_f32_32x32x16_bf16 v[{acc}:{acc+15}], {w}, a[{xr}:{xr+3}], {c}')
                    n0 = e.n
                    if ks == 3 and m == 0:
                        if st + 1 == 6: s.until('tabdone')
                        if st + 1 == cfg['gBbar'] and not cfg.get('stopA'): s.until('gBdone')
                        s.barrier(f'B{st+1}', f'D{st+1}')
                        while dma: dma.popleft()()
                        dma = deque(next_dma(st + 1))
                        if st == 7:
                            nxt = deque(rdP(0) + rdP(1))
                        n0 = e.n
                    nrd = 2 if m < 2 else 1
                    if m == 3: nrd = 9
                    for _ in range(nrd):
                        if nxt: nxt.popleft()()
                    left = 16 - (4 * ((ks + 1) & 3) + m)
                    s.pace(dma, left)
                    s.gap(n0, cfg['budA'])
        s.stamp('Aend')
        if cfg.get('stopA'):
            s.drain(); s.stamp('end'); s.final_stamps(); e.raw('s_endpgm')
            for f in s.slow: f()
            return
        s.until('gAdone')
        gb = s.gate(f'B{cfg["gBbar"]}')
        totb = cfg['totb'] if H else 10
        sc3 = H and cfg.get('sc3')
        if sc3:
            totb = None
            G1p = [s.gate('Cend')] + s.aug_F(aG1, 2) + s.g_part(aG1, 0, 64) + s.g_part(aG1 + 16, 1, 64) + [s.mark('G1done'), s.fstamp('G1')]
            gk = lambda k: [s.gate(f'p{cfg[k][0]}k{cfg[k][1]}')] if cfg.get(k) else []
            G0p = [gb] + s.aug_F(aG0, 0) + s.g_part(aG0, 0, 152) + s.g_part(aG0 + 16, 1, 152) + [s.fstamp('G0')]
            S1p = s.aug_S() + s.s1(0) + s.s1(1) + [s.mark('s1done'), s.fstamp('s1'), s.gate('TOT')] + s.s2() + [s.fstamp('s2')]
            prog = (G0p + S1p) if cfg.get('g0first') else (S1p + G0p)
            prog += [s.gate('Bend')] + s.aug_F(aU0, 1) + s.u_part(aG0, aU0, 0, 0) + s.u_part(aG0 + 16, aU0 + 16, 1, 0) + [s.mark('F0done'), s.fstamp('F0st')]
            prog += gk('s3ik') + s.s3_issue() + [s.fstamp('s3i')] + gk('s3pk') + s.s3() + [s.mark('s3done'), s.fstamp('s3')]
            gp = cfg['g1pos']
            prog += (G1p if gp == 0 else []) + s.s4(0) + (G1p if gp == 1 else []) + s.s4(1) + [s.mark('Sdone'), s.fstamp('Sdone')]
            prog += s.p2_late() + s.p2_late2() + [s.mark('late')] + (G1p if gp == 2 else [])
            prog += [s.gate('Dend')] + s.aug_F(aU1, 3) + s.u_part(aG1, aU1, 0, 1) + s.u_part(aG1 + 16, aU1 + 16, 1, 1) + [s.mark('F1done'), s.fstamp('F1st')]
            s.add(prog)
        elif H:
            s.add([gb] + s.aug_F(aG0, 0) + s.g_part(aG0, 0, 152) + s.g_part(aG0 + 16, 1, 152) + [s.fstamp('G0')] +
                  [s.gate('Bend')] + s.aug_F(aU0, 1) + s.u_part(aG0, aU0, 0, 0) + s.u_part(aG0 + 16, aU0 + 16, 1, 0) + [s.mark('F0done'), s.fstamp('F0st')] +
                  s.aug_S() + s.s1(0) + s.s1(1) + [s.mark('s1done')])
        else:
            s.add(s.aug_S() + s.s1(0) + [gb] + s.aug_F(aG0, 0) + s.g_part(aG0, 0, 152) + s.s1(1) + [s.mark('s1done')] + s.g_part(aG0 + 16, 1, 152))
        issued = 2
        for f in rdP(2): f()
        issued = 3
        for idx, (p, kk) in enumerate(order):
            st = 8 + 2 * p + (kk >> 4)
            fr = WF + 4 * (idx % NR)
            accb = [aU0, aG1, aU1][p]
            bud = [cfg['budB'], cfg['budC'], cfg['budD']][p]
            s.events.add(f'p{p}k{kk}')
            if sc3 and p == 0 and kk == cfg['totk']:
                s.until('s1done'); s.barrier('TOT')
            if sc3 and (p, kk) == tuple(cfg['flEk']):
                s.until('F0done'); s.addfront(s.flag_prog('HF0', 0) + [s.mark('flEdone'), s.fstamp('flE')])
            if sc3 and cfg.get('fYk') and (p, kk) == tuple(cfg['fYk']):
                s.until('Sdone'); s.addfront(s.flag_prog('HS', 1) + [s.fstamp('flY')])
            if (kk & 15) == 16 - pf and (st + 1 < nst or (H and cfg['p2'])):
                if st + 1 == cfg['gBbar']: s.until('gBdone')
                if st + 1 == totb: s.until('s1done')
                if H and not sc3 and st + 1 == cfg['flEb']: s.until('F0done')
                s.barrier(f'B{st+1}', f'D{st+1}' if st + 1 < nst else None)
                if H and not sc3 and st + 1 == cfg['s3b']: s.addfront(s.s3_issue())
                if st + 1 == totb: s.addfront(s.s2() + [s.mark('s2done'), s.fstamp('s2')])
                if H and not sc3 and st + 1 == cfg['flEb']: s.addfront(s.flag_prog('HF0', 0) + [s.mark('flEdone'), s.fstamp('flE')])
                if p == 2 and cfg.get('nofl') and kk >= cfg['cE']: dma.extend(next_dma(st + 1))
                else:
                    while dma: dma.popleft()()
                    dma = deque(next_dma(st + 1))
            if p == 2:
                if kk == 0 and not sc3:
                    s.add(s.aug_F(aG1, 2) + s.g_part(aG1, 0, 64) + s.g_part(aG1 + 16, 1, 64) + [s.mark('G1done'), s.fstamp('G1')])
                if cfg['p2']:
                    if kk == cfg['pE']: dma.appendleft(lambda: s.I(*s.poll_issue()))
                    if kk == cfg['cE']:
                        s.until('flEdone')
                        dma.append(lambda: s.stamp('epre'))
                        dma.append(s.poll_check(0xff))
                        dma.append(lambda: s.stamp('eok'))
                        if cfg.get('hE'): dma.append(s.issueH(cfg['hE']))
                        for q in range(cfg.get('nEB', 2)): dma.extend(s.issueB(q))
                        if cfg.get('tearly'): dma.append(s.tail_early())
                        if cfg.get('gE'): dma.append(s.issueG(cfg['gE']))
            nxt = deque()
            if issued < len(order):
                nxt = deque(rdP(issued)); issued += 1
            for t in range(2):
                acc = accb + 16 * t
                xr = (kk * 2 + t) * 4
                c = '0' if kk == 0 else f'v[{acc}:{acc+15}]'
                I(f'v_mfma_f32_32x32x16_bf16 v[{acc}:{acc+15}], v[{fr}:{fr+3}], a[{xr}:{xr+3}], {c}')
                n0 = e.n
                if nxt: nxt.popleft()()
                if p == 2 and kk >= cfg['cE'] and cfg['p2']: left = 2 * (cfg.get('dEnd', 32) - kk) - t
                else: left = 32 - (2 * (((kk & 15) + pf) & 15) + t)
                s.pace(dma, left)
                s.gap(n0, bud)
            if kk == 31:
                s.stamp(['Bend', 'Cend', 'Dend'][p]); s.events.add(['Bend', 'Cend', 'Dend'][p])
        while dma: dma.popleft()()
        if not H:
            s.until('s1done')
            s.barrier('B10')
            if cfg['p2'] and not cfg.get('Lw', 1):
                for q in range(3):
                    for f in s.issueW(q): f()
            s.addfront(s.s2())
            s.add(s.aug_F(aU0, 1) + s.u_part(aG0, aU0, 0, 0) + s.u_part(aG0 + 16, aU0 + 16, 1, 0))
            s.drain()
            for f in s.pfL('F0'): f()
            if cfg['p2'] and cfg.get('Lw', 1) == 1:
                for q in range(3):
                    for f in s.issueW(q): f()
            s.stamp('F1st')
            fE = s.flag_prog('HF0', 0) + [s.fstamp('flE')]
            post = [Fn(f, 8) for f in s.pfL('s3i')]
            if cfg['p2'] and cfg.get('Lw', 1) == 2:
                post += [Fn(f, 8) for q in range(3) for f in s.issueW(q)]
            pre_ = (fE + s.s3_issue() + post if cfg.get('LfE', 0) else s.s3_issue() + post + fE) + s.s3() + [s.fstamp('s3')] + s.s4(0) + s.s4(1) + [s.mark('Sdone'), s.fstamp('Sdone')]
            if cfg.get('Lw', 1) == 4:
                Wl = [Fn(f, 8) for q in range(3) for f in s.issueW(q)]
                Bl = [Fn(f, 8) for q in range(cfg.get('nEB', 2)) for f in s.issueB(q)]
                chk_ = [Fn(s.poll_check(0xff), 8), s.fstamp('eok')] + ([Fn(s.issueH(cfg['hE']), 8)] if cfg.get('hE') else [])
                s.add(pre_ + [Fn(lambda: s.I(*s.poll_issue()), 8)] + [Fn(f, 8) for f in s.pfL('S')] + Wl + s.flag_prog('HS', 1) + [s.fstamp('flY')] + chk_ + Bl + ([Fn(s.tail_early(), 8)] if cfg.get('tearly') else []) + ([Fn(s.issueG(cfg['gE']), 8)] if cfg.get('gE') else []) +
                      [Fn(f, 8) for f in s.pfL('S2')] + s.p2_late() + s.p2_late2() + [s.mark('late')])
                s.drain()
            else:
                s.add(pre_ + [Fn(f, 8) for f in s.pfL('S')] + s.flag_prog('HS', 1) + [s.fstamp('flY')] + [Fn(f, 8) for f in s.pfL('S2')])
                if cfg['p2'] and cfg.get('Lw', 1) == 3: s.add([Fn(f, 8) for q in range(3) for f in s.issueW(q)])
                if cfg.get('sc3'): s.add(s.p2_late() + s.p2_late2() + [s.mark('late')])
                s.drain()
                if cfg['p2']:
                    I(*s.poll_issue()); s.poll_check(0xff)(); s.stamp('eok')
                    if cfg.get('hE'): s.issueH(cfg['hE'])()
                    if cfg.get('gE'): s.issueG(cfg['gE'])()
                    for q in range(cfg.get('nEB', 2)):
                        for f in s.issueB(q): f()
        elif not sc3:
            s.add(s.aug_F(aU1, 3) + s.u_part(aG1, aU1, 0, 1) + s.u_part(aG1 + 16, aU1 + 16, 1, 1) + [s.fstamp('F1st')] + s.s3() + [s.fstamp('s3')] + s.s4(0) + s.flag_prog('HF1', 2) + [s.fstamp('flL')] +
                  s.s4(1) + [s.mark('Sdone'), s.fstamp('Sdone')] + ['s_nop 0'] * cfg.get('ydelay', 0) + s.flag_prog('HS', 1) + [s.fstamp('flY')])
        if sc3 and cfg.get('f1first', 1):
            s.until('F1done')
        if cfg['p2']: s.p2()
        else: s.drain()
        s.stamp('end')
        s.final_stamps()
        e.raw('s_endpgm')
        for f in s.slow: f()
    def gate_mark(s, ev): return ('gate', ev)

def gen_fz(ts=False, cfg=None):
    e = Em(); I = e.I
    cfg = cfg or {}
    e.raw('s_cmp_ge_u32 s2, 256'); e.raw('s_cbranch_scc1 FZ_done')
    I(f's_load_dwordx16 s[64:79], s[0:1], 0')
    I(f's_load_dwordx8 s[80:87], s[0:1], 64')
    I(f's_load_dwordx8 s[88:95], s[0:1], 96')
    e.raw(f's_memrealtime s[{sSB}:{sSB+1}]')
    if ts: e.raw(f'{ts} s[98:99]')
    I(f'v_and_b32 v{vL}, 63, v0'); I(f'v_lshrrev_b32 v{vT}, 6, v0'); I(f'v_readfirstlane_b32 s{sw}, v{vT}')
    if cfg.get('codepf', 1):
        e.raw('s_getpc_b64 s[4:5]'); e.label('PF_base')
        I(f's_lshr_b32 s6, s2, 3'); I(f's_and_b32 s6, s6, 1'); I(f's_lshl_b32 s6, s6, 15')
        I(f'v_lshlrev_b32 v{vT+1}, 7, v0'); I(f'v_add_u32 v{vT+1}, s6, v{vT+1}')
        e.raw(f'v_min_u32 v{vT+1}, TEXT_END-PF_base-4, v{vT+1}')
        I(f'v_mov_b32 v{vT+4}, s4'); I(f'v_mov_b32 v{vT+5}, s5')
        I(f'v_add_co_u32 v{vT+4}, vcc, v{vT+4}, v{vT+1}'); I(f'v_addc_co_u32 v{vT+5}, vcc, 0, v{vT+5}, vcc')
        I(f'global_load_dword v{vDUM}, v[{vT+4}:{vT+5}], off')
    I(f's_and_b32 s{sTmp}, s2, 7'); I(f's_lshr_b32 s{sTmp2}, s2, 3')
    I(f's_lshr_b32 s{sRho}, s{sTmp2}, 2'); I(f's_and_b32 s{sU}, s{sTmp2}, 3')
    I(f's_and_b32 s{sTmp3}, s{sTmp}, 1'); I(f's_lshl_b32 s{sR}, s{sRho}, 1'); I(f's_add_u32 s{sR}, s{sR}, s{sTmp3}')
    I(f's_lshr_b32 s{sG}, s{sTmp}, 1'); I(f's_lshl_b32 s{sC}, s{sG}, 2'); I(f's_add_u32 s{sC}, s{sC}, s{sU}')
    I(f's_lshl_b32 s{sTmp}, s{sU}, 1')
    offm = cfg.get('offm', 'zero')
    if offm == 'cur': I(f's_add_u32 s{sOff}, s{sRho}, s{sTmp}'); I(f's_and_b32 s{sOff}, s{sOff}, 7')
    elif offm == 'zero': I(f's_mov_b32 s{sOff}, 0')
    elif offm == 'rho': I(f's_mov_b32 s{sOff}, s{sRho}')
    elif offm == 'u2': I(f's_mov_b32 s{sOff}, s{sTmp}')
    elif offm == 'rho4': I(f's_and_b32 s{sOff}, s{sRho}, 1'); I(f's_lshl_b32 s{sOff}, s{sOff}, 2')
    elif offm == 'rho2': I(f's_and_b32 s{sOff}, s{sRho}, 3'); I(f's_lshl_b32 s{sOff}, s{sOff}, 1')
    elif offm == 'xcd': I(f's_and_b32 s{sOff}, s2, 7')
    I(f's_mul_i32 s{sSo2}, s{sG}, 7'); I(f's_add_u32 s{sSo2}, s{sSo2}, s{sTmp}'); I(f's_lshl_b32 s{sSo2}, s{sSo2}, 7')
    I(f's_and_b32 s{sTp}, s{sw}, 1'); I(f's_lshr_b32 s{sCp}, s{sw}, 1')
    for s_, n in [(sX, 2048*512*2), (sW1, 512*1792*2), (sW3, 512*1792*2), (sCSC, 512*1792*2), (sSB, 512*512*2), (sWS, WS_SIZE), (sDBG, 256)]:
        I(f's_mov_b32 s{s_+2}, {n}'); I(f's_mov_b32 s{s_+3}, 0x00020000')
    I(f's_lshl_b32 s{sXo}, s{sR}, 2'); I(f's_add_u32 s{sXo}, s{sXo}, s{sw}'); I(f's_lshl_b32 s{sXo}, s{sXo}, 15')
    I(f's_lshl_b32 s{sSo}, s{sC}, 15'); I(f's_lshl_b32 s{sTmp}, s{sTp}, 13'); I(f's_add_u32 s{sSo}, s{sSo}, s{sTmp}')
    I(f's_mul_i32 s{sFo}, s{sw}, {16*WROW}'); I(f's_add_u32 s{sFo}, s{sFo}, s{sSo2}')
    I(f's_lshl_b32 s{sW12}, s{sw}, 12'); I(f's_lshl_b32 s{sW11}, s{sw}, 11'); I(f's_lshl_b32 s{sW13}, s{sw}, 13')
    a, b, c, d = vT, vT + 1, vT + 2, vT + 3
    I(f'v_lshlrev_b32 v{vHB}, 4, v{vL}')
    I(f'v_lshrrev_b32 v{a}, 5, v{vL}'); I(f'v_lshlrev_b32 v{a}, 4, v{a}'); I(f'v_and_b32 v{b}, 8, v{vL}'); I(f'v_add_u32 v{a}, v{a}, v{b}')
    I(f'v_bfe_u32 v{b}, v{vL}, 4, 1'); I(f'v_add_u32 v{a}, v{a}, v{b}'); I(f'v_lshlrev_b32 v{a}, 10, v{a}')
    I(f'v_and_b32 v{b}, 7, v{vL}'); I(f'v_lshrrev_b32 v{c}, 4, v{vL}'); I(f'v_xor_b32 v{d}, v{b}, v{c}')
    I(f'v_lshl_add_u32 v{vDX}, v{d}, 4, v{a}')
    I(f'v_xor_b32 v{vDX+1}, 64, v{vDX}'); I(f'v_add_u32 v{vDX+1}, 1024, v{vDX+1}')
    I(f'v_add_u32 v{vDX+2}, 2048, v{vDX}'); I(f'v_add_u32 v{vDX+3}, 2048, v{vDX+1}')
    I(f'v_bfe_u32 v{a}, v{vL}, 4, 1'); I(f'v_lshlrev_b32 v{a}, 2, v{a}'); I(f'v_xor_b32 v{a}, v{a}, v{b}'); I(f'v_lshlrev_b32 v{a}, 4, v{a}')
    I(f'v_lshrrev_b32 v{d}, 3, v{vL}'); I(f'v_mul_u32_u24 v{vDF}, {WROW}, v{d}'); I(f'v_add_u32 v{vDF}, v{vDF}, v{a}')
    for i in range(1, 4): I(f'v_add_u32 v{vDF+i}, {27648*i}, v{vDF}')
    I(f's_lshl_b32 s{sTmp}, s{sTp}, 2'); I(f'v_add_u32 v{c}, s{sTmp}, v{c}'); I(f'v_xor_b32 v{a}, v{b}, v{c}')
    I(f'v_lshlrev_b32 v{a}, 4, v{a}'); I(f'v_lshl_add_u32 v{vDS}, v{d}, 10, v{a}'); I(f'v_add_u32 v{vDS+1}, 15360, v{vDS}')
    gH = Gen('H', e, ts, cfg); gL = Gen('L', e, ts, cfg)
    gH.lds_addrs(); gH.pre_karg()
    e.force_wait('lgkmcnt(0)')
    if ts: I(f'v_writelane_b32 v{vTS}, s98, 0')
    I(f's_cmp_eq_u32 s{sU}, 3'); e.raw('s_cbranch_scc1 FZ_L')
    sv = (dict(e.lastw), dict(e.lastsw))
    for g, lab in ((gH, None), (gL, 'FZ_L')):
        if lab: e.label(lab); e.reset_hazards(pad=2); e.lgk = []; e.vm = []
        g.body()
    e.label('FZ_done'); e.raw('s_endpgm')
    return e
```

```python
from em import Em
from collections import deque
WS_STATS = 12 << 20
WS_CSS = (12 << 20) + (64 << 10)
WS_CSF = (12 << 20) + (128 << 10)
WS_E = 13 << 20
WS_FL = (13 << 20) + (512 << 10)
WS_TS = 14 << 20
WS_SIZE = 16 << 20
TSTRIDE = 176 * 1024
SLOT = 32768
HALF = 65536
MISC = 131072
L_RS = MISC
L_TOTZ = MISC + 512
L_TAB = MISC + 2304
L_WAUG = MISC + 6400
L_CSC = MISC + 16384
L_TR = MISC + 16384
OOB = 0x40000000
LOG2E = 0x3fb8aa3b
NLOG2E = 0xbfb8aa3b
INV2PI = 0x3e22f983
SPIN = 100000
WROW = 3584
WCH = 64 * WROW

sCSC, sX, sW1, sW3, sWS, sSB, sDBG = 4, 8, 12, 16, 20, 24, 28
sw, sR, sC, sOff, sNonce, sTp, sCp, sU, sG, sRho = 32, 33, 34, 35, 36, 37, 38, 39, 40, 41
sXo, sSo, sFo, sKa, sKb, sKc, sTmp, sTmp2, sTmp3 = 42, 43, 44, 45, 46, 47, 48, 49, 50
sW12, sW11, sW13, sTg0, sHF = 51, 52, 53, 54, 55
sMhi, sModd, sBad, sMsel = 56, 58, 60, 62
sSpin = 3
sGa, sGb = 96, 97
kX, kLre, kLim, kBre, kBim, kCre, kCim, kLdt = 64, 66, 68, 70, 72, 74, 76, 78
kDk, kBx, kW1, kW3, kW2, kOut, kDbg, kWs = 80, 82, 84, 86, 88, 90, 92, 94
TSPOOL = [98, 82, 0]
sSo2 = 101
sFlP = 100
sW2, sCRE, sCIM, sOUT = 64, 68, 84, 92
sBE, sBY, sFlC, sXb, sSb, sDko, sRowW, sCrow, sOb = 72, 73, 74, 75, 76, 77, 78, 79, 88
aS, aG0, aU0, aG1, aU1, WF = 0, 32, 64, 96, 128, 160
vW, vA0, vA1, vB1, vPl = 176, 180, 181, 182, 183
vXA, vSS, vG, vL, vHB, vCA = 184, 188, 192, 193, 194, 195
vDX, vDF, vDS = 196, 200, 204
vXaug, vNRS, vK2, vSA = 206, 214, 216, 218
vT = 222
vNon, vPo, vTS, vDUM = 252, 253, 254, 255
vCh, vTg, vRs, vTo, vTw, vTr, vEo, vFl = 222, 223, 224, 225, 226, 227, 228, 229
vPc, vPC, vH = 230, 234, 238
vC, vY = 196, 184
ACCO, ACCY = 128, 192
TRANS = ('v_exp_f32','v_log_f32','v_rcp_f32','v_rsq_f32','v_sqrt_f32','v_sin_f32','v_cos_f32')

VOP3 = ('v_fma_f32', 'v_lshl_add_u32', 'v_bfe_u32', 'v_cvt_pk_bf16_f32', 'v_mul_lo_u32', 'v_add3_u32', 'v_lshl_or_b32', 'v_and_or_b32', 'v_writelane_b32', 'v_mul_u32_u24')
def cost(txt):
    mn = txt.split()[0]
    if mn in TRANS or 'permlane' in mn: return 8
    if mn.startswith('v_mfma'): return 8
    if mn.startswith('v_pk_'): return 20
    if mn in VOP3 or (mn.startswith('v_cndmask') and 's[' in txt) or (mn.startswith('v_cmp') and ' s[' in txt[:30]) or '0x' in txt and mn.startswith('v_') or (mn.startswith('v_') and ' -v' in txt): return 5
    return 4

class Atom:
    def __init__(s, items):
        s.items = items; s.cost = sum(icost(x) for x in items)
class Fn:
    def __init__(s, f, c): s.f = f; s.cost = c
def icost(x):
    if isinstance(x, (Atom, Fn)): return x.cost
    return cost(x[0] if isinstance(x, tuple) else x)
def isctl(x, k): return isinstance(x, tuple) and x[0] == k

def cmac(d, a, b, c):
    if d == c:
        return [f'v_fmac_f32 v{d}, v{a}, v{b}', f'v_fmac_f32 v{d+1}, v{a}, v{b+1}',
                f'v_fma_f32 v{d}, -v{a+1}, v{b+1}, v{d}', f'v_fmac_f32 v{d+1}, v{a+1}, v{b}']
    return [f'v_fma_f32 v{d}, v{a}, v{b}, v{c}', f'v_fma_f32 v{d+1}, v{a}, v{b+1}, v{c+1}',
            f'v_fma_f32 v{d}, -v{a+1}, v{b+1}, v{d}', f'v_fmac_f32 v{d+1}, v{a+1}, v{b}']
def zipl(a, b):
    out = []; i = j = 0
    while i < len(a) or j < len(b):
        if j >= len(b) or (i < len(a) and i * len(b) <= j * len(a)): out.append(a[i]); i += 1
        else: out.append(b[j]); j += 1
    return out

DEF_SCHED = [['W3', 'B2', 'B3'], ['W4'], ['pL', 'W5'], ['W6', 'cL', 'B4', 'B5', 'B6'], ['pY', 'W7'], ['W8', 'cY', 'B7', 'B8'], ['W9', 'B9'], ['W10', 'B10'], [], [], []]
SCHED3 = [['W3', 'B2', 'B3'], ['fY', 'W4'], ['fL', 'pY', 'W5'], ['W6', 'cY', 'B4', 'B5', 'pL'], ['W7', 'cL', 'B6', 'B7'], ['W8', 'B8'], ['W9', 'B9'], ['W10', 'B10'], [], [], []]
S4 = [['W3', 'B2'], ['fL', 'pY', 'W4', 'B3', 'cY', 'h4.5.9.10'], ['W5', 'B4'], ['pL', 'W6', 'B5', 'cL', 'h6.7.8'], ['W7', 'B6'], ['W8', 'B7'], ['W9', 'B8'], ['W10', 'B9'], ['B10'], [], []]
S5 = [['W3', 'B2', 'B3'], ['fL', 'pY', 'W4', 'cY', 'h4.5.9.10'], ['W5', 'B4'], ['pL', 'W6', 'B5', 'cL', 'h6.7.8'], ['W7', 'B6'], ['W8', 'B7'], ['W9', 'B8'], ['W10', 'B9'], ['B10'], [], []]
S6 = [['W3', 'B2', 'B3'], ['fL', 'pY', 'W4'], ['cY', 'h4.5.9.10', 'W5', 'B4', 'pL'], ['W6', 'B5', 'cL', 'h6.7.8'], ['W7', 'B6'], ['W8', 'B7'], ['W9', 'B8'], ['W10', 'B9'], ['B10'], [], []]
S7 = [['W3', 'B2', 'B3'], ['fL', 'pY', 'W4'], ['cY', 'B4', 'B5', 'W5'], ['pL', 'W6'], ['cL', 'B6', 'B7', 'W7'], ['W8', 'B8'], ['W9', 'B9'], ['W10', 'B10'], [], [], []]
S8 = [['W3', 'B2'], ['pY', 'W4', 'B3', 'cY', 'h4.5.9.10'], ['fL', 'W5', 'B4'], ['W6', 'B5', 'pL'], ['cL', 'h6.7.8', 'W7', 'B6'], ['W8', 'B7'], ['W9', 'B8'], ['W10', 'B9'], ['B10'], [], []]
S9 = [['W3', 'B2'], ['pY', 'W4', 'B3', 'cY', 'h4.5.9.10', 'fL'], ['W5', 'B4'], ['W6', 'pL', 'B5'], ['cL', 'h6.7.8', 'W7', 'B6'], ['W8', 'B7'], ['W9', 'B8'], ['W10', 'B9'], ['B10'], [], []]
T2 = [('o', 0), ('o', 2), ('o', 4), ('o', 6), ('y', 0), ('o', 1), ('o', 3), ('o', 5), ('y', 1), ('y', 2), ('y', 3)]
U1 = [['W3', 'B2'], ['fL', 'pY', 'W4', 'B3', 'cY', 'h4.8.9.10'], ['W5', 'B4'], ['pL', 'W6', 'cL', 'h6.7', 'B5'], ['W7', 'B6'], ['W8', 'B7'], ['W9', 'B8'], ['W10', 'B9'], ['B10'], [], []]
U2 = [['W3', 'B2'], ['pY', 'W4', 'B3', 'cY', 'h4.8.9.10', 'fL'], ['W5', 'B4'], ['W6', 'pL', 'B4x'], ['cL', 'h6.7', 'B5', 'W7', 'B6'], ['W8', 'B7'], ['W9', 'B8'], ['W10', 'B9'], ['B10'], [], []]
U2[3].remove('B4x')
U3 = [['W3', 'B2', 'B3'], ['fL', 'pY', 'W4', 'cY', 'B4'], ['W5', 'pL'], ['W6', 'cL', 'B5', 'B6'], ['W7', 'B7'], ['W8', 'B8'], ['W9', 'B9'], ['W10', 'B10'], [], [], []]
T3 = [('o', 0), ('o', 2), ('o', 4), ('o', 6), ('y', 0), ('y', 1), ('y', 2), ('y', 3), ('o', 1), ('o', 3), ('o', 5)]
V1 = [['W3', 'B2'], ['pY', 'W4', 'B3', 'cY', 'h4.5.6.7'], ['fL', 'W5', 'B4'], ['W6', 'B5'], ['W7', 'B6'], ['W8', 'B7', 'pL'], ['cL', 'h8.9.10', 'W9', 'B8'], ['W10', 'B9'], ['B10'], [], []]
V2 = [['W3', 'B2'], ['pY', 'W4', 'B3', 'cY', 'h4.5.6.7'], ['fL', 'W5', 'B4'], ['W6', 'B5'], ['W7', 'B6'], ['W8', 'pL', 'B7'], ['cL', 'h8.9.10', 'W9', 'B8'], ['W10', 'B9'], ['B10'], [], []]
V3 = [['W3', 'B2'], ['pY', 'W4', 'B3', 'cY', 'h4.5.6.7'], ['fL', 'W5', 'B4'], ['W6', 'B5'], ['W7', 'B6'], ['pL', 'W8', 'B7'], ['cL', 'h8.9.10', 'W9', 'B8'], ['W10', 'B9'], ['B10'], [], []]
V4 = [['W3', 'B2'], ['fL', 'pY', 'W4', 'B3', 'cY', 'h4.5.6.7'], ['W5', 'B4'], ['W6', 'B5'], ['W7', 'B6', 'pL'], ['W8', 'B7', 'cL', 'h8.9.10'], ['W9', 'B8'], ['W10', 'B9'], ['B10'], [], []]
V5 = [['W3', 'B2'], ['pY', 'W4', 'B3', 'cY', 'h4.5.6.7'], ['fL', 'W5', 'B4'], ['W6', 'B5'], ['W7', 'B6'], ['W8', 'B7'], ['pL', 'W9'], ['cL', 'h8.9.10', 'B8', 'W10', 'B9'], ['B10'], [], []]
V6 = [['W3', 'B2'], ['pY', 'W4', 'B3', 'cY', 'h4.5.6.7'], ['fL', 'W5', 'B4'], ['W6', 'B5'], ['W7', 'B6'], ['pL', 'W8', 'B7'], ['cL', 'h8.9.10', 'B8', 'W9'], ['W10', 'B9'], ['B10'], [], []]
V7 = [['W3', 'B2'], ['pY', 'W4', 'B3', 'cY', 'h4.5.6.7'], ['fL', 'W5', 'B4'], ['W6', 'B5'], ['W7', 'B6'], ['pL', 'W8', 'B7'], ['cL', 'W9', 'B8'], ['W10', 'B9'], ['B10'], [], []]
V8 = [['W3', 'B2'], ['pY', 'W4', 'B3', 'cY', 'h4.5.6.7', 'fL'], ['W5', 'B4'], ['W6', 'B5'], ['W7', 'B6'], ['pL', 'W8', 'B7'], ['cL', 'h8.9.10', 'W9', 'B8'], ['W10', 'B9'], ['B10'], [], []]
V9 = [['W3', 'B2'], ['pY', 'W4', 'B3', 'cY', 'h4.5.6.7'], ['W5', 'B4', 'fL'], ['W6', 'B5'], ['W7', 'B6'], ['W8', 'B7'], ['pL', 'W9', 'cL', 'h8.9.10', 'B8'], ['W10', 'B9'], ['B10'], [], []]
def addit(S, q, items, front=True):
    S = [list(x) for x in S]
    S[q] = (list(items) + S[q]) if front else (S[q] + list(items))
    return S
class Gen:
    def __init__(s, typ, e, ts=False, cfg=None):
        s.typ = typ; s.e = e; s.ts = ts
        s.cfg = dict(gA_issue=5, gB_issue=6, gA_proc=7, gB_proc=7, gBbar=8, offm='zero', fcs=3, budA=30, budB=24, budC=24, budD=24, pf=3, p2=True, budP=40, budP0=64, slack=1,
                     pE=10, cE=16, s3b=14, flEb=12, sched=DEF_SCHED, totb=12)
        if cfg: s.cfg.update(cfg)
        s.fill = deque(); s.events = set(); s.half = {}
        s.slow = []
        s.pacc = 0.5
        s.nlab = 0
        s.P = f'FZ{typ}'
        s.pend = []
        s.names = s.cfg.get('stamps', [])
        if s.cfg.get('sc3'):
            d = dict(types=[('o', 0), ('o', 2), ('o', 4), ('o', 6), ('y', 0), ('y', 1), ('o', 1), ('o', 3), ('o', 5), ('y', 2), ('y', 3)],
                     sched=SCHED3, totk=20, flEk=(1, 28), s3ik=None, s3pk=(1, 26), g1pos=2, pE=6, cE=14, nEB=2, tq=1)
            for k, v in d.items():
                if not cfg or k not in cfg: s.cfg[k] = v
        s.TYPES = s.cfg.get('types', Gen.TYPES)
    def I(s, t, tag=None): s.e.I(t, tag)
    def lab(s, n):
        s.nlab += 1; return f'{s.P}_{n}{s.nlab}'
    def stamp(s, name):
        if not s.ts or name not in s.names: return
        k = s.names.index(name) + 1
        used = [p[0] for p in s.pend]
        free = [r for r in TSPOOL if r not in used]
        if not free:
            s.flush_stamps(); free = list(TSPOOL)
        r = free[0]
        s.e.raw(f'{s.ts} s[{r}:{r+1}]')
        s.pend.append((r, k))
    def fstamp(s, name):
        return Fn(lambda: s.stamp(name), 0)
    def flush_stamps(s):
        if not s.pend: return
        s.e.force_wait('lgkmcnt(0)')
        for r, k in s.pend: s.I(f'v_writelane_b32 v{vTS}, s{r}, {k}')
        s.pend = []
    def final_stamps(s):
        if not s.ts: return
        s.flush_stamps()
        I = s.I
        I(f's_lshl_b32 s{sTmp}, s2, 2'); I(f's_add_u32 s{sTmp}, s{sTmp}, s{sw}'); I(f's_lshl_b32 s{sTmp}, s{sTmp}, 8'); I(f's_add_u32 s{sTmp}, s{sTmp}, {WS_TS}')
        I(f'v_lshlrev_b32 v{vDUM}, 2, v{vL}')
        I(f'buffer_store_dword v{vTS}, v{vDUM}, s[{sWS}:{sWS+3}], s{sTmp} offen')
    def add(s, items):
        for x in items: s.fill.append(x)
    def addfront(s, items):
        for x in reversed(items): s.fill.appendleft(x)
    def gate(s, ev): return ('gate', ev)
    def mark(s, ev): return ('mark', ev)
    def emit1(s, x):
        if isinstance(x, Atom):
            for y in x.items: s.emit1(y)
        elif isinstance(x, Fn): x.f()
        elif isinstance(x, tuple): s.I(x[0], x[1])
        else: s.I(x)
    def run_fill(s, budget):
        while s.fill:
            x = s.fill[0]
            if isctl(x, 'gate'):
                if x[1] in s.events: s.fill.popleft(); continue
                return
            if isctl(x, 'mark'):
                s.fill.popleft(); s.events.add(x[1]); continue
            c = icost(x)
            if c > budget + s.cfg['slack'] and not (c > 20 and budget >= 12): return
            n0 = s.e.n
            s.fill.popleft(); s.emit1(x); budget -= max(c, 4 * (s.e.n - n0))
    def gap(s, n0, G):
        s.run_fill(G - 4 * (s.e.n - n0))
    def pace(s, dma, left):
        if not dma: s.pacc = s.cfg.get('pacc0', 0.5); return
        s.pacc += len(dma) / max(left, 1)
        n = int(s.pacc + 1e-9); s.pacc -= n
        for _ in range(min(n, len(dma))): dma.popleft()()
        if not dma: s.pacc = s.cfg.get('pacc0', 0.5)
    def atom(s, lst): return Atom(lst)
    def capture(s, fn):
        rec = []
        old = s.I
        s.I = lambda t, tag=None: rec.append((t, tag) if tag else t)
        fn()
        s.I = old
        out = []; i = 0
        txt = lambda x: x[0] if isinstance(x, tuple) else x
        while i < len(rec):
            t = txt(rec[i])
            if t.startswith(('s_cmp', 's_bitcmp')):
                j = i + 1
                while j < len(rec) and txt(rec[j]).startswith('s_cselect'): j += 1
                out.append(Atom(rec[i:j])); i = j
            elif t.startswith('v_cmp') and ' vcc,' in t:
                j = i + 1
                while j < len(rec) and txt(rec[j]).startswith('v_cndmask') and txt(rec[j]).endswith('vcc'): j += 1
                assert j > i + 1, t
                out.append(Atom(rec[i:j])); i = j
            else: out.append(rec[i]); i += 1
        return out
    def until(s, ev):
        while ev not in s.events:
            assert s.fill, ev
            x = s.fill[0]
            if isctl(x, 'gate'): assert x[1] in s.events, (ev, x)
            s.run_fill(64)
    def drain(s):
        while s.fill:
            x = s.fill[0]
            if isctl(x, 'gate'): assert x[1] in s.events, x
            s.run_fill(10**9)
    def addr(s, reg, slot):
        h = slot >> 1
        if s.half.get(reg, 0) != h:
            s.I(f'v_add_u32 v{reg}, {HALF}, v{reg}' if h else f'v_subrev_u32 v{reg}, {HALF}, v{reg}')
            s.half[reg] = h
        return (slot & 1) * SLOT
    def barrier(s, name, wait_tag=None):
        e = s.e
        s.stamp('pre' + name)
        if wait_tag: e.wait_tag(wait_tag)
        e.barrier()
        s.events.add(name)
        s.stamp(name)
        s.flush_stamps()
    def rd_x(s, st, ks, t):
        a = ((4 * st + ks) * 2 + t) * 4
        def f():
            o = s.addr(vXA + ks, st & 3)
            s.I(f'ds_read_b128 a[{a}:{a+3}], v{vXA+ks} offset:{o+4096*t}')
        return [f]
    def rd_S(s, st, ks, dst):
        def f():
            o = s.addr(vSS + ks, st & 3)
            s.I(f'ds_read_b128 v[{dst}:{dst+3}], v{vSS+ks} offset:{o}')
        return [f]
    def rd_W(s, slot, off, dst):
        def f1():
            o = s.addr(vG, slot)
            s.I(f'ds_read_b64_tr_b16 v[{dst}:{dst+1}], v{vG} offset:{o+off}')
        def f2():
            o = s.addr(vG, slot)
            s.I(f'ds_read_b64_tr_b16 v[{dst+2}:{dst+3}], v{vG} offset:{o+off+512}')
        return [f1, f2]
    def mkdma(s, ops, tag):
        out = []
        for pre, ins in ops:
            def f(pre=pre, ins=ins):
                for p in pre: s.I(p)
                s.I(ins, tag)
            out.append(f)
        return out
    def dma_list(s, st):
        ops = []
        slot = (st & 3) * SLOT
        if st < 8:
            pre = [f's_add_u32 s{sKa}, s{sOff}, {st}', f's_and_b32 s{sKa}, s{sKa}, 7', f's_lshl_b32 s{sKb}, s{sKa}, 7',
                   f's_add_u32 s{sKc}, s{sXo}, s{sKb}', f's_add_u32 m0, s{sW12}, {slot}']
            for A in range(4):
                ops.append((pre if A == 0 else [], f'buffer_load_dwordx4 v{vDX+A}, s[{sX}:{sX+3}], s{sKc} offen offset:{1024*A} lds'))
            pre = [f's_add_u32 s{sKc}, s{sSo}, s{sKb}', f's_add_u32 m0, s{sW11}, {slot+16384}']
            for i in range(2):
                ops.append((pre if i == 0 else [], f'buffer_load_dwordx4 v{vDS+i}, s[{sSB}:{sSB+3}], s{sKc} offen offset:{1024*i} lds'))
            pre = [f's_mul_i32 s{sKc}, s{sKa}, {WCH}', f's_add_u32 s{sKc}, s{sKc}, s{sFo}', f's_add_u32 m0, s{sW11}, {slot+24576}']
            for i in range(2):
                ops.append((pre if i == 0 else [], f'buffer_load_dwordx4 v{vDF+i}, s[{sW1}:{sW1+3}], s{sKc} offen offset:{1024*i} lds'))
        else:
            p = (st - 8) >> 1; vs = st & 1
            srd = sW1 if p == 1 else sW3
            line = 128 if p >= 1 else 0
            pre = [f's_add_u32 s{sKa}, s{sOff}, s{sw}', f's_add_u32 s{sKa}, s{sKa}, {4*vs}', f's_and_b32 s{sKa}, s{sKa}, 7',
                   f's_mul_i32 s{sKc}, s{sKa}, {WCH}', f's_add_u32 s{sKc}, s{sKc}, s{sSo2}']
            if line: pre.append(f's_add_u32 s{sKc}, s{sKc}, {line}')
            pre.append(f's_add_u32 m0, s{sW13}, {slot}')
            for i in range(4):
                ops.append((pre if i == 0 else [], f'buffer_load_dwordx4 v{vDF+i}, s[{srd}:{srd+3}], s{sKc} offen offset:{1024*i} lds'))
            pre = [f's_add_u32 s{sKc}, s{sKc}, {32*WROW}', f's_add_u32 m0, s{sW13}, {slot+4096}']
            for i in range(4):
                ops.append((pre if i == 0 else [], f'buffer_load_dwordx4 v{vDF+i}, s[{srd}:{srd+3}], s{sKc} offen offset:{1024*i} lds'))
        return s.mkdma(ops, f'D{st}')
    def dma_csc(s):
        ops = []
        nl = 2 if s.typ == 'H' else 1
        for X in range(nl):
            pre = [f's_mul_i32 s{sKc}, s{sRho}, {WCH}', f's_add_u32 s{sKc}, s{sKc}, s{sFo}']
            if X: pre.append(f's_add_u32 s{sKc}, s{sKc}, 128')
            pre.append(f's_add_u32 m0, s{sW11}, {L_CSC + X*8192}')
            for i in range(2):
                ops.append((pre if i == 0 else [], f'buffer_load_dwordx4 v{vDF+i}, s[{sCSC}:{sCSC+3}], s{sKc} offen offset:{1024*i} lds'))
        return s.mkdma(ops, 'CSC')

    XR, SR, PR, NP = 96, 104, 108, 114
    SV = 152
    def inter(s, vms, alus, per):
        alus = deque(alus)
        for f in vms:
            f()
            bud = per
            while alus and bud > 0:
                x = alus.popleft(); n0 = s.e.n; s.emit1(x); bud -= max(icost(x), 4 * (s.e.n - n0))
        while alus: s.emit1(alus.popleft())
    def prologue(s):
        e = s.e; I = s.I; typ = s.typ; cfg = s.cfg
        a, b, c, d = 240, 241, 242, 243
        XR, SR, PR, NP = s.XR, s.SR, s.PR, s.NP
        s.stamp('karg')
        I(f's_mov_b64 s[{sX}:{sX+1}], s[{kX}:{kX+1}]')
        I(f's_mov_b64 s[{sDBG}:{sDBG+1}], s[{kDbg}:{kDbg+1}]')
        Ln = s.lab('nn')
        I(f's_or_b32 s{sTmp2}, s2, s{sw}'); I(f's_cmp_eq_u32 s{sTmp2}, 0'); e.raw(f's_cbranch_scc0 {Ln}')
        I(f's_or_b32 s{sTmp}, s{sSB}, 1')
        I(f'v_mov_b32 v{a}, s{sTmp}'); I(f'v_lshlrev_b32 v{b}, 10, v{vL}')
        I(f'buffer_store_dword v{a}, v{b}, s[{sDBG}:{sDBG+3}], 0 offen sc1')
        e.label(Ln)
        I(f'buffer_load_dwordx4 v[{XR}:{XR+3}], v{vHB}, s[{sX}:{sX+3}], s{sGa} offen', 'XR')
        I(f'buffer_load_dwordx4 v[{XR+4}:{XR+7}], v{vHB}, s[{sX}:{sX+3}], s{sGa} offen offset:1024', 'XR')
        I(f's_mov_b64 s[{sW1}:{sW1+1}], s[{kW1}:{kW1+1}]')
        I(f's_cmp_eq_u32 s{sCp}, 0'); I(f's_cselect_b64 s[{sSB}:{sSB+1}], s[{kBre}:{kBre+1}], s[{kBim}:{kBim+1}]')
        I(f's_bitcmp1_b32 s{sR}, 2'); I(f's_cselect_b64 s[{sTmp}:{sTmp+1}], s[{kBim}:{kBim+1}], s[{kBre}:{kBre+1}]')
        I(f'global_load_dwordx4 v[{SR}:{SR+3}], v{SR}, s[{sTmp}:{sTmp+1}]', 'SR')
        for k, src in enumerate((kLre, kLim, kLdt)): I(f'global_load_ushort v{PR+k}, v{PR+3}, s[{src}:{src+1}]', 'PR')
        I(f's_mov_b64 s[{sWS}:{sWS+1}], s[{kWs}:{kWs+1}]')
        I(f's_mov_b64 s[{sW3}:{sW3+1}], s[{kW3}:{kW3+1}]')
        I(f's_and_b32 s{sTmp}, s{sR}, 1'); I(f's_cmp_eq_u32 s{sTmp}, 0'); I(f's_cselect_b64 s[{sCSC}:{sCSC+1}], s[{kW1}:{kW1+1}], s[{kW3}:{kW3+1}]')
        s.stamp('q0')
        pe = s.capture(s.p2_srd) + s.capture(s.p2_early)
        s.inter(s.dma_list(0), pe + s.s_setup(), cfg.get('per0', 56))
        s.stamp('q1')
        I(f's_lshr_b32 s{sGa}, s{sGa}, 7'); I(f's_add_u32 s{sGa}, s{sGa}, {WS_STATS}')
        I(f'v_mov_b32 v{NP+1}, 0')
        def np_():
            I(f'buffer_load_dword v{NP}, v{NP+1}, s[{sDBG}:{sDBG+3}], 0 offen sc1', 'NP')
        e.wait_tag('XR')
        s.stamp('q2')
        st_ = s.capture(s.stats_x); ss_ = s.capture(s.stats_s)
        s.inter([np_] + s.dma_list(1) + s.pf1_list(), st_ + ss_, cfg.get('per1', 56))
        s.stamp('q4')
        s.barrier('B0', 'D0')

    def pf1_list(s):
        m = s.cfg.get('pf1', 0); I = s.I; out = []
        va, vb = 244, 245
        if m & 1:
            def fx():
                I(f'v_lshlrev_b32 v{va}, 3, v{vHB}')
                I(f's_lshl_b32 s{sKa}, s{sR}, 17'); I(f's_lshl_b32 s{sKb}, s{sU}, 15'); I(f's_add_u32 s{sKa}, s{sKa}, s{sKb}')
                I(f's_lshl_b32 s{sKb}, s{sw}, 13'); I(f's_add_u32 s{sKa}, s{sKa}, s{sKb}')
                I(f'buffer_load_dword v{vDUM}, v{va}, s[{sX}:{sX+3}], s{sKa} offen', 'PF')
            out.append(fx)
        if m & 2:
            def fs():
                I(f'v_lshlrev_b32 v{vb}, 3, v{vHB}'); I(f'v_mov_b32 v{va}, {OOB}')
                I(f'v_cndmask_b32 v{vb}, v{vb}, v{va}, s[{sMhi}:{sMhi+1}]')
                I(f's_lshl_b32 s{sKa}, s{sC}, 15'); I(f's_lshl_b32 s{sKb}, s{sRho}, 12'); I(f's_add_u32 s{sKa}, s{sKa}, s{sKb}')
                I(f's_cmp_eq_u32 s{sTp}, 0'); I(f's_cselect_b32 s{sKa}, s{sKa}, {OOB}')
                I(f'buffer_load_dword v{vDUM}, v{vb}, s[{sSB}:{sSB+3}], s{sKa} offen', 'PF')
            out.append(fs)
        if m & 4:
            def fw():
                I(f'v_mul_u32_u24 v{va}, {WROW}, v{vL}')
                I(f's_cmp_eq_u32 s{sCp}, 0'); I(f's_cselect_b64 s[{sBad}:{sBad+1}], s[{sW1}:{sW1+1}], s[{sW3}:{sW3+1}]')
                I(f's_mov_b32 s{sBad+2}, {512*1792*2}'); I(f's_mov_b32 s{sBad+3}, 0x00020000')
                I(f's_mul_i32 s{sKa}, s{sRho}, {WCH}'); I(f's_add_u32 s{sKa}, s{sKa}, s{sSo2}')
                I(f's_add_u32 s{sKb}, s{sKa}, 128')
                if s.typ == 'L': I(f's_mov_b32 s{sKb}, {OOB}')
                I(f's_cmp_eq_u32 s{sTp}, 0'); I(f's_cselect_b32 s{sKa}, s{sKb}, s{sKa}')
                I(f'buffer_load_dword v{vDUM}, v{va}, s[{sBad}:{sBad+3}], s{sKa} offen', 'PF')
            out.append(fw)
        return out
    def pf2_item(s, unit, k):
        I = s.I
        def f():
            I(f'v_lshlrev_b32 v{vPo}, 3, v{vHB}')
            I(f's_mul_i32 s{sKa}, s{sRho}, 3'); I(f's_add_u32 s{sKa}, s{sKa}, s{sU}'); I(f's_lshl_b32 s{sKa}, s{sKa}, 2'); I(f's_add_u32 s{sKa}, s{sKa}, s{sw}')
            if k % 3:
                I(f's_add_u32 s{sKa}, s{sKa}, {32 * (k % 3)}'); I(f's_sub_u32 s{sKb}, s{sKa}, 96'); I(f's_cmp_ge_u32 s{sKa}, 96'); I(f's_cselect_b32 s{sKa}, s{sKb}, s{sKa}')
            if unit in ('r', 'i'):
                I(f's_lshl_b32 s{sKa}, s{sKa}, 13'); srd = sCRE if unit == 'r' else sCIM
            else:
                j = unit
                I(f's_lshr_b32 s{sKb}, s{sKa}, 3'); I(f's_mul_i32 s{sKb}, s{sKb}, {7*65536}'); I(f's_and_b32 s{sKa}, s{sKa}, 7'); I(f's_lshl_b32 s{sKa}, s{sKa}, 13')
                I(f's_add_u32 s{sKa}, s{sKa}, s{sKb}')
                if j: I(f's_add_u32 s{sKa}, s{sKa}, {j*65536}')
                srd = sW2
            I(f'buffer_load_dword v{vDUM}, v{vPo}, s[{srd}:{srd+3}], s{sKa} offen', 'PF')
        return f
    def pfL(s, pos):
        I = s.I; out = []
        va, vb = 100, 101
        for unit in s.cfg.get('pfL', {}).get(pos, ()):
            def f(unit=unit):
                if not getattr(s, 'pfl_init', False):
                    s.pfl_init = True
                    I(f'v_lshlrev_b32 v{va}, 3, v{vHB}')
                    I(f'v_lshrrev_b32 v{vb}, 2, v{vL}'); I(f'v_lshlrev_b32 v{vb}, 10, v{vb}'); I(f'v_and_b32 v{va+2}, 3, v{vL}'); I(f'v_lshl_add_u32 v{vb}, v{va+2}, 8, v{vb}')
                I(f's_lshl_b32 s{sKa}, s{sRho}, 2'); I(f's_add_u32 s{sKa}, s{sKa}, s{sw}')
                if isinstance(unit, str):
                    I(f's_lshl_b32 s{sKa}, s{sKa}, 14')
                    if unit[1] == '1': I(f's_add_u32 s{sKa}, s{sKa}, 128')
                    srd = sCRE if unit[0] == 'r' else sCIM; v = vb
                else:
                    I(f's_lshr_b32 s{sKb}, s{sKa}, 3'); I(f's_mul_i32 s{sKb}, s{sKb}, {7*65536}'); I(f's_and_b32 s{sKa}, s{sKa}, 7'); I(f's_lshl_b32 s{sKa}, s{sKa}, 13')
                    I(f's_add_u32 s{sKa}, s{sKa}, s{sKb}')
                    if unit: I(f's_add_u32 s{sKa}, s{sKa}, {unit*65536}')
                    srd = sW2; v = va
                I(f'buffer_load_dword v{vDUM}, v{v}, s[{srd}:{srd+3}], s{sKa} offen', 'PF')
            out.append(f)
        return out
    def pre_karg(s):
        I = s.I; a = 240
        SR, PR = s.SR, s.PR
        I(f's_lshl_b32 s{sTmp}, s{sR}, 7'); I(f's_lshl_b32 s{sTmp2}, s{sC}, 3'); I(f's_add_u32 s{sTmp}, s{sTmp}, s{sTmp2}')
        I(f's_lshl_b32 s{sTmp2}, s{sw}, 1'); I(f's_add_u32 s{sTmp}, s{sTmp}, s{sTmp2}')
        I(f's_lshl_b32 s{sGa}, s{sTmp}, 10')
        I(f's_lshr_b32 s{sTmp3}, s{sR}, 3'); I(f's_lshl_b32 s{sTmp3}, s{sTmp3}, 4')
        I(f's_and_b32 s{sTmp}, s{sR}, 3'); I(f's_lshl_b32 s{sTmp}, s{sTmp}, 2'); I(f's_add_u32 s{sTmp3}, s{sTmp3}, s{sTmp}')
        I(f's_lshl_b32 s{sTmp}, s{sC}, 5'); I(f's_add_u32 s{sTmp3}, s{sTmp3}, s{sTmp}'); I(f's_add_u32 s{sTmp3}, s{sTmp3}, s{sw}')
        I(f's_lshl_b32 s{sTmp3}, s{sTmp3}, 10'); I(f'v_add_u32 v{SR}, s{sTmp3}, v{vHB}')
        I(f's_lshl_b32 s{sGb}, s{sR}, 2'); I(f's_add_u32 s{sGb}, s{sGb}, s{sw}'); I(f's_lshl_b32 s{sGb}, s{sGb}, 3')
        I(f's_lshl_b32 s{sTmp3}, s{sC}, 9'); I(f's_add_u32 s{sGb}, s{sGb}, s{sTmp3}'); I(f's_add_u32 s{sGb}, s{sGb}, {WS_CSS}')
        I(f'v_and_b32 v{a}, 31, v{vL}'); I(f'v_lshlrev_b32 v{a}, 1, v{a}')
        I(f's_lshl_b32 s{sTmp}, s{sC}, 6'); I(f'v_add_u32 v{PR+3}, s{sTmp}, v{a}')

    def p2_srd(s):
        I = s.I
        for dst, src, n in ((sW2, kW2, 1792*512*2), (sCRE, kCre, 512*512*2), (sCIM, kCim, 512*512*2), (sOUT, kOut, 2048*512*4)):
            I(f's_mov_b64 s[{dst}:{dst+1}], s[{src}:{src+1}]'); I(f's_mov_b32 s{dst+2}, {n}'); I(f's_mov_b32 s{dst+3}, 0x00020000')
    def p2_early(s):
        I = s.I; a, b, c, d = 240, 241, 242, 243
        I(f's_and_b32 s{sTmp}, s2, 7'); I(f's_lshl_b32 s{sTmp}, s{sTmp}, 2'); I(f's_add_u32 s{sTmp}, s{sTmp}, s{sU}')
        I(f's_mul_i32 s{sTmp2}, s{sTmp}, {2*TSTRIDE}')
        I(f's_mul_i32 s{sBE}, s{sw}, 28672'); I(f's_add_u32 s{sBE}, s{sBE}, s{sTmp2}')
        I(f's_lshl_b32 s{sBY}, s{sw}, 14'); I(f's_add_u32 s{sBY}, s{sBY}, s{sTmp2}'); I(f's_add_u32 s{sBY}, s{sBY}, 114688')
        sDt = sRho
        if s.cfg.get('dtx', 0):
            sDt = sTmp3; I(f's_xor_b32 s{sDt}, s{sRho}, {s.cfg["dtx"]}')
        I(f's_mul_i32 s{sRowW}, s{sw}, {7*65536}'); I(f's_lshl_b32 s{sDko}, s{sDt}, 7'); I(f's_add_u32 s{sRowW}, s{sRowW}, s{sDko}')
        I(f's_lshl_b32 s{sCrow}, s{sDt}, 16'); I(f's_lshl_b32 s{sTmp2}, s{sw}, 8'); I(f's_add_u32 s{sCrow}, s{sCrow}, s{sTmp2}')
        I(f's_lshl_b32 s{sFlC}, s{sTmp}, 2'); I(f's_add_u32 s{sFlC}, s{sFlC}, s{sw}'); I(f's_lshl_b32 s{sFlC}, s{sFlC}, 7'); I(f's_add_u32 s{sFlC}, s{sFlC}, {WS_FL + s.cfg.get("floff", 0)}')
        I(f's_lshl_b32 s{sTmp}, s{sTmp}, 6'); I(f's_lshl_b32 s{sTmp2}, s{sw}, 4'); I(f's_add_u32 s{sTmp}, s{sTmp}, s{sTmp2}')
        I(f's_lshl_b32 s{sXb}, s{sTmp}, 10'); I(f's_add_u32 s{sXb}, s{sXb}, s{sDko}')
        I(f's_lshl_b32 s{sOb}, s{sXb}, 1')
        I(f's_lshl_b32 s{sSb}, s{sTmp}, 3'); I(f's_add_u32 s{sSb}, s{sSb}, {WS_STATS}')
        I(f's_lshl_b32 s{sFlP}, s{sR}, 1'); I(f's_add_u32 s{sFlP}, s{sFlP}, s{sTp}'); I(f's_lshl_b32 s{sFlP}, s{sFlP}, 2'); I(f's_add_u32 s{sFlP}, s{sFlP}, s{sG}')
        I(f's_lshl_b32 s{sFlP}, s{sFlP}, 7'); I(f's_lshl_b32 s{sTmp}, s{sU}, 1'); I(f's_add_u32 s{sTmp}, s{sTmp}, s{sCp}'); I(f's_lshl_b32 s{sTmp}, s{sTmp}, 2')
        I(f's_add_u32 s{sFlP}, s{sFlP}, s{sTmp}'); I(f's_add_u32 s{sFlP}, s{sFlP}, {WS_FL + s.cfg.get("floff", 0)}')
        I(f'v_bfe_u32 v{a}, v{vL}, 4, 1'); I(f'v_lshlrev_b32 v{a}, 2, v{a}'); I(f'v_and_b32 v{b}, 7, v{vL}'); I(f'v_xor_b32 v{a}, v{a}, v{b}')
        I(f'v_lshrrev_b32 v{c}, 3, v{vL}'); I(f'v_lshlrev_b32 v{c}, 10, v{c}'); I(f'v_lshl_add_u32 v{vW}, v{a}, 4, v{c}')
        for i in range(1, 4): I(f'v_add_u32 v{vW+i}, {7168*i}, v{vW}')
        I(f'v_lshrrev_b32 v{a}, 5, v{vL}'); I(f'v_lshlrev_b32 v{a}, 2, v{a}'); I(f'v_bfe_u32 v{c}, v{vL}, 2, 2'); I(f'v_add_u32 v{a}, v{a}, v{c}')
        I(f'v_lshlrev_b32 v{a}, 7, v{a}'); I(f'v_lshrrev_b32 v{c}, 1, v{c}'); I(f'v_lshlrev_b32 v{c}, 6, v{c}'); I(f'v_add_u32 v{a}, v{a}, v{c}')
        I(f'v_bfe_u32 v{c}, v{vL}, 4, 1'); I(f'v_lshl_add_u32 v{a}, v{c}, 5, v{a}'); I(f'v_and_b32 v{c}, 3, v{vL}'); I(f'v_lshl_add_u32 v{a}, v{c}, 3, v{a}')
        I(f'v_add_u32 v{vA0}, s{sW13}, v{a}'); I(f'v_xor_b32 v{vA1}, 64, v{vA0}')
        I(f'v_add_u32 v{vB1}, {TSTRIDE}, v{vHB}')
        I(f'v_and_b32 v{vPl}, 31, v{vL}'); I(f'v_lshlrev_b32 v{vPl}, 2, v{vPl}')

    def lds_addrs(s):
        I = s.I; a, b, c, d = 240, 241, 242, 243
        I(f'v_and_b32 v{a}, 31, v{vL}'); I(f'v_bfe_u32 v{b}, v{vL}, 1, 3'); I(f'v_lshrrev_b32 v{c}, 5, v{vL}'); I(f'v_xor_b32 v{b}, v{b}, v{c}')
        I(f'v_lshlrev_b32 v{b}, 4, v{b}')
        I(f'v_lshl_add_u32 v{d}, v{a}, 7, v{b}')
        I(f's_lshl_b32 s{sTmp}, s{sTp}, 13')
        I(f'v_add_u32 v{vXA}, s{sTmp}, v{d}')
        for k in range(1, 4): I(f'v_xor_b32 v{vXA+k}, {32*k}, v{vXA}')
        I(f'v_lshrrev_b32 v{c}, 3, v{a}'); I(f'v_lshlrev_b32 v{c}, 11, v{c}'); I(f'v_and_b32 v{d}, 7, v{a}'); I(f'v_lshl_add_u32 v{c}, v{d}, 7, v{c}')
        I(f'v_add_u32 v{c}, v{c}, v{b}'); I(f's_lshl_b32 s{sTmp}, s{sCp}, 10'); I(f's_add_u32 s{sTmp}, s{sTmp}, 16384')
        I(f'v_add_u32 v{vSS}, s{sTmp}, v{c}')
        for k in range(1, 4): I(f'v_xor_b32 v{vSS+k}, {32*k}, v{vSS}')
        I(f'v_lshrrev_b32 v{b}, 5, v{vL}'); I(f'v_bfe_u32 v{c}, v{vL}, 2, 2'); I(f'v_lshl_add_u32 v{b}, v{b}, 3, v{c}')
        I(f'v_and_b32 v{d}, 3, v{vL}'); I(f'v_lshlrev_b32 v{d}, 3, v{d}'); I(f'v_lshl_add_u32 v{d}, v{b}, 7, v{d}')
        I(f'v_bfe_u32 v{a}, v{vL}, 4, 1'); I(f'v_lshl_add_u32 v{d}, v{a}, 5, v{d}')
        I(f'v_lshrrev_b32 v{c}, 1, v{c}'); I(f'v_lshlrev_b32 v{c}, 6, v{c}'); I(f'v_add_u32 v{d}, v{d}, v{c}')
        I(f's_lshl_b32 s{sTmp}, s{sCp}, 6'); I(f'v_xor_b32 v{vG}, s{sTmp}, v{d}')
        I(f's_lshl_b32 s{sTmp}, s{sTp}, 6'); I(f'v_xor_b32 v{vCA}, s{sTmp}, v{d}')
        I(f's_lshl_b32 s{sTmp}, s{sCp}, 13'); I(f's_cmp_eq_u32 s{sU}, 3'); I(f's_cselect_b32 s{sTmp}, 0, s{sTmp}'); I(f's_add_u32 s{sTmp}, s{sTmp}, {L_CSC}')
        I(f'v_add_u32 v{vCA}, s{sTmp}, v{vCA}')
        I(f's_mov_b32 s{sMhi}, 0'); I(f's_mov_b32 s{sMhi+1}, -1')
        I(f's_mov_b32 s{sModd}, 0xffff0000'); I(f's_mov_b32 s{sModd+1}, 0xffff0000')
        I(f's_lshl_b32 s{sTmp}, s{sR}, 2'); I(f's_lshl_b32 s{sTmp2}, s{sTp}, 1'); I(f's_add_u32 s{sTmp}, s{sTmp}, s{sTmp2}')
        I(f's_mul_i32 s{sTg0}, s{sTmp}, {TSTRIDE}')
        I(f's_lshl_b32 s{sTmp}, s{sSo2}, 5')
        I(f's_lshl_b32 s{sTmp2}, s{sCp}, 11'); I(f's_add_u32 s{sTmp}, s{sTmp}, s{sTmp2}'); I(f's_add_u32 s{sHF}, s{sTg0}, s{sTmp}')
        z = 116
        for k in range(4): I(f'v_mov_b32 v{z+k}, 0')
        I(f'v_add_u32 v{a}, {L_TOTZ}, v{vHB}'); I(f'ds_write_b128 v{a}, v[{z}:{z+3}]')

    def tab(s):
        I = s.I; PR = s.PR
        n, u, v_, lr, li, t0, t1, t2, t3, wa, un, vn = range(116, 128)
        P = 148
        I(f'v_lshrrev_b32 v{t0}, 5, v{vL}')
        I(f's_lshl_b32 s{sTmp}, s{sw}, 1'); I(f's_lshl_b32 s{sTmp}, 8, s{sTmp}')
        I(f'v_mul_u32_u24 v{n}, s{sTmp}, v{t0}')
        I(f's_cmp_eq_u32 s{sw}, 3'); I(f's_cselect_b64 s[{sBad}:{sBad+1}], -1, 0'); I(f's_cselect_b32 s{sMsel}, -1, 0')
        I(f's_mov_b32 s{sMsel+1}, 0')
        I(f'v_mul_u32_u24 v{t1}, 511, v{t0}'); I(f'v_add_u32 v{t1}, 1, v{t1}')
        I(f'v_cndmask_b32 v{t1}, v{n}, v{t1}, s[{sBad}:{sBad+1}]'); I(f'v_cvt_f32_u32 v{t1}, v{t1}')
        I(f's_lshl_b32 s{sTmp}, s{sTmp}, 1'); I(f'v_add_u32 v{n}, s{sTmp}, v{n}')
        I(f'v_cndmask_b32 v{n}, v{n}, 1, s[{sBad}:{sBad+1}]'); I(f'v_cvt_f32_u32 v{n}, v{n}')
        I(f'v_bfe_u32 v{wa}, v{vL}, 4, 1'); I(f'v_lshlrev_b32 v{wa}, 11, v{wa}'); I(f'v_lshl_add_u32 v{wa}, v{t0}, 7, v{wa}')
        I(f'v_and_b32 v{t0}, 15, v{vL}'); I(f'v_lshl_add_u32 v{wa}, v{t0}, 3, v{wa}')
        I(f's_lshl_b32 s{sTmp}, s{sw}, 9'); I(f's_add_u32 s{sTmp}, s{sTmp}, {L_TAB}'); I(f'v_add_u32 v{wa}, s{sTmp}, v{wa}')
        I(f'v_lshlrev_b32 v{lr}, 16, v{PR}'); I(f'v_lshlrev_b32 v{li}, 16, v{PR+1}'); I(f'v_lshlrev_b32 v{t0}, 16, v{PR+2}')
        I(f'v_mul_f32 v{t0}, {LOG2E:#x}, v{t0}'); I(f'v_exp_f32 v{t0}, v{t0}')
        I(f'v_cvt_pk_bf16_f32 v{t0}, v{t0}, v{t0}'); I(f'v_lshlrev_b32 v{t0}, 16, v{t0}')
        I(f'v_mul_f32 v{u}, v{t0}, v{lr}'); I(f'v_mul_f32 v{v_}, v{t0}, v{li}')
        I(f'v_mul_f32 v{u}, {LOG2E:#x}, v{u}'); I(f'v_mul_f32 v{v_}, {INV2PI:#x}, v{v_}')
        for j, nn in ((0, t1), (1, n)):
            I(f'v_mul_f32 v{un}, v{nn}, v{u}'); I(f'v_mul_f32 v{vn}, v{nn}, v{v_}')
            I(f'v_exp_f32 v{un}, v{un}'); I(f'v_fract_f32 v{vn}, v{vn}')
            I(f'v_cos_f32 v{t0}, v{vn}'); I(f'v_sin_f32 v{t2}, v{vn}')
            I(f'v_mul_f32 v{P}, v{un}, v{t0}'); I(f'v_mul_f32 v{P+1}, v{un}, v{t2}')
            if j == 1:
                I(f'v_add_f32 v{t0}, -1.0, v{P}')
                I(f'v_mul_f32 v{t1}, v{lr}, v{lr}'); I(f'v_fma_f32 v{t1}, v{li}, v{li}, v{t1}'); I(f'v_rcp_f32 v{t1}, v{t1}')
                I(f'v_mul_f32 v{t2}, v{t0}, v{lr}'); I(f'v_fma_f32 v{t2}, v{P+1}, v{li}, v{t2}')
                I(f'v_mul_f32 v{t3}, v{P+1}, v{lr}'); I(f'v_fma_f32 v{t3}, -v{t0}, v{li}, v{t3}')
                I(f'v_add_f32 v{t1}, v{t1}, v{t1}')
                I(f'v_mul_f32 v{t2}, v{t2}, v{t1}'); I(f'v_mul_f32 v{t3}, v{t3}, v{t1}')
                I(f'v_cndmask_b32 v{P}, v{P}, v{t2}, s[{sMsel}:{sMsel+1}]'); I(f'v_cndmask_b32 v{P+1}, v{P+1}, v{t3}, s[{sMsel}:{sMsel+1}]')
            I(f'ds_write_b64 v{wa}, v[{P}:{P+1}] offset:{256*j}')

    def stats_x(s):
        I = s.I; XR = s.XR; SV = s.SV
        F = 128
        for r in range(2):
            for k in range(4):
                I(f'v_lshlrev_b32 v{F+8*r+2*k}, 16, v{XR+4*r+k}'); I(f'v_and_b32 v{F+8*r+2*k+1}, 0xffff0000, v{XR+4*r+k}')
        pa, pb, t0, t1 = 144, 145, 146, 147
        def reduce2(pa, pb):
            I(f'v_permlane32_swap_b32 v{pa}, v{pb}'); I(f'v_add_f32 v{pa}, v{pa}, v{pb}')
            I(f'v_mov_b32 v{pb}, v{pa}'); I(f'v_permlane16_swap_b32 v{pa}, v{pb}'); I(f'v_add_f32 v{pa}, v{pa}, v{pb}')
            for k in (8, 4, 2, 1): I(f'v_add_f32_dpp v{pa}, v{pa}, v{pa} row_ror:{k} row_mask:0xf bank_mask:0xf')
            I(f'v_mov_b32 v{pb}, v{pa}'); I(f'v_permlane32_swap_b32 v{pa}, v{pb}')
        for k in range(1, 8):
            for r, p in ((0, pa), (1, pb)):
                if k == 1: I(f'v_add_f32 v{p}, v{F+8*r}, v{F+8*r+1}')
                else: I(f'v_add_f32 v{p}, v{p}, v{F+8*r+k}')
        reduce2(pa, pb)
        I(f'v_mul_f32 v{t0}, 0x3b000000, v{pa}'); I(f'v_mul_f32 v{t1}, 0x3b000000, v{pb}')
        for r, m in ((0, t0), (1, t1)):
            for k in range(8): I(f'v_sub_f32 v{F+8*r+k}, v{F+8*r+k}, v{m}')
        for k in range(8):
            for r, p in ((0, pa), (1, pb)):
                if k == 0: I(f'v_mul_f32 v{p}, v{F+8*r}, v{F+8*r}')
                else: I(f'v_fmac_f32 v{p}, v{F+8*r+k}, v{F+8*r+k}')
        reduce2(pa, pb)
        I(f'v_cndmask_b32 v{t0}, v{t0}, v{t1}, s[{sMhi}:{sMhi+1}]')
        I(f'v_cndmask_b32 v{pa}, v{pa}, v{pb}, s[{sMhi}:{sMhi+1}]')
        I(f'v_mul_f32 v{pa}, 0x3b000000, v{pa}')
        I(f'v_cvt_pk_bf16_f32 v{pa}, v{pa}, v{pa}'); I(f'v_lshlrev_b32 v{pa}, 16, v{pa}')
        I(f'v_add_f32 v{pa}, 0x3727c5ac, v{pa}')
        I(f'v_cvt_pk_bf16_f32 v{pa}, v{pa}, v{pa}'); I(f'v_lshlrev_b32 v{pa}, 16, v{pa}')
        I(f'v_sqrt_f32 v{pa}, v{pa}')
        I(f'v_cvt_pk_bf16_f32 v{SV}, v{pa}, v{t0}')
        I(f'v_and_b32 v{t1}, 31, v{vL}'); I(f'v_lshrrev_b32 v{t0}, 2, v{vL}'); I(f'v_mov_b32 v{pb}, {OOB}')
        I(f'v_cmp_eq_u32 vcc, 0, v{t1}'); I(f'v_cndmask_b32 v{SV+4}, v{pb}, v{t0}, vcc')
    def stats_s(s):
        I = s.I; SR = s.SR; SV = s.SV
        F = 158
        F = 64; q0, q1, ob = 72, 73, 74
        for k in range(4):
            I(f'v_lshlrev_b32 v{F+2*k}, 16, v{SR+k}'); I(f'v_and_b32 v{F+2*k+1}, 0xffff0000, v{SR+k}')
        for k in range(4): I(f'v_add_f32 v{F+k}, v{F+k}, v{F+4+k}')
        I(f'v_add_f32 v{F}, v{F}, v{F+2}'); I(f'v_add_f32 v{F+1}, v{F+1}, v{F+3}'); I(f'v_add_f32 v{q0}, v{F}, v{F+1}')
        I(f'v_mov_b32 v{q1}, v{q0}'); I(f'v_permlane32_swap_b32 v{q0}, v{q1}'); I(f'v_add_f32 v{q0}, v{q0}, v{q1}')
        I(f'v_mov_b32 v{q1}, v{q0}'); I(f'v_permlane16_swap_b32 v{q0}, v{q1}'); I(f'v_add_f32 v{q0}, v{q0}, v{q1}')
        for k in (8, 4, 2): I(f'v_add_f32_dpp v{q0}, v{q0}, v{q0} row_ror:{k} row_mask:0xf bank_mask:0xf')
        I(f'v_add_f32_dpp v{SV+2}, v{q0}, v{q0} row_ror:1 row_mask:0xf bank_mask:0xf')
        I(f'v_mov_b32 v{ob}, {OOB}')
        I(f'v_cmp_eq_u32 vcc, 0, v{vL}'); I(f'v_cndmask_b32 v{SV+5}, v{ob}, 0, vcc')

    def pub_prog(s):
        e = s.e; NP = s.NP; SV = s.SV
        Ls = s.lab('nps'); Lr = s.lab('npr')
        def chk():
            e.wait_tag('NP')
            s.I(f'v_readfirstlane_b32 s{sNonce}, v{NP}'); s.I(f's_cmp_eq_u32 s{sNonce}, 0'); e.raw(f's_cbranch_scc1 {Ls}'); e.label(Lr)
        def slow():
            e.label(Ls); e.reset_hazards(); e.vm = []; e.lgk = []
            s.I(f's_mov_b32 s{sSpin}, 0')
            e.label(Ls + 'l'); e.reset_hazards()
            s.I(f'buffer_load_dword v{NP}, v{NP+1}, s[{sDBG}:{sDBG+3}], 0 offen sc1'); e.force_wait('vmcnt(0)')
            s.I(f'v_readfirstlane_b32 s{sNonce}, v{NP}'); s.I(f's_add_u32 s{sSpin}, s{sSpin}, 1')
            s.I(f's_cmp_gt_u32 s{sSpin}, {SPIN}'); e.raw(f's_cbranch_scc1 {Lr}')
            s.I(f's_cmp_eq_u32 s{sNonce}, 0'); e.raw(f's_cbranch_scc1 {Ls}l')
            e.raw('s_nop 4'); e.raw(f's_branch {Lr}')
        s.slow.append(slow)
        return [Fn(chk, 16), f'v_mov_b32 v{SV+1}, s{sNonce}', f'v_mov_b32 v{SV+3}, s{sNonce}', f'v_mov_b32 v{vNon}, s{sNonce}',
                f'buffer_store_dwordx2 v[{SV}:{SV+1}], v{SV+4}, s[{sWS}:{sWS+3}], s{sGa} offen sc1',
                f'buffer_store_dwordx2 v[{SV+2}:{SV+3}], v{SV+5}, s[{sWS}:{sWS+3}], s{sGb} offen sc1']

    def fcs_prog(s):
        AC, FR, ONE, Gq, vo = 96, 112, 128, 132, 134
        ops = [f'v_mov_b32 v{ONE+k}, 0x3f803f80' for k in range(4)]
        for ks in range(4):
            ops += [f'ds_read_b64_tr_b16 v[{FR+4*ks}:{FR+4*ks+1}], v{vCA} offset:{2048*ks}', f'ds_read_b64_tr_b16 v[{FR+4*ks+2}:{FR+4*ks+3}], v{vCA} offset:{2048*ks+512}']
        ops += [f'v_lshlrev_b32 v{vo}, 3, v{vL}', f'v_mov_b32 v{vo+1}, {OOB}', f'v_cndmask_b32 v{vo}, v{vo}, v{vo+1}, s[{sMhi}:{sMhi+1}]',
                f's_and_b32 s{sTmp}, s{sR}, 1', f's_mul_i32 s{sTmp}, s{sTmp}, {28*4096}',
                f's_lshl_b32 s{sTmp2}, s{sSo2}, 5', f's_add_u32 s{sTmp}, s{sTmp}, s{sTmp2}']
        if s.typ == 'H':
            ops += [f's_lshl_b32 s{sTmp2}, s{sCp}, 12', f's_add_u32 s{sTmp}, s{sTmp}, s{sTmp2}']
        ops += [f's_lshl_b32 s{sTmp2}, s{sRho}, 9', f's_add_u32 s{sTmp}, s{sTmp}, s{sTmp2}',
                f's_lshl_b32 s{sTmp2}, s{sTp}, 8', f's_add_u32 s{sTmp}, s{sTmp}, s{sTmp2}', f's_add_u32 s{sGa}, s{sTmp}, {WS_CSF}']
        if s.typ == 'L':
            ops += [s.atom([f's_cmp_eq_u32 s{sCp}, 0', f's_cselect_b32 s{sGa}, s{sGa}, {OOB}'])]
        ops += [f'v_mov_b32 v{Gq+1}, s{sNonce}']
        for ks in range(4):
            ops.append(f'v_mfma_f32_32x32x16_bf16 v[{AC}:{AC+15}], v[{ONE}:{ONE+3}], v[{FR+4*ks}:{FR+4*ks+3}], ' + ('0' if ks == 0 else f'v[{AC}:{AC+15}]'))
        return ops, [f'v_mov_b32 v{Gq}, v{AC}', f'buffer_store_dwordx2 v[{Gq}:{Gq+1}], v{vo}, s[{sWS}:{sWS+3}], s{sGa} offen sc1']

    def tagcheck(s, regs, loads, exp=None):
        e = s.e
        ops = []
        for i, r in enumerate(regs):
            src = f's{sNonce}' if exp is None else f'v{exp[i]}'
            if i == 0: ops.append(f'v_cmp_ne_u32 s[{sBad}:{sBad+1}], {src}, v{r}')
            else:
                ops.append(s.atom([f'v_cmp_ne_u32 vcc, {src}, v{r}', f's_or_b64 s[{sBad}:{sBad+1}], s[{sBad}:{sBad+1}], vcc']))
        Ls = s.lab('slow'); Lr = s.lab('ret')
        def br():
            s.I(f's_cmp_lg_u64 s[{sBad}:{sBad+1}], 0'); e.raw(f's_cbranch_scc1 {Ls}'); e.label(Lr)
        ops.append(Fn(br, 8))
        def slow():
            e.label(Ls); e.reset_hazards(); e.vm = []; e.lgk = []
            s.I(f's_mov_b32 s{sSpin}, 0')
            e.label(Ls + 'l'); e.reset_hazards()
            for x in loads: s.I(x)
            e.force_wait('vmcnt(0)')
            for i, r in enumerate(regs):
                src = f's{sNonce}' if exp is None else f'v{exp[i]}'
                if i == 0: s.I(f'v_cmp_ne_u32 s[{sBad}:{sBad+1}], {src}, v{r}')
                else:
                    s.I(f'v_cmp_ne_u32 vcc, {src}, v{r}'); s.I(f's_or_b64 s[{sBad}:{sBad+1}], s[{sBad}:{sBad+1}], vcc')
            s.I(f's_add_u32 s{sSpin}, s{sSpin}, 1'); s.I(f's_cmp_gt_u32 s{sSpin}, {SPIN}'); e.raw(f's_cbranch_scc1 {Lr}')
            s.I(f's_cmp_lg_u64 s[{sBad}:{sBad+1}], 0'); e.raw(f's_cbranch_scc1 {Ls}l')
            e.raw('s_nop 4'); e.raw(f's_branch {Lr}')
        s.slow.append(slow)
        return ops

    def pi_ops(s, d, t):
        return [f'v_bfe_u32 v{d}, v{vL}, 2, 1', f'v_lshlrev_b32 v{d}, 4, v{d}',
                f'v_and_b32 v{t}, 1, v{vL}', f'v_lshl_add_u32 v{d}, v{t}, 3, v{d}',
                f'v_bfe_u32 v{t}, v{vL}, 3, 2', f'v_lshl_add_u32 v{d}, v{t}, 1, v{d}',
                f'v_bfe_u32 v{t}, v{vL}, 1, 1', f'v_add_u32 v{d}, v{d}, v{t}']

    GA = 136
    def gA_issue(s):
        GA = s.GA; vp, va, vc = GA + 6, GA + 7, GA + 8
        ops = s.pi_ops(vp, va)
        ops += [f'v_lshlrev_b32 v{va}, 3, v{vp}',
                f's_lshl_b32 s{sTmp}, s{sR}, 10', f's_lshl_b32 s{sTmp2}, s{sTp}, 9', f's_add_u32 s{sTmp}, s{sTmp}, s{sTmp2}', f's_add_u32 s{sGa}, s{sTmp}, {WS_STATS}',
                f'v_and_b32 v{vc}, 31, v{vL}', f'v_lshlrev_b32 v{vc}, 3, v{vc}',
                f's_lshl_b32 s{sTmp}, s{sC}, 9', f's_lshl_b32 s{sTmp2}, s{sCp}, 8', f's_add_u32 s{sTmp}, s{sTmp}, s{sTmp2}', f's_add_u32 s{sGb}, s{sTmp}, {WS_CSS}']
        s.glA = [f'buffer_load_dwordx2 v[{GA}:{GA+1}], v{va}, s[{sWS}:{sWS+3}], s{sGa} offen sc1',
                 f'buffer_load_dwordx2 v[{GA+2}:{GA+3}], v{va}, s[{sWS}:{sWS+3}], s{sGa} offen offset:256 sc1',
                 f'buffer_load_dwordx2 v[{GA+4}:{GA+5}], v{vc}, s[{sWS}:{sWS+3}], s{sGb} offen sc1']
        ops += [(x, 'GA') for x in s.glA]
        return ops
    def split3(s, A, t0, t1, t2, o0, o1):
        return [f'v_cvt_pk_bf16_f32 v{t0}, v{A}, v{A}', f'v_and_b32 v{t0}, 0xffff0000, v{t0}',
                f'v_sub_f32 v{t1}, v{A}, v{t0}',
                f'v_cvt_pk_bf16_f32 v{t2}, v{t1}, v{t1}', f'v_and_b32 v{t2}, 0xffff0000, v{t2}',
                f'v_sub_f32 v{t1}, v{t1}, v{t2}',
                f'v_cvt_pk_bf16_f32 v{o1}, v{t1}, 0',
                f'v_lshrrev_b32 v{t0}, 16, v{t0}', f'v_or_b32 v{o0}, v{t0}, v{t2}']
    def gA_proc(s):
        GA = s.GA; vp = GA + 6
        ops = s.tagcheck([GA + 1, GA + 3, GA + 5], s.glA)
        t0, t1, t2, t3, ra = 145, 146, 147, 148, 149
        ops += [f'v_lshlrev_b32 v{ra}, 2, v{vp}', f's_lshl_b32 s{sTmp}, s{sTp}, 8', f's_add_u32 s{sTmp}, s{sTmp}, {L_RS}', f'v_add_u32 v{ra}, s{sTmp}, v{ra}']
        ops += [f's_mov_b32 s{sTmp2}, {NLOG2E:#x}']
        for t in range(2):
            ms = GA + 2 * t; xa = vXaug + 4 * t
            ops += [f'v_lshlrev_b32 v{t0}, 16, v{ms}',
                    f'v_and_b32 v{t1}, 0xffff0000, v{ms}', f'v_xor_b32 v{t1}, 0x80000000, v{t1}',
                    f'v_rcp_f32 v{t2}, v{t0}', f'v_mul_f32 v{vK2+t}, v{t0}, v{t0}',
                    f'v_lshrrev_b32 v{t3}, 16, v{t1}', f'v_or_b32 v{t1}, v{t1}, v{t3}',
                    f'v_cndmask_b32 v{xa}, v{t1}, 0, s[{sMhi}:{sMhi+1}]', f'v_cndmask_b32 v{xa+1}, v{t3}, 0, s[{sMhi}:{sMhi+1}]',
                    f'v_mov_b32 v{xa+2}, 0', f'v_mov_b32 v{xa+3}, 0',
                    f'v_mul_f32 v{vNRS+t}, s{sTmp2}, v{t2}',
                    f'ds_write_b32 v{ra}, v{t2} offset:{128*t}']
        ops += s.split3(GA + 4, t0, t1, t2, vSA, vSA + 1)
        ops += [f'v_mov_b32 v{vSA+2}, 0', f'v_mov_b32 v{vSA+3}, 0']
        return ops

    GB = 96
    def gB_issue(s):
        GB = s.GB
        ops = [f's_mul_i32 s{sTmp3}, s{sTp}, {28*4096}', f's_lshl_b32 s{sTmp2}, s{sSo2}, 5', f's_add_u32 s{sTmp3}, s{sTmp3}, s{sTmp2}']
        if s.typ == 'H': ops += [f's_lshl_b32 s{sTmp2}, s{sCp}, 12', f's_add_u32 s{sTmp3}, s{sTmp3}, s{sTmp2}']
        ops += [f's_add_u32 s{sTmp3}, s{sTmp3}, {WS_CSF}']
        s.glB = [f'buffer_load_dwordx4 v[{GB+4*n}:{GB+4*n+3}], v{vHB}, s[{sWS}:{sWS+3}], s{sMsel} offen offset:{1024*n} sc1' for n in range(4)]
        ops += [f's_mov_b32 s{sMsel}, s{sTmp3}']
        ops += [(x, 'GB') for x in s.glB]
        return ops
    def gB_proc(s):
        GB = s.GB
        regs = [GB + 4 * n + 1 + 2 * m for n in range(4) for m in range(2)]
        ops = s.tagcheck(regs, s.glB)
        t0, t1, t2, wa = 112, 113, 114, 115
        O = 116
        A, B = GB, GB + 2
        ops += [f'v_add_f32 v{A}, v{A}, v{GB+4}', f'v_add_f32 v{B}, v{B}, v{GB+6}',
                f'v_add_f32 v{GB+8}, v{GB+8}, v{GB+12}', f'v_add_f32 v{GB+10}, v{GB+10}, v{GB+14}',
                f'v_add_f32 v{A}, v{A}, v{GB+8}', f'v_add_f32 v{B}, v{B}, v{GB+10}',
                f'v_permlane32_swap_b32 v{A}, v{B}', f'v_add_f32 v{A}, v{A}, v{B}']
        ops += s.split3(A, t0, t1, t2, O, O + 1)
        ops += [f'v_and_b32 v{wa}, 31, v{vL}', f'v_lshlrev_b32 v{wa}, 4, v{wa}', f'v_lshrrev_b32 v{t0}, 5, v{vL}', f'v_lshl_add_u32 v{wa}, v{t0}, 3, v{wa}']
        if s.typ == 'H':
            ops += [f's_lshl_b32 s{sTmp}, s{sCp}, 10', f's_lshl_b32 s{sTmp2}, s{sTp}, 9', f's_add_u32 s{sTmp}, s{sTmp}, s{sTmp2}', f's_add_u32 s{sTmp}, s{sTmp}, {L_WAUG}']
        else:
            ops += [f's_lshl_b32 s{sTmp}, s{sTp}, 9', f's_add_u32 s{sTmp}, s{sTmp}, {L_WAUG}']
        ops += [f'v_add_u32 v{wa}, s{sTmp}, v{wa}', f'ds_write_b64 v{wa}, v[{O}:{O+1}]']
        return ops

    def g_part(s, G, t, T):
        ops = []
        for h in range(2):
            g = G + 8 * h
            for j in range(8): ops.append(f'v_mul_f32 v{T+j}, v{vNRS+t}, v{g+j}')
            for j in range(8): ops.append(f'v_exp_f32 v{T+j}, v{T+j}')
            for j in range(8): ops.append(f'v_fma_f32 v{T+j}, v{vK2+t}, v{T+j}, v{vK2+t}')
            for j in range(8): ops.append(f'v_rcp_f32 v{T+j}, v{T+j}')
            for j in range(8): ops.append(f'v_mul_f32 v{g+j}, v{g+j}, v{T+j}')
        return ops
    def u_part(s, G, U, t, line):
        ops = []
        for h in range(2):
            g = G + 8 * h; u = U + 8 * h
            for j in range(8): ops.append(f'v_mul_f32 v{u+j}, v{u+j}, v{g+j}')
            for j in range(4): ops.append(f'v_cvt_pk_bf16_f32 v{u+j}, v{u+2*j}, v{u+2*j+1}')
            add = t * TSTRIDE + line * 4096
            st = f'buffer_store_dwordx4 v[{u}:{u+3}], v{vHB}, s[{sWS}:{sWS+3}], s{sGb} offen offset:{1024*h} sc1'
            if add: ops.append(s.atom([f's_add_u32 s{sGb}, s{sHF}, {add}', (st, f'HF{line}')]))
            else: ops.append(s.atom([f's_mov_b32 s{sGb}, s{sHF}', (st, f'HF{line}')]))
        return ops

    def s_setup(s):
        a, b = 240, 241
        o = []
        o += [f'v_and_b32 v{a}, 15, v{vL}', f'v_lshlrev_b32 v{b}, 3, v{a}',
              f's_lshl_b32 s{sTmp}, s{sCp}, 11', f's_add_u32 s{sTmp}, s{sTmp}, {L_TAB}',
              f'v_add_u32 v{vCh}, s{sTmp}, v{b}',
              f'v_lshlrev_b32 v{vTg}, 3, v{vL}', f'v_add_u32 v{vTg}, s{sTmp}, v{vTg}',
              f's_lshl_b32 s{sTmp}, s{sCp}, 7', f's_lshl_b32 s{sTmp2}, s{sTp}, 9', f's_add_u32 s{sTmp}, s{sTmp}, s{sTmp2}', f's_add_u32 s{sTmp}, s{sTmp}, {L_TOTZ}',
              f'v_add_u32 v{vTo}, s{sTmp}, v{b}',
              f'v_lshrrev_b32 v{b}, 4, v{vL}', f'v_lshlrev_b32 v{vRs}, 5, v{b}', f's_lshl_b32 s{sTmp}, s{sTp}, 8', f's_add_u32 s{sTmp}, s{sTmp}, {L_RS}',
              f'v_add_u32 v{vRs}, s{sTmp}, v{vRs}',
              f's_mul_i32 s{sTmp}, s{sw}, 2560', f's_add_u32 s{sTmp}, s{sTmp}, {L_TR}',
              f'v_mul_u32_u24 v{vTw}, 80, v{a}', f'v_lshl_add_u32 v{vTw}, v{b}, 4, v{vTw}', f'v_add_u32 v{vTw}, s{sTmp}, v{vTw}',
              f'v_lshrrev_b32 v{vTr}, 5, v{vL}', f'v_lshlrev_b32 v{vTr}, 3, v{vTr}', f'v_bfe_u32 v{b}, v{vL}, 2, 2', f'v_add_u32 v{vTr}, v{vTr}, v{b}',
              f'v_mul_u32_u24 v{vTr}, 80, v{vTr}',
              f'v_and_b32 v{b}, 3, v{vL}', f'v_lshl_add_u32 v{vTr}, v{b}, 3, v{vTr}',
              f'v_bfe_u32 v{b}, v{vL}, 4, 1', f'v_lshl_add_u32 v{vTr}, v{b}, 5, v{vTr}',
              f'v_add_u32 v{vTr}, s{sTmp}, v{vTr}']
        o += [f'v_lshlrev_b32 v{a}, 4, v{a}', f's_lshl_b32 s{sTmp}, s{sR}, 8',
              s.atom([f's_cmp_eq_u32 s{sTp}, 1', f's_cselect_b32 s{sTmp}, s{sTmp}, {OOB}']),
              f'v_add_u32 v{a}, s{sTmp}, v{a}', f'v_mov_b32 v{b}, {OOB}',
              s.atom([f'v_cmp_gt_u32 vcc, 16, v{vL}', f'v_cndmask_b32 v{vEo}, v{b}, v{a}, vcc']),
              s.atom([f'v_cmp_eq_u32 vcc, 0, v{vL}', f'v_cndmask_b32 v{vFl}, v{b}, 0, vcc'])]
        return o
    def s1(s, t):
        A = aS + 16 * t; P = vPc + 2 * t
        R = 128; L1, L8, L16 = 136, 138, 140
        E, Z, X, Q, Y = 142, 144, 146, 148, 150
        def pr(r): return f'v[{r}:{r+1}]'
        ops = [f'ds_read_b128 v[{R}:{R+3}], v{vRs} offset:{128*t}', f'ds_read_b128 v[{R+4}:{R+7}], v{vRs} offset:{128*t+16}',
               f'ds_read_b64 {pr(L1)}, v{vCh} offset:1536', f'ds_read_b64 {pr(L8)}, v{vCh} offset:128', f'ds_read_b64 {pr(L16)}, v{vCh} offset:256']
        for m in range(8): ops.append(f'v_permlane16_swap_b32 v{A+2*m}, v{A+2*m+1}')
        for m in range(8):
            ops += [f'v_mul_f32 v{A+2*m}, v{R+m}, v{A+2*m}', f'v_mul_f32 v{A+2*m+1}, v{R+m}, v{A+2*m+1}']
        prev = A
        e0, e1 = E, Z
        for m in range(1, 8):
            ops += cmac(e0, L1, prev, A + 2 * m)
            prev = e0; e0, e1 = e1, e0
        E = prev; Z = e0
        ops += [f'v_mov_b32 v{Z}, 0', f'v_mov_b32 v{Z+1}, 0', f'v_mov_b32 v{X}, v{E}', f'v_mov_b32 v{X+1}, v{E+1}',
                f'v_cndmask_b32 v{Q}, 1.0, v{L8}, s[{sModd}:{sModd+1}]', f'v_cndmask_b32 v{Q+1}, 0, v{L8+1}, s[{sModd}:{sModd+1}]',
                f'v_permlane16_swap_b32 v{Z}, v{X}', f'v_permlane16_swap_b32 v{Z+1}, v{X+1}']
        ops += cmac(E, L8, Z, E)
        ops += [f'v_mov_b32 v{X}, v{E}', f'v_mov_b32 v{X+1}, v{E+1}', f'v_mov_b32 v{Y}, 0', f'v_mov_b32 v{Y+1}, 0',
                f'v_permlane16_swap_b32 v{E}, v{X}', f'v_permlane16_swap_b32 v{E+1}, v{X+1}',
                f'v_permlane32_swap_b32 v{Y}, v{X}', f'v_permlane32_swap_b32 v{Y+1}, v{X+1}']
        ops += cmac(X, L16, Y, X)
        ops += cmac(P, Q, Y, Z)
        ops += [s.atom([f's_mov_b64 exec, s[{sMhi}:{sMhi+1}]', f'ds_write_b64 v{vTo}, {pr(X)} offset:{(3+t)*256}', f's_mov_b64 exec, -1'])]
        return ops
    def s2(s):
        R = 240; L32 = 250; Gq = 240
        def pr(r): return f'v[{r}:{r+1}]'
        ops = []
        for k in range(5): ops.append(f'ds_read_b64 {pr(R+2*k)}, v{vTo} offset:{k*256}')
        ops.append(f'ds_read_b64 {pr(L32)}, v{vCh} offset:640')
        ops += [f's_lshl_b32 s{sTmp}, s{sC}, 13', f's_lshl_b32 s{sTmp2}, s{sCp}, 12', f's_add_u32 s{sTmp}, s{sTmp}, s{sTmp2}', f's_add_u32 s{sGa}, s{sTmp}, {WS_E}']
        ops += cmac(R + 2, L32, R, R + 2)
        ops += cmac(vPC, L32, R + 2, R + 4)
        ops += cmac(vPC + 2, L32, vPC, R + 6)
        ops += cmac(R + 8, L32, vPC + 2, R + 8)
        ops += [f'v_mov_b32 v{Gq}, v{R+8}', f'v_mov_b32 v{Gq+1}, s{sNonce}', f'v_mov_b32 v{Gq+2}, v{R+9}', f'v_mov_b32 v{Gq+3}, s{sNonce}']
        ops += [f'buffer_store_dwordx4 v[{Gq}:{Gq+3}], v{vEo}, s[{sWS}:{sWS+3}], s{sGa} offen sc1']
        return ops
    EG, vEg, vEx = 32, 48, 52
    def s3_issue(s):
        EG, vEg, vEx = s.EG, s.vEg, s.vEx
        a, b = 56, 57
        o = [f'v_and_b32 v{a}, 15, v{vL}', f'v_lshlrev_b32 v{a}, 4, v{a}', f'v_lshrrev_b32 v{b}, 4, v{vL}', f'v_sub_u32 v{b}, s{sR}, v{b}', f'v_add_u32 v{b}, -1, v{b}']
        for k in range(4):
            g = vEg + k; x = vEx + k
            if k: o.append(f'v_add_u32 v{b}, -4, v{b}')
            o += [f'v_lshl_add_u32 v{g}, v{b}, 8, v{a}', f'v_mov_b32 v{x}, {OOB}',
                  s.atom([f'v_cmp_le_i32 vcc, 0, v{b}', f'v_cndmask_b32 v{g}, v{x}, v{g}, vcc', f'v_cndmask_b32 v{x}, 0, v{vNon}, vcc'])]
        s.glE = [f'buffer_load_dwordx4 v[{EG+4*k}:{EG+4*k+3}], v{vEg+k}, s[{sWS}:{sWS+3}], s{sGa} offen sc1' for k in range(4)]
        o += [(x, 'EG') for x in s.glE]
        return o
    def s3(s):
        EG, vEx = s.EG, s.vEx
        L512, Q = 56, 58
        regs = [EG + 4 * k + 1 + 2 * m for k in range(4) for m in range(2)]
        exp = [vEx + k for k in range(4) for m in range(2)]
        ops = [f'ds_read_b64 v[{L512}:{L512+1}], v{vCh} offset:1664', f'ds_read_b64 v[{Q}:{Q+1}], v{vTg} offset:1024']
        ops += s.tagcheck(regs, s.glE, exp)
        def cm4(dr, di, ar, ai, br, bi, cr, ci):
            return [f'v_fmac_f32 v{dr}, v{ar}, v{br}', f'v_fmac_f32 v{di}, v{ar}, v{bi}',
                    f'v_fma_f32 v{dr}, -v{ai}, v{bi}, v{dr}', f'v_fmac_f32 v{di}, v{ai}, v{br}']
        for k in (2, 1, 0):
            ops += cm4(EG + 4 * k, EG + 4 * k + 2, L512, L512 + 1, EG + 4 * (k + 1), EG + 4 * (k + 1) + 2, EG + 4 * k, EG + 4 * k + 2)
        wr, wi = EG + 4, EG + 5; H = vH
        ops += [f'v_mul_f32 v{wr}, v{Q}, v{EG}', f'v_mul_f32 v{wi}, v{Q}, v{EG+2}', f'v_fma_f32 v{wr}, -v{Q+1}, v{EG+2}, v{wr}', f'v_fmac_f32 v{wi}, v{Q+1}, v{EG}',
                f'v_permlane16_swap_b32 v{wr}, v{wi}', f'v_add_f32 v{wr}, v{wr}, v{wi}', f'v_mov_b32 v{wi}, v{wr}',
                f'v_permlane32_swap_b32 v{wr}, v{wi}', f'v_add_f32 v{H}, v{wr}, v{wi}', f'v_mov_b32 v{H+1}, v{H}',
                f'v_permlane16_swap_b32 v{H}, v{H+1}']
        return ops
    def s4(s, t):
        A = aS + 16 * t; P = vPc + 2 * t; C = vPC + 2 * t
        L1, Q32, Q8, CF = 240, 242, 244, 246
        X = 248
        O = 184
        def pr(r): return f'v[{r}:{r+1}]'
        ops = [f's_lshl_b32 s{sTmp}, s{sTp}, 8', f'v_add_u32 v{O}, s{sTmp}, v{vCh}',
               f'ds_read_b64 {pr(Q32)}, v{O} offset:{512+128*t}', f'ds_read_b64 {pr(Q8)}, v{vTg}',
               f'ds_read_b64 {pr(L1)}, v{vCh} offset:1536', f'ds_read_b64 {pr(CF)}, v{vCh} offset:1792']
        ops += [f's_lshl_b32 s{sTmp}, s{sC}, 1', f's_add_u32 s{sTmp}, s{sTmp}, s{sCp}',
                f's_lshr_b32 s{sTmp2}, s{sTmp}, 2', f's_lshl_b32 s{sTmp2}, s{sTmp2}, 3', f's_and_b32 s{sTmp}, s{sTmp}, 3', f's_add_u32 s{sTmp}, s{sTmp}, s{sTmp2}',
                f's_add_u32 s{sTmp}, s{sTmp}, 112', f's_lshl_b32 s{sTmp}, s{sTmp}, 10', f's_add_u32 s{sTmp3}, s{sTmp}, s{sTg0}']
        if t: ops += [f's_add_u32 s{sTmp3}, s{sTmp3}, {TSTRIDE}']
        ops += cmac(C, Q32, vH, C)
        ops += cmac(P, Q8, C, P)
        prev = P
        def cf(m):
            x = X + 2 * (m & 1); r = A + 2 * m
            return [f'v_mul_f32 v{x}, v{r}, v{CF}', f'v_mul_f32 v{x+1}, v{r}, v{CF+1}',
                    f'v_fma_f32 v{r}, -v{r+1}, v{CF+1}, v{x}', f'v_fma_f32 v{r+1}, -v{r+1}, v{CF}, -v{x+1}']
        for m in range(8):
            ops += cmac(A + 2 * m, L1, prev, A + 2 * m); prev = A + 2 * m
            if m >= 1: ops += cf(m - 1)
        ops += cf(7)
        for k in range(4): ops.append(f'v_cvt_pk_bf16_f32 v{O+k}, v{A+4*k}, v{A+4*k+2}')
        for k in range(4): ops.append(f'v_cvt_pk_bf16_f32 v{O+4+k}, v{A+4*k+1}, v{A+4*k+3}')
        ops += [f'ds_write_b128 v{vTw}, v[{O}:{O+3}]', f'ds_write_b128 v{vTw}, v[{O+4}:{O+7}] offset:1280']
        for ri in range(2):
            d = A + 4 * ri
            ops += [f'ds_read_b64_tr_b16 v[{d}:{d+1}], v{vTr} offset:{1280*ri}', f'ds_read_b64_tr_b16 v[{d+2}:{d+3}], v{vTr} offset:{1280*ri+320}']
        ops += [(f'buffer_store_dwordx4 v[{A}:{A+3}], v{vHB}, s[{sWS}:{sWS+3}], s{sTmp3} offen sc1', 'HS'), f's_add_u32 s{sTmp3}, s{sTmp3}, 4096',
                (f'buffer_store_dwordx4 v[{A+4}:{A+7}], v{vHB}, s[{sWS}:{sWS+3}], s{sTmp3} offen sc1', 'HS')]
        return ops
    def aug_F(s, acc, idx):
        fa = 244
        return [f'v_and_b32 v{fa+2}, 31, v{vL}', f'v_lshlrev_b32 v{fa+2}, 3, v{fa+2}',
                f's_lshl_b32 s{sTmp}, s{sCp}, 8', f's_add_u32 s{sTmp}, s{sTmp}, {L_WAUG + 512*idx}', f'v_add_u32 v{fa+2}, s{sTmp}, v{fa+2}',
                f'ds_read_b64 v[{fa}:{fa+1}], v{fa+2}', f'v_mov_b32 v{fa+3}, 0', f'v_mov_b32 v{fa+2}, 0'] + \
               [f'v_mfma_f32_32x32x16_bf16 v[{acc+16*t}:{acc+16*t+15}], v[{fa}:{fa+3}], v[{vXaug+4*t}:{vXaug+4*t+3}], v[{acc+16*t}:{acc+16*t+15}]' for t in range(2)]
    def aug_S(s):
        return [f'v_mfma_f32_32x32x16_bf16 v[{aS+16*t}:{aS+16*t+15}], v[{vXaug+4*t}:{vXaug+4*t+3}], v[{vSA}:{vSA+3}], v[{aS+16*t}:{aS+16*t+15}]' for t in range(2)]
    def flag_prog(s, tag, phase):
        def f():
            s.e.wait_tag(tag)
            s.I(f'buffer_store_dword v{vNon}, v{vFl}, s[{sWS}:{sWS+3}], s{sFlP} offen offset:{32*phase} sc1')
        return [Fn(f, 8)]
    def poll_issue(s):
        return (f'buffer_load_dword v{vPo}, v{vPl}, s[{sWS}:{sWS+3}], s{sFlC} offen sc1', 'PL')
    def poll_check(s, mask):
        e = s.e
        Ls = s.lab('pslow'); Lr = s.lab('pret')
        def chk():
            s.I(f'v_cmp_eq_u32 vcc, s{sNonce}, v{vPo}'); s.I(f's_and_b32 s{sKa}, vcc_lo, {mask:#x}')
            s.I(f's_cmp_eq_u32 s{sKa}, {mask:#x}'); e.raw(f's_cbranch_scc0 {Ls}'); e.label(Lr)
        def slow():
            e.label(Ls); e.reset_hazards(); e.vm = []; e.lgk = []
            s.I(f's_mov_b32 s{sSpin}, 0')
            e.label(Ls + 'l'); e.reset_hazards()
            s.I(s.poll_issue()[0]); e.force_wait('vmcnt(0)')
            s.I(f'v_cmp_eq_u32 vcc, s{sNonce}, v{vPo}'); s.I(f's_and_b32 s{sKa}, vcc_lo, {mask:#x}')
            s.I(f's_add_u32 s{sSpin}, s{sSpin}, 1'); s.I(f's_cmp_gt_u32 s{sSpin}, {SPIN}'); e.raw(f's_cbranch_scc1 {Lr}')
            s.I(f's_cmp_eq_u32 s{sKa}, {mask:#x}'); e.raw(f's_cbranch_scc0 {Ls}l')
            e.raw('s_nop 4'); e.raw(f's_branch {Lr}')
        s.slow.append(slow)
        return chk

    TYPES = [('o', 0), ('o', 2), ('o', 4), ('o', 6), ('o', 1), ('o', 3), ('o', 5), ('y', 0), ('y', 1), ('y', 2), ('y', 3)]
    def issueB(s, q):
        ty, j = s.TYPES[q]
        if 'b' in s.cfg.get('xp3', ''): ty, j = 'o', 0
        S = (q & 3) * 32
        out = []
        for s_ in range(4):
            for t in range(2):
                r = S + 8 * s_ + 4 * t
                ins = f'buffer_load_dwordx4 a[{r}:{r+3}], v{vHB if t == 0 else vB1}, s[{sWS}:{sWS+3}], s{sKb} offen offset:{1024*s_}' + s.cfg.get('bsc', ' sc1')
                pre = [f's_add_u32 s{sKb}, s{sBE if ty == "o" else sBY}, {j*4096}'] if (s_ == 0 and t == 0) else []
                def f(pre=pre, ins=ins):
                    for p in pre: s.I(p)
                    s.I(ins, f'B{q}')
                out.append(f)
        return out
    def issueH(s, qs):
        ty, j0 = s.TYPES[qs[0]]
        stride = (s.TYPES[qs[1]][1] - j0) * 4096 if len(qs) > 1 else 0
        for k, q in enumerate(qs): assert s.TYPES[q] == (ty, j0 + k * stride // 4096), (qs, q)
        va, vb = 200, 201
        def f():
            I = s.I
            I(f'v_lshrrev_b32 v{vb}, 3, v{vL}'); I(f'v_cmp_gt_u32 vcc, {len(qs)}, v{vb}')
            I(f'v_mul_u32_u24 v{vb}, {stride}, v{vb}') if stride else I(f'v_mov_b32 v{vb}, 0')
            I(f'v_and_b32 v{va}, 7, v{vL}'); I(f'v_lshl_add_u32 v{va}, v{va}, 7, v{vb}')
            I(f'v_mov_b32 v{vb}, {OOB}'); I(f'v_cndmask_b32 v{va}, v{vb}, v{va}, vcc')
            I(f's_lshr_b32 s{sKa}, s{sRho}, 2'); I(f's_mul_i32 s{sKa}, s{sKa}, {TSTRIDE}')
            I(f's_and_b32 s{sKb}, s{sRho}, 3'); I(f's_lshl_b32 s{sKb}, s{sKb}, 10'); I(f's_add_u32 s{sKa}, s{sKa}, s{sKb}')
            I(f's_add_u32 s{sKa}, s{sKa}, s{sBE if ty == "o" else sBY}')
            if j0: I(f's_add_u32 s{sKa}, s{sKa}, {j0*4096}')
            I(f'buffer_load_dword v{vDUM}, v{va}, s[{sWS}:{sWS+3}], s{sKa} offen' + s.cfg.get('hsc', ' sc1'), 'PF')
        return f
    def issueG(s, qs):
        va, vb = 202, 203
        def f():
            I = s.I
            I(f'v_cmp_gt_u32 vcc, 16, v{vL}'); I(f's_lshl_b32 s{sKa}, s{sU}, 4'); I(f'v_add_u32 v{va}, s{sKa}, v{vL}'); I(f'v_lshlrev_b32 v{va}, 10, v{va}')
            I(f'v_mov_b32 v{vb}, {OOB}'); I(f'v_cndmask_b32 v{va}, v{vb}, v{va}, vcc')
            for q in qs:
                ty, j = s.TYPES[q]
                if ty == 'o': I(f's_add_u32 s{sKa}, s{sRowW}, {j*65536}'); sr = sW2
                else: I(f's_add_u32 s{sKa}, s{sCrow}, {(j >> 1)*128}'); sr = sCIM if (j & 1) else sCRE
                I(f'buffer_load_dword v{vDUM}, v{va}, s[{sr}:{sr+3}], s{sKa} offen', 'PF')
        return f
    def issueW(s, q):
        ty, j = s.TYPES[q]
        if 'w' in s.cfg.get('xp3', ''): ty, j = 'o', 0
        slot = (q + 2) & 3
        ops = []
        for half in range(2):
            for i in range(4):
                pre = []
                if i == 0:
                    pre.append(f's_add_u32 m0, s{sW13}, {slot*SLOT + half*4096}')
                    if ty == 'o': pre.append(f's_add_u32 s{sKc}, s{sRowW}, {j*65536 + half*32768}')
                    else: pre.append(f's_add_u32 s{sKc}, s{sCrow}, {(j >> 1)*128 + half*32768}')
                if ty == 'o': ins = f'buffer_load_dwordx4 v{vW+i}, s[{sW2}:{sW2+3}], s{sKc} offen offset:{1024*i} lds'
                else:
                    sr = sCIM if (j & 1) else sCRE
                    ins = f'buffer_load_dwordx4 v{vC+i}, s[{sr}:{sr+3}], s{sKc} offen offset:{1024*i} lds'
                ops.append((pre, ins))
        return s.mkdma(ops, f'W{q}')
    def readA(s, q, s_, buf):
        ty, j = s.TYPES[q]
        slot = (q + 2) & 3
        out = []
        for ee in range(2):
            r = WF + 8 * buf + 4 * ee
            if ty == 'o':
                va = vA0 if ee == 0 else vA1
                for k in range(2):
                    def f(va=va, r=r, k=k):
                        o = s.addr(va, slot)
                        s.I(f'ds_read_b64_tr_b16 v[{r+2*k}:{r+2*k+1}], v{va} offset:{o + s_*2048 + 1024*k}')
                    out.append(f)
            else:
                def f(r=r, ee=ee):
                    o = s.addr(vY + s_, slot)
                    s.I(f'ds_read_b128 v[{r}:{r+3}], v{vY+s_} offset:{o + ee*4096}')
                out.append(f)
        return out
    def sched_item(s, it):
        xp2 = s.cfg.get('xp2', '')
        if it[0] in xp2 and it[0] in 'WB': return []
        if it[0] == 'c' and 'c' in xp2: return []
        if it[0] == 'W': return s.issueW(int(it[1:]))
        if it[0] == 'B': return s.issueB(int(it[1:]))
        if it[0] == 'h': return [s.issueH([int(x) for x in it[1:].split('.')])]
        if it[0] == 'g': return [s.issueG([int(x) for x in it[1:].split('.')])]
        if it[0] == 'p': return [lambda: s.I(*s.poll_issue())]
        if it[0] == 'c': return [s.poll_check({'E': 0xff, 'Y': 0xff00, 'L': 0x3f0000}[it[1]]), lambda: s.stamp('ok' + it[1])]
        if it[0] == 'f':
            if s.typ != 'H': return []
            ev, tag, ph = {'Y': ('Sdone', 'HS', 1), 'L': ('F1done', 'HF1', 2)}[it[1]]
            def ff():
                s.until(ev); s.stamp('pfl' + it[1]); s.flag_prog(tag, ph)[0].f(); s.stamp('fl' + it[1])
            return [ff]
        raise ValueError(it)
    def p2_late(s):
        a, b, c = 240, 241, 242
        o = [f'v_lshrrev_b32 v{a}, 3, v{vL}', f'v_lshlrev_b32 v{a}, 10, v{a}', f'v_lshrrev_b32 v{b}, 4, v{vL}', f'v_and_b32 v{c}, 7, v{vL}',
             f'v_xor_b32 v{b}, v{b}, v{c}', f'v_lshl_add_u32 v{vC}, v{b}, 4, v{a}',
             f'v_xor_b32 v{vC+1}, 64, v{vC}', f'v_add_u32 v{vC+1}, 7168, v{vC+1}', f'v_add_u32 v{vC+2}, {7168*2}, v{vC}', f'v_add_u32 v{vC+3}, {7168*2}, v{vC+1}']
        return o
    def p2_late2(s):
        a, b, c = 240, 241, 242
        o = [f'v_and_b32 v{a}, 31, v{vL}', f'v_lshlrev_b32 v{a}, 7, v{a}', f'v_bfe_u32 v{c}, v{vL}, 1, 3', f'v_lshrrev_b32 v{b}, 5, v{vL}', f'v_xor_b32 v{c}, v{c}, v{b}',
             f'v_lshl_add_u32 v{a}, v{c}, 4, v{a}', f'v_add_u32 v{vY}, s{sW13}, v{a}']
        o += [f'v_xor_b32 v{vY+k}, {32*k}, v{vY}' for k in range(1, 4)]
        for k in range(4): s.half[vY + k] = 0
        return o
    tX, tS, tDk, tSo, tDo, tDf, tXf, tYi, tRo, tRy, tF, tXo, tOo = 32, 40, 48, 50, 51, 52, 56, 72, 88, 89, 90, 94, 95
    def tail_addr(s):
        a, b, c, d = 240, 241, 242, 243
        tRo, tRy, tF = s.tRo, s.tRy, s.tF
        def key(dst, row, tmp):
            return [f'v_bfe_u32 v{tmp}, v{row}, 3, 2', f'v_lshlrev_b32 v{tmp}, 1, v{tmp}', f'v_and_b32 v{dst}, 7, v{row}', f'v_xor_b32 v{dst}, v{dst}, v{tmp}']
        o = s.pi_ops(a, b) + key(c, a, b) + [f'v_lshrrev_b32 v{d}, 5, v{vL}', f'v_xor_b32 v{c}, v{c}, v{d}', f'v_lshlrev_b32 v{a}, 8, v{a}',
             f'v_lshl_add_u32 v{a}, v{c}, 4, v{a}', f's_add_u32 s{sTmp}, s{sW13}, {SLOT}', f'v_add_u32 v{tRo}, s{sTmp}, v{a}']
        r2 = s.cfg.get('reg2')
        sw_ = s.cfg.get('swap')
        if sw_:
            assert r2
            o[-2:] = [f's_add_u32 s{sTmp}, s{sW13}, {2*SLOT}', f'v_add_u32 v{tRy}, s{sTmp}, v{a}']
        elif r2: o += [f'v_add_u32 v{s.tRo2}, {3*SLOT}, v{tRo}']
        o += [f'v_and_b32 v{a}, 31, v{vL}'] + key(c, a, b) + [f'v_xor_b32 v{c}, v{c}, v{d}', f'v_lshlrev_b32 v{a}, 8, v{a}',
             f'v_lshl_add_u32 v{a}, v{c}, 4, v{a}'] + ([f's_add_u32 s{sTmp}, s{sW13}, {SLOT}', f'v_add_u32 v{tRo}, s{sTmp}, v{a}', f'v_add_u32 v{s.tRo2}, {3*SLOT}, v{tRo}'] if sw_ else
             [f's_add_u32 s{sTmp}, s{sW13}, {(2 if r2 else 3)*SLOT}', f'v_add_u32 v{tRy}, s{sTmp}, v{a}'])
        o += [f'v_lshrrev_b32 v{b}, 4, v{vL}', f'v_and_b32 v{c}, 15, v{vL}', f'v_xor_b32 v{a}, v{b}, v{c}', f's_lshl_b32 s{sTmp}, s{sTp}, 2', f'v_xor_b32 v{a}, s{sTmp}, v{a}',
              f'v_lshlrev_b32 v{a}, 4, v{a}', f'v_lshl_add_u32 v{a}, v{b}, 8, v{a}',
              f's_lshl_b32 s{sTmp}, s{sTp}, 12', (f's_mul_i32 s{sTmp2}, s{sCp}, {3*SLOT}' if r2 else f's_lshl_b32 s{sTmp2}, s{sCp}, 15'), f's_add_u32 s{sTmp}, s{sTmp}, s{sTmp2}', f's_add_u32 s{sTmp}, s{sTmp}, {SLOT}',
              f'v_add_u32 v{tF}, s{sTmp}, v{a}', f'v_xor_b32 v{tF+1}, 64, v{tF}', f'v_xor_b32 v{tF+2}, 32, v{tF}', f'v_xor_b32 v{tF+3}, 96, v{tF}',
              f'v_lshlrev_b32 v{s.tOo}, 11, v{b}', f'v_lshl_add_u32 v{s.tOo}, v{c}, 4, v{s.tOo}',
              f'v_lshlrev_b32 v{s.tXo}, 10, v{b}', f'v_lshl_add_u32 v{s.tXo}, v{c}, 3, v{s.tXo}',
              f'v_lshlrev_b32 v{s.tSo}, 3, v{b}', f'v_lshlrev_b32 v{s.tDo}, 3, v{c}', f'v_add_u32 v{s.tDo}, s{sDko}, v{s.tDo}']
        return o
    def tail_loads(s):
        o = []
        for i in range(4):
            o.append(s.atom([f's_add_u32 s{sTmp}, s{sXb}, {4096*i}', (f'buffer_load_dwordx2 v[{s.tX+2*i}:{s.tX+2*i+1}], v{s.tXo}, s[{sX}:{sX+3}], s{sTmp} offen', 'TX')]))
        for i in range(4):
            o.append((f'buffer_load_dwordx2 v[{s.tS+2*i}:{s.tS+2*i+1}], v{s.tSo}, s[{sWS}:{sWS+3}], s{sSb} offen offset:{32*i} sc1', 'TX'))
        o.append((f'global_load_dwordx2 v[{s.tDk}:{s.tDk+1}], v{s.tDo}, s[{kDk}:{kDk+1}]', 'TX'))
        return o
    def tail_early(s):
        eX, eS, eD, b, c = 204, 205, 218, 219, 220
        def f():
            I = s.I
            if s.typ == 'H': s.until('s3done')
            I(f'v_lshrrev_b32 v{b}, 4, v{vL}'); I(f'v_and_b32 v{c}, 15, v{vL}')
            I(f'v_lshlrev_b32 v{eX}, 10, v{b}'); I(f'v_lshl_add_u32 v{eX}, v{c}, 3, v{eX}')
            I(f'v_lshlrev_b32 v{eS}, 3, v{b}'); I(f'v_lshlrev_b32 v{eD}, 3, v{c}'); I(f'v_add_u32 v{eD}, s{sDko}, v{eD}')
            for i in range(4):
                I(f's_add_u32 s{sKa}, s{sXb}, {4096*i}')
                I(f'buffer_load_dwordx2 v[{s.tX+2*i}:{s.tX+2*i+1}], v{eX}, s[{sX}:{sX+3}], s{sKa} offen', 'TX')
            for i in range(4):
                I(f'buffer_load_dwordx2 v[{s.tS+2*i}:{s.tS+2*i+1}], v{eS}, s[{sWS}:{sWS+3}], s{sSb} offen offset:{32*i} sc1', 'TX')
            I(f'global_load_dwordx2 v[{s.tDk}:{s.tDk+1}], v{eD}, s[{kDk}:{kDk+1}]', 'TX')
        return f
    def tail_pre(s):
        tX, tS, tDk, tDf, tXf, tYi = s.tX, s.tS, s.tDk, s.tDf, s.tXf, s.tYi
        o = [f'v_lshlrev_b32 v{tDf}, 16, v{tDk}', f'v_and_b32 v{tDf+1}, 0xffff0000, v{tDk}', f'v_lshlrev_b32 v{tDf+2}, 16, v{tDk+1}', f'v_and_b32 v{tDf+3}, 0xffff0000, v{tDk+1}']
        for i in range(4):
            m = tS + 2 * i; rs = m + 1; x0 = tX + 2 * i; xf = tXf + 4 * i; y = tYi + 4 * i
            o += [f'v_lshlrev_b32 v{rs}, 16, v{m}', f'v_rcp_f32 v{rs}, v{rs}', f'v_and_b32 v{m}, 0xffff0000, v{m}',
                  f'v_lshlrev_b32 v{xf}, 16, v{x0}', f'v_and_b32 v{xf+1}, 0xffff0000, v{x0}', f'v_lshlrev_b32 v{xf+2}, 16, v{x0+1}', f'v_and_b32 v{xf+3}, 0xffff0000, v{x0+1}']
            o += [f'v_sub_f32 v{y+j}, v{xf+j}, v{m}' for j in range(4)]
            o += [f'v_mul_f32 v{y+j}, v{y+j}, v{rs}' for j in range(4)]
            o += [f'v_mul_f32 v{y+j}, v{y+j}, v{tDf+j}' for j in range(4)]
        return o
    tRo2 = 96
    def part_write(s, base, acc, base2=None, ees=(0, 1)):
        o = []
        for ee in ees:
            for A in range(4):
                k = (8 * ee + 2 * A) * 16
                tmp = 240 + (A & 1); tmp2 = 242 + (A & 1)
                if k:
                    o.append(f'v_xor_b32 v{tmp}, {k}, v{base}')
                    if base2: o.append(f'v_xor_b32 v{tmp2}, {k}, v{base2}')
                else: tmp = base; tmp2 = base2
                for t in range(2):
                    r = acc + 16 * (2 * ee + t) + 4 * A
                    if base2 and t: o.append(f'ds_write_b128 v{tmp2}, a[{r}:{r+3}]')
                    else: o.append(f'ds_write_b128 v{tmp}, a[{r}:{r+3}] offset:{t*SLOT}')
        return o
    tO = 96
    def o_gate(s):
        O = s.tO; T = 112
        o = []
        for i in range(4):
            for src in range(4):
                r = O + 16 * src + 4 * i
                o.append(f'ds_read_b128 v[{r}:{r+3}], v{s.tF+i} offset:{src*8192 + i*1024}')
        if s.cfg.get('reg2'):
            o += [s.atom([f's_lshl_b32 s{sTmp}, s{sCp}, 16', f's_sub_u32 s{sTmp}, {SLOT}, s{sTmp}'] + [f'v_add_u32 v{s.tF+i}, s{sTmp}, v{s.tF+i}' for i in range(4)])]
        else: o += [f'v_add_u32 v{s.tF+i}, {HALF}, v{s.tF+i}' for i in range(4)]
        for i in range(4):
            for j in range(4):
                r = O + 4 * i + j
                o += [f'v_add_f32 v{r}, v{r}, v{r+16}', f'v_add_f32 v{r+32}, v{r+32}, v{r+48}']
            for j in range(4):
                r = O + 4 * i + j
                o += [f'v_add_f32 v{r}, v{r}, v{r+32}']
        if s.cfg.get('swap'):
            for k in range(16): o.append(f'v_add_f32 v{O+k}, v{O+k}, v{s.tYi+k}')
            return o
        for r in range(O, O + 16): o.append(f'v_mul_f32 v{r+16}, {NLOG2E:#x}, v{r}')
        for r in range(O, O + 16): o.append(f'v_exp_f32 v{r+16}, v{r+16}')
        for r in range(O, O + 16): o.append(f'v_add_f32 v{r+16}, 1.0, v{r+16}')
        for r in range(O, O + 16): o.append(f'v_rcp_f32 v{r+16}, v{r+16}')
        for r in range(O, O + 16): o.append(f'v_mul_f32 v{r}, v{r}, v{r+16}')
        return o

    def p2(s):
        e = s.e; I = s.I; cfg = s.cfg; H = s.typ == 'H'
        sched = cfg['sched']
        e.wait_tag('W0')
        for f in s.readA(0, 0, 0): f()
        buf = 0
        def acc(ty, ee, t):
            b = (ACCO if ty == 'o' else ACCY) + 16 * (2 * ee + t)
            return f'a[{b}:{b+15}]'
        started = set()
        dma = deque()
        swap = cfg.get('swap')
        ACCF, ACCL = (ACCY, ACCO) if swap else (ACCO, ACCY)
        qo = max(q for q in range(11) if s.TYPES[q][0] == ('y' if swap else 'o')) + 1
        assert (qo == 8 and cfg.get('reg2') and cfg.get('qbar', -1) >= 0) or (qo == 9 and not cfg.get('reg2'))
        stag = cfg.get('stag')
        def rdS(ee, s_):
            r = 16 * ee + 4 * s_
            def f():
                if s.TYPES[10][0] == 'o':
                    va = vA0 if ee == 0 else vA1
                    o = s.addr(va, (10 + 2) & 3)
                    for k in range(2): s.I(f'ds_read_b64_tr_b16 v[{r+2*k}:{r+2*k+1}], v{va} offset:{o + s_*2048 + 1024*k}')
                    return
                o = s.addr(vY + s_, (10 + 2) & 3)
                s.I(f'ds_read_b128 v[{r}:{r+3}], v{vY+s_} offset:{o + ee*4096}')
            return f
        for q in range(11):
            ty, j = s.TYPES[q]
            if cfg.get('sc3'):
                ity = lambda n: s.TYPES[n][0] == 'y'
                if any(it[0] == 'W' and ity(int(it[1:])) for it in sched[q]) or (q + 1 < 11 and ity(q + 1)): s.until('late')
                if q == cfg['tq']: s.add(s.tail_addr())
                if q == 6: s.drain()
            for it in sched[q]: dma.extend(s.sched_item(it))
            if s.typ == 'L': dma.extend(s.pfL(f'q{q}'))
            if not cfg.get('sc3'):
                if q == 2: s.add(s.tail_addr())
                if q == 3:
                    s.until('Sdone'); s.add(s.p2_late())
                if q == 4: s.drain(); s.add(s.p2_late2())
                if q == 6: s.drain()
            if q == 7 and not cfg.get('tearly'): s.add(s.tail_loads())
            if q == cfg.get('tpq', 8): s.add(s.tail_pre())
            if q == cfg.get('qbar', -1): s.barrier('BQ')
            if q == qo: s.add(s.part_write(s.tRo, ACCF, s.tRo2 if cfg.get('reg2') else None))
            if q == qo + 1:
                s.drain(); s.barrier('BO'); s.add(s.o_gate())
            bud = cfg['budP0'] if q < 3 else cfg['budP']
            if q >= qo: bud = cfg.get('budT', bud)
            if stag and q == 10:
                assert ty == ('o' if swap else 'y')
                aops = deque(rdS(1, s_) for s_ in range(4)); yw = deque()
                k = 0
                for ee in range(2):
                    for s_ in range(4):
                        for t in range(2):
                            r = 16 * ee + 4 * s_
                            br = (q & 3) * 32 + 8 * s_ + 4 * t
                            A = acc(ty, ee, t)
                            I(f'v_mfma_f32_32x32x16_bf16 {A}, v[{r}:{r+3}], a[{br}:{br+3}], {A}')
                            n0 = e.n
                            if aops: aops.popleft()()
                            if k == 8: yw.extend(s.part_write(s.tRy, ACCL, ees=(0,)))
                            if k >= 9:
                                for _ in range(cfg.get('ywn', 2)):
                                    if yw: I(yw.popleft())
                            s.gap(n0, bud)
                            k += 1
                while yw: I(yw.popleft())
                s.stamp(f'q{q}e')
                continue
            for s_ in range(4):
                if stag and q == 9 and s_ == 3: aops = deque(rdS(0, x) for x in range(4)); needw = 'W10'
                elif s_ < 3: aops = deque(s.readA(q, s_ + 1, buf ^ 1)); needw = None
                elif q + 1 < 11: aops = deque(s.readA(q + 1, 0, buf ^ 1)); needw = f'W{q+1}'
                else: aops = deque(); needw = None
                k = 0
                for ee in range(2):
                    for t in range(2):
                        r = WF + 8 * buf + 4 * ee
                        br = (q & 3) * 32 + 8 * s_ + 4 * t
                        A = acc(ty, ee, t)
                        cs = A if (ty, ee, t) in started else '0'
                        started.add((ty, ee, t))
                        I(f'v_mfma_f32_32x32x16_bf16 {A}, v[{r}:{r+3}], a[{br}:{br+3}], {cs}')
                        n0 = e.n
                        if k == 0 and needw: e.wait_tag(needw)
                        if aops: aops.popleft()()
                        left = 16 - (4 * s_ + k)
                        s.pace(dma, left)
                        s.gap(n0, bud)
                        k += 1
                while aops: aops.popleft()()
                buf ^= 1
            while dma: dma.popleft()()
            s.stamp(f'q{q}e')
        s.drain()
        s.stamp('P2end')
        for x in s.part_write(s.tRy, ACCL, ees=((1,) if stag else (0, 1))): I(x)
        s.barrier('BY')
        Y = [0, 112, 128, 144]
        for i in range(4):
            for src in range(4):
                r = Y[src] + 4 * i
                I(f'ds_read_b128 v[{r}:{r+3}], v{s.tF+i} offset:{src*8192 + i*1024}')
        for i in range(4):
            if swap:
                for j in range(4):
                    I(f'v_add_f32 v{Y[0]+4*i+j}, v{Y[0]+4*i+j}, v{Y[3]+4*i+j}'); I(f'v_add_f32 v{Y[1]+4*i+j}, v{Y[1]+4*i+j}, v{Y[2]+4*i+j}')
                for j in range(4):
                    I(f'v_add_f32 v{Y[0]+4*i+j}, v{Y[0]+4*i+j}, v{Y[1]+4*i+j}')
                T = Y[1] + 4 * i; r = Y[0] + 4 * i
                for j in range(4): I(f'v_mul_f32 v{T+j}, {NLOG2E:#x}, v{r+j}')
                for j in range(4): I(f'v_exp_f32 v{T+j}, v{T+j}')
                for j in range(4): I(f'v_add_f32 v{T+j}, 1.0, v{T+j}')
                for j in range(4): I(f'v_rcp_f32 v{T+j}, v{T+j}')
                for j in range(4): I(f'v_mul_f32 v{r+j}, v{r+j}, v{T+j}')
            else:
              for j in range(4):
                I(f'v_add_f32 v{Y[0]+4*i+j}, v{Y[0]+4*i+j}, v{s.tYi+4*i+j}'); I(f'v_add_f32 v{Y[1]+4*i+j}, v{Y[1]+4*i+j}, v{Y[2]+4*i+j}')
              for j in range(4):
                I(f'v_add_f32 v{Y[0]+4*i+j}, v{Y[0]+4*i+j}, v{Y[3]+4*i+j}')
              for j in range(4):
                I(f'v_add_f32 v{Y[0]+4*i+j}, v{Y[0]+4*i+j}, v{Y[1]+4*i+j}')
            for j in range(4):
                I(f'v_fma_f32 v{Y[0]+4*i+j}, v{Y[0]+4*i+j}, v{s.tO+4*i+j}, v{s.tXf+4*i+j}')
            I(f's_add_u32 s{sTmp}, s{sOb}, {8192*i}')
            I(f'buffer_store_dwordx4 v[{Y[0]+4*i}:{Y[0]+4*i+3}], v{s.tOo}, s[{sOUT}:{sOUT+3}], s{sTmp} offen' + s.cfg.get('osc', ''))

    def body(s):
        e = s.e; I = s.I; cfg = s.cfg; typ = s.typ
        s.prologue()
        H = typ == 'H'
        tb_ = s.capture(s.tab)
        skip = cfg.get('skip', ())
        K = lambda n, l: [] if n in skip else (l() if callable(l) else l)
        s.add(K('pub', s.pub_prog) + [s.fstamp('pub')] + K('tab', tb_) + [s.mark('tabdone')])
        o1, o2 = s.fcs_prog()
        s.add([s.gate(f'B{cfg["fcs"]}')] + K('fcs', o1 + o2) + [s.fstamp('fcs')])
        s.add([s.gate(f'B{cfg["gA_issue"]}')] + K('gA', s.gA_issue))
        s.add([s.gate(f'B{cfg["gB_issue"]}')] + K('gB', s.gB_issue))
        s.add([s.gate(f'B{cfg["gA_proc"]}')] + K('gA', s.gA_proc) + [s.mark('gAdone'), s.fstamp('gA')])
        s.add([s.gate(f'B{cfg["gB_proc"]}')] + K('gB', s.gB_proc) + [s.mark('gBdone'), s.fstamp('gB')])
        if cfg.get('stopA'):
            s.stopA = True
        def readsA(st, ks):
            b = WF + 8 * ((4 * st + ks) & 1)
            xp = cfg.get('xp', '')
            return ([] if 'S' in xp else s.rd_S(st, ks, b)) + ([] if 'x' in xp else s.rd_x(st, ks, 0) + s.rd_x(st, ks, 1)) + ([] if 'W' in xp else s.rd_W(st & 3, 24576 + 2048 * ks, b + 4))
        pf = cfg['pf']; NR = 4
        assert pf == 3
        npass = 3 if H else 1
        order = [(p, kk) for p in range(npass) for kk in range(32)]
        def rdP(idx):
            p, kk = order[idx]
            st = 8 + 2 * p + (kk >> 4)
            return s.rd_W(st & 3, (kk & 15) * 2048, WF + 4 * (idx % NR))
        dma = deque(s.dma_list(2))
        for f in readsA(0, 0): f()
        nst = 8 + 2 * npass
        def next_dma(stb):
            l = next_dma0(stb)
            if H:
                for k, (b, unit) in enumerate(cfg.get('pf2', ())):
                    if b == stb: l = l + [s.pf2_item(unit, k)]
            else: l = l + s.pfL(f'B{stb}')
            return l
        def next_dma0(stb):
            l = []
            if 'D' in cfg.get('xp', ''): return l
            if 'H' in cfg.get('xp', ''): return s.dma_list(stb + 2)[:4]
            if stb == 1: l = (s.dma_csc() + s.dma_list(3)) if cfg['fcs'] <= 3 else (s.dma_list(3) + s.dma_csc())
            elif stb < 8: l = s.dma_list(stb + 2)
            elif stb == 8: l = (s.dma_list(10) + s.dma_list(11)) if nst > 11 else []
            elif stb + 3 < nst: l = s.dma_list(stb + 3)
            elif H and cfg['p2'] and stb in (11, 12, 13): l = s.issueW(stb - 11)
            return l
        for st in range(8):
            for ks in range(4):
                kk = 4 * st + ks
                b = WF + 8 * (kk & 1)
                if ks < 3: nxt = readsA(st, ks + 1)
                elif st < 7: nxt = readsA(st + 1, 0)
                else: nxt = []
                nxt = deque(nxt)
                seq = [(aS, 0, True), (aS, 1, True), (aG0, 0, False), (aG0, 1, False)]
                for m, (base, t, isS) in enumerate(seq):
                    acc = base + 16 * t
                    xr = (kk * 2 + t) * 4
                    w = f'v[{b}:{b+3}]' if isS else f'v[{b+4}:{b+7}]'
                    c = '0' if kk == 0 else f'v[{acc}:{acc+15}]'
                    if isS: I(f'v_mfma_f32_32x32x16_bf16 v[{acc}:{acc+15}], a[{xr}:{xr+3}], {w}, {c}')
                    else: I(f'v_mfma_f32_32x32x16_bf16 v[{acc}:{acc+15}], {w}, a[{xr}:{xr+3}], {c}')
                    n0 = e.n
                    if ks == 3 and m == 0:
                        if st + 1 == 6: s.until('tabdone')
                        if st + 1 == cfg['gBbar'] and not cfg.get('stopA'): s.until('gBdone')
                        s.barrier(f'B{st+1}', f'D{st+1}')
                        while dma: dma.popleft()()
                        dma = deque(next_dma(st + 1))
                        if st == 7:
                            nxt = deque(rdP(0) + rdP(1))
                        n0 = e.n
                    nrd = 2 if m < 2 else 1
                    if m == 3: nrd = 9
                    for _ in range(nrd):
                        if nxt: nxt.popleft()()
                    left = 16 - (4 * ((ks + 1) & 3) + m)
                    s.pace(dma, left)
                    s.gap(n0, cfg['budA'])
        s.stamp('Aend')
        if cfg.get('stopA'):
            s.drain(); s.stamp('end'); s.final_stamps(); e.raw('s_endpgm')
            for f in s.slow: f()
            return
        s.until('gAdone')
        gb = s.gate(f'B{cfg["gBbar"]}')
        totb = cfg['totb'] if H else 10
        sc3 = H and cfg.get('sc3')
        if sc3:
            totb = None
            G1p = [s.gate('Cend')] + s.aug_F(aG1, 2) + s.g_part(aG1, 0, 64) + s.g_part(aG1 + 16, 1, 64) + [s.mark('G1done'), s.fstamp('G1')]
            gk = lambda k: [s.gate(f'p{cfg[k][0]}k{cfg[k][1]}')] if cfg.get(k) else []
            G0p = [gb] + s.aug_F(aG0, 0) + s.g_part(aG0, 0, 152) + s.g_part(aG0 + 16, 1, 152) + [s.fstamp('G0')]
            S1p = s.aug_S() + s.s1(0) + s.s1(1) + [s.mark('s1done'), s.fstamp('s1'), s.gate('TOT')] + s.s2() + [s.fstamp('s2')]
            prog = (G0p + S1p) if cfg.get('g0first') else (S1p + G0p)
            prog += [s.gate('Bend')] + s.aug_F(aU0, 1) + s.u_part(aG0, aU0, 0, 0) + s.u_part(aG0 + 16, aU0 + 16, 1, 0) + [s.mark('F0done'), s.fstamp('F0st')]
            prog += gk('s3ik') + s.s3_issue() + [s.fstamp('s3i')] + gk('s3pk') + s.s3() + [s.mark('s3done'), s.fstamp('s3')]
            gp = cfg['g1pos']
            prog += (G1p if gp == 0 else []) + s.s4(0) + (G1p if gp == 1 else []) + s.s4(1) + [s.mark('Sdone'), s.fstamp('Sdone')]
            prog += s.p2_late() + s.p2_late2() + [s.mark('late')] + (G1p if gp == 2 else [])
            prog += [s.gate('Dend')] + s.aug_F(aU1, 3) + s.u_part(aG1, aU1, 0, 1) + s.u_part(aG1 + 16, aU1 + 16, 1, 1) + [s.mark('F1done'), s.fstamp('F1st')]
            s.add(prog)
        elif H:
            s.add([gb] + s.aug_F(aG0, 0) + s.g_part(aG0, 0, 152) + s.g_part(aG0 + 16, 1, 152) + [s.fstamp('G0')] +
                  [s.gate('Bend')] + s.aug_F(aU0, 1) + s.u_part(aG0, aU0, 0, 0) + s.u_part(aG0 + 16, aU0 + 16, 1, 0) + [s.mark('F0done'), s.fstamp('F0st')] +
                  s.aug_S() + s.s1(0) + s.s1(1) + [s.mark('s1done')])
        else:
            s.add(s.aug_S() + s.s1(0) + [gb] + s.aug_F(aG0, 0) + s.g_part(aG0, 0, 152) + s.s1(1) + [s.mark('s1done')] + s.g_part(aG0 + 16, 1, 152))
        issued = 2
        for f in rdP(2): f()
        issued = 3
        for idx, (p, kk) in enumerate(order):
            st = 8 + 2 * p + (kk >> 4)
            fr = WF + 4 * (idx % NR)
            accb = [aU0, aG1, aU1][p]
            bud = [cfg['budB'], cfg['budC'], cfg['budD']][p]
            s.events.add(f'p{p}k{kk}')
            if sc3 and p == 0 and kk == cfg['totk']:
                s.until('s1done'); s.barrier('TOT')
            if sc3 and (p, kk) == tuple(cfg['flEk']):
                s.until('F0done'); s.addfront(s.flag_prog('HF0', 0) + [s.mark('flEdone'), s.fstamp('flE')])
            if sc3 and cfg.get('fYk') and (p, kk) == tuple(cfg['fYk']):
                s.until('Sdone'); s.addfront(s.flag_prog('HS', 1) + [s.fstamp('flY')])
            if (kk & 15) == 16 - pf and (st + 1 < nst or (H and cfg['p2'])):
                if st + 1 == cfg['gBbar']: s.until('gBdone')
                if st + 1 == totb: s.until('s1done')
                if H and not sc3 and st + 1 == cfg['flEb']: s.until('F0done')
                s.barrier(f'B{st+1}', f'D{st+1}' if st + 1 < nst else None)
                if H and not sc3 and st + 1 == cfg['s3b']: s.addfront(s.s3_issue())
                if st + 1 == totb: s.addfront(s.s2() + [s.mark('s2done'), s.fstamp('s2')])
                if H and not sc3 and st + 1 == cfg['flEb']: s.addfront(s.flag_prog('HF0', 0) + [s.mark('flEdone'), s.fstamp('flE')])
                if p == 2 and cfg.get('nofl') and kk >= cfg['cE']: dma.extend(next_dma(st + 1))
                else:
                    while dma: dma.popleft()()
                    dma = deque(next_dma(st + 1))
            if p == 2:
                if kk == 0 and not sc3:
                    s.add(s.aug_F(aG1, 2) + s.g_part(aG1, 0, 64) + s.g_part(aG1 + 16, 1, 64) + [s.mark('G1done'), s.fstamp('G1')])
                if cfg['p2']:
                    if kk == cfg['pE']: dma.appendleft(lambda: s.I(*s.poll_issue()))
                    if kk == cfg['cE']:
                        s.until('flEdone')
                        dma.append(lambda: s.stamp('epre'))
                        dma.append(s.poll_check(0xff))
                        dma.append(lambda: s.stamp('eok'))
                        if cfg.get('hE'): dma.append(s.issueH(cfg['hE']))
                        for q in range(cfg.get('nEB', 2)): dma.extend(s.issueB(q))
                        if cfg.get('tearly'): dma.append(s.tail_early())
                        if cfg.get('gE'): dma.append(s.issueG(cfg['gE']))
            nxt = deque()
            if issued < len(order):
                nxt = deque(rdP(issued)); issued += 1
            for t in range(2):
                acc = accb + 16 * t
                xr = (kk * 2 + t) * 4
                c = '0' if kk == 0 else f'v[{acc}:{acc+15}]'
                I(f'v_mfma_f32_32x32x16_bf16 v[{acc}:{acc+15}], v[{fr}:{fr+3}], a[{xr}:{xr+3}], {c}')
                n0 = e.n
                if nxt: nxt.popleft()()
                if p == 2 and kk >= cfg['cE'] and cfg['p2']: left = 2 * (cfg.get('dEnd', 32) - kk) - t
                else: left = 32 - (2 * (((kk & 15) + pf) & 15) + t)
                s.pace(dma, left)
                s.gap(n0, bud)
            if kk == 31:
                s.stamp(['Bend', 'Cend', 'Dend'][p]); s.events.add(['Bend', 'Cend', 'Dend'][p])
        while dma: dma.popleft()()
        if not H:
            s.until('s1done')
            s.barrier('B10')
            if cfg['p2'] and not cfg.get('Lw', 1):
                for q in range(3):
                    for f in s.issueW(q): f()
            s.addfront(s.s2())
            s.add(s.aug_F(aU0, 1) + s.u_part(aG0, aU0, 0, 0) + s.u_part(aG0 + 16, aU0 + 16, 1, 0))
            s.drain()
            for f in s.pfL('F0'): f()
            if cfg['p2'] and cfg.get('Lw', 1) == 1:
                for q in range(3):
                    for f in s.issueW(q): f()
            s.stamp('F1st')
            fE = s.flag_prog('HF0', 0) + [s.fstamp('flE')]
            post = [Fn(f, 8) for f in s.pfL('s3i')]
            if cfg['p2'] and cfg.get('Lw', 1) == 2:
                post += [Fn(f, 8) for q in range(3) for f in s.issueW(q)]
            pre_ = (fE + s.s3_issue() + post if cfg.get('LfE', 0) else s.s3_issue() + post + fE) + s.s3() + [s.fstamp('s3')] + s.s4(0) + s.s4(1) + [s.mark('Sdone'), s.fstamp('Sdone')]
            if cfg.get('Lw', 1) == 4:
                Wl = [Fn(f, 8) for q in range(3) for f in s.issueW(q)]
                Bl = [Fn(f, 8) for q in range(cfg.get('nEB', 2)) for f in s.issueB(q)]
                chk_ = [Fn(s.poll_check(0xff), 8), s.fstamp('eok')] + ([Fn(s.issueH(cfg['hE']), 8)] if cfg.get('hE') else [])
                s.add(pre_ + [Fn(lambda: s.I(*s.poll_issue()), 8)] + [Fn(f, 8) for f in s.pfL('S')] + Wl + s.flag_prog('HS', 1) + [s.fstamp('flY')] + chk_ + Bl + ([Fn(s.tail_early(), 8)] if cfg.get('tearly') else []) + ([Fn(s.issueG(cfg['gE']), 8)] if cfg.get('gE') else []) +
                      [Fn(f, 8) for f in s.pfL('S2')] + s.p2_late() + s.p2_late2() + [s.mark('late')])
                s.drain()
            else:
                s.add(pre_ + [Fn(f, 8) for f in s.pfL('S')] + s.flag_prog('HS', 1) + [s.fstamp('flY')] + [Fn(f, 8) for f in s.pfL('S2')])
                if cfg['p2'] and cfg.get('Lw', 1) == 3: s.add([Fn(f, 8) for q in range(3) for f in s.issueW(q)])
                if cfg.get('sc3'): s.add(s.p2_late() + s.p2_late2() + [s.mark('late')])
                s.drain()
                if cfg['p2']:
                    I(*s.poll_issue()); s.poll_check(0xff)(); s.stamp('eok')
                    if cfg.get('hE'): s.issueH(cfg['hE'])()
                    if cfg.get('gE'): s.issueG(cfg['gE'])()
                    for q in range(cfg.get('nEB', 2)):
                        for f in s.issueB(q): f()
        elif not sc3:
            s.add(s.aug_F(aU1, 3) + s.u_part(aG1, aU1, 0, 1) + s.u_part(aG1 + 16, aU1 + 16, 1, 1) + [s.fstamp('F1st')] + s.s3() + [s.fstamp('s3')] + s.s4(0) + s.flag_prog('HF1', 2) + [s.fstamp('flL')] +
                  s.s4(1) + [s.mark('Sdone'), s.fstamp('Sdone')] + ['s_nop 0'] * cfg.get('ydelay', 0) + s.flag_prog('HS', 1) + [s.fstamp('flY')])
        if sc3 and cfg.get('f1first', 1):
            s.until('F1done')
        if cfg['p2']: s.p2()
        else: s.drain()
        s.stamp('end')
        s.final_stamps()
        e.raw('s_endpgm')
        for f in s.slow: f()
    def gate_mark(s, ev): return ('gate', ev)

def gen_fz(ts=False, cfg=None):
    e = Em(); I = e.I
    cfg = cfg or {}
    e.raw('s_cmp_ge_u32 s2, 256'); e.raw('s_cbranch_scc1 FZ_done')
    I(f's_load_dwordx16 s[64:79], s[0:1], 0')
    I(f's_load_dwordx8 s[80:87], s[0:1], 64')
    I(f's_load_dwordx8 s[88:95], s[0:1], 96')
    e.raw(f's_memrealtime s[{sSB}:{sSB+1}]')
    if ts: e.raw(f'{ts} s[98:99]')
    I(f'v_and_b32 v{vL}, 63, v0'); I(f'v_lshrrev_b32 v{vT}, 6, v0'); I(f'v_readfirstlane_b32 s{sw}, v{vT}')
    if cfg.get('codepf', 1):
        e.raw('s_getpc_b64 s[4:5]'); e.label('PF_base')
        I(f's_lshr_b32 s6, s2, 3'); I(f's_and_b32 s6, s6, 1'); I(f's_lshl_b32 s6, s6, 15')
        I(f'v_lshlrev_b32 v{vT+1}, 7, v0'); I(f'v_add_u32 v{vT+1}, s6, v{vT+1}')
        e.raw(f'v_min_u32 v{vT+1}, TEXT_END-PF_base-4, v{vT+1}')
        I(f'v_mov_b32 v{vT+4}, s4'); I(f'v_mov_b32 v{vT+5}, s5')
        I(f'v_add_co_u32 v{vT+4}, vcc, v{vT+4}, v{vT+1}'); I(f'v_addc_co_u32 v{vT+5}, vcc, 0, v{vT+5}, vcc')
        I(f'global_load_dword v{vDUM}, v[{vT+4}:{vT+5}], off')
    I(f's_and_b32 s{sTmp}, s2, 7'); I(f's_lshr_b32 s{sTmp2}, s2, 3')
    I(f's_lshr_b32 s{sRho}, s{sTmp2}, 2'); I(f's_and_b32 s{sU}, s{sTmp2}, 3')
    I(f's_and_b32 s{sTmp3}, s{sTmp}, 1'); I(f's_lshl_b32 s{sR}, s{sRho}, 1'); I(f's_add_u32 s{sR}, s{sR}, s{sTmp3}')
    I(f's_lshr_b32 s{sG}, s{sTmp}, 1'); I(f's_lshl_b32 s{sC}, s{sG}, 2'); I(f's_add_u32 s{sC}, s{sC}, s{sU}')
    I(f's_lshl_b32 s{sTmp}, s{sU}, 1')
    offm = cfg.get('offm', 'zero')
    if offm == 'cur': I(f's_add_u32 s{sOff}, s{sRho}, s{sTmp}'); I(f's_and_b32 s{sOff}, s{sOff}, 7')
    elif offm == 'zero': I(f's_mov_b32 s{sOff}, 0')
    elif offm == 'rho': I(f's_mov_b32 s{sOff}, s{sRho}')
    elif offm == 'u2': I(f's_mov_b32 s{sOff}, s{sTmp}')
    elif offm == 'rho4': I(f's_and_b32 s{sOff}, s{sRho}, 1'); I(f's_lshl_b32 s{sOff}, s{sOff}, 2')
    elif offm == 'rho2': I(f's_and_b32 s{sOff}, s{sRho}, 3'); I(f's_lshl_b32 s{sOff}, s{sOff}, 1')
    elif offm == 'xcd': I(f's_and_b32 s{sOff}, s2, 7')
    I(f's_mul_i32 s{sSo2}, s{sG}, 7'); I(f's_add_u32 s{sSo2}, s{sSo2}, s{sTmp}'); I(f's_lshl_b32 s{sSo2}, s{sSo2}, 7')
    I(f's_and_b32 s{sTp}, s{sw}, 1'); I(f's_lshr_b32 s{sCp}, s{sw}, 1')
    for s_, n in [(sX, 2048*512*2), (sW1, 512*1792*2), (sW3, 512*1792*2), (sCSC, 512*1792*2), (sSB, 512*512*2), (sWS, WS_SIZE), (sDBG, 256)]:
        I(f's_mov_b32 s{s_+2}, {n}'); I(f's_mov_b32 s{s_+3}, 0x00020000')
    I(f's_lshl_b32 s{sXo}, s{sR}, 2'); I(f's_add_u32 s{sXo}, s{sXo}, s{sw}'); I(f's_lshl_b32 s{sXo}, s{sXo}, 15')
    I(f's_lshl_b32 s{sSo}, s{sC}, 15'); I(f's_lshl_b32 s{sTmp}, s{sTp}, 13'); I(f's_add_u32 s{sSo}, s{sSo}, s{sTmp}')
    I(f's_mul_i32 s{sFo}, s{sw}, {16*WROW}'); I(f's_add_u32 s{sFo}, s{sFo}, s{sSo2}')
    I(f's_lshl_b32 s{sW12}, s{sw}, 12'); I(f's_lshl_b32 s{sW11}, s{sw}, 11'); I(f's_lshl_b32 s{sW13}, s{sw}, 13')
    a, b, c, d = vT, vT + 1, vT + 2, vT + 3
    I(f'v_lshlrev_b32 v{vHB}, 4, v{vL}')
    I(f'v_lshrrev_b32 v{a}, 5, v{vL}'); I(f'v_lshlrev_b32 v{a}, 4, v{a}'); I(f'v_and_b32 v{b}, 8, v{vL}'); I(f'v_add_u32 v{a}, v{a}, v{b}')
    I(f'v_bfe_u32 v{b}, v{vL}, 4, 1'); I(f'v_add_u32 v{a}, v{a}, v{b}'); I(f'v_lshlrev_b32 v{a}, 10, v{a}')
    I(f'v_and_b32 v{b}, 7, v{vL}'); I(f'v_lshrrev_b32 v{c}, 4, v{vL}'); I(f'v_xor_b32 v{d}, v{b}, v{c}')
    I(f'v_lshl_add_u32 v{vDX}, v{d}, 4, v{a}')
    I(f'v_xor_b32 v{vDX+1}, 64, v{vDX}'); I(f'v_add_u32 v{vDX+1}, 1024, v{vDX+1}')
    I(f'v_add_u32 v{vDX+2}, 2048, v{vDX}'); I(f'v_add_u32 v{vDX+3}, 2048, v{vDX+1}')
    I(f'v_bfe_u32 v{a}, v{vL}, 4, 1'); I(f'v_lshlrev_b32 v{a}, 2, v{a}'); I(f'v_xor_b32 v{a}, v{a}, v{b}'); I(f'v_lshlrev_b32 v{a}, 4, v{a}')
    I(f'v_lshrrev_b32 v{d}, 3, v{vL}'); I(f'v_mul_u32_u24 v{vDF}, {WROW}, v{d}'); I(f'v_add_u32 v{vDF}, v{vDF}, v{a}')
    for i in range(1, 4): I(f'v_add_u32 v{vDF+i}, {27648*i}, v{vDF}')
    I(f's_lshl_b32 s{sTmp}, s{sTp}, 2'); I(f'v_add_u32 v{c}, s{sTmp}, v{c}'); I(f'v_xor_b32 v{a}, v{b}, v{c}')
    I(f'v_lshlrev_b32 v{a}, 4, v{a}'); I(f'v_lshl_add_u32 v{vDS}, v{d}, 10, v{a}'); I(f'v_add_u32 v{vDS+1}, 15360, v{vDS}')
    gH = Gen('H', e, ts, cfg); gL = Gen('L', e, ts, cfg)
    gH.lds_addrs(); gH.pre_karg()
    e.force_wait('lgkmcnt(0)')
    if ts: I(f'v_writelane_b32 v{vTS}, s98, 0')
    I(f's_cmp_eq_u32 s{sU}, 3'); e.raw('s_cbranch_scc1 FZ_L')
    sv = (dict(e.lastw), dict(e.lastsw))
    for g, lab in ((gH, None), (gL, 'FZ_L')):
        if lab: e.label(lab); e.reset_hazards(pad=2); e.lgk = []; e.vm = []
        g.body()
    e.label('FZ_done'); e.raw('s_endpgm')
    return e
```

```python
from em import Em
from collections import deque
WS_STATS = 12 << 20
WS_CSS = (12 << 20) + (64 << 10)
WS_CSF = (12 << 20) + (128 << 10)
WS_E = 13 << 20
WS_FL = (13 << 20) + (512 << 10)
WS_TS = 14 << 20
WS_SIZE = 16 << 20
TSTRIDE = 176 * 1024
SLOT = 32768
HALF = 65536
MISC = 131072
L_RS = MISC
L_TOTZ = MISC + 512
L_TAB = MISC + 2304
L_WAUG = MISC + 6400
L_CSC = MISC + 16384
L_TR = MISC + 16384
OOB = 0x40000000
LOG2E = 0x3fb8aa3b
NLOG2E = 0xbfb8aa3b
INV2PI = 0x3e22f983
SPIN = 100000
WROW = 3584
WCH = 64 * WROW

sCSC, sX, sW1, sW3, sWS, sSB, sDBG = 4, 8, 12, 16, 20, 24, 28
sw, sR, sC, sOff, sNonce, sTp, sCp, sU, sG, sRho = 32, 33, 34, 35, 36, 37, 38, 39, 40, 41
sXo, sSo, sFo, sKa, sKb, sKc, sTmp, sTmp2, sTmp3 = 42, 43, 44, 45, 46, 47, 48, 49, 50
sW12, sW11, sW13, sTg0, sHF = 51, 52, 53, 54, 55
sMhi, sModd, sBad, sMsel = 56, 58, 60, 62
sSpin = 3
sGa, sGb = 96, 97
kX, kLre, kLim, kBre, kBim, kCre, kCim, kLdt = 64, 66, 68, 70, 72, 74, 76, 78
kDk, kBx, kW1, kW3, kW2, kOut, kDbg, kWs = 80, 82, 84, 86, 88, 90, 92, 94
TSPOOL = [98, 82, 0]
sSo2 = 101
sFlP = 100
sW2, sCRE, sCIM, sOUT = 64, 68, 84, 92
sBE, sBY, sFlC, sXb, sSb, sDko, sRowW, sCrow, sOb = 72, 73, 74, 75, 76, 77, 78, 79, 88
aS, aG0, aU0, aG1, aU1, WF = 0, 32, 64, 96, 128, 160
vW, vA0, vA1, vB1, vPl = 176, 180, 181, 182, 183
vXA, vSS, vG, vL, vHB, vCA = 184, 188, 192, 193, 194, 195
vDX, vDF, vDS = 196, 200, 204
vXaug, vNRS, vK2, vSA = 206, 214, 216, 218
vT = 222
vNon, vPo, vTS, vDUM = 252, 253, 254, 255
vCh, vTg, vRs, vTo, vTw, vTr, vEo, vFl = 222, 223, 224, 225, 226, 227, 228, 229
vPc, vPC, vH = 230, 234, 238
vC, vY = 196, 184
ACCO, ACCY = 128, 192
TRANS = ('v_exp_f32','v_log_f32','v_rcp_f32','v_rsq_f32','v_sqrt_f32','v_sin_f32','v_cos_f32')

VOP3 = ('v_fma_f32', 'v_lshl_add_u32', 'v_bfe_u32', 'v_cvt_pk_bf16_f32', 'v_mul_lo_u32', 'v_add3_u32', 'v_lshl_or_b32', 'v_and_or_b32', 'v_writelane_b32', 'v_mul_u32_u24')
def cost(txt):
    mn = txt.split()[0]
    if mn in TRANS or 'permlane' in mn: return 8
    if mn.startswith('v_mfma'): return 8
    if mn.startswith('v_pk_'): return 20
    if mn in VOP3 or (mn.startswith('v_cndmask') and 's[' in txt) or (mn.startswith('v_cmp') and ' s[' in txt[:30]) or '0x' in txt and mn.startswith('v_') or (mn.startswith('v_') and ' -v' in txt): return 5
    return 4

class Atom:
    def __init__(s, items):
        s.items = items; s.cost = sum(icost(x) for x in items)
class Fn:
    def __init__(s, f, c): s.f = f; s.cost = c
def icost(x):
    if isinstance(x, (Atom, Fn)): return x.cost
    return cost(x[0] if isinstance(x, tuple) else x)
def isctl(x, k): return isinstance(x, tuple) and x[0] == k

def cmac(d, a, b, c):
    if d == c:
        return [f'v_fmac_f32 v{d}, v{a}, v{b}', f'v_fmac_f32 v{d+1}, v{a}, v{b+1}',
                f'v_fma_f32 v{d}, -v{a+1}, v{b+1}, v{d}', f'v_fmac_f32 v{d+1}, v{a+1}, v{b}']
    return [f'v_fma_f32 v{d}, v{a}, v{b}, v{c}', f'v_fma_f32 v{d+1}, v{a}, v{b+1}, v{c+1}',
            f'v_fma_f32 v{d}, -v{a+1}, v{b+1}, v{d}', f'v_fmac_f32 v{d+1}, v{a+1}, v{b}']
def zipl(a, b):
    out = []; i = j = 0
    while i < len(a) or j < len(b):
        if j >= len(b) or (i < len(a) and i * len(b) <= j * len(a)): out.append(a[i]); i += 1
        else: out.append(b[j]); j += 1
    return out

DEF_SCHED = [['W3', 'B2', 'B3'], ['W4'], ['pL', 'W5'], ['W6', 'cL', 'B4', 'B5', 'B6'], ['pY', 'W7'], ['W8', 'cY', 'B7', 'B8'], ['W9', 'B9'], ['W10', 'B10'], [], [], []]
SCHED3 = [['W3', 'B2', 'B3'], ['fY', 'W4'], ['fL', 'pY', 'W5'], ['W6', 'cY', 'B4', 'B5', 'pL'], ['W7', 'cL', 'B6', 'B7'], ['W8', 'B8'], ['W9', 'B9'], ['W10', 'B10'], [], [], []]
S4 = [['W3', 'B2'], ['fL', 'pY', 'W4', 'B3', 'cY', 'h4.5.9.10'], ['W5', 'B4'], ['pL', 'W6', 'B5', 'cL', 'h6.7.8'], ['W7', 'B6'], ['W8', 'B7'], ['W9', 'B8'], ['W10', 'B9'], ['B10'], [], []]
S5 = [['W3', 'B2', 'B3'], ['fL', 'pY', 'W4', 'cY', 'h4.5.9.10'], ['W5', 'B4'], ['pL', 'W6', 'B5', 'cL', 'h6.7.8'], ['W7', 'B6'], ['W8', 'B7'], ['W9', 'B8'], ['W10', 'B9'], ['B10'], [], []]
S6 = [['W3', 'B2', 'B3'], ['fL', 'pY', 'W4'], ['cY', 'h4.5.9.10', 'W5', 'B4', 'pL'], ['W6', 'B5', 'cL', 'h6.7.8'], ['W7', 'B6'], ['W8', 'B7'], ['W9', 'B8'], ['W10', 'B9'], ['B10'], [], []]
S7 = [['W3', 'B2', 'B3'], ['fL', 'pY', 'W4'], ['cY', 'B4', 'B5', 'W5'], ['pL', 'W6'], ['cL', 'B6', 'B7', 'W7'], ['W8', 'B8'], ['W9', 'B9'], ['W10', 'B10'], [], [], []]
S8 = [['W3', 'B2'], ['pY', 'W4', 'B3', 'cY', 'h4.5.9.10'], ['fL', 'W5', 'B4'], ['W6', 'B5', 'pL'], ['cL', 'h6.7.8', 'W7', 'B6'], ['W8', 'B7'], ['W9', 'B8'], ['W10', 'B9'], ['B10'], [], []]
S9 = [['W3', 'B2'], ['pY', 'W4', 'B3', 'cY', 'h4.5.9.10', 'fL'], ['W5', 'B4'], ['W6', 'pL', 'B5'], ['cL', 'h6.7.8', 'W7', 'B6'], ['W8', 'B7'], ['W9', 'B8'], ['W10', 'B9'], ['B10'], [], []]
T2 = [('o', 0), ('o', 2), ('o', 4), ('o', 6), ('y', 0), ('o', 1), ('o', 3), ('o', 5), ('y', 1), ('y', 2), ('y', 3)]
U1 = [['W3', 'B2'], ['fL', 'pY', 'W4', 'B3', 'cY', 'h4.8.9.10'], ['W5', 'B4'], ['pL', 'W6', 'cL', 'h6.7', 'B5'], ['W7', 'B6'], ['W8', 'B7'], ['W9', 'B8'], ['W10', 'B9'], ['B10'], [], []]
U2 = [['W3', 'B2'], ['pY', 'W4', 'B3', 'cY', 'h4.8.9.10', 'fL'], ['W5', 'B4'], ['W6', 'pL', 'B4x'], ['cL', 'h6.7', 'B5', 'W7', 'B6'], ['W8', 'B7'], ['W9', 'B8'], ['W10', 'B9'], ['B10'], [], []]
U2[3].remove('B4x')
U3 = [['W3', 'B2', 'B3'], ['fL', 'pY', 'W4', 'cY', 'B4'], ['W5', 'pL'], ['W6', 'cL', 'B5', 'B6'], ['W7', 'B7'], ['W8', 'B8'], ['W9', 'B9'], ['W10', 'B10'], [], [], []]
T3 = [('o', 0), ('o', 2), ('o', 4), ('o', 6), ('y', 0), ('y', 1), ('y', 2), ('y', 3), ('o', 1), ('o', 3), ('o', 5)]
V1 = [['W3', 'B2'], ['pY', 'W4', 'B3', 'cY', 'h4.5.6.7'], ['fL', 'W5', 'B4'], ['W6', 'B5'], ['W7', 'B6'], ['W8', 'B7', 'pL'], ['cL', 'h8.9.10', 'W9', 'B8'], ['W10', 'B9'], ['B10'], [], []]
V2 = [['W3', 'B2'], ['pY', 'W4', 'B3', 'cY', 'h4.5.6.7'], ['fL', 'W5', 'B4'], ['W6', 'B5'], ['W7', 'B6'], ['W8', 'pL', 'B7'], ['cL', 'h8.9.10', 'W9', 'B8'], ['W10', 'B9'], ['B10'], [], []]
V3 = [['W3', 'B2'], ['pY', 'W4', 'B3', 'cY', 'h4.5.6.7'], ['fL', 'W5', 'B4'], ['W6', 'B5'], ['W7', 'B6'], ['pL', 'W8', 'B7'], ['cL', 'h8.9.10', 'W9', 'B8'], ['W10', 'B9'], ['B10'], [], []]
V4 = [['W3', 'B2'], ['fL', 'pY', 'W4', 'B3', 'cY', 'h4.5.6.7'], ['W5', 'B4'], ['W6', 'B5'], ['W7', 'B6', 'pL'], ['W8', 'B7', 'cL', 'h8.9.10'], ['W9', 'B8'], ['W10', 'B9'], ['B10'], [], []]
V5 = [['W3', 'B2'], ['pY', 'W4', 'B3', 'cY', 'h4.5.6.7'], ['fL', 'W5', 'B4'], ['W6', 'B5'], ['W7', 'B6'], ['W8', 'B7'], ['pL', 'W9'], ['cL', 'h8.9.10', 'B8', 'W10', 'B9'], ['B10'], [], []]
V6 = [['W3', 'B2'], ['pY', 'W4', 'B3', 'cY', 'h4.5.6.7'], ['fL', 'W5', 'B4'], ['W6', 'B5'], ['W7', 'B6'], ['pL', 'W8', 'B7'], ['cL', 'h8.9.10', 'B8', 'W9'], ['W10', 'B9'], ['B10'], [], []]
V7 = [['W3', 'B2'], ['pY', 'W4', 'B3', 'cY', 'h4.5.6.7'], ['fL', 'W5', 'B4'], ['W6', 'B5'], ['W7', 'B6'], ['pL', 'W8', 'B7'], ['cL', 'W9', 'B8'], ['W10', 'B9'], ['B10'], [], []]
V8 = [['W3', 'B2'], ['pY', 'W4', 'B3', 'cY', 'h4.5.6.7', 'fL'], ['W5', 'B4'], ['W6', 'B5'], ['W7', 'B6'], ['pL', 'W8', 'B7'], ['cL', 'h8.9.10', 'W9', 'B8'], ['W10', 'B9'], ['B10'], [], []]
V9 = [['W3', 'B2'], ['pY', 'W4', 'B3', 'cY', 'h4.5.6.7'], ['W5', 'B4', 'fL'], ['W6', 'B5'], ['W7', 'B6'], ['W8', 'B7'], ['pL', 'W9', 'cL', 'h8.9.10', 'B8'], ['W10', 'B9'], ['B10'], [], []]
X1 = [['W3', 'B2'], ['pY', 'W4', 'B3', 'cY', 'h4.5.6.7'], ['W5', 'B4'], ['fL', 'W6', 'B5'], ['W7', 'B6'], ['W8', 'B7'], ['pL', 'W9', 'cL', 'B8'], ['W10', 'B9'], ['B10'], [], []]
X2 = [['W3', 'B2'], ['pY', 'W4', 'B3', 'cY', 'h4.5.6.7'], ['W5', 'B4', 'fL'], ['W6', 'B5'], ['W7', 'B6'], ['W8', 'B7', 'pL'], ['W9', 'cL', 'B8'], ['W10', 'B9'], ['B10'], [], []]
X3 = [['W3', 'B2'], ['pY', 'W4', 'B3', 'cY', 'h4.5.6.7'], ['W5', 'B4'], ['fL', 'W6', 'B5'], ['W7', 'B6'], ['W8', 'B7'], ['pL', 'W9'], ['cL', 'B8', 'W10', 'B9'], ['B10'], [], []]
X4 = [['W3', 'B2'], ['pY', 'W4', 'B3', 'cY'], ['fL', 'W5', 'B4'], ['W6', 'B5'], ['W7', 'B6'], ['pL', 'W8', 'B7'], ['cL', 'W9', 'B8'], ['W10', 'B9'], ['B10'], [], []]
X5 = [['W3', 'B2'], ['pY', 'W4', 'B3', 'cY'], ['W5', 'B4'], ['fL', 'W6', 'B5'], ['W7', 'B6'], ['W8', 'B7'], ['pL', 'W9', 'cL', 'B8'], ['W10', 'B9'], ['B10'], [], []]
X6 = [['W3', 'B2'], ['pY', 'W4', 'B3', 'cY'], ['W5', 'B4'], ['fL', 'W6', 'B5'], ['W7', 'B6'], ['W8', 'B7'], ['pL', 'W9'], ['cL', 'B8', 'W10', 'B9'], ['B10'], [], []]
X7 = [['W3', 'B2'], ['pY', 'W4', 'B3'], ['cY', 'fL', 'W5', 'B4'], ['W6', 'B5'], ['W7', 'B6'], ['pL', 'W8', 'B7'], ['cL', 'W9', 'B8'], ['W10', 'B9'], ['B10'], [], []]
X8 = [['W3', 'B2'], ['pY', 'W4', 'B3'], ['cY', 'B4', 'W5'], ['fL', 'W6', 'B5'], ['W7', 'B6'], ['W8', 'B7', 'pL'], ['W9', 'cL', 'B8'], ['W10', 'B9'], ['B10'], [], []]
X9 = [['W3', 'B2', 'B3'], ['pY', 'W4'], ['cY', 'fL', 'B4', 'W5', 'B5'], ['W6', 'B6'], ['W7', 'B7'], ['pL', 'W8'], ['cL', 'W9', 'B8'], ['W10', 'B9'], ['B10'], [], []]
T5 = [('o', 0), ('o', 2), ('o', 4), ('y', 0), ('y', 1), ('y', 2), ('y', 3), ('o', 6), ('o', 1), ('o', 3), ('o', 5)]
Y1 = [['W3', 'B2'], ['pY', 'W4', 'cY', 'B3'], ['W5', 'B4'], ['fL', 'W6', 'B5'], ['W7', 'B6'], ['W8', 'B7'], ['pL', 'W9', 'cL', 'B8'], ['B9'], ['W10', 'B10'], [], []]
Y2 = [['W3', 'B2'], ['pY', 'W4', 'cY', 'B3'], ['W5', 'B4'], ['fL', 'W6', 'B5'], ['W7', 'B6'], ['W8', 'B7'], ['pL', 'W9', 'cL', 'B8'], ['B9', 'B10'], ['W10'], [], []]
Y3 = [['W3', 'B2'], ['pY', 'W4', 'cY', 'B3'], ['fL', 'W5', 'B4'], ['W6', 'B5'], ['W7', 'B6'], ['pL', 'W8', 'B7'], ['cL', 'B8', 'W9'], ['B9'], ['W10', 'B10'], [], []]
Y4 = [['W3', 'B2'], ['pY', 'W4', 'cY', 'B3'], ['W5', 'B4'], ['fL', 'W6', 'B5'], ['W7', 'B6'], ['W8', 'B7'], ['pL', 'W9'], ['cL', 'B8', 'B9'], ['W10', 'B10'], [], []]
Y5 = [['W3', 'B2', 'pY'], ['W4', 'cY', 'B3'], ['W5', 'B4'], ['fL', 'W6', 'B5'], ['W7', 'B6'], ['W8', 'B7', 'pL'], ['W9', 'cL', 'B8'], ['B9'], ['W10', 'B10'], [], []]
Y6 = [['W3', 'B2', 'pY'], ['W4', 'cY', 'B3'], ['W5', 'B4', 'fL'], ['W6', 'B5'], ['W7', 'B6'], ['W8', 'B7', 'pL'], ['W9', 'cL', 'B8'], ['B9'], ['W10', 'B10'], [], []]
Y7 = [['W3', 'B2', 'pY'], ['cY', 'B3', 'W4'], ['W5', 'B4'], ['fL', 'W6', 'B5'], ['W7', 'B6'], ['W8', 'B7', 'pL'], ['W9', 'cL', 'B8'], ['B9'], ['W10', 'B10'], [], []]
Y8 = [['W3', 'B2', 'pY'], ['W4', 'cY', 'B3'], ['W5', 'B4'], ['fL', 'W6', 'B5'], ['W7', 'B6'], ['W8', 'B7'], ['pL', 'W9'], ['cL', 'B8', 'B9'], ['W10', 'B10'], [], []]
Y9 = [['W3', 'B2', 'pY'], ['W4', 'cY', 'B3'], ['W5', 'B4'], ['W6', 'B5', 'fL'], ['W7', 'B6'], ['W8', 'B7'], ['W9', 'pL'], ['cL', 'B8', 'B9'], ['W10', 'B10'], [], []]
def addit(S, q, items, front=True):
    S = [list(x) for x in S]
    S[q] = (list(items) + S[q]) if front else (S[q] + list(items))
    return S
class Gen:
    def __init__(s, typ, e, ts=False, cfg=None):
        s.typ = typ; s.e = e; s.ts = ts
        s.cfg = dict(gA_issue=5, gB_issue=6, gA_proc=7, gB_proc=7, gBbar=8, offm='zero', fcs=3, budA=30, budB=24, budC=24, budD=24, pf=3, p2=True, budP=40, budP0=64, slack=1,
                     pE=10, cE=16, s3b=14, flEb=12, sched=DEF_SCHED, totb=12)
        if cfg: s.cfg.update(cfg)
        s.fill = deque(); s.events = set(); s.half = {}
        s.slow = []
        s.pacc = 0.5
        s.nlab = 0
        s.P = f'FZ{typ}'
        s.pend = []
        s.names = s.cfg.get('stamps', [])
        if s.cfg.get('sc3'):
            d = dict(types=[('o', 0), ('o', 2), ('o', 4), ('o', 6), ('y', 0), ('y', 1), ('o', 1), ('o', 3), ('o', 5), ('y', 2), ('y', 3)],
                     sched=SCHED3, totk=20, flEk=(1, 28), s3ik=None, s3pk=(1, 26), g1pos=2, pE=6, cE=14, nEB=2, tq=1)
            for k, v in d.items():
                if not cfg or k not in cfg: s.cfg[k] = v
        s.TYPES = s.cfg.get('types', Gen.TYPES)
    def I(s, t, tag=None): s.e.I(t, tag)
    def lab(s, n):
        s.nlab += 1; return f'{s.P}_{n}{s.nlab}'
    def stamp(s, name):
        if not s.ts or name not in s.names: return
        k = s.names.index(name) + 1
        used = [p[0] for p in s.pend]
        free = [r for r in TSPOOL if r not in used]
        if not free:
            s.flush_stamps(); free = list(TSPOOL)
        r = free[0]
        s.e.raw(f'{s.ts} s[{r}:{r+1}]')
        s.pend.append((r, k))
    def fstamp(s, name):
        return Fn(lambda: s.stamp(name), 0)
    def flush_stamps(s):
        if not s.pend: return
        s.e.force_wait('lgkmcnt(0)')
        for r, k in s.pend: s.I(f'v_writelane_b32 v{vTS}, s{r}, {k}')
        s.pend = []
    def final_stamps(s):
        if not s.ts: return
        s.flush_stamps()
        I = s.I
        I(f's_lshl_b32 s{sTmp}, s2, 2'); I(f's_add_u32 s{sTmp}, s{sTmp}, s{sw}'); I(f's_lshl_b32 s{sTmp}, s{sTmp}, 8'); I(f's_add_u32 s{sTmp}, s{sTmp}, {WS_TS}')
        I(f'v_lshlrev_b32 v{vDUM}, 2, v{vL}')
        I(f'buffer_store_dword v{vTS}, v{vDUM}, s[{sWS}:{sWS+3}], s{sTmp} offen')
    def add(s, items):
        for x in items: s.fill.append(x)
    def addfront(s, items):
        for x in reversed(items): s.fill.appendleft(x)
    def gate(s, ev): return ('gate', ev)
    def mark(s, ev): return ('mark', ev)
    def emit1(s, x):
        if isinstance(x, Atom):
            for y in x.items: s.emit1(y)
        elif isinstance(x, Fn): x.f()
        elif isinstance(x, tuple): s.I(x[0], x[1])
        else: s.I(x)
    def run_fill(s, budget):
        while s.fill:
            x = s.fill[0]
            if isctl(x, 'gate'):
                if x[1] in s.events: s.fill.popleft(); continue
                return
            if isctl(x, 'mark'):
                s.fill.popleft(); s.events.add(x[1]); continue
            if isctl(x, 'skip'):
                if budget >= 12: s.fill.popleft()
                return
            c = icost(x)
            if c > budget + s.cfg['slack'] and not (c > 20 and budget >= 12): return
            n0 = s.e.n
            s.fill.popleft(); s.emit1(x); budget -= max(c, 4 * (s.e.n - n0))
    def gap(s, n0, G):
        s.run_fill(G - 4 * (s.e.n - n0))
    def pace(s, dma, left):
        if not dma: s.pacc = s.cfg.get('pacc0', 0.5); return
        s.pacc += len(dma) / max(left, 1)
        n = int(s.pacc + 1e-9); s.pacc -= n
        for _ in range(min(n, len(dma))): dma.popleft()()
        if not dma: s.pacc = s.cfg.get('pacc0', 0.5)
    def atom(s, lst): return Atom(lst)
    def capture(s, fn):
        rec = []
        old = s.I
        s.I = lambda t, tag=None: rec.append((t, tag) if tag else t)
        fn()
        s.I = old
        out = []; i = 0
        txt = lambda x: x[0] if isinstance(x, tuple) else x
        while i < len(rec):
            t = txt(rec[i])
            if t.startswith(('s_cmp', 's_bitcmp')):
                j = i + 1
                while j < len(rec) and txt(rec[j]).startswith('s_cselect'): j += 1
                out.append(Atom(rec[i:j])); i = j
            elif t.startswith('v_cmp') and ' vcc,' in t:
                j = i + 1
                while j < len(rec) and txt(rec[j]).startswith('v_cndmask') and txt(rec[j]).endswith('vcc'): j += 1
                assert j > i + 1, t
                out.append(Atom(rec[i:j])); i = j
            else: out.append(rec[i]); i += 1
        return out
    def until(s, ev):
        while ev not in s.events:
            assert s.fill, ev
            x = s.fill[0]
            if isctl(x, 'gate'): assert x[1] in s.events, (ev, x)
            s.run_fill(64)
    def drain(s):
        while s.fill:
            x = s.fill[0]
            if isctl(x, 'gate'): assert x[1] in s.events, x
            s.run_fill(10**9)
    def addr(s, reg, slot):
        h = slot >> 1
        if s.half.get(reg, 0) != h:
            s.I(f'v_add_u32 v{reg}, {HALF}, v{reg}' if h else f'v_subrev_u32 v{reg}, {HALF}, v{reg}')
            s.half[reg] = h
        return (slot & 1) * SLOT
    def barrier(s, name, wait_tag=None):
        e = s.e
        s.stamp('pre' + name)
        if wait_tag: e.wait_tag(wait_tag)
        e.barrier()
        s.events.add(name)
        s.stamp(name)
        s.flush_stamps()
    def rd_x(s, st, ks, t):
        a = ((4 * st + ks) * 2 + t) * 4
        def f():
            o = s.addr(vXA + ks, st & 3)
            s.I(f'ds_read_b128 a[{a}:{a+3}], v{vXA+ks} offset:{o+4096*t}')
        return [f]
    def rd_S(s, st, ks, dst):
        def f():
            o = s.addr(vSS + ks, st & 3)
            s.I(f'ds_read_b128 v[{dst}:{dst+3}], v{vSS+ks} offset:{o}')
        return [f]
    def rd_W(s, slot, off, dst):
        def f1():
            o = s.addr(vG, slot)
            s.I(f'ds_read_b64_tr_b16 v[{dst}:{dst+1}], v{vG} offset:{o+off}')
        def f2():
            o = s.addr(vG, slot)
            s.I(f'ds_read_b64_tr_b16 v[{dst+2}:{dst+3}], v{vG} offset:{o+off+512}')
        return [f1, f2]
    def mkdma(s, ops, tag):
        out = []
        for pre, ins in ops:
            def f(pre=pre, ins=ins):
                for p in pre: s.I(p)
                s.I(ins, tag)
            out.append(f)
        return out
    def dma_list(s, st):
        ops = []
        slot = (st & 3) * SLOT
        if st < 8:
            pre = [f's_add_u32 s{sKa}, s{sOff}, {st}', f's_and_b32 s{sKa}, s{sKa}, 7', f's_lshl_b32 s{sKb}, s{sKa}, 7',
                   f's_add_u32 s{sKc}, s{sXo}, s{sKb}', f's_add_u32 m0, s{sW12}, {slot}']
            for A in range(4):
                ops.append((pre if A == 0 else [], f'buffer_load_dwordx4 v{vDX+A}, s[{sX}:{sX+3}], s{sKc} offen offset:{1024*A} lds'))
            pre = [f's_add_u32 s{sKc}, s{sSo}, s{sKb}', f's_add_u32 m0, s{sW11}, {slot+16384}']
            for i in range(2):
                ops.append((pre if i == 0 else [], f'buffer_load_dwordx4 v{vDS+i}, s[{sSB}:{sSB+3}], s{sKc} offen offset:{1024*i} lds'))
            pre = [f's_mul_i32 s{sKc}, s{sKa}, {WCH}', f's_add_u32 s{sKc}, s{sKc}, s{sFo}', f's_add_u32 m0, s{sW11}, {slot+24576}']
            for i in range(2):
                ops.append((pre if i == 0 else [], f'buffer_load_dwordx4 v{vDF+i}, s[{sW1}:{sW1+3}], s{sKc} offen offset:{1024*i} lds'))
        else:
            p = (st - 8) >> 1; vs = st & 1
            srd = sW1 if p == 1 else sW3
            line = 128 if p >= 1 else 0
            pre = [f's_add_u32 s{sKa}, s{sOff}, s{sw}', f's_add_u32 s{sKa}, s{sKa}, {4*vs}', f's_and_b32 s{sKa}, s{sKa}, 7',
                   f's_mul_i32 s{sKc}, s{sKa}, {WCH}', f's_add_u32 s{sKc}, s{sKc}, s{sSo2}']
            if line: pre.append(f's_add_u32 s{sKc}, s{sKc}, {line}')
            pre.append(f's_add_u32 m0, s{sW13}, {slot}')
            for i in range(4):
                ops.append((pre if i == 0 else [], f'buffer_load_dwordx4 v{vDF+i}, s[{srd}:{srd+3}], s{sKc} offen offset:{1024*i} lds'))
            pre = [f's_add_u32 s{sKc}, s{sKc}, {32*WROW}', f's_add_u32 m0, s{sW13}, {slot+4096}']
            for i in range(4):
                ops.append((pre if i == 0 else [], f'buffer_load_dwordx4 v{vDF+i}, s[{srd}:{srd+3}], s{sKc} offen offset:{1024*i} lds'))
        return s.mkdma(ops, f'D{st}')
    def dma_csc(s):
        ops = []
        nl = 2 if s.typ == 'H' else 1
        for X in range(nl):
            pre = [f's_mul_i32 s{sKc}, s{sRho}, {WCH}', f's_add_u32 s{sKc}, s{sKc}, s{sFo}']
            if X: pre.append(f's_add_u32 s{sKc}, s{sKc}, 128')
            pre.append(f's_add_u32 m0, s{sW11}, {L_CSC + X*8192}')
            for i in range(2):
                ops.append((pre if i == 0 else [], f'buffer_load_dwordx4 v{vDF+i}, s[{sCSC}:{sCSC+3}], s{sKc} offen offset:{1024*i} lds'))
        return s.mkdma(ops, 'CSC')

    XR, SR, PR, NP = 96, 104, 108, 114
    SV = 152
    def inter(s, vms, alus, per):
        alus = deque(alus)
        for f in vms:
            f()
            bud = per
            while alus and bud > 0:
                x = alus.popleft(); n0 = s.e.n; s.emit1(x); bud -= max(icost(x), 4 * (s.e.n - n0))
        while alus: s.emit1(alus.popleft())
    def prologue(s):
        e = s.e; I = s.I; typ = s.typ; cfg = s.cfg
        a, b, c, d = 240, 241, 242, 243
        XR, SR, PR, NP = s.XR, s.SR, s.PR, s.NP
        s.stamp('karg')
        I(f's_mov_b64 s[{sX}:{sX+1}], s[{kX}:{kX+1}]')
        I(f's_mov_b64 s[{sDBG}:{sDBG+1}], s[{kDbg}:{kDbg+1}]')
        Ln = s.lab('nn')
        I(f's_or_b32 s{sTmp2}, s2, s{sw}'); I(f's_cmp_eq_u32 s{sTmp2}, 0'); e.raw(f's_cbranch_scc0 {Ln}')
        I(f's_or_b32 s{sTmp}, s{sSB}, 1')
        I(f'v_mov_b32 v{a}, s{sTmp}'); I(f'v_lshlrev_b32 v{b}, 10, v{vL}')
        I(f'buffer_store_dword v{a}, v{b}, s[{sDBG}:{sDBG+3}], 0 offen sc1')
        e.label(Ln)
        I(f'buffer_load_dwordx4 v[{XR}:{XR+3}], v{vHB}, s[{sX}:{sX+3}], s{sGa} offen', 'XR')
        I(f'buffer_load_dwordx4 v[{XR+4}:{XR+7}], v{vHB}, s[{sX}:{sX+3}], s{sGa} offen offset:1024', 'XR')
        I(f's_mov_b64 s[{sW1}:{sW1+1}], s[{kW1}:{kW1+1}]')
        I(f's_cmp_eq_u32 s{sCp}, 0'); I(f's_cselect_b64 s[{sSB}:{sSB+1}], s[{kBre}:{kBre+1}], s[{kBim}:{kBim+1}]')
        I(f's_bitcmp1_b32 s{sR}, 2'); I(f's_cselect_b64 s[{sTmp}:{sTmp+1}], s[{kBim}:{kBim+1}], s[{kBre}:{kBre+1}]')
        I(f'global_load_dwordx4 v[{SR}:{SR+3}], v{SR}, s[{sTmp}:{sTmp+1}]', 'SR')
        for k, src in enumerate((kLre, kLim, kLdt)): I(f'global_load_ushort v{PR+k}, v{PR+3}, s[{src}:{src+1}]', 'PR')
        I(f's_mov_b64 s[{sWS}:{sWS+1}], s[{kWs}:{kWs+1}]')
        I(f's_mov_b64 s[{sW3}:{sW3+1}], s[{kW3}:{kW3+1}]')
        I(f's_and_b32 s{sTmp}, s{sR}, 1'); I(f's_cmp_eq_u32 s{sTmp}, 0'); I(f's_cselect_b64 s[{sCSC}:{sCSC+1}], s[{kW1}:{kW1+1}], s[{kW3}:{kW3+1}]')
        s.stamp('q0')
        pe = s.capture(s.p2_srd) + s.capture(s.p2_early)
        s.inter(s.dma_list(0), pe + s.s_setup(), cfg.get('per0', 56))
        s.stamp('q1')
        I(f's_lshr_b32 s{sGa}, s{sGa}, 7'); I(f's_add_u32 s{sGa}, s{sGa}, {WS_STATS}')
        I(f'v_mov_b32 v{NP+1}, 0')
        def np_():
            I(f'buffer_load_dword v{NP}, v{NP+1}, s[{sDBG}:{sDBG+3}], 0 offen sc1', 'NP')
        e.wait_tag('XR')
        s.stamp('q2')
        st_ = s.capture(s.stats_x); ss_ = s.capture(s.stats_s)
        s.inter([np_] + s.dma_list(1) + s.pf1_list(), st_ + ss_, cfg.get('per1', 56))
        s.stamp('q4')
        s.barrier('B0', 'D0')

    def pf1_list(s):
        m = s.cfg.get('pf1', 0); I = s.I; out = []
        va, vb = 244, 245
        if m & 1:
            def fx():
                I(f'v_lshlrev_b32 v{va}, 3, v{vHB}')
                I(f's_lshl_b32 s{sKa}, s{sR}, 17'); I(f's_lshl_b32 s{sKb}, s{sU}, 15'); I(f's_add_u32 s{sKa}, s{sKa}, s{sKb}')
                I(f's_lshl_b32 s{sKb}, s{sw}, 13'); I(f's_add_u32 s{sKa}, s{sKa}, s{sKb}')
                I(f'buffer_load_dword v{vDUM}, v{va}, s[{sX}:{sX+3}], s{sKa} offen', 'PF')
            out.append(fx)
        if m & 2:
            def fs():
                I(f'v_lshlrev_b32 v{vb}, 3, v{vHB}'); I(f'v_mov_b32 v{va}, {OOB}')
                I(f'v_cndmask_b32 v{vb}, v{vb}, v{va}, s[{sMhi}:{sMhi+1}]')
                I(f's_lshl_b32 s{sKa}, s{sC}, 15'); I(f's_lshl_b32 s{sKb}, s{sRho}, 12'); I(f's_add_u32 s{sKa}, s{sKa}, s{sKb}')
                I(f's_cmp_eq_u32 s{sTp}, 0'); I(f's_cselect_b32 s{sKa}, s{sKa}, {OOB}')
                I(f'buffer_load_dword v{vDUM}, v{vb}, s[{sSB}:{sSB+3}], s{sKa} offen', 'PF')
            out.append(fs)
        if m & 4:
            def fw():
                I(f'v_mul_u32_u24 v{va}, {WROW}, v{vL}')
                I(f's_cmp_eq_u32 s{sCp}, 0'); I(f's_cselect_b64 s[{sBad}:{sBad+1}], s[{sW1}:{sW1+1}], s[{sW3}:{sW3+1}]')
                I(f's_mov_b32 s{sBad+2}, {512*1792*2}'); I(f's_mov_b32 s{sBad+3}, 0x00020000')
                I(f's_mul_i32 s{sKa}, s{sRho}, {WCH}'); I(f's_add_u32 s{sKa}, s{sKa}, s{sSo2}')
                I(f's_add_u32 s{sKb}, s{sKa}, 128')
                if s.typ == 'L': I(f's_mov_b32 s{sKb}, {OOB}')
                I(f's_cmp_eq_u32 s{sTp}, 0'); I(f's_cselect_b32 s{sKa}, s{sKb}, s{sKa}')
                I(f'buffer_load_dword v{vDUM}, v{va}, s[{sBad}:{sBad+3}], s{sKa} offen', 'PF')
            out.append(fw)
        return out
    def pf2_item(s, unit, k):
        I = s.I
        def f():
            I(f'v_lshlrev_b32 v{vPo}, 3, v{vHB}')
            I(f's_mul_i32 s{sKa}, s{sRho}, 3'); I(f's_add_u32 s{sKa}, s{sKa}, s{sU}'); I(f's_lshl_b32 s{sKa}, s{sKa}, 2'); I(f's_add_u32 s{sKa}, s{sKa}, s{sw}')
            if k % 3:
                I(f's_add_u32 s{sKa}, s{sKa}, {32 * (k % 3)}'); I(f's_sub_u32 s{sKb}, s{sKa}, 96'); I(f's_cmp_ge_u32 s{sKa}, 96'); I(f's_cselect_b32 s{sKa}, s{sKb}, s{sKa}')
            if unit in ('r', 'i'):
                I(f's_lshl_b32 s{sKa}, s{sKa}, 13'); srd = sCRE if unit == 'r' else sCIM
            else:
                j = unit
                I(f's_lshr_b32 s{sKb}, s{sKa}, 3'); I(f's_mul_i32 s{sKb}, s{sKb}, {7*65536}'); I(f's_and_b32 s{sKa}, s{sKa}, 7'); I(f's_lshl_b32 s{sKa}, s{sKa}, 13')
                I(f's_add_u32 s{sKa}, s{sKa}, s{sKb}')
                if j: I(f's_add_u32 s{sKa}, s{sKa}, {j*65536}')
                srd = sW2
            I(f'buffer_load_dword v{vDUM}, v{vPo}, s[{srd}:{srd+3}], s{sKa} offen', 'PF')
        return f
    def pfL(s, pos):
        I = s.I; out = []
        va, vb = 100, 101
        for unit in s.cfg.get('pfL', {}).get(pos, ()):
            def f(unit=unit):
                if not getattr(s, 'pfl_init', False):
                    s.pfl_init = True
                    I(f'v_lshlrev_b32 v{va}, 3, v{vHB}')
                    I(f'v_lshrrev_b32 v{vb}, 2, v{vL}'); I(f'v_lshlrev_b32 v{vb}, 10, v{vb}'); I(f'v_and_b32 v{va+2}, 3, v{vL}'); I(f'v_lshl_add_u32 v{vb}, v{va+2}, 8, v{vb}')
                I(f's_lshl_b32 s{sKa}, s{sRho}, 2'); I(f's_add_u32 s{sKa}, s{sKa}, s{sw}')
                if isinstance(unit, str):
                    I(f's_lshl_b32 s{sKa}, s{sKa}, 14')
                    if unit[1] == '1': I(f's_add_u32 s{sKa}, s{sKa}, 128')
                    srd = sCRE if unit[0] == 'r' else sCIM; v = vb
                else:
                    I(f's_lshr_b32 s{sKb}, s{sKa}, 3'); I(f's_mul_i32 s{sKb}, s{sKb}, {7*65536}'); I(f's_and_b32 s{sKa}, s{sKa}, 7'); I(f's_lshl_b32 s{sKa}, s{sKa}, 13')
                    I(f's_add_u32 s{sKa}, s{sKa}, s{sKb}')
                    if unit: I(f's_add_u32 s{sKa}, s{sKa}, {unit*65536}')
                    srd = sW2; v = va
                I(f'buffer_load_dword v{vDUM}, v{v}, s[{srd}:{srd+3}], s{sKa} offen', 'PF')
            out.append(f)
        return out
    def pre_karg(s):
        I = s.I; a = 240
        SR, PR = s.SR, s.PR
        I(f's_lshl_b32 s{sTmp}, s{sR}, 7'); I(f's_lshl_b32 s{sTmp2}, s{sC}, 3'); I(f's_add_u32 s{sTmp}, s{sTmp}, s{sTmp2}')
        I(f's_lshl_b32 s{sTmp2}, s{sw}, 1'); I(f's_add_u32 s{sTmp}, s{sTmp}, s{sTmp2}')
        I(f's_lshl_b32 s{sGa}, s{sTmp}, 10')
        I(f's_lshr_b32 s{sTmp3}, s{sR}, 3'); I(f's_lshl_b32 s{sTmp3}, s{sTmp3}, 4')
        I(f's_and_b32 s{sTmp}, s{sR}, 3'); I(f's_lshl_b32 s{sTmp}, s{sTmp}, 2'); I(f's_add_u32 s{sTmp3}, s{sTmp3}, s{sTmp}')
        I(f's_lshl_b32 s{sTmp}, s{sC}, 5'); I(f's_add_u32 s{sTmp3}, s{sTmp3}, s{sTmp}'); I(f's_add_u32 s{sTmp3}, s{sTmp3}, s{sw}')
        I(f's_lshl_b32 s{sTmp3}, s{sTmp3}, 10'); I(f'v_add_u32 v{SR}, s{sTmp3}, v{vHB}')
        I(f's_lshl_b32 s{sGb}, s{sR}, 2'); I(f's_add_u32 s{sGb}, s{sGb}, s{sw}'); I(f's_lshl_b32 s{sGb}, s{sGb}, 3')
        I(f's_lshl_b32 s{sTmp3}, s{sC}, 9'); I(f's_add_u32 s{sGb}, s{sGb}, s{sTmp3}'); I(f's_add_u32 s{sGb}, s{sGb}, {WS_CSS}')
        I(f'v_and_b32 v{a}, 31, v{vL}'); I(f'v_lshlrev_b32 v{a}, 1, v{a}')
        I(f's_lshl_b32 s{sTmp}, s{sC}, 6'); I(f'v_add_u32 v{PR+3}, s{sTmp}, v{a}')

    def p2_srd(s):
        I = s.I
        for dst, src, n in ((sW2, kW2, 1792*512*2), (sCRE, kCre, 512*512*2), (sCIM, kCim, 512*512*2), (sOUT, kOut, 2048*512*4)):
            I(f's_mov_b64 s[{dst}:{dst+1}], s[{src}:{src+1}]'); I(f's_mov_b32 s{dst+2}, {n}'); I(f's_mov_b32 s{dst+3}, 0x00020000')
    def p2_early(s):
        I = s.I; a, b, c, d = 240, 241, 242, 243
        I(f's_and_b32 s{sTmp}, s2, 7'); I(f's_lshl_b32 s{sTmp}, s{sTmp}, 2'); I(f's_add_u32 s{sTmp}, s{sTmp}, s{sU}')
        I(f's_mul_i32 s{sTmp2}, s{sTmp}, {2*TSTRIDE}')
        I(f's_mul_i32 s{sBE}, s{sw}, 28672'); I(f's_add_u32 s{sBE}, s{sBE}, s{sTmp2}')
        I(f's_lshl_b32 s{sBY}, s{sw}, 14'); I(f's_add_u32 s{sBY}, s{sBY}, s{sTmp2}'); I(f's_add_u32 s{sBY}, s{sBY}, 114688')
        sDt = sRho
        if s.cfg.get('dtx', 0):
            sDt = sTmp3; I(f's_xor_b32 s{sDt}, s{sRho}, {s.cfg["dtx"]}')
        I(f's_mul_i32 s{sRowW}, s{sw}, {7*65536}'); I(f's_lshl_b32 s{sDko}, s{sDt}, 7'); I(f's_add_u32 s{sRowW}, s{sRowW}, s{sDko}')
        I(f's_lshl_b32 s{sCrow}, s{sDt}, 16'); I(f's_lshl_b32 s{sTmp2}, s{sw}, 8'); I(f's_add_u32 s{sCrow}, s{sCrow}, s{sTmp2}')
        I(f's_lshl_b32 s{sFlC}, s{sTmp}, 2'); I(f's_add_u32 s{sFlC}, s{sFlC}, s{sw}'); I(f's_lshl_b32 s{sFlC}, s{sFlC}, 7'); I(f's_add_u32 s{sFlC}, s{sFlC}, {WS_FL + s.cfg.get("floff", 0)}')
        I(f's_lshl_b32 s{sTmp}, s{sTmp}, 6'); I(f's_lshl_b32 s{sTmp2}, s{sw}, 4'); I(f's_add_u32 s{sTmp}, s{sTmp}, s{sTmp2}')
        I(f's_lshl_b32 s{sXb}, s{sTmp}, 10'); I(f's_add_u32 s{sXb}, s{sXb}, s{sDko}')
        I(f's_lshl_b32 s{sOb}, s{sXb}, 1')
        I(f's_lshl_b32 s{sSb}, s{sTmp}, 3'); I(f's_add_u32 s{sSb}, s{sSb}, {WS_STATS}')
        I(f's_lshl_b32 s{sFlP}, s{sR}, 1'); I(f's_add_u32 s{sFlP}, s{sFlP}, s{sTp}'); I(f's_lshl_b32 s{sFlP}, s{sFlP}, 2'); I(f's_add_u32 s{sFlP}, s{sFlP}, s{sG}')
        I(f's_lshl_b32 s{sFlP}, s{sFlP}, 7'); I(f's_lshl_b32 s{sTmp}, s{sU}, 1'); I(f's_add_u32 s{sTmp}, s{sTmp}, s{sCp}'); I(f's_lshl_b32 s{sTmp}, s{sTmp}, 2')
        I(f's_add_u32 s{sFlP}, s{sFlP}, s{sTmp}'); I(f's_add_u32 s{sFlP}, s{sFlP}, {WS_FL + s.cfg.get("floff", 0)}')
        I(f'v_bfe_u32 v{a}, v{vL}, 4, 1'); I(f'v_lshlrev_b32 v{a}, 2, v{a}'); I(f'v_and_b32 v{b}, 7, v{vL}'); I(f'v_xor_b32 v{a}, v{a}, v{b}')
        I(f'v_lshrrev_b32 v{c}, 3, v{vL}'); I(f'v_lshlrev_b32 v{c}, 10, v{c}'); I(f'v_lshl_add_u32 v{vW}, v{a}, 4, v{c}')
        for i in range(1, 4): I(f'v_add_u32 v{vW+i}, {7168*i}, v{vW}')
        I(f'v_lshrrev_b32 v{a}, 5, v{vL}'); I(f'v_lshlrev_b32 v{a}, 2, v{a}'); I(f'v_bfe_u32 v{c}, v{vL}, 2, 2'); I(f'v_add_u32 v{a}, v{a}, v{c}')
        I(f'v_lshlrev_b32 v{a}, 7, v{a}'); I(f'v_lshrrev_b32 v{c}, 1, v{c}'); I(f'v_lshlrev_b32 v{c}, 6, v{c}'); I(f'v_add_u32 v{a}, v{a}, v{c}')
        I(f'v_bfe_u32 v{c}, v{vL}, 4, 1'); I(f'v_lshl_add_u32 v{a}, v{c}, 5, v{a}'); I(f'v_and_b32 v{c}, 3, v{vL}'); I(f'v_lshl_add_u32 v{a}, v{c}, 3, v{a}')
        I(f'v_add_u32 v{vA0}, s{sW13}, v{a}'); I(f'v_xor_b32 v{vA1}, 64, v{vA0}')
        I(f'v_add_u32 v{vB1}, {TSTRIDE}, v{vHB}')
        I(f'v_and_b32 v{vPl}, 31, v{vL}'); I(f'v_lshlrev_b32 v{vPl}, 2, v{vPl}')

    def lds_addrs(s):
        I = s.I; a, b, c, d = 240, 241, 242, 243
        I(f'v_and_b32 v{a}, 31, v{vL}'); I(f'v_bfe_u32 v{b}, v{vL}, 1, 3'); I(f'v_lshrrev_b32 v{c}, 5, v{vL}'); I(f'v_xor_b32 v{b}, v{b}, v{c}')
        I(f'v_lshlrev_b32 v{b}, 4, v{b}')
        I(f'v_lshl_add_u32 v{d}, v{a}, 7, v{b}')
        I(f's_lshl_b32 s{sTmp}, s{sTp}, 13')
        I(f'v_add_u32 v{vXA}, s{sTmp}, v{d}')
        for k in range(1, 4): I(f'v_xor_b32 v{vXA+k}, {32*k}, v{vXA}')
        I(f'v_lshrrev_b32 v{c}, 3, v{a}'); I(f'v_lshlrev_b32 v{c}, 11, v{c}'); I(f'v_and_b32 v{d}, 7, v{a}'); I(f'v_lshl_add_u32 v{c}, v{d}, 7, v{c}')
        I(f'v_add_u32 v{c}, v{c}, v{b}'); I(f's_lshl_b32 s{sTmp}, s{sCp}, 10'); I(f's_add_u32 s{sTmp}, s{sTmp}, 16384')
        I(f'v_add_u32 v{vSS}, s{sTmp}, v{c}')
        for k in range(1, 4): I(f'v_xor_b32 v{vSS+k}, {32*k}, v{vSS}')
        I(f'v_lshrrev_b32 v{b}, 5, v{vL}'); I(f'v_bfe_u32 v{c}, v{vL}, 2, 2'); I(f'v_lshl_add_u32 v{b}, v{b}, 3, v{c}')
        I(f'v_and_b32 v{d}, 3, v{vL}'); I(f'v_lshlrev_b32 v{d}, 3, v{d}'); I(f'v_lshl_add_u32 v{d}, v{b}, 7, v{d}')
        I(f'v_bfe_u32 v{a}, v{vL}, 4, 1'); I(f'v_lshl_add_u32 v{d}, v{a}, 5, v{d}')
        I(f'v_lshrrev_b32 v{c}, 1, v{c}'); I(f'v_lshlrev_b32 v{c}, 6, v{c}'); I(f'v_add_u32 v{d}, v{d}, v{c}')
        I(f's_lshl_b32 s{sTmp}, s{sCp}, 6'); I(f'v_xor_b32 v{vG}, s{sTmp}, v{d}')
        I(f's_lshl_b32 s{sTmp}, s{sTp}, 6'); I(f'v_xor_b32 v{vCA}, s{sTmp}, v{d}')
        I(f's_lshl_b32 s{sTmp}, s{sCp}, 13'); I(f's_cmp_eq_u32 s{sU}, 3'); I(f's_cselect_b32 s{sTmp}, 0, s{sTmp}'); I(f's_add_u32 s{sTmp}, s{sTmp}, {L_CSC}')
        I(f'v_add_u32 v{vCA}, s{sTmp}, v{vCA}')
        I(f's_mov_b32 s{sMhi}, 0'); I(f's_mov_b32 s{sMhi+1}, -1')
        I(f's_mov_b32 s{sModd}, 0xffff0000'); I(f's_mov_b32 s{sModd+1}, 0xffff0000')
        I(f's_lshl_b32 s{sTmp}, s{sR}, 2'); I(f's_lshl_b32 s{sTmp2}, s{sTp}, 1'); I(f's_add_u32 s{sTmp}, s{sTmp}, s{sTmp2}')
        I(f's_mul_i32 s{sTg0}, s{sTmp}, {TSTRIDE}')
        I(f's_lshl_b32 s{sTmp}, s{sSo2}, 5')
        I(f's_lshl_b32 s{sTmp2}, s{sCp}, 11'); I(f's_add_u32 s{sTmp}, s{sTmp}, s{sTmp2}'); I(f's_add_u32 s{sHF}, s{sTg0}, s{sTmp}')
        z = 116
        for k in range(4): I(f'v_mov_b32 v{z+k}, 0')
        I(f'v_add_u32 v{a}, {L_TOTZ}, v{vHB}'); I(f'ds_write_b128 v{a}, v[{z}:{z+3}]')

    def tab(s):
        I = s.I; PR = s.PR
        n, u, v_, lr, li, t0, t1, t2, t3, wa, un, vn = range(116, 128)
        P = 148
        I(f'v_lshrrev_b32 v{t0}, 5, v{vL}')
        I(f's_lshl_b32 s{sTmp}, s{sw}, 1'); I(f's_lshl_b32 s{sTmp}, 8, s{sTmp}')
        I(f'v_mul_u32_u24 v{n}, s{sTmp}, v{t0}')
        I(f's_cmp_eq_u32 s{sw}, 3'); I(f's_cselect_b64 s[{sBad}:{sBad+1}], -1, 0'); I(f's_cselect_b32 s{sMsel}, -1, 0')
        I(f's_mov_b32 s{sMsel+1}, 0')
        I(f'v_mul_u32_u24 v{t1}, 511, v{t0}'); I(f'v_add_u32 v{t1}, 1, v{t1}')
        I(f'v_cndmask_b32 v{t1}, v{n}, v{t1}, s[{sBad}:{sBad+1}]'); I(f'v_cvt_f32_u32 v{t1}, v{t1}')
        I(f's_lshl_b32 s{sTmp}, s{sTmp}, 1'); I(f'v_add_u32 v{n}, s{sTmp}, v{n}')
        I(f'v_cndmask_b32 v{n}, v{n}, 1, s[{sBad}:{sBad+1}]'); I(f'v_cvt_f32_u32 v{n}, v{n}')
        I(f'v_bfe_u32 v{wa}, v{vL}, 4, 1'); I(f'v_lshlrev_b32 v{wa}, 11, v{wa}'); I(f'v_lshl_add_u32 v{wa}, v{t0}, 7, v{wa}')
        I(f'v_and_b32 v{t0}, 15, v{vL}'); I(f'v_lshl_add_u32 v{wa}, v{t0}, 3, v{wa}')
        I(f's_lshl_b32 s{sTmp}, s{sw}, 9'); I(f's_add_u32 s{sTmp}, s{sTmp}, {L_TAB}'); I(f'v_add_u32 v{wa}, s{sTmp}, v{wa}')
        I(f'v_lshlrev_b32 v{lr}, 16, v{PR}'); I(f'v_lshlrev_b32 v{li}, 16, v{PR+1}'); I(f'v_lshlrev_b32 v{t0}, 16, v{PR+2}')
        I(f'v_mul_f32 v{t0}, {LOG2E:#x}, v{t0}'); I(f'v_exp_f32 v{t0}, v{t0}')
        I(f'v_cvt_pk_bf16_f32 v{t0}, v{t0}, v{t0}'); I(f'v_lshlrev_b32 v{t0}, 16, v{t0}')
        I(f'v_mul_f32 v{u}, v{t0}, v{lr}'); I(f'v_mul_f32 v{v_}, v{t0}, v{li}')
        I(f'v_mul_f32 v{u}, {LOG2E:#x}, v{u}'); I(f'v_mul_f32 v{v_}, {INV2PI:#x}, v{v_}')
        for j, nn in ((0, t1), (1, n)):
            I(f'v_mul_f32 v{un}, v{nn}, v{u}'); I(f'v_mul_f32 v{vn}, v{nn}, v{v_}')
            I(f'v_exp_f32 v{un}, v{un}'); I(f'v_fract_f32 v{vn}, v{vn}')
            I(f'v_cos_f32 v{t0}, v{vn}'); I(f'v_sin_f32 v{t2}, v{vn}')
            I(f'v_mul_f32 v{P}, v{un}, v{t0}'); I(f'v_mul_f32 v{P+1}, v{un}, v{t2}')
            if j == 1:
                I(f'v_add_f32 v{t0}, -1.0, v{P}')
                I(f'v_mul_f32 v{t1}, v{lr}, v{lr}'); I(f'v_fma_f32 v{t1}, v{li}, v{li}, v{t1}'); I(f'v_rcp_f32 v{t1}, v{t1}')
                I(f'v_mul_f32 v{t2}, v{t0}, v{lr}'); I(f'v_fma_f32 v{t2}, v{P+1}, v{li}, v{t2}')
                I(f'v_mul_f32 v{t3}, v{P+1}, v{lr}'); I(f'v_fma_f32 v{t3}, -v{t0}, v{li}, v{t3}')
                I(f'v_add_f32 v{t1}, v{t1}, v{t1}')
                I(f'v_mul_f32 v{t2}, v{t2}, v{t1}'); I(f'v_mul_f32 v{t3}, v{t3}, v{t1}')
                I(f'v_cndmask_b32 v{P}, v{P}, v{t2}, s[{sMsel}:{sMsel+1}]'); I(f'v_cndmask_b32 v{P+1}, v{P+1}, v{t3}, s[{sMsel}:{sMsel+1}]')
            I(f'ds_write_b64 v{wa}, v[{P}:{P+1}] offset:{256*j}')

    def stats_x(s):
        I = s.I; XR = s.XR; SV = s.SV
        F = 128
        for r in range(2):
            for k in range(4):
                I(f'v_lshlrev_b32 v{F+8*r+2*k}, 16, v{XR+4*r+k}'); I(f'v_and_b32 v{F+8*r+2*k+1}, 0xffff0000, v{XR+4*r+k}')
        pa, pb, t0, t1 = 144, 145, 146, 147
        def reduce2(pa, pb):
            I(f'v_permlane32_swap_b32 v{pa}, v{pb}'); I(f'v_add_f32 v{pa}, v{pa}, v{pb}')
            I(f'v_mov_b32 v{pb}, v{pa}'); I(f'v_permlane16_swap_b32 v{pa}, v{pb}'); I(f'v_add_f32 v{pa}, v{pa}, v{pb}')
            for k in (8, 4, 2, 1): I(f'v_add_f32_dpp v{pa}, v{pa}, v{pa} row_ror:{k} row_mask:0xf bank_mask:0xf')
            I(f'v_mov_b32 v{pb}, v{pa}'); I(f'v_permlane32_swap_b32 v{pa}, v{pb}')
        for k in range(1, 8):
            for r, p in ((0, pa), (1, pb)):
                if k == 1: I(f'v_add_f32 v{p}, v{F+8*r}, v{F+8*r+1}')
                else: I(f'v_add_f32 v{p}, v{p}, v{F+8*r+k}')
        reduce2(pa, pb)
        I(f'v_mul_f32 v{t0}, 0x3b000000, v{pa}'); I(f'v_mul_f32 v{t1}, 0x3b000000, v{pb}')
        for r, m in ((0, t0), (1, t1)):
            for k in range(8): I(f'v_sub_f32 v{F+8*r+k}, v{F+8*r+k}, v{m}')
        for k in range(8):
            for r, p in ((0, pa), (1, pb)):
                if k == 0: I(f'v_mul_f32 v{p}, v{F+8*r}, v{F+8*r}')
                else: I(f'v_fmac_f32 v{p}, v{F+8*r+k}, v{F+8*r+k}')
        reduce2(pa, pb)
        I(f'v_cndmask_b32 v{t0}, v{t0}, v{t1}, s[{sMhi}:{sMhi+1}]')
        I(f'v_cndmask_b32 v{pa}, v{pa}, v{pb}, s[{sMhi}:{sMhi+1}]')
        I(f'v_mul_f32 v{pa}, 0x3b000000, v{pa}')
        I(f'v_cvt_pk_bf16_f32 v{pa}, v{pa}, v{pa}'); I(f'v_lshlrev_b32 v{pa}, 16, v{pa}')
        I(f'v_add_f32 v{pa}, 0x3727c5ac, v{pa}')
        I(f'v_cvt_pk_bf16_f32 v{pa}, v{pa}, v{pa}'); I(f'v_lshlrev_b32 v{pa}, 16, v{pa}')
        I(f'v_sqrt_f32 v{pa}, v{pa}')
        I(f'v_cvt_pk_bf16_f32 v{SV}, v{pa}, v{t0}')
        I(f'v_and_b32 v{t1}, 31, v{vL}'); I(f'v_lshrrev_b32 v{t0}, 2, v{vL}'); I(f'v_mov_b32 v{pb}, {OOB}')
        I(f'v_cmp_eq_u32 vcc, 0, v{t1}'); I(f'v_cndmask_b32 v{SV+4}, v{pb}, v{t0}, vcc')
    def stats_s(s):
        I = s.I; SR = s.SR; SV = s.SV
        F = 158
        F = 64; q0, q1, ob = 72, 73, 74
        for k in range(4):
            I(f'v_lshlrev_b32 v{F+2*k}, 16, v{SR+k}'); I(f'v_and_b32 v{F+2*k+1}, 0xffff0000, v{SR+k}')
        for k in range(4): I(f'v_add_f32 v{F+k}, v{F+k}, v{F+4+k}')
        I(f'v_add_f32 v{F}, v{F}, v{F+2}'); I(f'v_add_f32 v{F+1}, v{F+1}, v{F+3}'); I(f'v_add_f32 v{q0}, v{F}, v{F+1}')
        I(f'v_mov_b32 v{q1}, v{q0}'); I(f'v_permlane32_swap_b32 v{q0}, v{q1}'); I(f'v_add_f32 v{q0}, v{q0}, v{q1}')
        I(f'v_mov_b32 v{q1}, v{q0}'); I(f'v_permlane16_swap_b32 v{q0}, v{q1}'); I(f'v_add_f32 v{q0}, v{q0}, v{q1}')
        for k in (8, 4, 2): I(f'v_add_f32_dpp v{q0}, v{q0}, v{q0} row_ror:{k} row_mask:0xf bank_mask:0xf')
        I(f'v_add_f32_dpp v{SV+2}, v{q0}, v{q0} row_ror:1 row_mask:0xf bank_mask:0xf')
        I(f'v_mov_b32 v{ob}, {OOB}')
        I(f'v_cmp_eq_u32 vcc, 0, v{vL}'); I(f'v_cndmask_b32 v{SV+5}, v{ob}, 0, vcc')

    def pub_prog(s):
        e = s.e; NP = s.NP; SV = s.SV
        Ls = s.lab('nps'); Lr = s.lab('npr')
        def chk():
            e.wait_tag('NP')
            s.I(f'v_readfirstlane_b32 s{sNonce}, v{NP}'); s.I(f's_cmp_eq_u32 s{sNonce}, 0'); e.raw(f's_cbranch_scc1 {Ls}'); e.label(Lr)
        def slow():
            e.label(Ls); e.reset_hazards(); e.vm = []; e.lgk = []
            s.I(f's_mov_b32 s{sSpin}, 0')
            e.label(Ls + 'l'); e.reset_hazards()
            s.I(f'buffer_load_dword v{NP}, v{NP+1}, s[{sDBG}:{sDBG+3}], 0 offen sc1'); e.force_wait('vmcnt(0)')
            s.I(f'v_readfirstlane_b32 s{sNonce}, v{NP}'); s.I(f's_add_u32 s{sSpin}, s{sSpin}, 1')
            s.I(f's_cmp_gt_u32 s{sSpin}, {SPIN}'); e.raw(f's_cbranch_scc1 {Lr}')
            s.I(f's_cmp_eq_u32 s{sNonce}, 0'); e.raw(f's_cbranch_scc1 {Ls}l')
            e.raw('s_nop 4'); e.raw(f's_branch {Lr}')
        s.slow.append(slow)
        return [Fn(chk, 16), f'v_mov_b32 v{SV+1}, s{sNonce}', f'v_mov_b32 v{SV+3}, s{sNonce}', f'v_mov_b32 v{vNon}, s{sNonce}',
                f'buffer_store_dwordx2 v[{SV}:{SV+1}], v{SV+4}, s[{sWS}:{sWS+3}], s{sGa} offen sc1',
                f'buffer_store_dwordx2 v[{SV+2}:{SV+3}], v{SV+5}, s[{sWS}:{sWS+3}], s{sGb} offen sc1']

    def fcs_prog(s):
        AC, FR, ONE, Gq, vo = 96, 112, 128, 132, 134
        ops = [f'v_mov_b32 v{ONE+k}, 0x3f803f80' for k in range(4)]
        for ks in range(4):
            ops += [f'ds_read_b64_tr_b16 v[{FR+4*ks}:{FR+4*ks+1}], v{vCA} offset:{2048*ks}', f'ds_read_b64_tr_b16 v[{FR+4*ks+2}:{FR+4*ks+3}], v{vCA} offset:{2048*ks+512}']
        ops += [f'v_lshlrev_b32 v{vo}, 3, v{vL}', f'v_mov_b32 v{vo+1}, {OOB}', f'v_cndmask_b32 v{vo}, v{vo}, v{vo+1}, s[{sMhi}:{sMhi+1}]',
                f's_and_b32 s{sTmp}, s{sR}, 1', f's_mul_i32 s{sTmp}, s{sTmp}, {28*4096}',
                f's_lshl_b32 s{sTmp2}, s{sSo2}, 5', f's_add_u32 s{sTmp}, s{sTmp}, s{sTmp2}']
        if s.typ == 'H':
            ops += [f's_lshl_b32 s{sTmp2}, s{sCp}, 12', f's_add_u32 s{sTmp}, s{sTmp}, s{sTmp2}']
        ops += [f's_lshl_b32 s{sTmp2}, s{sRho}, 9', f's_add_u32 s{sTmp}, s{sTmp}, s{sTmp2}',
                f's_lshl_b32 s{sTmp2}, s{sTp}, 8', f's_add_u32 s{sTmp}, s{sTmp}, s{sTmp2}', f's_add_u32 s{sGa}, s{sTmp}, {WS_CSF}']
        if s.typ == 'L':
            ops += [s.atom([f's_cmp_eq_u32 s{sCp}, 0', f's_cselect_b32 s{sGa}, s{sGa}, {OOB}'])]
        ops += [f'v_mov_b32 v{Gq+1}, s{sNonce}']
        for ks in range(4):
            ops.append(f'v_mfma_f32_32x32x16_bf16 v[{AC}:{AC+15}], v[{ONE}:{ONE+3}], v[{FR+4*ks}:{FR+4*ks+3}], ' + ('0' if ks == 0 else f'v[{AC}:{AC+15}]'))
        return ops, [f'v_mov_b32 v{Gq}, v{AC}', f'buffer_store_dwordx2 v[{Gq}:{Gq+1}], v{vo}, s[{sWS}:{sWS+3}], s{sGa} offen sc1']

    def tagcheck(s, regs, loads, exp=None):
        e = s.e
        ops = []
        for i, r in enumerate(regs):
            src = f's{sNonce}' if exp is None else f'v{exp[i]}'
            if i == 0: ops.append(f'v_cmp_ne_u32 s[{sBad}:{sBad+1}], {src}, v{r}')
            else:
                ops.append(s.atom([f'v_cmp_ne_u32 vcc, {src}, v{r}', f's_or_b64 s[{sBad}:{sBad+1}], s[{sBad}:{sBad+1}], vcc']))
        Ls = s.lab('slow'); Lr = s.lab('ret')
        def br():
            s.I(f's_cmp_lg_u64 s[{sBad}:{sBad+1}], 0'); e.raw(f's_cbranch_scc1 {Ls}'); e.label(Lr)
        ops.append(Fn(br, 8))
        def slow():
            e.label(Ls); e.reset_hazards(); e.vm = []; e.lgk = []
            s.I(f's_mov_b32 s{sSpin}, 0')
            e.label(Ls + 'l'); e.reset_hazards()
            for x in loads: s.I(x)
            e.force_wait('vmcnt(0)')
            for i, r in enumerate(regs):
                src = f's{sNonce}' if exp is None else f'v{exp[i]}'
                if i == 0: s.I(f'v_cmp_ne_u32 s[{sBad}:{sBad+1}], {src}, v{r}')
                else:
                    s.I(f'v_cmp_ne_u32 vcc, {src}, v{r}'); s.I(f's_or_b64 s[{sBad}:{sBad+1}], s[{sBad}:{sBad+1}], vcc')
            s.I(f's_add_u32 s{sSpin}, s{sSpin}, 1'); s.I(f's_cmp_gt_u32 s{sSpin}, {SPIN}'); e.raw(f's_cbranch_scc1 {Lr}')
            s.I(f's_cmp_lg_u64 s[{sBad}:{sBad+1}], 0'); e.raw(f's_cbranch_scc1 {Ls}l')
            e.raw('s_nop 4'); e.raw(f's_branch {Lr}')
        s.slow.append(slow)
        return ops

    def pi_ops(s, d, t):
        return [f'v_bfe_u32 v{d}, v{vL}, 2, 1', f'v_lshlrev_b32 v{d}, 4, v{d}',
                f'v_and_b32 v{t}, 1, v{vL}', f'v_lshl_add_u32 v{d}, v{t}, 3, v{d}',
                f'v_bfe_u32 v{t}, v{vL}, 3, 2', f'v_lshl_add_u32 v{d}, v{t}, 1, v{d}',
                f'v_bfe_u32 v{t}, v{vL}, 1, 1', f'v_add_u32 v{d}, v{d}, v{t}']

    GA = 136
    def gA_issue(s):
        GA = s.GA; vp, va, vc = GA + 6, GA + 7, GA + 8
        ops = s.pi_ops(vp, va)
        ops += [f'v_lshlrev_b32 v{va}, 3, v{vp}',
                f's_lshl_b32 s{sTmp}, s{sR}, 10', f's_lshl_b32 s{sTmp2}, s{sTp}, 9', f's_add_u32 s{sTmp}, s{sTmp}, s{sTmp2}', f's_add_u32 s{sGa}, s{sTmp}, {WS_STATS}',
                f'v_and_b32 v{vc}, 31, v{vL}', f'v_lshlrev_b32 v{vc}, 3, v{vc}',
                f's_lshl_b32 s{sTmp}, s{sC}, 9', f's_lshl_b32 s{sTmp2}, s{sCp}, 8', f's_add_u32 s{sTmp}, s{sTmp}, s{sTmp2}', f's_add_u32 s{sGb}, s{sTmp}, {WS_CSS}']
        s.glA = [f'buffer_load_dwordx2 v[{GA}:{GA+1}], v{va}, s[{sWS}:{sWS+3}], s{sGa} offen sc1',
                 f'buffer_load_dwordx2 v[{GA+2}:{GA+3}], v{va}, s[{sWS}:{sWS+3}], s{sGa} offen offset:256 sc1',
                 f'buffer_load_dwordx2 v[{GA+4}:{GA+5}], v{vc}, s[{sWS}:{sWS+3}], s{sGb} offen sc1']
        ops += [(x, 'GA') for x in s.glA]
        return ops
    def split3(s, A, t0, t1, t2, o0, o1):
        return [f'v_cvt_pk_bf16_f32 v{t0}, v{A}, v{A}', f'v_and_b32 v{t0}, 0xffff0000, v{t0}',
                f'v_sub_f32 v{t1}, v{A}, v{t0}',
                f'v_cvt_pk_bf16_f32 v{t2}, v{t1}, v{t1}', f'v_and_b32 v{t2}, 0xffff0000, v{t2}',
                f'v_sub_f32 v{t1}, v{t1}, v{t2}',
                f'v_cvt_pk_bf16_f32 v{o1}, v{t1}, 0',
                f'v_lshrrev_b32 v{t0}, 16, v{t0}', f'v_or_b32 v{o0}, v{t0}, v{t2}']
    def gA_proc(s):
        GA = s.GA; vp = GA + 6
        ops = s.tagcheck([GA + 1, GA + 3, GA + 5], s.glA)
        t0, t1, t2, t3, ra = 145, 146, 147, 148, 149
        ops += [f'v_lshlrev_b32 v{ra}, 2, v{vp}', f's_lshl_b32 s{sTmp}, s{sTp}, 8', f's_add_u32 s{sTmp}, s{sTmp}, {L_RS}', f'v_add_u32 v{ra}, s{sTmp}, v{ra}']
        ops += [f's_mov_b32 s{sTmp2}, {NLOG2E:#x}']
        for t in range(2):
            ms = GA + 2 * t; xa = vXaug + 4 * t
            ops += [f'v_lshlrev_b32 v{t0}, 16, v{ms}',
                    f'v_and_b32 v{t1}, 0xffff0000, v{ms}', f'v_xor_b32 v{t1}, 0x80000000, v{t1}',
                    f'v_rcp_f32 v{t2}, v{t0}', f'v_mul_f32 v{vK2+t}, v{t0}, v{t0}',
                    f'v_lshrrev_b32 v{t3}, 16, v{t1}', f'v_or_b32 v{t1}, v{t1}, v{t3}',
                    f'v_cndmask_b32 v{xa}, v{t1}, 0, s[{sMhi}:{sMhi+1}]', f'v_cndmask_b32 v{xa+1}, v{t3}, 0, s[{sMhi}:{sMhi+1}]',
                    f'v_mov_b32 v{xa+2}, 0', f'v_mov_b32 v{xa+3}, 0',
                    f'v_mul_f32 v{vNRS+t}, s{sTmp2}, v{t2}',
                    f'ds_write_b32 v{ra}, v{t2} offset:{128*t}']
        ops += s.split3(GA + 4, t0, t1, t2, vSA, vSA + 1)
        ops += [f'v_mov_b32 v{vSA+2}, 0', f'v_mov_b32 v{vSA+3}, 0']
        return ops

    GB = 96
    def gB_issue(s):
        GB = s.GB
        ops = [f's_mul_i32 s{sTmp3}, s{sTp}, {28*4096}', f's_lshl_b32 s{sTmp2}, s{sSo2}, 5', f's_add_u32 s{sTmp3}, s{sTmp3}, s{sTmp2}']
        if s.typ == 'H': ops += [f's_lshl_b32 s{sTmp2}, s{sCp}, 12', f's_add_u32 s{sTmp3}, s{sTmp3}, s{sTmp2}']
        ops += [f's_add_u32 s{sTmp3}, s{sTmp3}, {WS_CSF}']
        s.glB = [f'buffer_load_dwordx4 v[{GB+4*n}:{GB+4*n+3}], v{vHB}, s[{sWS}:{sWS+3}], s{sMsel} offen offset:{1024*n} sc1' for n in range(4)]
        ops += [f's_mov_b32 s{sMsel}, s{sTmp3}']
        ops += [(x, 'GB') for x in s.glB]
        return ops
    def gB_proc(s):
        GB = s.GB
        regs = [GB + 4 * n + 1 + 2 * m for n in range(4) for m in range(2)]
        ops = s.tagcheck(regs, s.glB)
        t0, t1, t2, wa = 112, 113, 114, 115
        O = 116
        A, B = GB, GB + 2
        ops += [f'v_add_f32 v{A}, v{A}, v{GB+4}', f'v_add_f32 v{B}, v{B}, v{GB+6}',
                f'v_add_f32 v{GB+8}, v{GB+8}, v{GB+12}', f'v_add_f32 v{GB+10}, v{GB+10}, v{GB+14}',
                f'v_add_f32 v{A}, v{A}, v{GB+8}', f'v_add_f32 v{B}, v{B}, v{GB+10}',
                f'v_permlane32_swap_b32 v{A}, v{B}', f'v_add_f32 v{A}, v{A}, v{B}']
        ops += s.split3(A, t0, t1, t2, O, O + 1)
        ops += [f'v_and_b32 v{wa}, 31, v{vL}', f'v_lshlrev_b32 v{wa}, 4, v{wa}', f'v_lshrrev_b32 v{t0}, 5, v{vL}', f'v_lshl_add_u32 v{wa}, v{t0}, 3, v{wa}']
        if s.typ == 'H':
            ops += [f's_lshl_b32 s{sTmp}, s{sCp}, 10', f's_lshl_b32 s{sTmp2}, s{sTp}, 9', f's_add_u32 s{sTmp}, s{sTmp}, s{sTmp2}', f's_add_u32 s{sTmp}, s{sTmp}, {L_WAUG}']
        else:
            ops += [f's_lshl_b32 s{sTmp}, s{sTp}, 9', f's_add_u32 s{sTmp}, s{sTmp}, {L_WAUG}']
        ops += [f'v_add_u32 v{wa}, s{sTmp}, v{wa}', f'ds_write_b64 v{wa}, v[{O}:{O+1}]']
        return ops

    def g_part(s, G, t, T):
        ops = []
        for h in range(2):
            g = G + 8 * h
            for j in range(8): ops.append(f'v_mul_f32 v{T+j}, v{vNRS+t}, v{g+j}')
            for j in range(8): ops.append(f'v_exp_f32 v{T+j}, v{T+j}')
            for j in range(8): ops.append(f'v_fma_f32 v{T+j}, v{vK2+t}, v{T+j}, v{vK2+t}')
            for j in range(8): ops.append(f'v_rcp_f32 v{T+j}, v{T+j}')
            for j in range(8): ops.append(f'v_mul_f32 v{g+j}, v{g+j}, v{T+j}')
        return ops
    def u_part(s, G, U, t, line):
        ops = []
        for h in range(2):
            g = G + 8 * h; u = U + 8 * h
            for j in range(8): ops.append(f'v_mul_f32 v{u+j}, v{u+j}, v{g+j}')
            for j in range(4): ops.append(f'v_cvt_pk_bf16_f32 v{u+j}, v{u+2*j}, v{u+2*j+1}')
            add = t * TSTRIDE + line * 4096
            st = f'buffer_store_dwordx4 v[{u}:{u+3}], v{vHB}, s[{sWS}:{sWS+3}], s{sGb} offen offset:{1024*h} sc1'
            if add: ops.append(s.atom([f's_add_u32 s{sGb}, s{sHF}, {add}', (st, f'HF{line}')]))
            else: ops.append(s.atom([f's_mov_b32 s{sGb}, s{sHF}', (st, f'HF{line}')]))
        return ops

    def s_setup(s):
        a, b = 240, 241
        o = []
        o += [f'v_and_b32 v{a}, 15, v{vL}', f'v_lshlrev_b32 v{b}, 3, v{a}',
              f's_lshl_b32 s{sTmp}, s{sCp}, 11', f's_add_u32 s{sTmp}, s{sTmp}, {L_TAB}',
              f'v_add_u32 v{vCh}, s{sTmp}, v{b}',
              f'v_lshlrev_b32 v{vTg}, 3, v{vL}', f'v_add_u32 v{vTg}, s{sTmp}, v{vTg}',
              f's_lshl_b32 s{sTmp}, s{sCp}, 7', f's_lshl_b32 s{sTmp2}, s{sTp}, 9', f's_add_u32 s{sTmp}, s{sTmp}, s{sTmp2}', f's_add_u32 s{sTmp}, s{sTmp}, {L_TOTZ}',
              f'v_add_u32 v{vTo}, s{sTmp}, v{b}',
              f'v_lshrrev_b32 v{b}, 4, v{vL}', f'v_lshlrev_b32 v{vRs}, 5, v{b}', f's_lshl_b32 s{sTmp}, s{sTp}, 8', f's_add_u32 s{sTmp}, s{sTmp}, {L_RS}',
              f'v_add_u32 v{vRs}, s{sTmp}, v{vRs}',
              f's_mul_i32 s{sTmp}, s{sw}, 2560', f's_add_u32 s{sTmp}, s{sTmp}, {L_TR}',
              f'v_mul_u32_u24 v{vTw}, 80, v{a}', f'v_lshl_add_u32 v{vTw}, v{b}, 4, v{vTw}', f'v_add_u32 v{vTw}, s{sTmp}, v{vTw}',
              f'v_lshrrev_b32 v{vTr}, 5, v{vL}', f'v_lshlrev_b32 v{vTr}, 3, v{vTr}', f'v_bfe_u32 v{b}, v{vL}, 2, 2', f'v_add_u32 v{vTr}, v{vTr}, v{b}',
              f'v_mul_u32_u24 v{vTr}, 80, v{vTr}',
              f'v_and_b32 v{b}, 3, v{vL}', f'v_lshl_add_u32 v{vTr}, v{b}, 3, v{vTr}',
              f'v_bfe_u32 v{b}, v{vL}, 4, 1', f'v_lshl_add_u32 v{vTr}, v{b}, 5, v{vTr}',
              f'v_add_u32 v{vTr}, s{sTmp}, v{vTr}']
        o += [f'v_lshlrev_b32 v{a}, 4, v{a}', f's_lshl_b32 s{sTmp}, s{sR}, 8',
              s.atom([f's_cmp_eq_u32 s{sTp}, 1', f's_cselect_b32 s{sTmp}, s{sTmp}, {OOB}']),
              f'v_add_u32 v{a}, s{sTmp}, v{a}', f'v_mov_b32 v{b}, {OOB}',
              s.atom([f'v_cmp_gt_u32 vcc, 16, v{vL}', f'v_cndmask_b32 v{vEo}, v{b}, v{a}, vcc']),
              s.atom([f'v_cmp_eq_u32 vcc, 0, v{vL}', f'v_cndmask_b32 v{vFl}, v{b}, 0, vcc'])]
        return o
    def s1(s, t):
        A = aS + 16 * t; P = vPc + 2 * t
        R = 128; L1, L8, L16 = 136, 138, 140
        E, Z, X, Q, Y = 142, 144, 146, 148, 150
        def pr(r): return f'v[{r}:{r+1}]'
        ops = [f'ds_read_b128 v[{R}:{R+3}], v{vRs} offset:{128*t}', f'ds_read_b128 v[{R+4}:{R+7}], v{vRs} offset:{128*t+16}',
               f'ds_read_b64 {pr(L1)}, v{vCh} offset:1536', f'ds_read_b64 {pr(L8)}, v{vCh} offset:128', f'ds_read_b64 {pr(L16)}, v{vCh} offset:256']
        for m in range(8): ops.append(f'v_permlane16_swap_b32 v{A+2*m}, v{A+2*m+1}')
        for m in range(8):
            ops += [f'v_mul_f32 v{A+2*m}, v{R+m}, v{A+2*m}', f'v_mul_f32 v{A+2*m+1}, v{R+m}, v{A+2*m+1}']
        prev = A
        e0, e1 = E, Z
        for m in range(1, 8):
            ops += cmac(e0, L1, prev, A + 2 * m)
            prev = e0; e0, e1 = e1, e0
        E = prev; Z = e0
        ops += [f'v_mov_b32 v{Z}, 0', f'v_mov_b32 v{Z+1}, 0', f'v_mov_b32 v{X}, v{E}', f'v_mov_b32 v{X+1}, v{E+1}',
                f'v_cndmask_b32 v{Q}, 1.0, v{L8}, s[{sModd}:{sModd+1}]', f'v_cndmask_b32 v{Q+1}, 0, v{L8+1}, s[{sModd}:{sModd+1}]',
                f'v_permlane16_swap_b32 v{Z}, v{X}', f'v_permlane16_swap_b32 v{Z+1}, v{X+1}']
        ops += cmac(E, L8, Z, E)
        ops += [f'v_mov_b32 v{X}, v{E}', f'v_mov_b32 v{X+1}, v{E+1}', f'v_mov_b32 v{Y}, 0', f'v_mov_b32 v{Y+1}, 0',
                f'v_permlane16_swap_b32 v{E}, v{X}', f'v_permlane16_swap_b32 v{E+1}, v{X+1}',
                f'v_permlane32_swap_b32 v{Y}, v{X}', f'v_permlane32_swap_b32 v{Y+1}, v{X+1}']
        ops += cmac(X, L16, Y, X)
        ops += cmac(P, Q, Y, Z)
        ops += [s.atom([f's_mov_b64 exec, s[{sMhi}:{sMhi+1}]', f'ds_write_b64 v{vTo}, {pr(X)} offset:{(3+t)*256}', f's_mov_b64 exec, -1'])]
        return ops
    def s2(s):
        R = 240; L32 = 250; Gq = 240
        def pr(r): return f'v[{r}:{r+1}]'
        ops = []
        for k in range(5): ops.append(f'ds_read_b64 {pr(R+2*k)}, v{vTo} offset:{k*256}')
        ops.append(f'ds_read_b64 {pr(L32)}, v{vCh} offset:640')
        ops += [f's_lshl_b32 s{sTmp}, s{sC}, 13', f's_lshl_b32 s{sTmp2}, s{sCp}, 12', f's_add_u32 s{sTmp}, s{sTmp}, s{sTmp2}', f's_add_u32 s{sGa}, s{sTmp}, {WS_E}']
        ops += cmac(R + 2, L32, R, R + 2)
        ops += cmac(vPC, L32, R + 2, R + 4)
        ops += cmac(vPC + 2, L32, vPC, R + 6)
        ops += cmac(R + 8, L32, vPC + 2, R + 8)
        ops += [f'v_mov_b32 v{Gq}, v{R+8}', f'v_mov_b32 v{Gq+1}, s{sNonce}', f'v_mov_b32 v{Gq+2}, v{R+9}', f'v_mov_b32 v{Gq+3}, s{sNonce}']
        ops += [f'buffer_store_dwordx4 v[{Gq}:{Gq+3}], v{vEo}, s[{sWS}:{sWS+3}], s{sGa} offen sc1']
        return ops
    EG, vEg, vEx = 32, 48, 52
    def s3_issue(s):
        EG, vEg, vEx = s.EG, s.vEg, s.vEx
        a, b = 56, 57
        o = [f'v_and_b32 v{a}, 15, v{vL}', f'v_lshlrev_b32 v{a}, 4, v{a}', f'v_lshrrev_b32 v{b}, 4, v{vL}', f'v_sub_u32 v{b}, s{sR}, v{b}', f'v_add_u32 v{b}, -1, v{b}']
        for k in range(4):
            g = vEg + k; x = vEx + k
            if k: o.append(f'v_add_u32 v{b}, -4, v{b}')
            o += [f'v_lshl_add_u32 v{g}, v{b}, 8, v{a}', f'v_mov_b32 v{x}, {OOB}',
                  s.atom([f'v_cmp_le_i32 vcc, 0, v{b}', f'v_cndmask_b32 v{g}, v{x}, v{g}, vcc', f'v_cndmask_b32 v{x}, 0, v{vNon}, vcc'])]
        s.glE = [f'buffer_load_dwordx4 v[{EG+4*k}:{EG+4*k+3}], v{vEg+k}, s[{sWS}:{sWS+3}], s{sGa} offen sc1' for k in range(4)]
        o += [(x, 'EG') for x in s.glE]
        return o
    def s3(s):
        EG, vEx = s.EG, s.vEx
        L512, Q = 56, 58
        regs = [EG + 4 * k + 1 + 2 * m for k in range(4) for m in range(2)]
        exp = [vEx + k for k in range(4) for m in range(2)]
        ops = [f'ds_read_b64 v[{L512}:{L512+1}], v{vCh} offset:1664', f'ds_read_b64 v[{Q}:{Q+1}], v{vTg} offset:1024']
        ops += s.tagcheck(regs, s.glE, exp)
        def cm4(dr, di, ar, ai, br, bi, cr, ci):
            return [f'v_fmac_f32 v{dr}, v{ar}, v{br}', f'v_fmac_f32 v{di}, v{ar}, v{bi}',
                    f'v_fma_f32 v{dr}, -v{ai}, v{bi}, v{dr}', f'v_fmac_f32 v{di}, v{ai}, v{br}']
        for k in (2, 1, 0):
            ops += cm4(EG + 4 * k, EG + 4 * k + 2, L512, L512 + 1, EG + 4 * (k + 1), EG + 4 * (k + 1) + 2, EG + 4 * k, EG + 4 * k + 2)
        wr, wi = EG + 4, EG + 5; H = vH
        ops += [f'v_mul_f32 v{wr}, v{Q}, v{EG}', f'v_mul_f32 v{wi}, v{Q}, v{EG+2}', f'v_fma_f32 v{wr}, -v{Q+1}, v{EG+2}, v{wr}', f'v_fmac_f32 v{wi}, v{Q+1}, v{EG}',
                f'v_permlane16_swap_b32 v{wr}, v{wi}', f'v_add_f32 v{wr}, v{wr}, v{wi}', f'v_mov_b32 v{wi}, v{wr}',
                f'v_permlane32_swap_b32 v{wr}, v{wi}', f'v_add_f32 v{H}, v{wr}, v{wi}', f'v_mov_b32 v{H+1}, v{H}',
                f'v_permlane16_swap_b32 v{H}, v{H+1}']
        return ops
    def s4(s, t):
        A = aS + 16 * t; P = vPc + 2 * t; C = vPC + 2 * t
        L1, Q32, Q8, CF = 240, 242, 244, 246
        X = 248
        O = 184
        def pr(r): return f'v[{r}:{r+1}]'
        ops = [f's_lshl_b32 s{sTmp}, s{sTp}, 8', f'v_add_u32 v{O}, s{sTmp}, v{vCh}',
               f'ds_read_b64 {pr(Q32)}, v{O} offset:{512+128*t}', f'ds_read_b64 {pr(Q8)}, v{vTg}',
               f'ds_read_b64 {pr(L1)}, v{vCh} offset:1536', f'ds_read_b64 {pr(CF)}, v{vCh} offset:1792']
        ops += [f's_lshl_b32 s{sTmp}, s{sC}, 1', f's_add_u32 s{sTmp}, s{sTmp}, s{sCp}',
                f's_lshr_b32 s{sTmp2}, s{sTmp}, 2', f's_lshl_b32 s{sTmp2}, s{sTmp2}, 3', f's_and_b32 s{sTmp}, s{sTmp}, 3', f's_add_u32 s{sTmp}, s{sTmp}, s{sTmp2}',
                f's_add_u32 s{sTmp}, s{sTmp}, 112', f's_lshl_b32 s{sTmp}, s{sTmp}, 10', f's_add_u32 s{sTmp3}, s{sTmp}, s{sTg0}']
        if t: ops += [f's_add_u32 s{sTmp3}, s{sTmp3}, {TSTRIDE}']
        ops += cmac(C, Q32, vH, C)
        ops += cmac(P, Q8, C, P)
        prev = P
        def cf(m):
            x = X + 2 * (m & 1); r = A + 2 * m
            return [f'v_mul_f32 v{x}, v{r}, v{CF}', f'v_mul_f32 v{x+1}, v{r}, v{CF+1}',
                    f'v_fma_f32 v{r}, -v{r+1}, v{CF+1}, v{x}', f'v_fma_f32 v{r+1}, -v{r+1}, v{CF}, -v{x+1}']
        for m in range(8):
            ops += cmac(A + 2 * m, L1, prev, A + 2 * m); prev = A + 2 * m
            if m >= 1: ops += cf(m - 1)
        ops += cf(7)
        for k in range(4): ops.append(f'v_cvt_pk_bf16_f32 v{O+k}, v{A+4*k}, v{A+4*k+2}')
        for k in range(4): ops.append(f'v_cvt_pk_bf16_f32 v{O+4+k}, v{A+4*k+1}, v{A+4*k+3}')
        ops += [f'ds_write_b128 v{vTw}, v[{O}:{O+3}]', f'ds_write_b128 v{vTw}, v[{O+4}:{O+7}] offset:1280']
        for ri in range(2):
            d = A + 4 * ri
            ops += [f'ds_read_b64_tr_b16 v[{d}:{d+1}], v{vTr} offset:{1280*ri}', f'ds_read_b64_tr_b16 v[{d+2}:{d+3}], v{vTr} offset:{1280*ri+320}']
        ops += [(f'buffer_store_dwordx4 v[{A}:{A+3}], v{vHB}, s[{sWS}:{sWS+3}], s{sTmp3} offen sc1', 'HS'), f's_add_u32 s{sTmp3}, s{sTmp3}, 4096',
                (f'buffer_store_dwordx4 v[{A+4}:{A+7}], v{vHB}, s[{sWS}:{sWS+3}], s{sTmp3} offen sc1', 'HS')]
        return ops
    def aug_F(s, acc, idx):
        fa = 244
        return [f'v_and_b32 v{fa+2}, 31, v{vL}', f'v_lshlrev_b32 v{fa+2}, 3, v{fa+2}',
                f's_lshl_b32 s{sTmp}, s{sCp}, 8', f's_add_u32 s{sTmp}, s{sTmp}, {L_WAUG + 512*idx}', f'v_add_u32 v{fa+2}, s{sTmp}, v{fa+2}',
                f'ds_read_b64 v[{fa}:{fa+1}], v{fa+2}', f'v_mov_b32 v{fa+3}, 0', f'v_mov_b32 v{fa+2}, 0'] + \
               [f'v_mfma_f32_32x32x16_bf16 v[{acc+16*t}:{acc+16*t+15}], v[{fa}:{fa+3}], v[{vXaug+4*t}:{vXaug+4*t+3}], v[{acc+16*t}:{acc+16*t+15}]' for t in range(2)]
    def aug_S(s):
        return [f'v_mfma_f32_32x32x16_bf16 v[{aS+16*t}:{aS+16*t+15}], v[{vXaug+4*t}:{vXaug+4*t+3}], v[{vSA}:{vSA+3}], v[{aS+16*t}:{aS+16*t+15}]' for t in range(2)]
    def flag_prog(s, tag, phase):
        def f():
            s.e.wait_tag(tag)
            s.I(f'buffer_store_dword v{vNon}, v{vFl}, s[{sWS}:{sWS+3}], s{sFlP} offen offset:{32*phase} sc1')
        return [Fn(f, 8)]
    def poll_issue(s):
        return (f'buffer_load_dword v{vPo}, v{vPl}, s[{sWS}:{sWS+3}], s{sFlC} offen sc1', 'PL')
    def poll_check(s, mask):
        e = s.e
        Ls = s.lab('pslow'); Lr = s.lab('pret')
        def chk():
            s.I(f'v_cmp_eq_u32 vcc, s{sNonce}, v{vPo}'); s.I(f's_and_b32 s{sKa}, vcc_lo, {mask:#x}')
            s.I(f's_cmp_eq_u32 s{sKa}, {mask:#x}'); e.raw(f's_cbranch_scc0 {Ls}'); e.label(Lr)
        def slow():
            e.label(Ls); e.reset_hazards(); e.vm = []; e.lgk = []
            s.I(f's_mov_b32 s{sSpin}, 0')
            e.label(Ls + 'l'); e.reset_hazards()
            s.I(s.poll_issue()[0]); e.force_wait('vmcnt(0)')
            s.I(f'v_cmp_eq_u32 vcc, s{sNonce}, v{vPo}'); s.I(f's_and_b32 s{sKa}, vcc_lo, {mask:#x}')
            s.I(f's_add_u32 s{sSpin}, s{sSpin}, 1'); s.I(f's_cmp_gt_u32 s{sSpin}, {SPIN}'); e.raw(f's_cbranch_scc1 {Lr}')
            s.I(f's_cmp_eq_u32 s{sKa}, {mask:#x}'); e.raw(f's_cbranch_scc0 {Ls}l')
            e.raw('s_nop 4'); e.raw(f's_branch {Lr}')
        s.slow.append(slow)
        return chk

    TYPES = [('o', 0), ('o', 2), ('o', 4), ('o', 6), ('o', 1), ('o', 3), ('o', 5), ('y', 0), ('y', 1), ('y', 2), ('y', 3)]
    def issueB(s, q):
        ty, j = s.TYPES[q]
        if 'b' in s.cfg.get('xp3', ''): ty, j = 'o', 0
        S = (q & 3) * 32
        out = []
        for s_ in range(4):
            for t in range(2):
                r = S + 8 * s_ + 4 * t
                ins = f'buffer_load_dwordx4 a[{r}:{r+3}], v{vHB if t == 0 else vB1}, s[{sWS}:{sWS+3}], s{sKb} offen offset:{1024*s_}' + s.cfg.get('bsc', ' sc1')
                pre = [f's_add_u32 s{sKb}, s{sBE if ty == "o" else sBY}, {j*4096}'] if (s_ == 0 and t == 0) else []
                def f(pre=pre, ins=ins):
                    for p in pre: s.I(p)
                    s.I(ins, f'B{q}')
                out.append(f)
        return out
    def issueH(s, qs):
        ty, j0 = s.TYPES[qs[0]]
        stride = (s.TYPES[qs[1]][1] - j0) * 4096 if len(qs) > 1 else 0
        for k, q in enumerate(qs): assert s.TYPES[q] == (ty, j0 + k * stride // 4096), (qs, q)
        va, vb = 200, 201
        def f():
            I = s.I
            I(f'v_lshrrev_b32 v{vb}, 3, v{vL}'); I(f'v_cmp_gt_u32 vcc, {len(qs)}, v{vb}')
            I(f'v_mul_u32_u24 v{vb}, {stride}, v{vb}') if stride else I(f'v_mov_b32 v{vb}, 0')
            I(f'v_and_b32 v{va}, 7, v{vL}'); I(f'v_lshl_add_u32 v{va}, v{va}, 7, v{vb}')
            I(f'v_mov_b32 v{vb}, {OOB}'); I(f'v_cndmask_b32 v{va}, v{vb}, v{va}, vcc')
            I(f's_lshr_b32 s{sKa}, s{sRho}, 2'); I(f's_mul_i32 s{sKa}, s{sKa}, {TSTRIDE}')
            I(f's_and_b32 s{sKb}, s{sRho}, 3'); I(f's_lshl_b32 s{sKb}, s{sKb}, 10'); I(f's_add_u32 s{sKa}, s{sKa}, s{sKb}')
            I(f's_add_u32 s{sKa}, s{sKa}, s{sBE if ty == "o" else sBY}')
            if j0: I(f's_add_u32 s{sKa}, s{sKa}, {j0*4096}')
            I(f'buffer_load_dword v{vDUM}, v{va}, s[{sWS}:{sWS+3}], s{sKa} offen' + s.cfg.get('hsc', ' sc1'), 'PF')
        return f
    def issueG(s, qs):
        va, vb = 202, 203
        def f():
            I = s.I
            I(f'v_cmp_gt_u32 vcc, 16, v{vL}'); I(f's_lshl_b32 s{sKa}, s{sU}, 4'); I(f'v_add_u32 v{va}, s{sKa}, v{vL}'); I(f'v_lshlrev_b32 v{va}, 10, v{va}')
            I(f'v_mov_b32 v{vb}, {OOB}'); I(f'v_cndmask_b32 v{va}, v{vb}, v{va}, vcc')
            for q in qs:
                ty, j = s.TYPES[q]
                if ty == 'o': I(f's_add_u32 s{sKa}, s{sRowW}, {j*65536}'); sr = sW2
                else: I(f's_add_u32 s{sKa}, s{sCrow}, {(j >> 1)*128}'); sr = sCIM if (j & 1) else sCRE
                I(f'buffer_load_dword v{vDUM}, v{va}, s[{sr}:{sr+3}], s{sKa} offen', 'PF')
        return f
    def issueW(s, q):
        ty, j = s.TYPES[q]
        if 'w' in s.cfg.get('xp3', ''): ty, j = 'o', 0
        slot = s.wslot(q)
        ops = []
        for half in range(2):
            for i in range(4):
                pre = []
                if i == 0:
                    pre.append(f's_add_u32 m0, s{sW13}, {slot*SLOT + half*4096}')
                    if ty == 'o': pre.append(f's_add_u32 s{sKc}, s{sRowW}, {j*65536 + half*32768}')
                    else: pre.append(f's_add_u32 s{sKc}, s{sCrow}, {(j >> 1)*128 + half*32768}')
                if ty == 'o': ins = f'buffer_load_dwordx4 v{vW+i}, s[{sW2}:{sW2+3}], s{sKc} offen offset:{1024*i} lds'
                else:
                    sr = sCIM if (j & 1) else sCRE
                    ins = f'buffer_load_dwordx4 v{vC+i}, s[{sr}:{sr+3}], s{sKc} offen offset:{1024*i} lds'
                ops.append((pre, ins))
        return s.mkdma(ops, f'W{q}')
    def wslot(s, q):
        return s.cfg.get('wslot', {}).get(q, (q + 2) & 3)
    def readA(s, q, s_, buf):
        ty, j = s.TYPES[q]
        slot = s.wslot(q)
        out = []
        for ee in range(2):
            r = WF + 8 * buf + 4 * ee
            if ty == 'o':
                va = vA0 if ee == 0 else vA1
                for k in range(2):
                    def f(va=va, r=r, k=k):
                        o = s.addr(va, slot)
                        s.I(f'ds_read_b64_tr_b16 v[{r+2*k}:{r+2*k+1}], v{va} offset:{o + s_*2048 + 1024*k}')
                    out.append(f)
            else:
                def f(r=r, ee=ee):
                    o = s.addr(vY + s_, slot)
                    s.I(f'ds_read_b128 v[{r}:{r+3}], v{vY+s_} offset:{o + ee*4096}')
                out.append(f)
        return out
    def sched_item(s, it):
        xp2 = s.cfg.get('xp2', '')
        if it[0] in xp2 and it[0] in 'WB': return []
        if it[0] == 'c' and 'c' in xp2: return []
        if it[0] == 'W': return s.issueW(int(it[1:]))
        if it[0] == 'B': return s.issueB(int(it[1:]))
        if it[0] == 'h': return [s.issueH([int(x) for x in it[1:].split('.')])]
        if it[0] == 'g': return [s.issueG([int(x) for x in it[1:].split('.')])]
        if it[0] == 'p': return [lambda: s.I(*s.poll_issue())]
        if it[0] == 'c': return [s.poll_check({'E': 0xff, 'Y': 0xff00, 'L': 0x3f0000}[it[1]]), lambda: s.stamp('ok' + it[1])]
        if it[0] == 'f':
            if s.typ != 'H': return []
            ev, tag, ph = {'Y': ('Sdone', 'HS', 1), 'L': ('F1done', 'HF1', 2)}[it[1]]
            def ff():
                s.until(ev); s.stamp('pfl' + it[1]); s.flag_prog(tag, ph)[0].f(); s.stamp('fl' + it[1])
            return [ff]
        raise ValueError(it)
    def p2_late(s):
        a, b, c = 240, 241, 242
        o = [f'v_lshrrev_b32 v{a}, 3, v{vL}', f'v_lshlrev_b32 v{a}, 10, v{a}', f'v_lshrrev_b32 v{b}, 4, v{vL}', f'v_and_b32 v{c}, 7, v{vL}',
             f'v_xor_b32 v{b}, v{b}, v{c}', f'v_lshl_add_u32 v{vC}, v{b}, 4, v{a}',
             f'v_xor_b32 v{vC+1}, 64, v{vC}', f'v_add_u32 v{vC+1}, 7168, v{vC+1}', f'v_add_u32 v{vC+2}, {7168*2}, v{vC}', f'v_add_u32 v{vC+3}, {7168*2}, v{vC+1}']
        return o
    def p2_late2(s):
        a, b, c = 240, 241, 242
        o = [f'v_and_b32 v{a}, 31, v{vL}', f'v_lshlrev_b32 v{a}, 7, v{a}', f'v_bfe_u32 v{c}, v{vL}, 1, 3', f'v_lshrrev_b32 v{b}, 5, v{vL}', f'v_xor_b32 v{c}, v{c}, v{b}',
             f'v_lshl_add_u32 v{a}, v{c}, 4, v{a}', f'v_add_u32 v{vY}, s{sW13}, v{a}']
        o += [f'v_xor_b32 v{vY+k}, {32*k}, v{vY}' for k in range(1, 4)]
        for k in range(4): s.half[vY + k] = 0
        return o
    tX, tS, tDk, tSo, tDo, tDf, tXf, tYi, tRo, tRy, tF, tXo, tOo = 32, 40, 48, 50, 51, 52, 56, 72, 88, 89, 90, 94, 95
    def tail_addr(s):
        a, b, c, d = 240, 241, 242, 243
        tRo, tRy, tF = s.tRo, s.tRy, s.tF
        def key(dst, row, tmp):
            return [f'v_bfe_u32 v{tmp}, v{row}, 3, 2', f'v_lshlrev_b32 v{tmp}, 1, v{tmp}', f'v_and_b32 v{dst}, 7, v{row}', f'v_xor_b32 v{dst}, v{dst}, v{tmp}']
        o = s.pi_ops(a, b) + key(c, a, b) + [f'v_lshrrev_b32 v{d}, 5, v{vL}', f'v_xor_b32 v{c}, v{c}, v{d}', f'v_lshlrev_b32 v{a}, 8, v{a}',
             f'v_lshl_add_u32 v{a}, v{c}, 4, v{a}', f's_add_u32 s{sTmp}, s{sW13}, {SLOT}', f'v_add_u32 v{tRo}, s{sTmp}, v{a}']
        r2 = s.cfg.get('reg2')
        sw_ = s.cfg.get('swap')
        if sw_:
            assert r2
            o[-2:] = [f's_add_u32 s{sTmp}, s{sW13}, {2*SLOT}', f'v_add_u32 v{tRy}, s{sTmp}, v{a}']
        elif r2: o += [f'v_add_u32 v{s.tRo2}, {3*SLOT}, v{tRo}']
        o += [f'v_and_b32 v{a}, 31, v{vL}'] + key(c, a, b) + [f'v_xor_b32 v{c}, v{c}, v{d}', f'v_lshlrev_b32 v{a}, 8, v{a}',
             f'v_lshl_add_u32 v{a}, v{c}, 4, v{a}'] + ([f's_add_u32 s{sTmp}, s{sW13}, {SLOT if r2 == 1 else 0}', f'v_add_u32 v{tRo}, s{sTmp}, v{a}', f'v_add_u32 v{s.tRo2}, {(3 if r2 == 1 else 4)*SLOT}, v{tRo}'] if sw_ else
             [f's_add_u32 s{sTmp}, s{sW13}, {(2 if r2 else 3)*SLOT}', f'v_add_u32 v{tRy}, s{sTmp}, v{a}'])
        o += [f'v_lshrrev_b32 v{b}, 4, v{vL}', f'v_and_b32 v{c}, 15, v{vL}', f'v_xor_b32 v{a}, v{b}, v{c}', f's_lshl_b32 s{sTmp}, s{sTp}, 2', f'v_xor_b32 v{a}, s{sTmp}, v{a}',
              f'v_lshlrev_b32 v{a}, 4, v{a}', f'v_lshl_add_u32 v{a}, v{b}, 8, v{a}',
              f's_lshl_b32 s{sTmp}, s{sTp}, 12', (f's_mul_i32 s{sTmp2}, s{sCp}, {(4 if r2 == 2 else 3)*SLOT}' if r2 else f's_lshl_b32 s{sTmp2}, s{sCp}, 15'), f's_add_u32 s{sTmp}, s{sTmp}, s{sTmp2}', f's_add_u32 s{sTmp}, s{sTmp}, {0 if r2 == 2 else SLOT}',
              f'v_add_u32 v{tF}, s{sTmp}, v{a}', f'v_xor_b32 v{tF+1}, 64, v{tF}', f'v_xor_b32 v{tF+2}, 32, v{tF}', f'v_xor_b32 v{tF+3}, 96, v{tF}',
              f'v_lshlrev_b32 v{s.tOo}, 11, v{b}', f'v_lshl_add_u32 v{s.tOo}, v{c}, 4, v{s.tOo}',
              f'v_lshlrev_b32 v{s.tXo}, 10, v{b}', f'v_lshl_add_u32 v{s.tXo}, v{c}, 3, v{s.tXo}',
              f'v_lshlrev_b32 v{s.tSo}, 3, v{b}', f'v_lshlrev_b32 v{s.tDo}, 3, v{c}', f'v_add_u32 v{s.tDo}, s{sDko}, v{s.tDo}']
        return o
    def tail_loads(s):
        o = []
        for i in range(4):
            o.append(s.atom([f's_add_u32 s{sTmp}, s{sXb}, {4096*i}', (f'buffer_load_dwordx2 v[{s.tX+2*i}:{s.tX+2*i+1}], v{s.tXo}, s[{sX}:{sX+3}], s{sTmp} offen', 'TX')]))
        for i in range(4):
            o.append((f'buffer_load_dwordx2 v[{s.tS+2*i}:{s.tS+2*i+1}], v{s.tSo}, s[{sWS}:{sWS+3}], s{sSb} offen offset:{32*i} sc1', 'TX'))
        o.append((f'global_load_dwordx2 v[{s.tDk}:{s.tDk+1}], v{s.tDo}, s[{kDk}:{kDk+1}]', 'TX'))
        return o
    def tail_early(s):
        eX, eS, eD, b, c = 204, 205, 218, 219, 220
        def f():
            I = s.I
            if s.typ == 'H': s.until('s3done')
            I(f'v_lshrrev_b32 v{b}, 4, v{vL}'); I(f'v_and_b32 v{c}, 15, v{vL}')
            I(f'v_lshlrev_b32 v{eX}, 10, v{b}'); I(f'v_lshl_add_u32 v{eX}, v{c}, 3, v{eX}')
            I(f'v_lshlrev_b32 v{eS}, 3, v{b}'); I(f'v_lshlrev_b32 v{eD}, 3, v{c}'); I(f'v_add_u32 v{eD}, s{sDko}, v{eD}')
            for i in range(4):
                I(f's_add_u32 s{sKa}, s{sXb}, {4096*i}')
                I(f'buffer_load_dwordx2 v[{s.tX+2*i}:{s.tX+2*i+1}], v{eX}, s[{sX}:{sX+3}], s{sKa} offen', 'TX')
            for i in range(4):
                I(f'buffer_load_dwordx2 v[{s.tS+2*i}:{s.tS+2*i+1}], v{eS}, s[{sWS}:{sWS+3}], s{sSb} offen offset:{32*i} sc1', 'TX')
            I(f'global_load_dwordx2 v[{s.tDk}:{s.tDk+1}], v{eD}, s[{kDk}:{kDk+1}]', 'TX')
        return f
    def tail_pre(s):
        tX, tS, tDk, tDf, tXf, tYi = s.tX, s.tS, s.tDk, s.tDf, s.tXf, s.tYi
        o = [f'v_lshlrev_b32 v{tDf}, 16, v{tDk}', f'v_and_b32 v{tDf+1}, 0xffff0000, v{tDk}', f'v_lshlrev_b32 v{tDf+2}, 16, v{tDk+1}', f'v_and_b32 v{tDf+3}, 0xffff0000, v{tDk+1}']
        for i in range(4):
            m = tS + 2 * i; rs = m + 1; x0 = tX + 2 * i; xf = tXf + 4 * i; y = tYi + 4 * i
            o += [f'v_lshlrev_b32 v{rs}, 16, v{m}', f'v_rcp_f32 v{rs}, v{rs}', f'v_and_b32 v{m}, 0xffff0000, v{m}',
                  f'v_lshlrev_b32 v{xf}, 16, v{x0}', f'v_and_b32 v{xf+1}, 0xffff0000, v{x0}', f'v_lshlrev_b32 v{xf+2}, 16, v{x0+1}', f'v_and_b32 v{xf+3}, 0xffff0000, v{x0+1}']
            o += [f'v_sub_f32 v{y+j}, v{xf+j}, v{m}' for j in range(4)]
            o += [f'v_mul_f32 v{y+j}, v{y+j}, v{rs}' for j in range(4)]
            o += [f'v_mul_f32 v{y+j}, v{y+j}, v{tDf+j}' for j in range(4)]
        return o
    tRo2 = 96
    def part_write(s, base, acc, base2=None, ees=(0, 1), ts=(0, 1)):
        o = []
        for ee in ees:
            for A in range(4):
                k = (8 * ee + 2 * A) * 16
                tmp = 240 + (A & 1); tmp2 = 242 + (A & 1)
                if k:
                    o.append(f'v_xor_b32 v{tmp}, {k}, v{base}')
                    if base2: o.append(f'v_xor_b32 v{tmp2}, {k}, v{base2}')
                else: tmp = base; tmp2 = base2
                for t in ts:
                    r = acc + 16 * (2 * ee + t) + 4 * A
                    if base2 and t: o.append(f'ds_write_b128 v{tmp2}, a[{r}:{r+3}]')
                    else: o.append(f'ds_write_b128 v{tmp}, a[{r}:{r+3}] offset:{t*SLOT}')
        return o
    tO = 96
    def o_gate(s):
        O = s.tO; T = 112
        o = []
        for i in range(4):
            for src in range(4):
                r = O + 16 * src + 4 * i
                o.append(f'ds_read_b128 v[{r}:{r+3}], v{s.tF+i} offset:{src*8192 + i*1024}')
        if s.cfg.get('reg2') == 2:
            o += [s.atom([f's_mul_i32 s{sTmp}, s{sCp}, {3*SLOT}', f's_sub_u32 s{sTmp}, {2*SLOT}, s{sTmp}'] + [f'v_add_u32 v{s.tF+i}, s{sTmp}, v{s.tF+i}' for i in range(4)])]
        elif s.cfg.get('reg2'):
            o += [s.atom([f's_lshl_b32 s{sTmp}, s{sCp}, 16', f's_sub_u32 s{sTmp}, {SLOT}, s{sTmp}'] + [f'v_add_u32 v{s.tF+i}, s{sTmp}, v{s.tF+i}' for i in range(4)])]
        else: o += [f'v_add_u32 v{s.tF+i}, {HALF}, v{s.tF+i}' for i in range(4)]
        for i in range(4):
            for j in range(4):
                r = O + 4 * i + j
                o += [f'v_add_f32 v{r}, v{r}, v{r+16}', f'v_add_f32 v{r+32}, v{r+32}, v{r+48}']
            for j in range(4):
                r = O + 4 * i + j
                o += [f'v_add_f32 v{r}, v{r}, v{r+32}']
        if s.cfg.get('swap'):
            for k in range(16): o.append(f'v_add_f32 v{O+k}, v{O+k}, v{s.tYi+k}')
            return o
        for r in range(O, O + 16): o.append(f'v_mul_f32 v{r+16}, {NLOG2E:#x}, v{r}')
        for r in range(O, O + 16): o.append(f'v_exp_f32 v{r+16}, v{r+16}')
        for r in range(O, O + 16): o.append(f'v_add_f32 v{r+16}, 1.0, v{r+16}')
        for r in range(O, O + 16): o.append(f'v_rcp_f32 v{r+16}, v{r+16}')
        for r in range(O, O + 16): o.append(f'v_mul_f32 v{r}, v{r}, v{r+16}')
        return o

    def p2(s):
        e = s.e; I = s.I; cfg = s.cfg; H = s.typ == 'H'
        sched = cfg['sched']
        e.wait_tag('W0')
        for f in s.readA(0, 0, 0): f()
        buf = 0
        def acc(ty, ee, t):
            b = (ACCO if ty == 'o' else ACCY) + 16 * (2 * ee + t)
            return f'a[{b}:{b+15}]'
        started = set()
        dma = deque()
        swap = cfg.get('swap')
        ACCF, ACCL = (ACCY, ACCO) if swap else (ACCO, ACCY)
        qo = max(q for q in range(11) if s.TYPES[q][0] == ('y' if swap else 'o')) + 1
        assert (qo == 8 and cfg.get('reg2') == 1 and cfg.get('qbar', -1) >= 0) or (qo == 9 and not cfg.get('reg2')) or \
            (qo == 7 and cfg.get('reg2') == 2 and swap and 0 <= cfg.get('qbar', -1) <= 7 and cfg.get('wslot') == {10: 1} and any('W10' in x for x in sched[8:]))
        stag = cfg.get('stag')
        def rdS(ee, s_):
            r = 16 * ee + 4 * s_
            def f():
                if s.TYPES[10][0] == 'o':
                    va = vA0 if ee == 0 else vA1
                    o = s.addr(va, s.wslot(10))
                    for k in range(2): s.I(f'ds_read_b64_tr_b16 v[{r+2*k}:{r+2*k+1}], v{va} offset:{o + s_*2048 + 1024*k}')
                    return
                o = s.addr(vY + s_, s.wslot(10))
                s.I(f'ds_read_b128 v[{r}:{r+3}], v{vY+s_} offset:{o + ee*4096}')
            return f
        for q in range(11):
            ty, j = s.TYPES[q]
            if cfg.get('sc3'):
                ity = lambda n: s.TYPES[n][0] == 'y'
                if any(it[0] == 'W' and ity(int(it[1:])) for it in sched[q]) or (q + 1 < 11 and ity(q + 1)): s.until('late')
                if q == cfg['tq']: s.add(s.tail_addr())
                if q == 6: s.drain()
            for it in sched[q]: dma.extend(s.sched_item(it))
            if s.typ == 'L': dma.extend(s.pfL(f'q{q}'))
            if not cfg.get('sc3'):
                if q == 2: s.add(s.tail_addr())
                if q == 3:
                    s.until('Sdone'); s.add(s.p2_late())
                if q == 4: s.drain(); s.add(s.p2_late2())
                if q == 6: s.drain()
            if q == 7 and not cfg.get('tearly'): s.add(s.tail_loads())
            if q == cfg.get('tpq', 8): s.add(s.tail_pre())
            if q == cfg.get('qbar', -1): s.barrier('BQ')
            if q == qo:
                pw = s.part_write(s.tRo, ACCF, s.tRo2 if cfg.get('reg2') else None)
                if cfg.get('pwc'):
                    g = []; cur = []; nw = 0
                    for x in pw:
                        cur.append(x)
                        if x.startswith('ds_write'):
                            a_ = Atom(cur); a_.cost = cfg['pwc']; g.append(a_); cur = []
                            pwp = cfg.get('pwp', [0]); g += [('skip', 0)] * pwp[nw % len(pwp)]; nw += 1
                    assert not cur
                    pw = g
                s.add(pw)
            def bo():
                s.drain(); s.barrier('BO')
                og = s.o_gate()
                if cfg.get('prc'):
                    def wrap(x):
                        if isinstance(x, str) and x.startswith('ds_read'):
                            a_ = Atom([x]); a_.cost = cfg['prc']; return a_
                        return x
                    og = [wrap(x) for x in og]
                s.add(og)
            bok = cfg.get('bok', 0)
            if q == qo + 1 and bok == 0: bo()
            bud = cfg['budP0'] if q < 3 else cfg['budP']
            if q >= qo: bud = cfg.get('budT', bud)
            if stag and q == 10:
                assert ty == ('o' if swap else 'y')
                aops = deque(rdS(1, s_) for s_ in range(4)); yw = deque()
                k = 0
                if cfg.get('chain'):
                    dl = cfg.get('chd', 2)
                    order_ = [(ee, t, s_) for ee in range(2) for t in range(2) for s_ in range(4)]
                    for k, (ee, t, s_) in enumerate(order_):
                        r = 16 * ee + 4 * s_
                        br = (q & 3) * 32 + 8 * s_ + 4 * t
                        A = acc(ty, ee, t)
                        I(f'v_mfma_f32_32x32x16_bf16 {A}, v[{r}:{r+3}], a[{br}:{br+3}], {A}')
                        n0 = e.n
                        if aops: aops.popleft()()
                        if k >= 4 + dl - 1 and (k - (dl - 1)) % 4 == 0:
                            tl = (k - (dl - 1)) // 4 - 1
                            yw.extend(s.part_write(s.tRy, ACCL, ees=(tl >> 1,), ts=(tl & 1,)))
                        for _ in range(cfg.get('ywn', 2)):
                            if yw: I(yw.popleft())
                        s.gap(n0, bud)
                    while yw: I(yw.popleft())
                    s.stamp(f'q{q}e')
                    continue
                for ee in range(2):
                    for s_ in range(4):
                        for t in range(2):
                            r = 16 * ee + 4 * s_
                            br = (q & 3) * 32 + 8 * s_ + 4 * t
                            A = acc(ty, ee, t)
                            I(f'v_mfma_f32_32x32x16_bf16 {A}, v[{r}:{r+3}], a[{br}:{br+3}], {A}')
                            n0 = e.n
                            if aops: aops.popleft()()
                            if k == 8: yw.extend(s.part_write(s.tRy, ACCL, ees=(0,)))
                            if k >= 9:
                                for _ in range(cfg.get('ywn', 2)):
                                    if yw: I(yw.popleft())
                            s.gap(n0, bud)
                            k += 1
                while yw: I(yw.popleft())
                s.stamp(f'q{q}e')
                continue
            for s_ in range(4):
                if stag and q == 9 and s_ == 3: aops = deque(rdS(0, x) for x in range(4)); needw = 'W10'
                elif s_ < 3: aops = deque(s.readA(q, s_ + 1, buf ^ 1)); needw = None
                elif q + 1 < 11: aops = deque(s.readA(q + 1, 0, buf ^ 1)); needw = f'W{q+1}'
                else: aops = deque(); needw = None
                k = 0
                for ee in range(2):
                    for t in range(2):
                        r = WF + 8 * buf + 4 * ee
                        br = (q & 3) * 32 + 8 * s_ + 4 * t
                        A = acc(ty, ee, t)
                        cs = A if (ty, ee, t) in started else '0'
                        started.add((ty, ee, t))
                        I(f'v_mfma_f32_32x32x16_bf16 {A}, v[{r}:{r+3}], a[{br}:{br+3}], {cs}')
                        n0 = e.n
                        if k == 0 and needw: e.wait_tag(needw)
                        if bok and 16 * (q - qo - 1) + 4 * s_ + k == bok and q > qo: bo()
                        if aops: aops.popleft()()
                        left = 16 - (4 * s_ + k)
                        s.pace(dma, left)
                        s.gap(n0, bud)
                        k += 1
                while aops: aops.popleft()()
                buf ^= 1
            while dma: dma.popleft()()
            s.stamp(f'q{q}e')
        s.drain()
        s.stamp('P2end')
        for x in s.part_write(s.tRy, ACCL, ees=((1,) if stag else (0, 1)), ts=((1,) if cfg.get('chain') else (0, 1))): I(x)
        pk = cfg.get('pk')
        if pk:
            for j in range(2): I(f'v_mov_b32 v{160+j}, {NLOG2E:#x}'); I(f'v_mov_b32 v{162+j}, 1.0')
        s.barrier('BY')
        Y = [0, 112, 128, 144]
        for i in range(4):
            for src in range(4):
                r = Y[src] + 4 * i
                I(f'ds_read_b128 v[{r}:{r+3}], v{s.tF+i} offset:{src*8192 + i*1024}')
        for i in range(4):
            if swap and pk:
                P = lambda op, d, a, b: I(f'{op} v[{d}:{d+1}], v[{a}:{a+1}], v[{b}:{b+1}]')
                r = Y[0] + 4 * i; T = Y[1] + 4 * i
                for j in (0, 2): P('v_pk_add_f32', r + j, r + j, Y[3] + 4 * i + j); P('v_pk_add_f32', T + j, T + j, Y[2] + 4 * i + j)
                for j in (0, 2): P('v_pk_add_f32', r + j, r + j, T + j)
                for j in (0, 2): P('v_pk_mul_f32', T + j, r + j, 160)
                for j in range(4): I(f'v_exp_f32 v{T+j}, v{T+j}')
                for j in (0, 2): P('v_pk_add_f32', T + j, T + j, 162)
                for j in range(4): I(f'v_rcp_f32 v{T+j}, v{T+j}')
                for j in (0, 2): P('v_pk_mul_f32', r + j, r + j, T + j)
                for j in (0, 2): I(f'v_pk_fma_f32 v[{r+j}:{r+j+1}], v[{r+j}:{r+j+1}], v[{s.tO+4*i+j}:{s.tO+4*i+j+1}], v[{s.tXf+4*i+j}:{s.tXf+4*i+j+1}]')
                I(f's_add_u32 s{sTmp}, s{sOb}, {8192*i}')
                I(f'buffer_store_dwordx4 v[{r}:{r+3}], v{s.tOo}, s[{sOUT}:{sOUT+3}], s{sTmp} offen' + s.cfg.get('osc', ''))
                continue
            if swap:
                for j in range(4):
                    I(f'v_add_f32 v{Y[0]+4*i+j}, v{Y[0]+4*i+j}, v{Y[3]+4*i+j}'); I(f'v_add_f32 v{Y[1]+4*i+j}, v{Y[1]+4*i+j}, v{Y[2]+4*i+j}')
                for j in range(4):
                    I(f'v_add_f32 v{Y[0]+4*i+j}, v{Y[0]+4*i+j}, v{Y[1]+4*i+j}')
                T = Y[1] + 4 * i; r = Y[0] + 4 * i
                for j in range(4): I(f'v_mul_f32 v{T+j}, {NLOG2E:#x}, v{r+j}')
                for j in range(4): I(f'v_exp_f32 v{T+j}, v{T+j}')
                for j in range(4): I(f'v_add_f32 v{T+j}, 1.0, v{T+j}')
                for j in range(4): I(f'v_rcp_f32 v{T+j}, v{T+j}')
                for j in range(4): I(f'v_mul_f32 v{r+j}, v{r+j}, v{T+j}')
            else:
              for j in range(4):
                I(f'v_add_f32 v{Y[0]+4*i+j}, v{Y[0]+4*i+j}, v{s.tYi+4*i+j}'); I(f'v_add_f32 v{Y[1]+4*i+j}, v{Y[1]+4*i+j}, v{Y[2]+4*i+j}')
              for j in range(4):
                I(f'v_add_f32 v{Y[0]+4*i+j}, v{Y[0]+4*i+j}, v{Y[3]+4*i+j}')
              for j in range(4):
                I(f'v_add_f32 v{Y[0]+4*i+j}, v{Y[0]+4*i+j}, v{Y[1]+4*i+j}')
            for j in range(4):
                I(f'v_fma_f32 v{Y[0]+4*i+j}, v{Y[0]+4*i+j}, v{s.tO+4*i+j}, v{s.tXf+4*i+j}')
            I(f's_add_u32 s{sTmp}, s{sOb}, {8192*i}')
            I(f'buffer_store_dwordx4 v[{Y[0]+4*i}:{Y[0]+4*i+3}], v{s.tOo}, s[{sOUT}:{sOUT+3}], s{sTmp} offen' + s.cfg.get('osc', ''))

    def body(s):
        e = s.e; I = s.I; cfg = s.cfg; typ = s.typ
        s.prologue()
        H = typ == 'H'
        tb_ = s.capture(s.tab)
        skip = cfg.get('skip', ())
        K = lambda n, l: [] if n in skip else (l() if callable(l) else l)
        s.add(K('pub', s.pub_prog) + [s.fstamp('pub')] + K('tab', tb_) + [s.mark('tabdone')])
        o1, o2 = s.fcs_prog()
        s.add([s.gate(f'B{cfg["fcs"]}')] + K('fcs', o1 + o2) + [s.fstamp('fcs')])
        s.add([s.gate(f'B{cfg["gA_issue"]}')] + K('gA', s.gA_issue))
        s.add([s.gate(f'B{cfg["gB_issue"]}')] + K('gB', s.gB_issue))
        s.add([s.gate(f'B{cfg["gA_proc"]}')] + K('gA', s.gA_proc) + [s.mark('gAdone'), s.fstamp('gA')])
        s.add([s.gate(f'B{cfg["gB_proc"]}')] + K('gB', s.gB_proc) + [s.mark('gBdone'), s.fstamp('gB')])
        if cfg.get('stopA'):
            s.stopA = True
        def readsA(st, ks):
            b = WF + 8 * ((4 * st + ks) & 1)
            xp = cfg.get('xp', '')
            return ([] if 'S' in xp else s.rd_S(st, ks, b)) + ([] if 'x' in xp else s.rd_x(st, ks, 0) + s.rd_x(st, ks, 1)) + ([] if 'W' in xp else s.rd_W(st & 3, 24576 + 2048 * ks, b + 4))
        pf = cfg['pf']; NR = 4
        assert pf == 3
        npass = 3 if H else 1
        order = [(p, kk) for p in range(npass) for kk in range(32)]
        def rdP(idx):
            p, kk = order[idx]
            st = 8 + 2 * p + (kk >> 4)
            return s.rd_W(st & 3, (kk & 15) * 2048, WF + 4 * (idx % NR))
        dma = deque(s.dma_list(2))
        for f in readsA(0, 0): f()
        nst = 8 + 2 * npass
        def next_dma(stb):
            l = next_dma0(stb)
            if H:
                for k, (b, unit) in enumerate(cfg.get('pf2', ())):
                    if b == stb: l = l + [s.pf2_item(unit, k)]
            else: l = l + s.pfL(f'B{stb}')
            return l
        def next_dma0(stb):
            l = []
            if 'D' in cfg.get('xp', ''): return l
            if 'H' in cfg.get('xp', ''): return s.dma_list(stb + 2)[:4]
            if stb == 1: l = (s.dma_csc() + s.dma_list(3)) if cfg['fcs'] <= 3 else (s.dma_list(3) + s.dma_csc())
            elif stb < 8: l = s.dma_list(stb + 2)
            elif stb == 8: l = (s.dma_list(10) + s.dma_list(11)) if nst > 11 else []
            elif stb + 3 < nst: l = s.dma_list(stb + 3)
            elif H and cfg['p2'] and stb in (11, 12, 13): l = s.issueW(stb - 11)
            return l
        for st in range(8):
            for ks in range(4):
                kk = 4 * st + ks
                b = WF + 8 * (kk & 1)
                if ks < 3: nxt = readsA(st, ks + 1)
                elif st < 7: nxt = readsA(st + 1, 0)
                else: nxt = []
                nxt = deque(nxt)
                seq = [(aS, 0, True), (aS, 1, True), (aG0, 0, False), (aG0, 1, False)]
                for m, (base, t, isS) in enumerate(seq):
                    acc = base + 16 * t
                    xr = (kk * 2 + t) * 4
                    w = f'v[{b}:{b+3}]' if isS else f'v[{b+4}:{b+7}]'
                    c = '0' if kk == 0 else f'v[{acc}:{acc+15}]'
                    if isS: I(f'v_mfma_f32_32x32x16_bf16 v[{acc}:{acc+15}], a[{xr}:{xr+3}], {w}, {c}')
                    else: I(f'v_mfma_f32_32x32x16_bf16 v[{acc}:{acc+15}], {w}, a[{xr}:{xr+3}], {c}')
                    n0 = e.n
                    if ks == 3 and m == 0:
                        if st + 1 == 6: s.until('tabdone')
                        if st + 1 == cfg['gBbar'] and not cfg.get('stopA'): s.until('gBdone')
                        s.barrier(f'B{st+1}', f'D{st+1}')
                        while dma: dma.popleft()()
                        dma = deque(next_dma(st + 1))
                        if st == 7:
                            nxt = deque(rdP(0) + rdP(1))
                        n0 = e.n
                    nrd = 2 if m < 2 else 1
                    if m == 3: nrd = 9
                    for _ in range(nrd):
                        if nxt: nxt.popleft()()
                    left = 16 - (4 * ((ks + 1) & 3) + m)
                    s.pace(dma, left)
                    s.gap(n0, cfg['budA'])
        s.stamp('Aend')
        if cfg.get('stopA'):
            s.drain(); s.stamp('end'); s.final_stamps(); e.raw('s_endpgm')
            for f in s.slow: f()
            return
        s.until('gAdone')
        gb = s.gate(f'B{cfg["gBbar"]}')
        totb = cfg['totb'] if H else 10
        sc3 = H and cfg.get('sc3')
        if sc3:
            totb = None
            G1p = [s.gate('Cend')] + s.aug_F(aG1, 2) + s.g_part(aG1, 0, 64) + s.g_part(aG1 + 16, 1, 64) + [s.mark('G1done'), s.fstamp('G1')]
            gk = lambda k: [s.gate(f'p{cfg[k][0]}k{cfg[k][1]}')] if cfg.get(k) else []
            G0p = [gb] + s.aug_F(aG0, 0) + s.g_part(aG0, 0, 152) + s.g_part(aG0 + 16, 1, 152) + [s.fstamp('G0')]
            S1p = s.aug_S() + s.s1(0) + s.s1(1) + [s.mark('s1done'), s.fstamp('s1'), s.gate('TOT')] + s.s2() + [s.fstamp('s2')]
            prog = (G0p + S1p) if cfg.get('g0first') else (S1p + G0p)
            prog += [s.gate('Bend')] + s.aug_F(aU0, 1) + s.u_part(aG0, aU0, 0, 0) + s.u_part(aG0 + 16, aU0 + 16, 1, 0) + [s.mark('F0done'), s.fstamp('F0st')]
            prog += gk('s3ik') + s.s3_issue() + [s.fstamp('s3i')] + gk('s3pk') + s.s3() + [s.mark('s3done'), s.fstamp('s3')]
            gp = cfg['g1pos']
            prog += (G1p if gp == 0 else []) + s.s4(0) + (G1p if gp == 1 else []) + s.s4(1) + [s.mark('Sdone'), s.fstamp('Sdone')]
            prog += s.p2_late() + s.p2_late2() + [s.mark('late')] + (G1p if gp == 2 else [])
            prog += [s.gate('Dend')] + s.aug_F(aU1, 3) + s.u_part(aG1, aU1, 0, 1) + s.u_part(aG1 + 16, aU1 + 16, 1, 1) + [s.mark('F1done'), s.fstamp('F1st')]
            s.add(prog)
        elif H:
            s.add([gb] + s.aug_F(aG0, 0) + s.g_part(aG0, 0, 152) + s.g_part(aG0 + 16, 1, 152) + [s.fstamp('G0')] +
                  [s.gate('Bend')] + s.aug_F(aU0, 1) + s.u_part(aG0, aU0, 0, 0) + s.u_part(aG0 + 16, aU0 + 16, 1, 0) + [s.mark('F0done'), s.fstamp('F0st')] +
                  s.aug_S() + s.s1(0) + s.s1(1) + [s.mark('s1done')])
        else:
            s.add(s.aug_S() + s.s1(0) + [gb] + s.aug_F(aG0, 0) + s.g_part(aG0, 0, 152) + s.s1(1) + [s.mark('s1done')] + s.g_part(aG0 + 16, 1, 152))
        issued = 2
        for f in rdP(2): f()
        issued = 3
        for idx, (p, kk) in enumerate(order):
            st = 8 + 2 * p + (kk >> 4)
            fr = WF + 4 * (idx % NR)
            accb = [aU0, aG1, aU1][p]
            bud = [cfg['budB'], cfg['budC'], cfg['budD']][p]
            s.events.add(f'p{p}k{kk}')
            if sc3 and p == 0 and kk == cfg['totk']:
                s.until('s1done'); s.barrier('TOT')
            if sc3 and (p, kk) == tuple(cfg['flEk']):
                s.until('F0done'); s.addfront(s.flag_prog('HF0', 0) + [s.mark('flEdone'), s.fstamp('flE')])
            if sc3 and cfg.get('fYk') and (p, kk) == tuple(cfg['fYk']):
                s.until('Sdone'); s.addfront(s.flag_prog('HS', 1) + [s.fstamp('flY')])
            if (kk & 15) == 16 - pf and (st + 1 < nst or (H and cfg['p2'])):
                if st + 1 == cfg['gBbar']: s.until('gBdone')
                if st + 1 == totb: s.until('s1done')
                if H and not sc3 and st + 1 == cfg['flEb']: s.until('F0done')
                s.barrier(f'B{st+1}', f'D{st+1}' if st + 1 < nst else None)
                if H and not sc3 and st + 1 == cfg['s3b']: s.addfront(s.s3_issue())
                if st + 1 == totb: s.addfront(s.s2() + [s.mark('s2done'), s.fstamp('s2')])
                if H and not sc3 and st + 1 == cfg['flEb']: s.addfront(s.flag_prog('HF0', 0) + [s.mark('flEdone'), s.fstamp('flE')])
                if p == 2 and cfg.get('nofl') and kk >= cfg['cE']: dma.extend(next_dma(st + 1))
                else:
                    while dma: dma.popleft()()
                    dma = deque(next_dma(st + 1))
            if p == 2:
                if kk == 0 and not sc3:
                    s.add(s.aug_F(aG1, 2) + s.g_part(aG1, 0, 64) + s.g_part(aG1 + 16, 1, 64) + [s.mark('G1done'), s.fstamp('G1')])
                if cfg['p2']:
                    if kk == cfg['pE']: dma.appendleft(lambda: s.I(*s.poll_issue()))
                    if kk == cfg['cE']:
                        s.until('flEdone')
                        dma.append(lambda: s.stamp('epre'))
                        dma.append(s.poll_check(0xff))
                        dma.append(lambda: s.stamp('eok'))
                        if cfg.get('hE'): dma.append(s.issueH(cfg['hE']))
                        for q in range(cfg.get('nEB', 2)): dma.extend(s.issueB(q))
                        if cfg.get('tearly'): dma.append(s.tail_early())
                        if cfg.get('gE'): dma.append(s.issueG(cfg['gE']))
            nxt = deque()
            if issued < len(order):
                nxt = deque(rdP(issued)); issued += 1
            for t in range(2):
                acc = accb + 16 * t
                xr = (kk * 2 + t) * 4
                c = '0' if kk == 0 else f'v[{acc}:{acc+15}]'
                I(f'v_mfma_f32_32x32x16_bf16 v[{acc}:{acc+15}], v[{fr}:{fr+3}], a[{xr}:{xr+3}], {c}')
                n0 = e.n
                if nxt: nxt.popleft()()
                if p == 2 and kk >= cfg['cE'] and cfg['p2']: left = 2 * (cfg.get('dEnd', 32) - kk) - t
                else: left = 32 - (2 * (((kk & 15) + pf) & 15) + t)
                s.pace(dma, left)
                s.gap(n0, bud)
            if kk == 31:
                s.stamp(['Bend', 'Cend', 'Dend'][p]); s.events.add(['Bend', 'Cend', 'Dend'][p])
        while dma: dma.popleft()()
        if not H:
            s.until('s1done')
            s.barrier('B10')
            if cfg['p2'] and not cfg.get('Lw', 1):
                for q in range(3):
                    for f in s.issueW(q): f()
            s.addfront(s.s2())
            s.add(s.aug_F(aU0, 1) + s.u_part(aG0, aU0, 0, 0) + s.u_part(aG0 + 16, aU0 + 16, 1, 0))
            s.drain()
            for f in s.pfL('F0'): f()
            if cfg['p2'] and cfg.get('Lw', 1) == 1:
                for q in range(3):
                    for f in s.issueW(q): f()
            s.stamp('F1st')
            fE = s.flag_prog('HF0', 0) + [s.fstamp('flE')]
            post = [Fn(f, 8) for f in s.pfL('s3i')]
            if cfg['p2'] and cfg.get('Lw', 1) == 2:
                post += [Fn(f, 8) for q in range(3) for f in s.issueW(q)]
            pre_ = (fE + s.s3_issue() + post if cfg.get('LfE', 0) else s.s3_issue() + post + fE) + s.s3() + [s.fstamp('s3')] + s.s4(0) + s.s4(1) + [s.mark('Sdone'), s.fstamp('Sdone')]
            if cfg.get('Lw', 1) == 4:
                Wl = [Fn(f, 8) for q in range(3) for f in s.issueW(q)]
                Bl = [Fn(f, 8) for q in range(cfg.get('nEB', 2)) for f in s.issueB(q)]
                chk_ = [Fn(s.poll_check(0xff), 8), s.fstamp('eok')] + ([Fn(s.issueH(cfg['hE']), 8)] if cfg.get('hE') else [])
                s.add(pre_ + [Fn(lambda: s.I(*s.poll_issue()), 8)] + [Fn(f, 8) for f in s.pfL('S')] + Wl + s.flag_prog('HS', 1) + [s.fstamp('flY')] + chk_ + Bl + ([Fn(s.tail_early(), 8)] if cfg.get('tearly') else []) + ([Fn(s.issueG(cfg['gE']), 8)] if cfg.get('gE') else []) +
                      [Fn(f, 8) for f in s.pfL('S2')] + s.p2_late() + s.p2_late2() + [s.mark('late')])
                s.drain()
            else:
                s.add(pre_ + [Fn(f, 8) for f in s.pfL('S')] + s.flag_prog('HS', 1) + [s.fstamp('flY')] + [Fn(f, 8) for f in s.pfL('S2')])
                if cfg['p2'] and cfg.get('Lw', 1) == 3: s.add([Fn(f, 8) for q in range(3) for f in s.issueW(q)])
                if cfg.get('sc3'): s.add(s.p2_late() + s.p2_late2() + [s.mark('late')])
                s.drain()
                if cfg['p2']:
                    I(*s.poll_issue()); s.poll_check(0xff)(); s.stamp('eok')
                    if cfg.get('hE'): s.issueH(cfg['hE'])()
                    if cfg.get('gE'): s.issueG(cfg['gE'])()
                    for q in range(cfg.get('nEB', 2)):
                        for f in s.issueB(q): f()
        elif not sc3:
            s.add(s.aug_F(aU1, 3) + s.u_part(aG1, aU1, 0, 1) + s.u_part(aG1 + 16, aU1 + 16, 1, 1) + [s.fstamp('F1st')] + s.s3() + [s.fstamp('s3')] + s.s4(0) + s.flag_prog('HF1', 2) + [s.fstamp('flL')] +
                  s.s4(1) + [s.mark('Sdone'), s.fstamp('Sdone')] + ['s_nop 0'] * cfg.get('ydelay', 0) + s.flag_prog('HS', 1) + [s.fstamp('flY')])
        if sc3 and cfg.get('f1first', 1):
            s.until('F1done')
        if cfg['p2']: s.p2()
        else: s.drain()
        s.stamp('end')
        s.final_stamps()
        e.raw('s_endpgm')
        for f in s.slow: f()
    def gate_mark(s, ev): return ('gate', ev)

def gen_fz(ts=False, cfg=None):
    e = Em(); I = e.I
    cfg = cfg or {}
    e.raw('s_cmp_ge_u32 s2, 256'); e.raw('s_cbranch_scc1 FZ_done')
    I(f's_load_dwordx16 s[64:79], s[0:1], 0')
    I(f's_load_dwordx8 s[80:87], s[0:1], 64')
    I(f's_load_dwordx8 s[88:95], s[0:1], 96')
    e.raw(f's_memrealtime s[{sSB}:{sSB+1}]')
    if ts: e.raw(f'{ts} s[98:99]')
    I(f'v_and_b32 v{vL}, 63, v0'); I(f'v_lshrrev_b32 v{vT}, 6, v0'); I(f'v_readfirstlane_b32 s{sw}, v{vT}')
    if cfg.get('codepf', 1):
        e.raw('s_getpc_b64 s[4:5]'); e.label('PF_base')
        I(f's_lshr_b32 s6, s2, 3'); I(f's_and_b32 s6, s6, 1'); I(f's_lshl_b32 s6, s6, 15')
        I(f'v_lshlrev_b32 v{vT+1}, 7, v0'); I(f'v_add_u32 v{vT+1}, s6, v{vT+1}')
        e.raw(f'v_min_u32 v{vT+1}, TEXT_END-PF_base-4, v{vT+1}')
        I(f'v_mov_b32 v{vT+4}, s4'); I(f'v_mov_b32 v{vT+5}, s5')
        I(f'v_add_co_u32 v{vT+4}, vcc, v{vT+4}, v{vT+1}'); I(f'v_addc_co_u32 v{vT+5}, vcc, 0, v{vT+5}, vcc')
        I(f'global_load_dword v{vDUM}, v[{vT+4}:{vT+5}], off')
    I(f's_and_b32 s{sTmp}, s2, 7'); I(f's_lshr_b32 s{sTmp2}, s2, 3')
    I(f's_lshr_b32 s{sRho}, s{sTmp2}, 2'); I(f's_and_b32 s{sU}, s{sTmp2}, 3')
    I(f's_and_b32 s{sTmp3}, s{sTmp}, 1'); I(f's_lshl_b32 s{sR}, s{sRho}, 1'); I(f's_add_u32 s{sR}, s{sR}, s{sTmp3}')
    I(f's_lshr_b32 s{sG}, s{sTmp}, 1'); I(f's_lshl_b32 s{sC}, s{sG}, 2'); I(f's_add_u32 s{sC}, s{sC}, s{sU}')
    I(f's_lshl_b32 s{sTmp}, s{sU}, 1')
    offm = cfg.get('offm', 'zero')
    if offm == 'cur': I(f's_add_u32 s{sOff}, s{sRho}, s{sTmp}'); I(f's_and_b32 s{sOff}, s{sOff}, 7')
    elif offm == 'zero': I(f's_mov_b32 s{sOff}, 0')
    elif offm == 'rho': I(f's_mov_b32 s{sOff}, s{sRho}')
    elif offm == 'u2': I(f's_mov_b32 s{sOff}, s{sTmp}')
    elif offm == 'rho4': I(f's_and_b32 s{sOff}, s{sRho}, 1'); I(f's_lshl_b32 s{sOff}, s{sOff}, 2')
    elif offm == 'rho2': I(f's_and_b32 s{sOff}, s{sRho}, 3'); I(f's_lshl_b32 s{sOff}, s{sOff}, 1')
    elif offm == 'xcd': I(f's_and_b32 s{sOff}, s2, 7')
    I(f's_mul_i32 s{sSo2}, s{sG}, 7'); I(f's_add_u32 s{sSo2}, s{sSo2}, s{sTmp}'); I(f's_lshl_b32 s{sSo2}, s{sSo2}, 7')
    I(f's_and_b32 s{sTp}, s{sw}, 1'); I(f's_lshr_b32 s{sCp}, s{sw}, 1')
    for s_, n in [(sX, 2048*512*2), (sW1, 512*1792*2), (sW3, 512*1792*2), (sCSC, 512*1792*2), (sSB, 512*512*2), (sWS, WS_SIZE), (sDBG, 256)]:
        I(f's_mov_b32 s{s_+2}, {n}'); I(f's_mov_b32 s{s_+3}, 0x00020000')
    I(f's_lshl_b32 s{sXo}, s{sR}, 2'); I(f's_add_u32 s{sXo}, s{sXo}, s{sw}'); I(f's_lshl_b32 s{sXo}, s{sXo}, 15')
    I(f's_lshl_b32 s{sSo}, s{sC}, 15'); I(f's_lshl_b32 s{sTmp}, s{sTp}, 13'); I(f's_add_u32 s{sSo}, s{sSo}, s{sTmp}')
    I(f's_mul_i32 s{sFo}, s{sw}, {16*WROW}'); I(f's_add_u32 s{sFo}, s{sFo}, s{sSo2}')
    I(f's_lshl_b32 s{sW12}, s{sw}, 12'); I(f's_lshl_b32 s{sW11}, s{sw}, 11'); I(f's_lshl_b32 s{sW13}, s{sw}, 13')
    a, b, c, d = vT, vT + 1, vT + 2, vT + 3
    I(f'v_lshlrev_b32 v{vHB}, 4, v{vL}')
    I(f'v_lshrrev_b32 v{a}, 5, v{vL}'); I(f'v_lshlrev_b32 v{a}, 4, v{a}'); I(f'v_and_b32 v{b}, 8, v{vL}'); I(f'v_add_u32 v{a}, v{a}, v{b}')
    I(f'v_bfe_u32 v{b}, v{vL}, 4, 1'); I(f'v_add_u32 v{a}, v{a}, v{b}'); I(f'v_lshlrev_b32 v{a}, 10, v{a}')
    I(f'v_and_b32 v{b}, 7, v{vL}'); I(f'v_lshrrev_b32 v{c}, 4, v{vL}'); I(f'v_xor_b32 v{d}, v{b}, v{c}')
    I(f'v_lshl_add_u32 v{vDX}, v{d}, 4, v{a}')
    I(f'v_xor_b32 v{vDX+1}, 64, v{vDX}'); I(f'v_add_u32 v{vDX+1}, 1024, v{vDX+1}')
    I(f'v_add_u32 v{vDX+2}, 2048, v{vDX}'); I(f'v_add_u32 v{vDX+3}, 2048, v{vDX+1}')
    I(f'v_bfe_u32 v{a}, v{vL}, 4, 1'); I(f'v_lshlrev_b32 v{a}, 2, v{a}'); I(f'v_xor_b32 v{a}, v{a}, v{b}'); I(f'v_lshlrev_b32 v{a}, 4, v{a}')
    I(f'v_lshrrev_b32 v{d}, 3, v{vL}'); I(f'v_mul_u32_u24 v{vDF}, {WROW}, v{d}'); I(f'v_add_u32 v{vDF}, v{vDF}, v{a}')
    for i in range(1, 4): I(f'v_add_u32 v{vDF+i}, {27648*i}, v{vDF}')
    I(f's_lshl_b32 s{sTmp}, s{sTp}, 2'); I(f'v_add_u32 v{c}, s{sTmp}, v{c}'); I(f'v_xor_b32 v{a}, v{b}, v{c}')
    I(f'v_lshlrev_b32 v{a}, 4, v{a}'); I(f'v_lshl_add_u32 v{vDS}, v{d}, 10, v{a}'); I(f'v_add_u32 v{vDS+1}, 15360, v{vDS}')
    gH = Gen('H', e, ts, cfg); gL = Gen('L', e, ts, cfg)
    gH.lds_addrs(); gH.pre_karg()
    e.force_wait('lgkmcnt(0)')
    if ts: I(f'v_writelane_b32 v{vTS}, s98, 0')
    I(f's_cmp_eq_u32 s{sU}, 3'); e.raw('s_cbranch_scc1 FZ_L')
    sv = (dict(e.lastw), dict(e.lastsw))
    for g, lab in ((gH, None), (gL, 'FZ_L')):
        if lab: e.label(lab); e.reset_hazards(pad=2); e.lgk = []; e.vm = []
        g.body()
    e.label('FZ_done'); e.raw('s_endpgm')
    return e
```

```python
from em import Em
from collections import deque
WS_STATS = 12 << 20
WS_CSS = (12 << 20) + (64 << 10)
WS_CSF = (12 << 20) + (128 << 10)
WS_E = 13 << 20
WS_FL = (13 << 20) + (512 << 10)
WS_TS = 14 << 20
WS_SIZE = 16 << 20
TSTRIDE = 176 * 1024
SLOT = 32768
HALF = 65536
MISC = 131072
L_RS = MISC
L_TOTZ = MISC + 512
L_TAB = MISC + 2304
L_WAUG = MISC + 6400
L_CSC = MISC + 16384
L_TR = MISC + 16384
OOB = 0x40000000
LOG2E = 0x3fb8aa3b
NLOG2E = 0xbfb8aa3b
INV2PI = 0x3e22f983
SPIN = 100000
WROW = 3584
WCH = 64 * WROW

sCSC, sX, sW1, sW3, sWS, sSB, sDBG = 4, 8, 12, 16, 20, 24, 28
sw, sR, sC, sOff, sNonce, sTp, sCp, sU, sG, sRho = 32, 33, 34, 35, 36, 37, 38, 39, 40, 41
sXo, sSo, sFo, sKa, sKb, sKc, sTmp, sTmp2, sTmp3 = 42, 43, 44, 45, 46, 47, 48, 49, 50
sW12, sW11, sW13, sTg0, sHF = 51, 52, 53, 54, 55
sMhi, sModd, sBad, sMsel = 56, 58, 60, 62
sSpin = 3
sGa, sGb = 96, 97
kX, kLre, kLim, kBre, kBim, kCre, kCim, kLdt = 64, 66, 68, 70, 72, 74, 76, 78
kDk, kBx, kW1, kW3, kW2, kOut, kDbg, kWs = 80, 82, 84, 86, 88, 90, 92, 94
TSPOOL = [98, 82, 0]
sSo2 = 101
sFlP = 100
sW2, sCRE, sCIM, sOUT = 64, 68, 84, 92
sBE, sBY, sFlC, sXb, sSb, sDko, sRowW, sCrow, sOb = 72, 73, 74, 75, 76, 77, 78, 79, 88
aS, aG0, aU0, aG1, aU1, WF = 0, 32, 64, 96, 128, 160
vW, vA0, vA1, vB1, vPl = 176, 180, 181, 182, 183
vXA, vSS, vG, vL, vHB, vCA = 184, 188, 192, 193, 194, 195
vDX, vDF, vDS = 196, 200, 204
vXaug, vNRS, vK2, vSA = 206, 214, 216, 218
vT = 222
vNon, vPo, vTS, vDUM = 252, 253, 254, 255
vCh, vTg, vRs, vTo, vTw, vTr, vEo, vFl = 222, 223, 224, 225, 226, 227, 228, 229
vPc, vPC, vH = 230, 234, 238
vC, vY = 196, 184
ACCO, ACCY = 128, 192
TRANS = ('v_exp_f32','v_log_f32','v_rcp_f32','v_rsq_f32','v_sqrt_f32','v_sin_f32','v_cos_f32')

VOP3 = ('v_fma_f32', 'v_lshl_add_u32', 'v_bfe_u32', 'v_cvt_pk_bf16_f32', 'v_mul_lo_u32', 'v_add3_u32', 'v_lshl_or_b32', 'v_and_or_b32', 'v_writelane_b32', 'v_mul_u32_u24')
def cost(txt):
    mn = txt.split()[0]
    if mn in TRANS or 'permlane' in mn: return 8
    if mn.startswith('v_mfma'): return 8
    if mn.startswith('v_pk_'): return 20
    if mn in VOP3 or (mn.startswith('v_cndmask') and 's[' in txt) or (mn.startswith('v_cmp') and ' s[' in txt[:30]) or '0x' in txt and mn.startswith('v_') or (mn.startswith('v_') and ' -v' in txt): return 5
    return 4

class Atom:
    def __init__(s, items):
        s.items = items; s.cost = sum(icost(x) for x in items)
class Fn:
    def __init__(s, f, c): s.f = f; s.cost = c
def icost(x):
    if isinstance(x, (Atom, Fn)): return x.cost
    return cost(x[0] if isinstance(x, tuple) else x)
def isctl(x, k): return isinstance(x, tuple) and x[0] == k

def cmac(d, a, b, c):
    if d == c:
        return [f'v_fmac_f32 v{d}, v{a}, v{b}', f'v_fmac_f32 v{d+1}, v{a}, v{b+1}',
                f'v_fma_f32 v{d}, -v{a+1}, v{b+1}, v{d}', f'v_fmac_f32 v{d+1}, v{a+1}, v{b}']
    return [f'v_fma_f32 v{d}, v{a}, v{b}, v{c}', f'v_fma_f32 v{d+1}, v{a}, v{b+1}, v{c+1}',
            f'v_fma_f32 v{d}, -v{a+1}, v{b+1}, v{d}', f'v_fmac_f32 v{d+1}, v{a+1}, v{b}']
def zipl(a, b):
    out = []; i = j = 0
    while i < len(a) or j < len(b):
        if j >= len(b) or (i < len(a) and i * len(b) <= j * len(a)): out.append(a[i]); i += 1
        else: out.append(b[j]); j += 1
    return out

DEF_SCHED = [['W3', 'B2', 'B3'], ['W4'], ['pL', 'W5'], ['W6', 'cL', 'B4', 'B5', 'B6'], ['pY', 'W7'], ['W8', 'cY', 'B7', 'B8'], ['W9', 'B9'], ['W10', 'B10'], [], [], []]
SCHED3 = [['W3', 'B2', 'B3'], ['fY', 'W4'], ['fL', 'pY', 'W5'], ['W6', 'cY', 'B4', 'B5', 'pL'], ['W7', 'cL', 'B6', 'B7'], ['W8', 'B8'], ['W9', 'B9'], ['W10', 'B10'], [], [], []]
S4 = [['W3', 'B2'], ['fL', 'pY', 'W4', 'B3', 'cY', 'h4.5.9.10'], ['W5', 'B4'], ['pL', 'W6', 'B5', 'cL', 'h6.7.8'], ['W7', 'B6'], ['W8', 'B7'], ['W9', 'B8'], ['W10', 'B9'], ['B10'], [], []]
S5 = [['W3', 'B2', 'B3'], ['fL', 'pY', 'W4', 'cY', 'h4.5.9.10'], ['W5', 'B4'], ['pL', 'W6', 'B5', 'cL', 'h6.7.8'], ['W7', 'B6'], ['W8', 'B7'], ['W9', 'B8'], ['W10', 'B9'], ['B10'], [], []]
S6 = [['W3', 'B2', 'B3'], ['fL', 'pY', 'W4'], ['cY', 'h4.5.9.10', 'W5', 'B4', 'pL'], ['W6', 'B5', 'cL', 'h6.7.8'], ['W7', 'B6'], ['W8', 'B7'], ['W9', 'B8'], ['W10', 'B9'], ['B10'], [], []]
S7 = [['W3', 'B2', 'B3'], ['fL', 'pY', 'W4'], ['cY', 'B4', 'B5', 'W5'], ['pL', 'W6'], ['cL', 'B6', 'B7', 'W7'], ['W8', 'B8'], ['W9', 'B9'], ['W10', 'B10'], [], [], []]
S8 = [['W3', 'B2'], ['pY', 'W4', 'B3', 'cY', 'h4.5.9.10'], ['fL', 'W5', 'B4'], ['W6', 'B5', 'pL'], ['cL', 'h6.7.8', 'W7', 'B6'], ['W8', 'B7'], ['W9', 'B8'], ['W10', 'B9'], ['B10'], [], []]
S9 = [['W3', 'B2'], ['pY', 'W4', 'B3', 'cY', 'h4.5.9.10', 'fL'], ['W5', 'B4'], ['W6', 'pL', 'B5'], ['cL', 'h6.7.8', 'W7', 'B6'], ['W8', 'B7'], ['W9', 'B8'], ['W10', 'B9'], ['B10'], [], []]
T2 = [('o', 0), ('o', 2), ('o', 4), ('o', 6), ('y', 0), ('o', 1), ('o', 3), ('o', 5), ('y', 1), ('y', 2), ('y', 3)]
U1 = [['W3', 'B2'], ['fL', 'pY', 'W4', 'B3', 'cY', 'h4.8.9.10'], ['W5', 'B4'], ['pL', 'W6', 'cL', 'h6.7', 'B5'], ['W7', 'B6'], ['W8', 'B7'], ['W9', 'B8'], ['W10', 'B9'], ['B10'], [], []]
U2 = [['W3', 'B2'], ['pY', 'W4', 'B3', 'cY', 'h4.8.9.10', 'fL'], ['W5', 'B4'], ['W6', 'pL', 'B4x'], ['cL', 'h6.7', 'B5', 'W7', 'B6'], ['W8', 'B7'], ['W9', 'B8'], ['W10', 'B9'], ['B10'], [], []]
U2[3].remove('B4x')
U3 = [['W3', 'B2', 'B3'], ['fL', 'pY', 'W4', 'cY', 'B4'], ['W5', 'pL'], ['W6', 'cL', 'B5', 'B6'], ['W7', 'B7'], ['W8', 'B8'], ['W9', 'B9'], ['W10', 'B10'], [], [], []]
T3 = [('o', 0), ('o', 2), ('o', 4), ('o', 6), ('y', 0), ('y', 1), ('y', 2), ('y', 3), ('o', 1), ('o', 3), ('o', 5)]
V1 = [['W3', 'B2'], ['pY', 'W4', 'B3', 'cY', 'h4.5.6.7'], ['fL', 'W5', 'B4'], ['W6', 'B5'], ['W7', 'B6'], ['W8', 'B7', 'pL'], ['cL', 'h8.9.10', 'W9', 'B8'], ['W10', 'B9'], ['B10'], [], []]
V2 = [['W3', 'B2'], ['pY', 'W4', 'B3', 'cY', 'h4.5.6.7'], ['fL', 'W5', 'B4'], ['W6', 'B5'], ['W7', 'B6'], ['W8', 'pL', 'B7'], ['cL', 'h8.9.10', 'W9', 'B8'], ['W10', 'B9'], ['B10'], [], []]
V3 = [['W3', 'B2'], ['pY', 'W4', 'B3', 'cY', 'h4.5.6.7'], ['fL', 'W5', 'B4'], ['W6', 'B5'], ['W7', 'B6'], ['pL', 'W8', 'B7'], ['cL', 'h8.9.10', 'W9', 'B8'], ['W10', 'B9'], ['B10'], [], []]
V4 = [['W3', 'B2'], ['fL', 'pY', 'W4', 'B3', 'cY', 'h4.5.6.7'], ['W5', 'B4'], ['W6', 'B5'], ['W7', 'B6', 'pL'], ['W8', 'B7', 'cL', 'h8.9.10'], ['W9', 'B8'], ['W10', 'B9'], ['B10'], [], []]
V5 = [['W3', 'B2'], ['pY', 'W4', 'B3', 'cY', 'h4.5.6.7'], ['fL', 'W5', 'B4'], ['W6', 'B5'], ['W7', 'B6'], ['W8', 'B7'], ['pL', 'W9'], ['cL', 'h8.9.10', 'B8', 'W10', 'B9'], ['B10'], [], []]
V6 = [['W3', 'B2'], ['pY', 'W4', 'B3', 'cY', 'h4.5.6.7'], ['fL', 'W5', 'B4'], ['W6', 'B5'], ['W7', 'B6'], ['pL', 'W8', 'B7'], ['cL', 'h8.9.10', 'B8', 'W9'], ['W10', 'B9'], ['B10'], [], []]
V7 = [['W3', 'B2'], ['pY', 'W4', 'B3', 'cY', 'h4.5.6.7'], ['fL', 'W5', 'B4'], ['W6', 'B5'], ['W7', 'B6'], ['pL', 'W8', 'B7'], ['cL', 'W9', 'B8'], ['W10', 'B9'], ['B10'], [], []]
V8 = [['W3', 'B2'], ['pY', 'W4', 'B3', 'cY', 'h4.5.6.7', 'fL'], ['W5', 'B4'], ['W6', 'B5'], ['W7', 'B6'], ['pL', 'W8', 'B7'], ['cL', 'h8.9.10', 'W9', 'B8'], ['W10', 'B9'], ['B10'], [], []]
V9 = [['W3', 'B2'], ['pY', 'W4', 'B3', 'cY', 'h4.5.6.7'], ['W5', 'B4', 'fL'], ['W6', 'B5'], ['W7', 'B6'], ['W8', 'B7'], ['pL', 'W9', 'cL', 'h8.9.10', 'B8'], ['W10', 'B9'], ['B10'], [], []]
X1 = [['W3', 'B2'], ['pY', 'W4', 'B3', 'cY', 'h4.5.6.7'], ['W5', 'B4'], ['fL', 'W6', 'B5'], ['W7', 'B6'], ['W8', 'B7'], ['pL', 'W9', 'cL', 'B8'], ['W10', 'B9'], ['B10'], [], []]
X2 = [['W3', 'B2'], ['pY', 'W4', 'B3', 'cY', 'h4.5.6.7'], ['W5', 'B4', 'fL'], ['W6', 'B5'], ['W7', 'B6'], ['W8', 'B7', 'pL'], ['W9', 'cL', 'B8'], ['W10', 'B9'], ['B10'], [], []]
X3 = [['W3', 'B2'], ['pY', 'W4', 'B3', 'cY', 'h4.5.6.7'], ['W5', 'B4'], ['fL', 'W6', 'B5'], ['W7', 'B6'], ['W8', 'B7'], ['pL', 'W9'], ['cL', 'B8', 'W10', 'B9'], ['B10'], [], []]
X4 = [['W3', 'B2'], ['pY', 'W4', 'B3', 'cY'], ['fL', 'W5', 'B4'], ['W6', 'B5'], ['W7', 'B6'], ['pL', 'W8', 'B7'], ['cL', 'W9', 'B8'], ['W10', 'B9'], ['B10'], [], []]
X5 = [['W3', 'B2'], ['pY', 'W4', 'B3', 'cY'], ['W5', 'B4'], ['fL', 'W6', 'B5'], ['W7', 'B6'], ['W8', 'B7'], ['pL', 'W9', 'cL', 'B8'], ['W10', 'B9'], ['B10'], [], []]
X6 = [['W3', 'B2'], ['pY', 'W4', 'B3', 'cY'], ['W5', 'B4'], ['fL', 'W6', 'B5'], ['W7', 'B6'], ['W8', 'B7'], ['pL', 'W9'], ['cL', 'B8', 'W10', 'B9'], ['B10'], [], []]
X7 = [['W3', 'B2'], ['pY', 'W4', 'B3'], ['cY', 'fL', 'W5', 'B4'], ['W6', 'B5'], ['W7', 'B6'], ['pL', 'W8', 'B7'], ['cL', 'W9', 'B8'], ['W10', 'B9'], ['B10'], [], []]
X8 = [['W3', 'B2'], ['pY', 'W4', 'B3'], ['cY', 'B4', 'W5'], ['fL', 'W6', 'B5'], ['W7', 'B6'], ['W8', 'B7', 'pL'], ['W9', 'cL', 'B8'], ['W10', 'B9'], ['B10'], [], []]
X9 = [['W3', 'B2', 'B3'], ['pY', 'W4'], ['cY', 'fL', 'B4', 'W5', 'B5'], ['W6', 'B6'], ['W7', 'B7'], ['pL', 'W8'], ['cL', 'W9', 'B8'], ['W10', 'B9'], ['B10'], [], []]
T5 = [('o', 0), ('o', 2), ('o', 4), ('y', 0), ('y', 1), ('y', 2), ('y', 3), ('o', 6), ('o', 1), ('o', 3), ('o', 5)]
Y1 = [['W3', 'B2'], ['pY', 'W4', 'cY', 'B3'], ['W5', 'B4'], ['fL', 'W6', 'B5'], ['W7', 'B6'], ['W8', 'B7'], ['pL', 'W9', 'cL', 'B8'], ['B9'], ['W10', 'B10'], [], []]
Y2 = [['W3', 'B2'], ['pY', 'W4', 'cY', 'B3'], ['W5', 'B4'], ['fL', 'W6', 'B5'], ['W7', 'B6'], ['W8', 'B7'], ['pL', 'W9', 'cL', 'B8'], ['B9', 'B10'], ['W10'], [], []]
Y3 = [['W3', 'B2'], ['pY', 'W4', 'cY', 'B3'], ['fL', 'W5', 'B4'], ['W6', 'B5'], ['W7', 'B6'], ['pL', 'W8', 'B7'], ['cL', 'B8', 'W9'], ['B9'], ['W10', 'B10'], [], []]
Y4 = [['W3', 'B2'], ['pY', 'W4', 'cY', 'B3'], ['W5', 'B4'], ['fL', 'W6', 'B5'], ['W7', 'B6'], ['W8', 'B7'], ['pL', 'W9'], ['cL', 'B8', 'B9'], ['W10', 'B10'], [], []]
Y5 = [['W3', 'B2', 'pY'], ['W4', 'cY', 'B3'], ['W5', 'B4'], ['fL', 'W6', 'B5'], ['W7', 'B6'], ['W8', 'B7', 'pL'], ['W9', 'cL', 'B8'], ['B9'], ['W10', 'B10'], [], []]
Y6 = [['W3', 'B2', 'pY'], ['W4', 'cY', 'B3'], ['W5', 'B4', 'fL'], ['W6', 'B5'], ['W7', 'B6'], ['W8', 'B7', 'pL'], ['W9', 'cL', 'B8'], ['B9'], ['W10', 'B10'], [], []]
Y7 = [['W3', 'B2', 'pY'], ['cY', 'B3', 'W4'], ['W5', 'B4'], ['fL', 'W6', 'B5'], ['W7', 'B6'], ['W8', 'B7', 'pL'], ['W9', 'cL', 'B8'], ['B9'], ['W10', 'B10'], [], []]
Y8 = [['W3', 'B2', 'pY'], ['W4', 'cY', 'B3'], ['W5', 'B4'], ['fL', 'W6', 'B5'], ['W7', 'B6'], ['W8', 'B7'], ['pL', 'W9'], ['cL', 'B8', 'B9'], ['W10', 'B10'], [], []]
Y9 = [['W3', 'B2', 'pY'], ['W4', 'cY', 'B3'], ['W5', 'B4'], ['W6', 'B5', 'fL'], ['W7', 'B6'], ['W8', 'B7'], ['W9', 'pL'], ['cL', 'B8', 'B9'], ['W10', 'B10'], [], []]
Z1 = Y5[:7] + [['B9', 'B10'], ['W10'], [], []]
Z2 = Y5[:6] + [['W9', 'cL', 'B8', 'B9'], ['B10'], ['W10'], [], []]
Z3 = [['W3', 'B2', 'pY'], ['W4', 'cY', 'B3'], ['W5', 'B4'], ['W6', 'B5'], ['fL', 'W7', 'B6'], ['W8', 'B7'], ['W9', 'pL'], ['cL', 'B8', 'B9'], ['W10', 'B10'], [], []]
Z4 = [['W3', 'B2', 'pY'], ['W4', 'cY', 'B3'], ['W5', 'B4'], ['W6', 'fL', 'B5'], ['W7', 'B6'], ['W8', 'B7', 'pL'], ['W9', 'cL', 'B8'], ['B9'], ['W10', 'B10'], [], []]
Z5 = [['W3', 'B2', 'pY'], ['W4', 'cY', 'B3'], ['W5', 'fL', 'B4'], ['W6', 'B5'], ['W7', 'B6'], ['W8', 'B7', 'pL'], ['W9', 'cL', 'B8'], ['B9'], ['W10', 'B10'], [], []]
Z6 = [['W3', 'B2', 'pY'], ['W4', 'cY', 'B3'], ['fL', 'W5', 'B4'], ['W6', 'B5'], ['W7', 'B6'], ['W8', 'B7', 'pL'], ['W9', 'cL', 'B8'], ['B9'], ['W10', 'B10'], [], []]
def addit(S, q, items, front=True):
    S = [list(x) for x in S]
    S[q] = (list(items) + S[q]) if front else (S[q] + list(items))
    return S
class Gen:
    def __init__(s, typ, e, ts=False, cfg=None):
        s.typ = typ; s.e = e; s.ts = ts
        s.cfg = dict(gA_issue=5, gB_issue=6, gA_proc=7, gB_proc=7, gBbar=8, offm='zero', fcs=3, budA=30, budB=24, budC=24, budD=24, pf=3, p2=True, budP=40, budP0=64, slack=1,
                     pE=10, cE=16, s3b=14, flEb=12, sched=DEF_SCHED, totb=12)
        if cfg: s.cfg.update(cfg)
        s.fill = deque(); s.events = set(); s.half = {}
        s.slow = []
        s.pacc = 0.5
        s.nlab = 0
        s.P = f'FZ{typ}'
        s.pend = []
        s.names = s.cfg.get('stamps', [])
        if s.cfg.get('sc3'):
            d = dict(types=[('o', 0), ('o', 2), ('o', 4), ('o', 6), ('y', 0), ('y', 1), ('o', 1), ('o', 3), ('o', 5), ('y', 2), ('y', 3)],
                     sched=SCHED3, totk=20, flEk=(1, 28), s3ik=None, s3pk=(1, 26), g1pos=2, pE=6, cE=14, nEB=2, tq=1)
            for k, v in d.items():
                if not cfg or k not in cfg: s.cfg[k] = v
        s.TYPES = s.cfg.get('types', Gen.TYPES)
    def I(s, t, tag=None): s.e.I(t, tag)
    def lab(s, n):
        s.nlab += 1; return f'{s.P}_{n}{s.nlab}'
    def stamp(s, name):
        if not s.ts or name not in s.names: return
        k = s.names.index(name) + 1
        used = [p[0] for p in s.pend]
        free = [r for r in TSPOOL if r not in used]
        if not free:
            s.flush_stamps(); free = list(TSPOOL)
        r = free[0]
        s.e.raw(f'{s.ts} s[{r}:{r+1}]')
        s.pend.append((r, k))
    def fstamp(s, name):
        return Fn(lambda: s.stamp(name), 0)
    def flush_stamps(s):
        if not s.pend: return
        s.e.force_wait('lgkmcnt(0)')
        for r, k in s.pend: s.I(f'v_writelane_b32 v{vTS}, s{r}, {k}')
        s.pend = []
    def final_stamps(s):
        if not s.ts: return
        s.flush_stamps()
        I = s.I
        I(f's_lshl_b32 s{sTmp}, s2, 2'); I(f's_add_u32 s{sTmp}, s{sTmp}, s{sw}'); I(f's_lshl_b32 s{sTmp}, s{sTmp}, 8'); I(f's_add_u32 s{sTmp}, s{sTmp}, {WS_TS}')
        I(f'v_lshlrev_b32 v{vDUM}, 2, v{vL}')
        I(f'buffer_store_dword v{vTS}, v{vDUM}, s[{sWS}:{sWS+3}], s{sTmp} offen')
    def add(s, items):
        for x in items: s.fill.append(x)
    def addfront(s, items):
        for x in reversed(items): s.fill.appendleft(x)
    def gate(s, ev): return ('gate', ev)
    def mark(s, ev): return ('mark', ev)
    def emit1(s, x):
        if isinstance(x, Atom):
            for y in x.items: s.emit1(y)
        elif isinstance(x, Fn): x.f()
        elif isinstance(x, tuple): s.I(x[0], x[1])
        else: s.I(x)
    def run_fill(s, budget):
        while s.fill:
            x = s.fill[0]
            if isctl(x, 'gate'):
                if x[1] in s.events: s.fill.popleft(); continue
                return
            if isctl(x, 'mark'):
                s.fill.popleft(); s.events.add(x[1]); continue
            if isctl(x, 'skip'):
                if budget >= 12: s.fill.popleft()
                return
            c = icost(x)
            if c > budget + s.cfg['slack'] and not (c > 20 and budget >= 12): return
            n0 = s.e.n
            s.fill.popleft(); s.emit1(x); budget -= max(c, 4 * (s.e.n - n0))
    def gap(s, n0, G):
        s.run_fill(G - 4 * (s.e.n - n0))
    def pace(s, dma, left):
        if not dma: s.pacc = s.cfg.get('pacc0', 0.5); return
        s.pacc += len(dma) / max(left, 1)
        n = int(s.pacc + 1e-9); s.pacc -= n
        for _ in range(min(n, len(dma))): dma.popleft()()
        if not dma: s.pacc = s.cfg.get('pacc0', 0.5)
    def atom(s, lst): return Atom(lst)
    def capture(s, fn):
        rec = []
        old = s.I
        s.I = lambda t, tag=None: rec.append((t, tag) if tag else t)
        fn()
        s.I = old
        out = []; i = 0
        txt = lambda x: x[0] if isinstance(x, tuple) else x
        while i < len(rec):
            t = txt(rec[i])
            if t.startswith(('s_cmp', 's_bitcmp')):
                j = i + 1
                while j < len(rec) and txt(rec[j]).startswith('s_cselect'): j += 1
                out.append(Atom(rec[i:j])); i = j
            elif t.startswith('v_cmp') and ' vcc,' in t:
                j = i + 1
                while j < len(rec) and txt(rec[j]).startswith('v_cndmask') and txt(rec[j]).endswith('vcc'): j += 1
                assert j > i + 1, t
                out.append(Atom(rec[i:j])); i = j
            else: out.append(rec[i]); i += 1
        return out
    def until(s, ev):
        while ev not in s.events:
            assert s.fill, ev
            x = s.fill[0]
            if isctl(x, 'gate'): assert x[1] in s.events, (ev, x)
            s.run_fill(64)
    def drain(s):
        while s.fill:
            x = s.fill[0]
            if isctl(x, 'gate'): assert x[1] in s.events, x
            s.run_fill(10**9)
    def addr(s, reg, slot):
        h = slot >> 1
        if s.half.get(reg, 0) != h:
            s.I(f'v_add_u32 v{reg}, {HALF}, v{reg}' if h else f'v_subrev_u32 v{reg}, {HALF}, v{reg}')
            s.half[reg] = h
        return (slot & 1) * SLOT
    def barrier(s, name, wait_tag=None):
        e = s.e
        s.stamp('pre' + name)
        if wait_tag: e.wait_tag(wait_tag)
        e.barrier()
        s.events.add(name)
        s.stamp(name)
        s.flush_stamps()
    def rd_x(s, st, ks, t):
        a = ((4 * st + ks) * 2 + t) * 4
        def f():
            o = s.addr(vXA + ks, st & 3)
            s.I(f'ds_read_b128 a[{a}:{a+3}], v{vXA+ks} offset:{o+4096*t}')
        return [f]
    def rd_S(s, st, ks, dst):
        def f():
            o = s.addr(vSS + ks, st & 3)
            s.I(f'ds_read_b128 v[{dst}:{dst+3}], v{vSS+ks} offset:{o}')
        return [f]
    def rd_W(s, slot, off, dst):
        def f1():
            o = s.addr(vG, slot)
            s.I(f'ds_read_b64_tr_b16 v[{dst}:{dst+1}], v{vG} offset:{o+off}')
        def f2():
            o = s.addr(vG, slot)
            s.I(f'ds_read_b64_tr_b16 v[{dst+2}:{dst+3}], v{vG} offset:{o+off+512}')
        return [f1, f2]
    def mkdma(s, ops, tag):
        out = []
        for pre, ins in ops:
            def f(pre=pre, ins=ins):
                for p in pre: s.I(p)
                s.I(ins, tag)
            out.append(f)
        return out
    def dma_list(s, st):
        ops = []
        slot = (st & 3) * SLOT
        if st < 8:
            pre = [f's_add_u32 s{sKa}, s{sOff}, {st}', f's_and_b32 s{sKa}, s{sKa}, 7', f's_lshl_b32 s{sKb}, s{sKa}, 7',
                   f's_add_u32 s{sKc}, s{sXo}, s{sKb}', f's_add_u32 m0, s{sW12}, {slot}']
            for A in range(4):
                ops.append((pre if A == 0 else [], f'buffer_load_dwordx4 v{vDX+A}, s[{sX}:{sX+3}], s{sKc} offen offset:{1024*A} lds'))
            pre = [f's_add_u32 s{sKc}, s{sSo}, s{sKb}', f's_add_u32 m0, s{sW11}, {slot+16384}']
            for i in range(2):
                ops.append((pre if i == 0 else [], f'buffer_load_dwordx4 v{vDS+i}, s[{sSB}:{sSB+3}], s{sKc} offen offset:{1024*i} lds'))
            pre = [f's_mul_i32 s{sKc}, s{sKa}, {WCH}', f's_add_u32 s{sKc}, s{sKc}, s{sFo}', f's_add_u32 m0, s{sW11}, {slot+24576}']
            for i in range(2):
                ops.append((pre if i == 0 else [], f'buffer_load_dwordx4 v{vDF+i}, s[{sW1}:{sW1+3}], s{sKc} offen offset:{1024*i} lds'))
        else:
            p = (st - 8) >> 1; vs = st & 1
            srd = sW1 if p == 1 else sW3
            line = 128 if p >= 1 else 0
            pre = [f's_add_u32 s{sKa}, s{sOff}, s{sw}', f's_add_u32 s{sKa}, s{sKa}, {4*vs}', f's_and_b32 s{sKa}, s{sKa}, 7',
                   f's_mul_i32 s{sKc}, s{sKa}, {WCH}', f's_add_u32 s{sKc}, s{sKc}, s{sSo2}']
            if line: pre.append(f's_add_u32 s{sKc}, s{sKc}, {line}')
            pre.append(f's_add_u32 m0, s{sW13}, {slot}')
            for i in range(4):
                ops.append((pre if i == 0 else [], f'buffer_load_dwordx4 v{vDF+i}, s[{srd}:{srd+3}], s{sKc} offen offset:{1024*i} lds'))
            pre = [f's_add_u32 s{sKc}, s{sKc}, {32*WROW}', f's_add_u32 m0, s{sW13}, {slot+4096}']
            for i in range(4):
                ops.append((pre if i == 0 else [], f'buffer_load_dwordx4 v{vDF+i}, s[{srd}:{srd+3}], s{sKc} offen offset:{1024*i} lds'))
        return s.mkdma(ops, f'D{st}')
    def dma_csc(s):
        ops = []
        nl = 2 if s.typ == 'H' else 1
        for X in range(nl):
            pre = [f's_mul_i32 s{sKc}, s{sRho}, {WCH}', f's_add_u32 s{sKc}, s{sKc}, s{sFo}']
            if X: pre.append(f's_add_u32 s{sKc}, s{sKc}, 128')
            pre.append(f's_add_u32 m0, s{sW11}, {L_CSC + X*8192}')
            for i in range(2):
                ops.append((pre if i == 0 else [], f'buffer_load_dwordx4 v{vDF+i}, s[{sCSC}:{sCSC+3}], s{sKc} offen offset:{1024*i} lds'))
        return s.mkdma(ops, 'CSC')

    XR, SR, PR, NP = 96, 104, 108, 114
    SV = 152
    def inter(s, vms, alus, per):
        alus = deque(alus)
        for f in vms:
            f()
            bud = per
            while alus and bud > 0:
                x = alus.popleft(); n0 = s.e.n; s.emit1(x); bud -= max(icost(x), 4 * (s.e.n - n0))
        while alus: s.emit1(alus.popleft())
    def prologue(s):
        e = s.e; I = s.I; typ = s.typ; cfg = s.cfg
        a, b, c, d = 240, 241, 242, 243
        XR, SR, PR, NP = s.XR, s.SR, s.PR, s.NP
        s.stamp('karg')
        I(f's_mov_b64 s[{sX}:{sX+1}], s[{kX}:{kX+1}]')
        I(f's_mov_b64 s[{sDBG}:{sDBG+1}], s[{kDbg}:{kDbg+1}]')
        Ln = s.lab('nn')
        I(f's_or_b32 s{sTmp2}, s2, s{sw}'); I(f's_cmp_eq_u32 s{sTmp2}, 0'); e.raw(f's_cbranch_scc0 {Ln}')
        I(f's_or_b32 s{sTmp}, s{sSB}, 1')
        I(f'v_mov_b32 v{a}, s{sTmp}'); I(f'v_lshlrev_b32 v{b}, 10, v{vL}')
        I(f'buffer_store_dword v{a}, v{b}, s[{sDBG}:{sDBG+3}], 0 offen sc1')
        e.label(Ln)
        I(f'buffer_load_dwordx4 v[{XR}:{XR+3}], v{vHB}, s[{sX}:{sX+3}], s{sGa} offen', 'XR')
        I(f'buffer_load_dwordx4 v[{XR+4}:{XR+7}], v{vHB}, s[{sX}:{sX+3}], s{sGa} offen offset:1024', 'XR')
        I(f's_mov_b64 s[{sW1}:{sW1+1}], s[{kW1}:{kW1+1}]')
        I(f's_cmp_eq_u32 s{sCp}, 0'); I(f's_cselect_b64 s[{sSB}:{sSB+1}], s[{kBre}:{kBre+1}], s[{kBim}:{kBim+1}]')
        I(f's_bitcmp1_b32 s{sR}, 2'); I(f's_cselect_b64 s[{sTmp}:{sTmp+1}], s[{kBim}:{kBim+1}], s[{kBre}:{kBre+1}]')
        I(f'global_load_dwordx4 v[{SR}:{SR+3}], v{SR}, s[{sTmp}:{sTmp+1}]', 'SR')
        for k, src in enumerate((kLre, kLim, kLdt)): I(f'global_load_ushort v{PR+k}, v{PR+3}, s[{src}:{src+1}]', 'PR')
        I(f's_mov_b64 s[{sWS}:{sWS+1}], s[{kWs}:{kWs+1}]')
        I(f's_mov_b64 s[{sW3}:{sW3+1}], s[{kW3}:{kW3+1}]')
        I(f's_and_b32 s{sTmp}, s{sR}, 1'); I(f's_cmp_eq_u32 s{sTmp}, 0'); I(f's_cselect_b64 s[{sCSC}:{sCSC+1}], s[{kW1}:{kW1+1}], s[{kW3}:{kW3+1}]')
        s.stamp('q0')
        pe = s.capture(s.p2_srd) + s.capture(s.p2_early)
        s.inter(s.dma_list(0), pe + s.s_setup(), cfg.get('per0', 56))
        s.stamp('q1')
        I(f's_lshr_b32 s{sGa}, s{sGa}, 7'); I(f's_add_u32 s{sGa}, s{sGa}, {WS_STATS}')
        I(f'v_mov_b32 v{NP+1}, 0')
        def np_():
            I(f'buffer_load_dword v{NP}, v{NP+1}, s[{sDBG}:{sDBG+3}], 0 offen sc1', 'NP')
        e.wait_tag('XR')
        s.stamp('q2')
        st_ = s.capture(s.stats_x); ss_ = s.capture(s.stats_s)
        s.inter([np_] + s.dma_list(1) + s.pf1_list(), st_ + ss_, cfg.get('per1', 56))
        s.stamp('q4')
        s.barrier('B0', 'D0')

    def pf1_list(s):
        m = s.cfg.get('pf1', 0); I = s.I; out = []
        va, vb = 244, 245
        if m & 1:
            def fx():
                I(f'v_lshlrev_b32 v{va}, 3, v{vHB}')
                I(f's_lshl_b32 s{sKa}, s{sR}, 17'); I(f's_lshl_b32 s{sKb}, s{sU}, 15'); I(f's_add_u32 s{sKa}, s{sKa}, s{sKb}')
                I(f's_lshl_b32 s{sKb}, s{sw}, 13'); I(f's_add_u32 s{sKa}, s{sKa}, s{sKb}')
                I(f'buffer_load_dword v{vDUM}, v{va}, s[{sX}:{sX+3}], s{sKa} offen', 'PF')
            out.append(fx)
        if m & 2:
            def fs():
                I(f'v_lshlrev_b32 v{vb}, 3, v{vHB}'); I(f'v_mov_b32 v{va}, {OOB}')
                I(f'v_cndmask_b32 v{vb}, v{vb}, v{va}, s[{sMhi}:{sMhi+1}]')
                I(f's_lshl_b32 s{sKa}, s{sC}, 15'); I(f's_lshl_b32 s{sKb}, s{sRho}, 12'); I(f's_add_u32 s{sKa}, s{sKa}, s{sKb}')
                I(f's_cmp_eq_u32 s{sTp}, 0'); I(f's_cselect_b32 s{sKa}, s{sKa}, {OOB}')
                I(f'buffer_load_dword v{vDUM}, v{vb}, s[{sSB}:{sSB+3}], s{sKa} offen', 'PF')
            out.append(fs)
        if m & 4:
            def fw():
                I(f'v_mul_u32_u24 v{va}, {WROW}, v{vL}')
                I(f's_cmp_eq_u32 s{sCp}, 0'); I(f's_cselect_b64 s[{sBad}:{sBad+1}], s[{sW1}:{sW1+1}], s[{sW3}:{sW3+1}]')
                I(f's_mov_b32 s{sBad+2}, {512*1792*2}'); I(f's_mov_b32 s{sBad+3}, 0x00020000')
                I(f's_mul_i32 s{sKa}, s{sRho}, {WCH}'); I(f's_add_u32 s{sKa}, s{sKa}, s{sSo2}')
                I(f's_add_u32 s{sKb}, s{sKa}, 128')
                if s.typ == 'L': I(f's_mov_b32 s{sKb}, {OOB}')
                I(f's_cmp_eq_u32 s{sTp}, 0'); I(f's_cselect_b32 s{sKa}, s{sKb}, s{sKa}')
                I(f'buffer_load_dword v{vDUM}, v{va}, s[{sBad}:{sBad+3}], s{sKa} offen', 'PF')
            out.append(fw)
        return out
    def pf2_item(s, unit, k):
        I = s.I
        def f():
            I(f'v_lshlrev_b32 v{vPo}, 3, v{vHB}')
            I(f's_mul_i32 s{sKa}, s{sRho}, 3'); I(f's_add_u32 s{sKa}, s{sKa}, s{sU}'); I(f's_lshl_b32 s{sKa}, s{sKa}, 2'); I(f's_add_u32 s{sKa}, s{sKa}, s{sw}')
            if k % 3:
                I(f's_add_u32 s{sKa}, s{sKa}, {32 * (k % 3)}'); I(f's_sub_u32 s{sKb}, s{sKa}, 96'); I(f's_cmp_ge_u32 s{sKa}, 96'); I(f's_cselect_b32 s{sKa}, s{sKb}, s{sKa}')
            if unit in ('r', 'i'):
                I(f's_lshl_b32 s{sKa}, s{sKa}, 13'); srd = sCRE if unit == 'r' else sCIM
            else:
                j = unit
                I(f's_lshr_b32 s{sKb}, s{sKa}, 3'); I(f's_mul_i32 s{sKb}, s{sKb}, {7*65536}'); I(f's_and_b32 s{sKa}, s{sKa}, 7'); I(f's_lshl_b32 s{sKa}, s{sKa}, 13')
                I(f's_add_u32 s{sKa}, s{sKa}, s{sKb}')
                if j: I(f's_add_u32 s{sKa}, s{sKa}, {j*65536}')
                srd = sW2
            I(f'buffer_load_dword v{vDUM}, v{vPo}, s[{srd}:{srd+3}], s{sKa} offen', 'PF')
        return f
    def pfL(s, pos):
        I = s.I; out = []
        va, vb = 100, 101
        for unit in s.cfg.get('pfL', {}).get(pos, ()):
            def f(unit=unit):
                if not getattr(s, 'pfl_init', False):
                    s.pfl_init = True
                    I(f'v_lshlrev_b32 v{va}, 3, v{vHB}')
                    I(f'v_lshrrev_b32 v{vb}, 2, v{vL}'); I(f'v_lshlrev_b32 v{vb}, 10, v{vb}'); I(f'v_and_b32 v{va+2}, 3, v{vL}'); I(f'v_lshl_add_u32 v{vb}, v{va+2}, 8, v{vb}')
                I(f's_lshl_b32 s{sKa}, s{sRho}, 2'); I(f's_add_u32 s{sKa}, s{sKa}, s{sw}')
                if isinstance(unit, str):
                    I(f's_lshl_b32 s{sKa}, s{sKa}, 14')
                    if unit[1] == '1': I(f's_add_u32 s{sKa}, s{sKa}, 128')
                    srd = sCRE if unit[0] == 'r' else sCIM; v = vb
                else:
                    I(f's_lshr_b32 s{sKb}, s{sKa}, 3'); I(f's_mul_i32 s{sKb}, s{sKb}, {7*65536}'); I(f's_and_b32 s{sKa}, s{sKa}, 7'); I(f's_lshl_b32 s{sKa}, s{sKa}, 13')
                    I(f's_add_u32 s{sKa}, s{sKa}, s{sKb}')
                    if unit: I(f's_add_u32 s{sKa}, s{sKa}, {unit*65536}')
                    srd = sW2; v = va
                I(f'buffer_load_dword v{vDUM}, v{v}, s[{srd}:{srd+3}], s{sKa} offen', 'PF')
            out.append(f)
        return out
    def pre_karg(s):
        I = s.I; a = 240
        SR, PR = s.SR, s.PR
        I(f's_lshl_b32 s{sTmp}, s{sR}, 7'); I(f's_lshl_b32 s{sTmp2}, s{sC}, 3'); I(f's_add_u32 s{sTmp}, s{sTmp}, s{sTmp2}')
        I(f's_lshl_b32 s{sTmp2}, s{sw}, 1'); I(f's_add_u32 s{sTmp}, s{sTmp}, s{sTmp2}')
        I(f's_lshl_b32 s{sGa}, s{sTmp}, 10')
        I(f's_lshr_b32 s{sTmp3}, s{sR}, 3'); I(f's_lshl_b32 s{sTmp3}, s{sTmp3}, 4')
        I(f's_and_b32 s{sTmp}, s{sR}, 3'); I(f's_lshl_b32 s{sTmp}, s{sTmp}, 2'); I(f's_add_u32 s{sTmp3}, s{sTmp3}, s{sTmp}')
        I(f's_lshl_b32 s{sTmp}, s{sC}, 5'); I(f's_add_u32 s{sTmp3}, s{sTmp3}, s{sTmp}'); I(f's_add_u32 s{sTmp3}, s{sTmp3}, s{sw}')
        I(f's_lshl_b32 s{sTmp3}, s{sTmp3}, 10'); I(f'v_add_u32 v{SR}, s{sTmp3}, v{vHB}')
        I(f's_lshl_b32 s{sGb}, s{sR}, 2'); I(f's_add_u32 s{sGb}, s{sGb}, s{sw}'); I(f's_lshl_b32 s{sGb}, s{sGb}, 3')
        I(f's_lshl_b32 s{sTmp3}, s{sC}, 9'); I(f's_add_u32 s{sGb}, s{sGb}, s{sTmp3}'); I(f's_add_u32 s{sGb}, s{sGb}, {WS_CSS}')
        I(f'v_and_b32 v{a}, 31, v{vL}'); I(f'v_lshlrev_b32 v{a}, 1, v{a}')
        I(f's_lshl_b32 s{sTmp}, s{sC}, 6'); I(f'v_add_u32 v{PR+3}, s{sTmp}, v{a}')

    def p2_srd(s):
        I = s.I
        for dst, src, n in ((sW2, kW2, 1792*512*2), (sCRE, kCre, 512*512*2), (sCIM, kCim, 512*512*2), (sOUT, kOut, 2048*512*4)):
            I(f's_mov_b64 s[{dst}:{dst+1}], s[{src}:{src+1}]'); I(f's_mov_b32 s{dst+2}, {n}'); I(f's_mov_b32 s{dst+3}, 0x00020000')
    def p2_early(s):
        I = s.I; a, b, c, d = 240, 241, 242, 243
        I(f's_and_b32 s{sTmp}, s2, 7'); I(f's_lshl_b32 s{sTmp}, s{sTmp}, 2'); I(f's_add_u32 s{sTmp}, s{sTmp}, s{sU}')
        I(f's_mul_i32 s{sTmp2}, s{sTmp}, {2*TSTRIDE}')
        I(f's_mul_i32 s{sBE}, s{sw}, 28672'); I(f's_add_u32 s{sBE}, s{sBE}, s{sTmp2}')
        I(f's_lshl_b32 s{sBY}, s{sw}, 14'); I(f's_add_u32 s{sBY}, s{sBY}, s{sTmp2}'); I(f's_add_u32 s{sBY}, s{sBY}, 114688')
        sDt = sRho
        if s.cfg.get('dtx', 0):
            sDt = sTmp3; I(f's_xor_b32 s{sDt}, s{sRho}, {s.cfg["dtx"]}')
        I(f's_mul_i32 s{sRowW}, s{sw}, {7*65536}'); I(f's_lshl_b32 s{sDko}, s{sDt}, 7'); I(f's_add_u32 s{sRowW}, s{sRowW}, s{sDko}')
        I(f's_lshl_b32 s{sCrow}, s{sDt}, 16'); I(f's_lshl_b32 s{sTmp2}, s{sw}, 8'); I(f's_add_u32 s{sCrow}, s{sCrow}, s{sTmp2}')
        I(f's_lshl_b32 s{sFlC}, s{sTmp}, 2'); I(f's_add_u32 s{sFlC}, s{sFlC}, s{sw}'); I(f's_lshl_b32 s{sFlC}, s{sFlC}, 7'); I(f's_add_u32 s{sFlC}, s{sFlC}, {WS_FL + s.cfg.get("floff", 0)}')
        I(f's_lshl_b32 s{sTmp}, s{sTmp}, 6'); I(f's_lshl_b32 s{sTmp2}, s{sw}, 4'); I(f's_add_u32 s{sTmp}, s{sTmp}, s{sTmp2}')
        I(f's_lshl_b32 s{sXb}, s{sTmp}, 10'); I(f's_add_u32 s{sXb}, s{sXb}, s{sDko}')
        I(f's_lshl_b32 s{sOb}, s{sXb}, 1')
        I(f's_lshl_b32 s{sSb}, s{sTmp}, 3'); I(f's_add_u32 s{sSb}, s{sSb}, {WS_STATS}')
        I(f's_lshl_b32 s{sFlP}, s{sR}, 1'); I(f's_add_u32 s{sFlP}, s{sFlP}, s{sTp}'); I(f's_lshl_b32 s{sFlP}, s{sFlP}, 2'); I(f's_add_u32 s{sFlP}, s{sFlP}, s{sG}')
        I(f's_lshl_b32 s{sFlP}, s{sFlP}, 7'); I(f's_lshl_b32 s{sTmp}, s{sU}, 1'); I(f's_add_u32 s{sTmp}, s{sTmp}, s{sCp}'); I(f's_lshl_b32 s{sTmp}, s{sTmp}, 2')
        I(f's_add_u32 s{sFlP}, s{sFlP}, s{sTmp}'); I(f's_add_u32 s{sFlP}, s{sFlP}, {WS_FL + s.cfg.get("floff", 0)}')
        I(f'v_bfe_u32 v{a}, v{vL}, 4, 1'); I(f'v_lshlrev_b32 v{a}, 2, v{a}'); I(f'v_and_b32 v{b}, 7, v{vL}'); I(f'v_xor_b32 v{a}, v{a}, v{b}')
        I(f'v_lshrrev_b32 v{c}, 3, v{vL}'); I(f'v_lshlrev_b32 v{c}, 10, v{c}'); I(f'v_lshl_add_u32 v{vW}, v{a}, 4, v{c}')
        for i in range(1, 4): I(f'v_add_u32 v{vW+i}, {7168*i}, v{vW}')
        I(f'v_lshrrev_b32 v{a}, 5, v{vL}'); I(f'v_lshlrev_b32 v{a}, 2, v{a}'); I(f'v_bfe_u32 v{c}, v{vL}, 2, 2'); I(f'v_add_u32 v{a}, v{a}, v{c}')
        I(f'v_lshlrev_b32 v{a}, 7, v{a}'); I(f'v_lshrrev_b32 v{c}, 1, v{c}'); I(f'v_lshlrev_b32 v{c}, 6, v{c}'); I(f'v_add_u32 v{a}, v{a}, v{c}')
        I(f'v_bfe_u32 v{c}, v{vL}, 4, 1'); I(f'v_lshl_add_u32 v{a}, v{c}, 5, v{a}'); I(f'v_and_b32 v{c}, 3, v{vL}'); I(f'v_lshl_add_u32 v{a}, v{c}, 3, v{a}')
        I(f'v_add_u32 v{vA0}, s{sW13}, v{a}'); I(f'v_xor_b32 v{vA1}, 64, v{vA0}')
        I(f'v_add_u32 v{vB1}, {TSTRIDE}, v{vHB}')
        I(f'v_and_b32 v{vPl}, 31, v{vL}'); I(f'v_lshlrev_b32 v{vPl}, 2, v{vPl}')

    def lds_addrs(s):
        I = s.I; a, b, c, d = 240, 241, 242, 243
        I(f'v_and_b32 v{a}, 31, v{vL}'); I(f'v_bfe_u32 v{b}, v{vL}, 1, 3'); I(f'v_lshrrev_b32 v{c}, 5, v{vL}'); I(f'v_xor_b32 v{b}, v{b}, v{c}')
        I(f'v_lshlrev_b32 v{b}, 4, v{b}')
        I(f'v_lshl_add_u32 v{d}, v{a}, 7, v{b}')
        I(f's_lshl_b32 s{sTmp}, s{sTp}, 13')
        I(f'v_add_u32 v{vXA}, s{sTmp}, v{d}')
        for k in range(1, 4): I(f'v_xor_b32 v{vXA+k}, {32*k}, v{vXA}')
        I(f'v_lshrrev_b32 v{c}, 3, v{a}'); I(f'v_lshlrev_b32 v{c}, 11, v{c}'); I(f'v_and_b32 v{d}, 7, v{a}'); I(f'v_lshl_add_u32 v{c}, v{d}, 7, v{c}')
        I(f'v_add_u32 v{c}, v{c}, v{b}'); I(f's_lshl_b32 s{sTmp}, s{sCp}, 10'); I(f's_add_u32 s{sTmp}, s{sTmp}, 16384')
        I(f'v_add_u32 v{vSS}, s{sTmp}, v{c}')
        for k in range(1, 4): I(f'v_xor_b32 v{vSS+k}, {32*k}, v{vSS}')
        I(f'v_lshrrev_b32 v{b}, 5, v{vL}'); I(f'v_bfe_u32 v{c}, v{vL}, 2, 2'); I(f'v_lshl_add_u32 v{b}, v{b}, 3, v{c}')
        I(f'v_and_b32 v{d}, 3, v{vL}'); I(f'v_lshlrev_b32 v{d}, 3, v{d}'); I(f'v_lshl_add_u32 v{d}, v{b}, 7, v{d}')
        I(f'v_bfe_u32 v{a}, v{vL}, 4, 1'); I(f'v_lshl_add_u32 v{d}, v{a}, 5, v{d}')
        I(f'v_lshrrev_b32 v{c}, 1, v{c}'); I(f'v_lshlrev_b32 v{c}, 6, v{c}'); I(f'v_add_u32 v{d}, v{d}, v{c}')
        I(f's_lshl_b32 s{sTmp}, s{sCp}, 6'); I(f'v_xor_b32 v{vG}, s{sTmp}, v{d}')
        I(f's_lshl_b32 s{sTmp}, s{sTp}, 6'); I(f'v_xor_b32 v{vCA}, s{sTmp}, v{d}')
        I(f's_lshl_b32 s{sTmp}, s{sCp}, 13'); I(f's_cmp_eq_u32 s{sU}, 3'); I(f's_cselect_b32 s{sTmp}, 0, s{sTmp}'); I(f's_add_u32 s{sTmp}, s{sTmp}, {L_CSC}')
        I(f'v_add_u32 v{vCA}, s{sTmp}, v{vCA}')
        I(f's_mov_b32 s{sMhi}, 0'); I(f's_mov_b32 s{sMhi+1}, -1')
        I(f's_mov_b32 s{sModd}, 0xffff0000'); I(f's_mov_b32 s{sModd+1}, 0xffff0000')
        I(f's_lshl_b32 s{sTmp}, s{sR}, 2'); I(f's_lshl_b32 s{sTmp2}, s{sTp}, 1'); I(f's_add_u32 s{sTmp}, s{sTmp}, s{sTmp2}')
        I(f's_mul_i32 s{sTg0}, s{sTmp}, {TSTRIDE}')
        I(f's_lshl_b32 s{sTmp}, s{sSo2}, 5')
        I(f's_lshl_b32 s{sTmp2}, s{sCp}, 11'); I(f's_add_u32 s{sTmp}, s{sTmp}, s{sTmp2}'); I(f's_add_u32 s{sHF}, s{sTg0}, s{sTmp}')
        z = 116
        for k in range(4): I(f'v_mov_b32 v{z+k}, 0')
        I(f'v_add_u32 v{a}, {L_TOTZ}, v{vHB}'); I(f'ds_write_b128 v{a}, v[{z}:{z+3}]')

    def tab(s):
        I = s.I; PR = s.PR
        n, u, v_, lr, li, t0, t1, t2, t3, wa, un, vn = range(116, 128)
        P = 148
        I(f'v_lshrrev_b32 v{t0}, 5, v{vL}')
        I(f's_lshl_b32 s{sTmp}, s{sw}, 1'); I(f's_lshl_b32 s{sTmp}, 8, s{sTmp}')
        I(f'v_mul_u32_u24 v{n}, s{sTmp}, v{t0}')
        I(f's_cmp_eq_u32 s{sw}, 3'); I(f's_cselect_b64 s[{sBad}:{sBad+1}], -1, 0'); I(f's_cselect_b32 s{sMsel}, -1, 0')
        I(f's_mov_b32 s{sMsel+1}, 0')
        I(f'v_mul_u32_u24 v{t1}, 511, v{t0}'); I(f'v_add_u32 v{t1}, 1, v{t1}')
        I(f'v_cndmask_b32 v{t1}, v{n}, v{t1}, s[{sBad}:{sBad+1}]'); I(f'v_cvt_f32_u32 v{t1}, v{t1}')
        I(f's_lshl_b32 s{sTmp}, s{sTmp}, 1'); I(f'v_add_u32 v{n}, s{sTmp}, v{n}')
        I(f'v_cndmask_b32 v{n}, v{n}, 1, s[{sBad}:{sBad+1}]'); I(f'v_cvt_f32_u32 v{n}, v{n}')
        I(f'v_bfe_u32 v{wa}, v{vL}, 4, 1'); I(f'v_lshlrev_b32 v{wa}, 11, v{wa}'); I(f'v_lshl_add_u32 v{wa}, v{t0}, 7, v{wa}')
        I(f'v_and_b32 v{t0}, 15, v{vL}'); I(f'v_lshl_add_u32 v{wa}, v{t0}, 3, v{wa}')
        I(f's_lshl_b32 s{sTmp}, s{sw}, 9'); I(f's_add_u32 s{sTmp}, s{sTmp}, {L_TAB}'); I(f'v_add_u32 v{wa}, s{sTmp}, v{wa}')
        I(f'v_lshlrev_b32 v{lr}, 16, v{PR}'); I(f'v_lshlrev_b32 v{li}, 16, v{PR+1}'); I(f'v_lshlrev_b32 v{t0}, 16, v{PR+2}')
        I(f'v_mul_f32 v{t0}, {LOG2E:#x}, v{t0}'); I(f'v_exp_f32 v{t0}, v{t0}')
        I(f'v_cvt_pk_bf16_f32 v{t0}, v{t0}, v{t0}'); I(f'v_lshlrev_b32 v{t0}, 16, v{t0}')
        I(f'v_mul_f32 v{u}, v{t0}, v{lr}'); I(f'v_mul_f32 v{v_}, v{t0}, v{li}')
        I(f'v_mul_f32 v{u}, {LOG2E:#x}, v{u}'); I(f'v_mul_f32 v{v_}, {INV2PI:#x}, v{v_}')
        for j, nn in ((0, t1), (1, n)):
            I(f'v_mul_f32 v{un}, v{nn}, v{u}'); I(f'v_mul_f32 v{vn}, v{nn}, v{v_}')
            I(f'v_exp_f32 v{un}, v{un}'); I(f'v_fract_f32 v{vn}, v{vn}')
            I(f'v_cos_f32 v{t0}, v{vn}'); I(f'v_sin_f32 v{t2}, v{vn}')
            I(f'v_mul_f32 v{P}, v{un}, v{t0}'); I(f'v_mul_f32 v{P+1}, v{un}, v{t2}')
            if j == 1:
                I(f'v_add_f32 v{t0}, -1.0, v{P}')
                I(f'v_mul_f32 v{t1}, v{lr}, v{lr}'); I(f'v_fma_f32 v{t1}, v{li}, v{li}, v{t1}'); I(f'v_rcp_f32 v{t1}, v{t1}')
                I(f'v_mul_f32 v{t2}, v{t0}, v{lr}'); I(f'v_fma_f32 v{t2}, v{P+1}, v{li}, v{t2}')
                I(f'v_mul_f32 v{t3}, v{P+1}, v{lr}'); I(f'v_fma_f32 v{t3}, -v{t0}, v{li}, v{t3}')
                I(f'v_add_f32 v{t1}, v{t1}, v{t1}')
                I(f'v_mul_f32 v{t2}, v{t2}, v{t1}'); I(f'v_mul_f32 v{t3}, v{t3}, v{t1}')
                I(f'v_cndmask_b32 v{P}, v{P}, v{t2}, s[{sMsel}:{sMsel+1}]'); I(f'v_cndmask_b32 v{P+1}, v{P+1}, v{t3}, s[{sMsel}:{sMsel+1}]')
            I(f'ds_write_b64 v{wa}, v[{P}:{P+1}] offset:{256*j}')

    def stats_x(s):
        I = s.I; XR = s.XR; SV = s.SV
        F = 128
        for r in range(2):
            for k in range(4):
                I(f'v_lshlrev_b32 v{F+8*r+2*k}, 16, v{XR+4*r+k}'); I(f'v_and_b32 v{F+8*r+2*k+1}, 0xffff0000, v{XR+4*r+k}')
        pa, pb, t0, t1 = 144, 145, 146, 147
        def reduce2(pa, pb):
            I(f'v_permlane32_swap_b32 v{pa}, v{pb}'); I(f'v_add_f32 v{pa}, v{pa}, v{pb}')
            I(f'v_mov_b32 v{pb}, v{pa}'); I(f'v_permlane16_swap_b32 v{pa}, v{pb}'); I(f'v_add_f32 v{pa}, v{pa}, v{pb}')
            for k in (8, 4, 2, 1): I(f'v_add_f32_dpp v{pa}, v{pa}, v{pa} row_ror:{k} row_mask:0xf bank_mask:0xf')
            I(f'v_mov_b32 v{pb}, v{pa}'); I(f'v_permlane32_swap_b32 v{pa}, v{pb}')
        for k in range(1, 8):
            for r, p in ((0, pa), (1, pb)):
                if k == 1: I(f'v_add_f32 v{p}, v{F+8*r}, v{F+8*r+1}')
                else: I(f'v_add_f32 v{p}, v{p}, v{F+8*r+k}')
        reduce2(pa, pb)
        I(f'v_mul_f32 v{t0}, 0x3b000000, v{pa}'); I(f'v_mul_f32 v{t1}, 0x3b000000, v{pb}')
        for r, m in ((0, t0), (1, t1)):
            for k in range(8): I(f'v_sub_f32 v{F+8*r+k}, v{F+8*r+k}, v{m}')
        for k in range(8):
            for r, p in ((0, pa), (1, pb)):
                if k == 0: I(f'v_mul_f32 v{p}, v{F+8*r}, v{F+8*r}')
                else: I(f'v_fmac_f32 v{p}, v{F+8*r+k}, v{F+8*r+k}')
        reduce2(pa, pb)
        I(f'v_cndmask_b32 v{t0}, v{t0}, v{t1}, s[{sMhi}:{sMhi+1}]')
        I(f'v_cndmask_b32 v{pa}, v{pa}, v{pb}, s[{sMhi}:{sMhi+1}]')
        I(f'v_mul_f32 v{pa}, 0x3b000000, v{pa}')
        I(f'v_cvt_pk_bf16_f32 v{pa}, v{pa}, v{pa}'); I(f'v_lshlrev_b32 v{pa}, 16, v{pa}')
        I(f'v_add_f32 v{pa}, 0x3727c5ac, v{pa}')
        I(f'v_cvt_pk_bf16_f32 v{pa}, v{pa}, v{pa}'); I(f'v_lshlrev_b32 v{pa}, 16, v{pa}')
        I(f'v_sqrt_f32 v{pa}, v{pa}')
        I(f'v_cvt_pk_bf16_f32 v{SV}, v{pa}, v{t0}')
        I(f'v_and_b32 v{t1}, 31, v{vL}'); I(f'v_lshrrev_b32 v{t0}, 2, v{vL}'); I(f'v_mov_b32 v{pb}, {OOB}')
        I(f'v_cmp_eq_u32 vcc, 0, v{t1}'); I(f'v_cndmask_b32 v{SV+4}, v{pb}, v{t0}, vcc')
    def stats_s(s):
        I = s.I; SR = s.SR; SV = s.SV
        F = 158
        F = 64; q0, q1, ob = 72, 73, 74
        for k in range(4):
            I(f'v_lshlrev_b32 v{F+2*k}, 16, v{SR+k}'); I(f'v_and_b32 v{F+2*k+1}, 0xffff0000, v{SR+k}')
        for k in range(4): I(f'v_add_f32 v{F+k}, v{F+k}, v{F+4+k}')
        I(f'v_add_f32 v{F}, v{F}, v{F+2}'); I(f'v_add_f32 v{F+1}, v{F+1}, v{F+3}'); I(f'v_add_f32 v{q0}, v{F}, v{F+1}')
        I(f'v_mov_b32 v{q1}, v{q0}'); I(f'v_permlane32_swap_b32 v{q0}, v{q1}'); I(f'v_add_f32 v{q0}, v{q0}, v{q1}')
        I(f'v_mov_b32 v{q1}, v{q0}'); I(f'v_permlane16_swap_b32 v{q0}, v{q1}'); I(f'v_add_f32 v{q0}, v{q0}, v{q1}')
        for k in (8, 4, 2): I(f'v_add_f32_dpp v{q0}, v{q0}, v{q0} row_ror:{k} row_mask:0xf bank_mask:0xf')
        I(f'v_add_f32_dpp v{SV+2}, v{q0}, v{q0} row_ror:1 row_mask:0xf bank_mask:0xf')
        I(f'v_mov_b32 v{ob}, {OOB}')
        I(f'v_cmp_eq_u32 vcc, 0, v{vL}'); I(f'v_cndmask_b32 v{SV+5}, v{ob}, 0, vcc')

    def pub_prog(s):
        e = s.e; NP = s.NP; SV = s.SV
        Ls = s.lab('nps'); Lr = s.lab('npr')
        def chk():
            e.wait_tag('NP')
            s.I(f'v_readfirstlane_b32 s{sNonce}, v{NP}'); s.I(f's_cmp_eq_u32 s{sNonce}, 0'); e.raw(f's_cbranch_scc1 {Ls}'); e.label(Lr)
        def slow():
            e.label(Ls); e.reset_hazards(); e.vm = []; e.lgk = []
            s.I(f's_mov_b32 s{sSpin}, 0')
            e.label(Ls + 'l'); e.reset_hazards()
            s.I(f'buffer_load_dword v{NP}, v{NP+1}, s[{sDBG}:{sDBG+3}], 0 offen sc1'); e.force_wait('vmcnt(0)')
            s.I(f'v_readfirstlane_b32 s{sNonce}, v{NP}'); s.I(f's_add_u32 s{sSpin}, s{sSpin}, 1')
            s.I(f's_cmp_gt_u32 s{sSpin}, {SPIN}'); e.raw(f's_cbranch_scc1 {Lr}')
            s.I(f's_cmp_eq_u32 s{sNonce}, 0'); e.raw(f's_cbranch_scc1 {Ls}l')
            e.raw('s_nop 4'); e.raw(f's_branch {Lr}')
        s.slow.append(slow)
        return [Fn(chk, 16), f'v_mov_b32 v{SV+1}, s{sNonce}', f'v_mov_b32 v{SV+3}, s{sNonce}', f'v_mov_b32 v{vNon}, s{sNonce}',
                f'buffer_store_dwordx2 v[{SV}:{SV+1}], v{SV+4}, s[{sWS}:{sWS+3}], s{sGa} offen sc1',
                f'buffer_store_dwordx2 v[{SV+2}:{SV+3}], v{SV+5}, s[{sWS}:{sWS+3}], s{sGb} offen sc1']

    def fcs_prog(s):
        AC, FR, ONE, Gq, vo = 96, 112, 128, 132, 134
        ops = [f'v_mov_b32 v{ONE+k}, 0x3f803f80' for k in range(4)]
        for ks in range(4):
            ops += [f'ds_read_b64_tr_b16 v[{FR+4*ks}:{FR+4*ks+1}], v{vCA} offset:{2048*ks}', f'ds_read_b64_tr_b16 v[{FR+4*ks+2}:{FR+4*ks+3}], v{vCA} offset:{2048*ks+512}']
        ops += [f'v_lshlrev_b32 v{vo}, 3, v{vL}', f'v_mov_b32 v{vo+1}, {OOB}', f'v_cndmask_b32 v{vo}, v{vo}, v{vo+1}, s[{sMhi}:{sMhi+1}]',
                f's_and_b32 s{sTmp}, s{sR}, 1', f's_mul_i32 s{sTmp}, s{sTmp}, {28*4096}',
                f's_lshl_b32 s{sTmp2}, s{sSo2}, 5', f's_add_u32 s{sTmp}, s{sTmp}, s{sTmp2}']
        if s.typ == 'H':
            ops += [f's_lshl_b32 s{sTmp2}, s{sCp}, 12', f's_add_u32 s{sTmp}, s{sTmp}, s{sTmp2}']
        ops += [f's_lshl_b32 s{sTmp2}, s{sRho}, 9', f's_add_u32 s{sTmp}, s{sTmp}, s{sTmp2}',
                f's_lshl_b32 s{sTmp2}, s{sTp}, 8', f's_add_u32 s{sTmp}, s{sTmp}, s{sTmp2}', f's_add_u32 s{sGa}, s{sTmp}, {WS_CSF}']
        if s.typ == 'L':
            ops += [s.atom([f's_cmp_eq_u32 s{sCp}, 0', f's_cselect_b32 s{sGa}, s{sGa}, {OOB}'])]
        ops += [f'v_mov_b32 v{Gq+1}, s{sNonce}']
        for ks in range(4):
            ops.append(f'v_mfma_f32_32x32x16_bf16 v[{AC}:{AC+15}], v[{ONE}:{ONE+3}], v[{FR+4*ks}:{FR+4*ks+3}], ' + ('0' if ks == 0 else f'v[{AC}:{AC+15}]'))
        return ops, [f'v_mov_b32 v{Gq}, v{AC}', f'buffer_store_dwordx2 v[{Gq}:{Gq+1}], v{vo}, s[{sWS}:{sWS+3}], s{sGa} offen sc1']

    def tagcheck(s, regs, loads, exp=None):
        e = s.e
        ops = []
        for i, r in enumerate(regs):
            src = f's{sNonce}' if exp is None else f'v{exp[i]}'
            if i == 0: ops.append(f'v_cmp_ne_u32 s[{sBad}:{sBad+1}], {src}, v{r}')
            else:
                ops.append(s.atom([f'v_cmp_ne_u32 vcc, {src}, v{r}', f's_or_b64 s[{sBad}:{sBad+1}], s[{sBad}:{sBad+1}], vcc']))
        Ls = s.lab('slow'); Lr = s.lab('ret')
        def br():
            s.I(f's_cmp_lg_u64 s[{sBad}:{sBad+1}], 0'); e.raw(f's_cbranch_scc1 {Ls}'); e.label(Lr)
        ops.append(Fn(br, 8))
        def slow():
            e.label(Ls); e.reset_hazards(); e.vm = []; e.lgk = []
            s.I(f's_mov_b32 s{sSpin}, 0')
            e.label(Ls + 'l'); e.reset_hazards()
            for x in loads: s.I(x)
            e.force_wait('vmcnt(0)')
            for i, r in enumerate(regs):
                src = f's{sNonce}' if exp is None else f'v{exp[i]}'
                if i == 0: s.I(f'v_cmp_ne_u32 s[{sBad}:{sBad+1}], {src}, v{r}')
                else:
                    s.I(f'v_cmp_ne_u32 vcc, {src}, v{r}'); s.I(f's_or_b64 s[{sBad}:{sBad+1}], s[{sBad}:{sBad+1}], vcc')
            s.I(f's_add_u32 s{sSpin}, s{sSpin}, 1'); s.I(f's_cmp_gt_u32 s{sSpin}, {SPIN}'); e.raw(f's_cbranch_scc1 {Lr}')
            s.I(f's_cmp_lg_u64 s[{sBad}:{sBad+1}], 0'); e.raw(f's_cbranch_scc1 {Ls}l')
            e.raw('s_nop 4'); e.raw(f's_branch {Lr}')
        s.slow.append(slow)
        return ops

    def pi_ops(s, d, t):
        return [f'v_bfe_u32 v{d}, v{vL}, 2, 1', f'v_lshlrev_b32 v{d}, 4, v{d}',
                f'v_and_b32 v{t}, 1, v{vL}', f'v_lshl_add_u32 v{d}, v{t}, 3, v{d}',
                f'v_bfe_u32 v{t}, v{vL}, 3, 2', f'v_lshl_add_u32 v{d}, v{t}, 1, v{d}',
                f'v_bfe_u32 v{t}, v{vL}, 1, 1', f'v_add_u32 v{d}, v{d}, v{t}']

    GA = 136
    def gA_issue(s):
        GA = s.GA; vp, va, vc = GA + 6, GA + 7, GA + 8
        ops = s.pi_ops(vp, va)
        ops += [f'v_lshlrev_b32 v{va}, 3, v{vp}',
                f's_lshl_b32 s{sTmp}, s{sR}, 10', f's_lshl_b32 s{sTmp2}, s{sTp}, 9', f's_add_u32 s{sTmp}, s{sTmp}, s{sTmp2}', f's_add_u32 s{sGa}, s{sTmp}, {WS_STATS}',
                f'v_and_b32 v{vc}, 31, v{vL}', f'v_lshlrev_b32 v{vc}, 3, v{vc}',
                f's_lshl_b32 s{sTmp}, s{sC}, 9', f's_lshl_b32 s{sTmp2}, s{sCp}, 8', f's_add_u32 s{sTmp}, s{sTmp}, s{sTmp2}', f's_add_u32 s{sGb}, s{sTmp}, {WS_CSS}']
        s.glA = [f'buffer_load_dwordx2 v[{GA}:{GA+1}], v{va}, s[{sWS}:{sWS+3}], s{sGa} offen sc1',
                 f'buffer_load_dwordx2 v[{GA+2}:{GA+3}], v{va}, s[{sWS}:{sWS+3}], s{sGa} offen offset:256 sc1',
                 f'buffer_load_dwordx2 v[{GA+4}:{GA+5}], v{vc}, s[{sWS}:{sWS+3}], s{sGb} offen sc1']
        ops += [(x, 'GA') for x in s.glA]
        return ops
    def split3(s, A, t0, t1, t2, o0, o1):
        return [f'v_cvt_pk_bf16_f32 v{t0}, v{A}, v{A}', f'v_and_b32 v{t0}, 0xffff0000, v{t0}',
                f'v_sub_f32 v{t1}, v{A}, v{t0}',
                f'v_cvt_pk_bf16_f32 v{t2}, v{t1}, v{t1}', f'v_and_b32 v{t2}, 0xffff0000, v{t2}',
                f'v_sub_f32 v{t1}, v{t1}, v{t2}',
                f'v_cvt_pk_bf16_f32 v{o1}, v{t1}, 0',
                f'v_lshrrev_b32 v{t0}, 16, v{t0}', f'v_or_b32 v{o0}, v{t0}, v{t2}']
    def gA_proc(s):
        GA = s.GA; vp = GA + 6
        ops = s.tagcheck([GA + 1, GA + 3, GA + 5], s.glA)
        t0, t1, t2, t3, ra = 145, 146, 147, 148, 149
        ops += [f'v_lshlrev_b32 v{ra}, 2, v{vp}', f's_lshl_b32 s{sTmp}, s{sTp}, 8', f's_add_u32 s{sTmp}, s{sTmp}, {L_RS}', f'v_add_u32 v{ra}, s{sTmp}, v{ra}']
        ops += [f's_mov_b32 s{sTmp2}, {NLOG2E:#x}']
        for t in range(2):
            ms = GA + 2 * t; xa = vXaug + 4 * t
            ops += [f'v_lshlrev_b32 v{t0}, 16, v{ms}',
                    f'v_and_b32 v{t1}, 0xffff0000, v{ms}', f'v_xor_b32 v{t1}, 0x80000000, v{t1}',
                    f'v_rcp_f32 v{t2}, v{t0}', f'v_mul_f32 v{vK2+t}, v{t0}, v{t0}',
                    f'v_lshrrev_b32 v{t3}, 16, v{t1}', f'v_or_b32 v{t1}, v{t1}, v{t3}',
                    f'v_cndmask_b32 v{xa}, v{t1}, 0, s[{sMhi}:{sMhi+1}]', f'v_cndmask_b32 v{xa+1}, v{t3}, 0, s[{sMhi}:{sMhi+1}]',
                    f'v_mov_b32 v{xa+2}, 0', f'v_mov_b32 v{xa+3}, 0',
                    f'v_mul_f32 v{vNRS+t}, s{sTmp2}, v{t2}',
                    f'ds_write_b32 v{ra}, v{t2} offset:{128*t}']
        ops += s.split3(GA + 4, t0, t1, t2, vSA, vSA + 1)
        ops += [f'v_mov_b32 v{vSA+2}, 0', f'v_mov_b32 v{vSA+3}, 0']
        return ops

    GB = 96
    def gB_issue(s):
        GB = s.GB
        ops = [f's_mul_i32 s{sTmp3}, s{sTp}, {28*4096}', f's_lshl_b32 s{sTmp2}, s{sSo2}, 5', f's_add_u32 s{sTmp3}, s{sTmp3}, s{sTmp2}']
        if s.typ == 'H': ops += [f's_lshl_b32 s{sTmp2}, s{sCp}, 12', f's_add_u32 s{sTmp3}, s{sTmp3}, s{sTmp2}']
        ops += [f's_add_u32 s{sTmp3}, s{sTmp3}, {WS_CSF}']
        s.glB = [f'buffer_load_dwordx4 v[{GB+4*n}:{GB+4*n+3}], v{vHB}, s[{sWS}:{sWS+3}], s{sMsel} offen offset:{1024*n} sc1' for n in range(4)]
        ops += [f's_mov_b32 s{sMsel}, s{sTmp3}']
        ops += [(x, 'GB') for x in s.glB]
        return ops
    def gB_proc(s):
        GB = s.GB
        regs = [GB + 4 * n + 1 + 2 * m for n in range(4) for m in range(2)]
        ops = s.tagcheck(regs, s.glB)
        t0, t1, t2, wa = 112, 113, 114, 115
        O = 116
        A, B = GB, GB + 2
        ops += [f'v_add_f32 v{A}, v{A}, v{GB+4}', f'v_add_f32 v{B}, v{B}, v{GB+6}',
                f'v_add_f32 v{GB+8}, v{GB+8}, v{GB+12}', f'v_add_f32 v{GB+10}, v{GB+10}, v{GB+14}',
                f'v_add_f32 v{A}, v{A}, v{GB+8}', f'v_add_f32 v{B}, v{B}, v{GB+10}',
                f'v_permlane32_swap_b32 v{A}, v{B}', f'v_add_f32 v{A}, v{A}, v{B}']
        ops += s.split3(A, t0, t1, t2, O, O + 1)
        ops += [f'v_and_b32 v{wa}, 31, v{vL}', f'v_lshlrev_b32 v{wa}, 4, v{wa}', f'v_lshrrev_b32 v{t0}, 5, v{vL}', f'v_lshl_add_u32 v{wa}, v{t0}, 3, v{wa}']
        if s.typ == 'H':
            ops += [f's_lshl_b32 s{sTmp}, s{sCp}, 10', f's_lshl_b32 s{sTmp2}, s{sTp}, 9', f's_add_u32 s{sTmp}, s{sTmp}, s{sTmp2}', f's_add_u32 s{sTmp}, s{sTmp}, {L_WAUG}']
        else:
            ops += [f's_lshl_b32 s{sTmp}, s{sTp}, 9', f's_add_u32 s{sTmp}, s{sTmp}, {L_WAUG}']
        ops += [f'v_add_u32 v{wa}, s{sTmp}, v{wa}', f'ds_write_b64 v{wa}, v[{O}:{O+1}]']
        return ops

    def g_part(s, G, t, T):
        ops = []
        for h in range(2):
            g = G + 8 * h
            for j in range(8): ops.append(f'v_mul_f32 v{T+j}, v{vNRS+t}, v{g+j}')
            for j in range(8): ops.append(f'v_exp_f32 v{T+j}, v{T+j}')
            for j in range(8): ops.append(f'v_fma_f32 v{T+j}, v{vK2+t}, v{T+j}, v{vK2+t}')
            for j in range(8): ops.append(f'v_rcp_f32 v{T+j}, v{T+j}')
            for j in range(8): ops.append(f'v_mul_f32 v{g+j}, v{g+j}, v{T+j}')
        return ops
    def u_part(s, G, U, t, line):
        ops = []
        for h in range(2):
            g = G + 8 * h; u = U + 8 * h
            for j in range(8): ops.append(f'v_mul_f32 v{u+j}, v{u+j}, v{g+j}')
            for j in range(4): ops.append(f'v_cvt_pk_bf16_f32 v{u+j}, v{u+2*j}, v{u+2*j+1}')
            add = t * TSTRIDE + line * 4096
            st = f'buffer_store_dwordx4 v[{u}:{u+3}], v{vHB}, s[{sWS}:{sWS+3}], s{sGb} offen offset:{1024*h} sc1'
            if add: ops.append(s.atom([f's_add_u32 s{sGb}, s{sHF}, {add}', (st, f'HF{line}')]))
            else: ops.append(s.atom([f's_mov_b32 s{sGb}, s{sHF}', (st, f'HF{line}')]))
        return ops

    def s_setup(s):
        a, b = 240, 241
        o = []
        o += [f'v_and_b32 v{a}, 15, v{vL}', f'v_lshlrev_b32 v{b}, 3, v{a}',
              f's_lshl_b32 s{sTmp}, s{sCp}, 11', f's_add_u32 s{sTmp}, s{sTmp}, {L_TAB}',
              f'v_add_u32 v{vCh}, s{sTmp}, v{b}',
              f'v_lshlrev_b32 v{vTg}, 3, v{vL}', f'v_add_u32 v{vTg}, s{sTmp}, v{vTg}',
              f's_lshl_b32 s{sTmp}, s{sCp}, 7', f's_lshl_b32 s{sTmp2}, s{sTp}, 9', f's_add_u32 s{sTmp}, s{sTmp}, s{sTmp2}', f's_add_u32 s{sTmp}, s{sTmp}, {L_TOTZ}',
              f'v_add_u32 v{vTo}, s{sTmp}, v{b}',
              f'v_lshrrev_b32 v{b}, 4, v{vL}', f'v_lshlrev_b32 v{vRs}, 5, v{b}', f's_lshl_b32 s{sTmp}, s{sTp}, 8', f's_add_u32 s{sTmp}, s{sTmp}, {L_RS}',
              f'v_add_u32 v{vRs}, s{sTmp}, v{vRs}',
              f's_mul_i32 s{sTmp}, s{sw}, 2560', f's_add_u32 s{sTmp}, s{sTmp}, {L_TR}',
              f'v_mul_u32_u24 v{vTw}, 80, v{a}', f'v_lshl_add_u32 v{vTw}, v{b}, 4, v{vTw}', f'v_add_u32 v{vTw}, s{sTmp}, v{vTw}',
              f'v_lshrrev_b32 v{vTr}, 5, v{vL}', f'v_lshlrev_b32 v{vTr}, 3, v{vTr}', f'v_bfe_u32 v{b}, v{vL}, 2, 2', f'v_add_u32 v{vTr}, v{vTr}, v{b}',
              f'v_mul_u32_u24 v{vTr}, 80, v{vTr}',
              f'v_and_b32 v{b}, 3, v{vL}', f'v_lshl_add_u32 v{vTr}, v{b}, 3, v{vTr}',
              f'v_bfe_u32 v{b}, v{vL}, 4, 1', f'v_lshl_add_u32 v{vTr}, v{b}, 5, v{vTr}',
              f'v_add_u32 v{vTr}, s{sTmp}, v{vTr}']
        o += [f'v_lshlrev_b32 v{a}, 4, v{a}', f's_lshl_b32 s{sTmp}, s{sR}, 8',
              s.atom([f's_cmp_eq_u32 s{sTp}, 1', f's_cselect_b32 s{sTmp}, s{sTmp}, {OOB}']),
              f'v_add_u32 v{a}, s{sTmp}, v{a}', f'v_mov_b32 v{b}, {OOB}',
              s.atom([f'v_cmp_gt_u32 vcc, 16, v{vL}', f'v_cndmask_b32 v{vEo}, v{b}, v{a}, vcc']),
              s.atom([f'v_cmp_eq_u32 vcc, 0, v{vL}', f'v_cndmask_b32 v{vFl}, v{b}, 0, vcc'])]
        return o
    def s1(s, t):
        A = aS + 16 * t; P = vPc + 2 * t
        R = 128; L1, L8, L16 = 136, 138, 140
        E, Z, X, Q, Y = 142, 144, 146, 148, 150
        def pr(r): return f'v[{r}:{r+1}]'
        ops = [f'ds_read_b128 v[{R}:{R+3}], v{vRs} offset:{128*t}', f'ds_read_b128 v[{R+4}:{R+7}], v{vRs} offset:{128*t+16}',
               f'ds_read_b64 {pr(L1)}, v{vCh} offset:1536', f'ds_read_b64 {pr(L8)}, v{vCh} offset:128', f'ds_read_b64 {pr(L16)}, v{vCh} offset:256']
        for m in range(8): ops.append(f'v_permlane16_swap_b32 v{A+2*m}, v{A+2*m+1}')
        for m in range(8):
            ops += [f'v_mul_f32 v{A+2*m}, v{R+m}, v{A+2*m}', f'v_mul_f32 v{A+2*m+1}, v{R+m}, v{A+2*m+1}']
        prev = A
        e0, e1 = E, Z
        for m in range(1, 8):
            ops += cmac(e0, L1, prev, A + 2 * m)
            prev = e0; e0, e1 = e1, e0
        E = prev; Z = e0
        ops += [f'v_mov_b32 v{Z}, 0', f'v_mov_b32 v{Z+1}, 0', f'v_mov_b32 v{X}, v{E}', f'v_mov_b32 v{X+1}, v{E+1}',
                f'v_cndmask_b32 v{Q}, 1.0, v{L8}, s[{sModd}:{sModd+1}]', f'v_cndmask_b32 v{Q+1}, 0, v{L8+1}, s[{sModd}:{sModd+1}]',
                f'v_permlane16_swap_b32 v{Z}, v{X}', f'v_permlane16_swap_b32 v{Z+1}, v{X+1}']
        ops += cmac(E, L8, Z, E)
        ops += [f'v_mov_b32 v{X}, v{E}', f'v_mov_b32 v{X+1}, v{E+1}', f'v_mov_b32 v{Y}, 0', f'v_mov_b32 v{Y+1}, 0',
                f'v_permlane16_swap_b32 v{E}, v{X}', f'v_permlane16_swap_b32 v{E+1}, v{X+1}',
                f'v_permlane32_swap_b32 v{Y}, v{X}', f'v_permlane32_swap_b32 v{Y+1}, v{X+1}']
        ops += cmac(X, L16, Y, X)
        ops += cmac(P, Q, Y, Z)
        ops += [s.atom([f's_mov_b64 exec, s[{sMhi}:{sMhi+1}]', f'ds_write_b64 v{vTo}, {pr(X)} offset:{(3+t)*256}', f's_mov_b64 exec, -1'])]
        return ops
    def s2(s):
        R = 240; L32 = 250; Gq = 240
        def pr(r): return f'v[{r}:{r+1}]'
        ops = []
        for k in range(5): ops.append(f'ds_read_b64 {pr(R+2*k)}, v{vTo} offset:{k*256}')
        ops.append(f'ds_read_b64 {pr(L32)}, v{vCh} offset:640')
        ops += [f's_lshl_b32 s{sTmp}, s{sC}, 13', f's_lshl_b32 s{sTmp2}, s{sCp}, 12', f's_add_u32 s{sTmp}, s{sTmp}, s{sTmp2}', f's_add_u32 s{sGa}, s{sTmp}, {WS_E}']
        ops += cmac(R + 2, L32, R, R + 2)
        ops += cmac(vPC, L32, R + 2, R + 4)
        ops += cmac(vPC + 2, L32, vPC, R + 6)
        ops += cmac(R + 8, L32, vPC + 2, R + 8)
        ops += [f'v_mov_b32 v{Gq}, v{R+8}', f'v_mov_b32 v{Gq+1}, s{sNonce}', f'v_mov_b32 v{Gq+2}, v{R+9}', f'v_mov_b32 v{Gq+3}, s{sNonce}']
        ops += [f'buffer_store_dwordx4 v[{Gq}:{Gq+3}], v{vEo}, s[{sWS}:{sWS+3}], s{sGa} offen sc1']
        return ops
    EG, vEg, vEx = 32, 48, 52
    def s3_issue(s):
        EG, vEg, vEx = s.EG, s.vEg, s.vEx
        a, b = 56, 57
        o = [f'v_and_b32 v{a}, 15, v{vL}', f'v_lshlrev_b32 v{a}, 4, v{a}', f'v_lshrrev_b32 v{b}, 4, v{vL}', f'v_sub_u32 v{b}, s{sR}, v{b}', f'v_add_u32 v{b}, -1, v{b}']
        for k in range(4):
            g = vEg + k; x = vEx + k
            if k: o.append(f'v_add_u32 v{b}, -4, v{b}')
            o += [f'v_lshl_add_u32 v{g}, v{b}, 8, v{a}', f'v_mov_b32 v{x}, {OOB}',
                  s.atom([f'v_cmp_le_i32 vcc, 0, v{b}', f'v_cndmask_b32 v{g}, v{x}, v{g}, vcc', f'v_cndmask_b32 v{x}, 0, v{vNon}, vcc'])]
        s.glE = [f'buffer_load_dwordx4 v[{EG+4*k}:{EG+4*k+3}], v{vEg+k}, s[{sWS}:{sWS+3}], s{sGa} offen sc1' for k in range(4)]
        o += [(x, 'EG') for x in s.glE]
        return o
    def s3(s):
        EG, vEx = s.EG, s.vEx
        L512, Q = 56, 58
        regs = [EG + 4 * k + 1 + 2 * m for k in range(4) for m in range(2)]
        exp = [vEx + k for k in range(4) for m in range(2)]
        ops = [f'ds_read_b64 v[{L512}:{L512+1}], v{vCh} offset:1664', f'ds_read_b64 v[{Q}:{Q+1}], v{vTg} offset:1024']
        ops += s.tagcheck(regs, s.glE, exp)
        def cm4(dr, di, ar, ai, br, bi, cr, ci):
            return [f'v_fmac_f32 v{dr}, v{ar}, v{br}', f'v_fmac_f32 v{di}, v{ar}, v{bi}',
                    f'v_fma_f32 v{dr}, -v{ai}, v{bi}, v{dr}', f'v_fmac_f32 v{di}, v{ai}, v{br}']
        for k in (2, 1, 0):
            ops += cm4(EG + 4 * k, EG + 4 * k + 2, L512, L512 + 1, EG + 4 * (k + 1), EG + 4 * (k + 1) + 2, EG + 4 * k, EG + 4 * k + 2)
        wr, wi = EG + 4, EG + 5; H = vH
        ops += [f'v_mul_f32 v{wr}, v{Q}, v{EG}', f'v_mul_f32 v{wi}, v{Q}, v{EG+2}', f'v_fma_f32 v{wr}, -v{Q+1}, v{EG+2}, v{wr}', f'v_fmac_f32 v{wi}, v{Q+1}, v{EG}',
                f'v_permlane16_swap_b32 v{wr}, v{wi}', f'v_add_f32 v{wr}, v{wr}, v{wi}', f'v_mov_b32 v{wi}, v{wr}',
                f'v_permlane32_swap_b32 v{wr}, v{wi}', f'v_add_f32 v{H}, v{wr}, v{wi}', f'v_mov_b32 v{H+1}, v{H}',
                f'v_permlane16_swap_b32 v{H}, v{H+1}']
        return ops
    def s4(s, t):
        A = aS + 16 * t; P = vPc + 2 * t; C = vPC + 2 * t
        L1, Q32, Q8, CF = 240, 242, 244, 246
        X = 248
        O = 184
        def pr(r): return f'v[{r}:{r+1}]'
        ops = [f's_lshl_b32 s{sTmp}, s{sTp}, 8', f'v_add_u32 v{O}, s{sTmp}, v{vCh}',
               f'ds_read_b64 {pr(Q32)}, v{O} offset:{512+128*t}', f'ds_read_b64 {pr(Q8)}, v{vTg}',
               f'ds_read_b64 {pr(L1)}, v{vCh} offset:1536', f'ds_read_b64 {pr(CF)}, v{vCh} offset:1792']
        ops += [f's_lshl_b32 s{sTmp}, s{sC}, 1', f's_add_u32 s{sTmp}, s{sTmp}, s{sCp}',
                f's_lshr_b32 s{sTmp2}, s{sTmp}, 2', f's_lshl_b32 s{sTmp2}, s{sTmp2}, 3', f's_and_b32 s{sTmp}, s{sTmp}, 3', f's_add_u32 s{sTmp}, s{sTmp}, s{sTmp2}',
                f's_add_u32 s{sTmp}, s{sTmp}, 112', f's_lshl_b32 s{sTmp}, s{sTmp}, 10', f's_add_u32 s{sTmp3}, s{sTmp}, s{sTg0}']
        if t: ops += [f's_add_u32 s{sTmp3}, s{sTmp3}, {TSTRIDE}']
        ops += cmac(C, Q32, vH, C)
        ops += cmac(P, Q8, C, P)
        prev = P
        def cf(m):
            x = X + 2 * (m & 1); r = A + 2 * m
            return [f'v_mul_f32 v{x}, v{r}, v{CF}', f'v_mul_f32 v{x+1}, v{r}, v{CF+1}',
                    f'v_fma_f32 v{r}, -v{r+1}, v{CF+1}, v{x}', f'v_fma_f32 v{r+1}, -v{r+1}, v{CF}, -v{x+1}']
        for m in range(8):
            ops += cmac(A + 2 * m, L1, prev, A + 2 * m); prev = A + 2 * m
            if m >= 1: ops += cf(m - 1)
        ops += cf(7)
        for k in range(4): ops.append(f'v_cvt_pk_bf16_f32 v{O+k}, v{A+4*k}, v{A+4*k+2}')
        for k in range(4): ops.append(f'v_cvt_pk_bf16_f32 v{O+4+k}, v{A+4*k+1}, v{A+4*k+3}')
        ops += [f'ds_write_b128 v{vTw}, v[{O}:{O+3}]', f'ds_write_b128 v{vTw}, v[{O+4}:{O+7}] offset:1280']
        for ri in range(2):
            d = A + 4 * ri
            ops += [f'ds_read_b64_tr_b16 v[{d}:{d+1}], v{vTr} offset:{1280*ri}', f'ds_read_b64_tr_b16 v[{d+2}:{d+3}], v{vTr} offset:{1280*ri+320}']
        ops += [(f'buffer_store_dwordx4 v[{A}:{A+3}], v{vHB}, s[{sWS}:{sWS+3}], s{sTmp3} offen sc1', 'HS'), f's_add_u32 s{sTmp3}, s{sTmp3}, 4096',
                (f'buffer_store_dwordx4 v[{A+4}:{A+7}], v{vHB}, s[{sWS}:{sWS+3}], s{sTmp3} offen sc1', 'HS')]
        return ops
    def aug_F(s, acc, idx):
        fa = 244
        return [f'v_and_b32 v{fa+2}, 31, v{vL}', f'v_lshlrev_b32 v{fa+2}, 3, v{fa+2}',
                f's_lshl_b32 s{sTmp}, s{sCp}, 8', f's_add_u32 s{sTmp}, s{sTmp}, {L_WAUG + 512*idx}', f'v_add_u32 v{fa+2}, s{sTmp}, v{fa+2}',
                f'ds_read_b64 v[{fa}:{fa+1}], v{fa+2}', f'v_mov_b32 v{fa+3}, 0', f'v_mov_b32 v{fa+2}, 0'] + \
               [f'v_mfma_f32_32x32x16_bf16 v[{acc+16*t}:{acc+16*t+15}], v[{fa}:{fa+3}], v[{vXaug+4*t}:{vXaug+4*t+3}], v[{acc+16*t}:{acc+16*t+15}]' for t in range(2)]
    def aug_S(s):
        return [f'v_mfma_f32_32x32x16_bf16 v[{aS+16*t}:{aS+16*t+15}], v[{vXaug+4*t}:{vXaug+4*t+3}], v[{vSA}:{vSA+3}], v[{aS+16*t}:{aS+16*t+15}]' for t in range(2)]
    def flag_prog(s, tag, phase):
        def f():
            if not (phase == 2 and s.cfg.get('xfl') == 'w'): s.e.wait_tag(tag)
            s.I(f'buffer_store_dword v{vNon}, v{vFl}, s[{sWS}:{sWS+3}], s{sFlP} offen offset:{32*phase} sc1')
        return [Fn(f, 8)]
    def poll_issue(s):
        return (f'buffer_load_dword v{vPo}, v{vPl}, s[{sWS}:{sWS+3}], s{sFlC} offen sc1', 'PL')
    def poll_check(s, mask):
        e = s.e
        Ls = s.lab('pslow'); Lr = s.lab('pret')
        def chk():
            s.I(f'v_cmp_eq_u32 vcc, s{sNonce}, v{vPo}'); s.I(f's_and_b32 s{sKa}, vcc_lo, {mask:#x}')
            s.I(f's_cmp_eq_u32 s{sKa}, {mask:#x}'); e.raw(f's_cbranch_scc0 {Ls}'); e.label(Lr)
        def slow():
            e.label(Ls); e.reset_hazards(); e.vm = []; e.lgk = []
            s.I(f's_mov_b32 s{sSpin}, 0')
            e.label(Ls + 'l'); e.reset_hazards()
            s.I(s.poll_issue()[0]); e.force_wait('vmcnt(0)')
            s.I(f'v_cmp_eq_u32 vcc, s{sNonce}, v{vPo}'); s.I(f's_and_b32 s{sKa}, vcc_lo, {mask:#x}')
            s.I(f's_add_u32 s{sSpin}, s{sSpin}, 1'); s.I(f's_cmp_gt_u32 s{sSpin}, {SPIN}'); e.raw(f's_cbranch_scc1 {Lr}')
            s.I(f's_cmp_eq_u32 s{sKa}, {mask:#x}'); e.raw(f's_cbranch_scc0 {Ls}l')
            e.raw('s_nop 4'); e.raw(f's_branch {Lr}')
        s.slow.append(slow)
        return chk

    TYPES = [('o', 0), ('o', 2), ('o', 4), ('o', 6), ('o', 1), ('o', 3), ('o', 5), ('y', 0), ('y', 1), ('y', 2), ('y', 3)]
    def issueB(s, q):
        ty, j = s.TYPES[q]
        if 'b' in s.cfg.get('xp3', ''): ty, j = 'o', 0
        S = (q & 3) * 32
        out = []
        for s_ in range(4):
            for t in range(2):
                r = S + 8 * s_ + 4 * t
                ins = f'buffer_load_dwordx4 a[{r}:{r+3}], v{vHB if t == 0 else vB1}, s[{sWS}:{sWS+3}], s{sKb} offen offset:{1024*s_}' + s.cfg.get('bsc', ' sc1')
                pre = [f's_add_u32 s{sKb}, s{sBE if ty == "o" else sBY}, {j*4096}'] if (s_ == 0 and t == 0) else []
                def f(pre=pre, ins=ins):
                    for p in pre: s.I(p)
                    s.I(ins, f'B{q}')
                out.append(f)
        return out
    def issueH(s, qs):
        ty, j0 = s.TYPES[qs[0]]
        stride = (s.TYPES[qs[1]][1] - j0) * 4096 if len(qs) > 1 else 0
        for k, q in enumerate(qs): assert s.TYPES[q] == (ty, j0 + k * stride // 4096), (qs, q)
        va, vb = 200, 201
        def f():
            I = s.I
            I(f'v_lshrrev_b32 v{vb}, 3, v{vL}'); I(f'v_cmp_gt_u32 vcc, {len(qs)}, v{vb}')
            I(f'v_mul_u32_u24 v{vb}, {stride}, v{vb}') if stride else I(f'v_mov_b32 v{vb}, 0')
            I(f'v_and_b32 v{va}, 7, v{vL}'); I(f'v_lshl_add_u32 v{va}, v{va}, 7, v{vb}')
            I(f'v_mov_b32 v{vb}, {OOB}'); I(f'v_cndmask_b32 v{va}, v{vb}, v{va}, vcc')
            I(f's_lshr_b32 s{sKa}, s{sRho}, 2'); I(f's_mul_i32 s{sKa}, s{sKa}, {TSTRIDE}')
            I(f's_and_b32 s{sKb}, s{sRho}, 3'); I(f's_lshl_b32 s{sKb}, s{sKb}, 10'); I(f's_add_u32 s{sKa}, s{sKa}, s{sKb}')
            I(f's_add_u32 s{sKa}, s{sKa}, s{sBE if ty == "o" else sBY}')
            if j0: I(f's_add_u32 s{sKa}, s{sKa}, {j0*4096}')
            I(f'buffer_load_dword v{vDUM}, v{va}, s[{sWS}:{sWS+3}], s{sKa} offen' + s.cfg.get('hsc', ' sc1'), 'PF')
        return f
    def issueG(s, qs):
        va, vb = 202, 203
        def f():
            I = s.I
            I(f'v_cmp_gt_u32 vcc, 16, v{vL}'); I(f's_lshl_b32 s{sKa}, s{sU}, 4'); I(f'v_add_u32 v{va}, s{sKa}, v{vL}'); I(f'v_lshlrev_b32 v{va}, 10, v{va}')
            I(f'v_mov_b32 v{vb}, {OOB}'); I(f'v_cndmask_b32 v{va}, v{vb}, v{va}, vcc')
            for q in qs:
                ty, j = s.TYPES[q]
                if ty == 'o': I(f's_add_u32 s{sKa}, s{sRowW}, {j*65536}'); sr = sW2
                else: I(f's_add_u32 s{sKa}, s{sCrow}, {(j >> 1)*128}'); sr = sCIM if (j & 1) else sCRE
                I(f'buffer_load_dword v{vDUM}, v{va}, s[{sr}:{sr+3}], s{sKa} offen', 'PF')
        return f
    def issueW(s, q):
        ty, j = s.TYPES[q]
        if 'w' in s.cfg.get('xp3', ''): ty, j = 'o', 0
        slot = s.wslot(q)
        ops = []
        for half in range(2):
            for i in range(4):
                pre = []
                if i == 0:
                    pre.append(f's_add_u32 m0, s{sW13}, {slot*SLOT + half*4096}')
                    if ty == 'o': pre.append(f's_add_u32 s{sKc}, s{sRowW}, {j*65536 + half*32768}')
                    else: pre.append(f's_add_u32 s{sKc}, s{sCrow}, {(j >> 1)*128 + half*32768}')
                if ty == 'o': ins = f'buffer_load_dwordx4 v{vW+i}, s[{sW2}:{sW2+3}], s{sKc} offen offset:{1024*i} lds'
                else:
                    sr = sCIM if (j & 1) else sCRE
                    ins = f'buffer_load_dwordx4 v{vC+i}, s[{sr}:{sr+3}], s{sKc} offen offset:{1024*i} lds'
                ops.append((pre, ins))
        return s.mkdma(ops, f'W{q}')
    def wslot(s, q):
        return s.cfg.get('wslot', {}).get(q, (q + 2) & 3)
    def readA(s, q, s_, buf):
        ty, j = s.TYPES[q]
        slot = s.wslot(q)
        out = []
        for ee in range(2):
            r = WF + 8 * buf + 4 * ee
            if ty == 'o':
                va = vA0 if ee == 0 else vA1
                for k in range(2):
                    def f(va=va, r=r, k=k):
                        o = s.addr(va, slot)
                        s.I(f'ds_read_b64_tr_b16 v[{r+2*k}:{r+2*k+1}], v{va} offset:{o + s_*2048 + 1024*k}')
                    out.append(f)
            else:
                def f(r=r, ee=ee):
                    o = s.addr(vY + s_, slot)
                    s.I(f'ds_read_b128 v[{r}:{r+3}], v{vY+s_} offset:{o + ee*4096}')
                out.append(f)
        return out
    def sched_item(s, it):
        xp2 = s.cfg.get('xp2', '')
        if it[0] in xp2 and it[0] in 'WB': return []
        if it[0] == 'c' and 'c' in xp2: return []
        if it[0] == 'W': return s.issueW(int(it[1:]))
        if it[0] == 'B': return s.issueB(int(it[1:]))
        if it[0] == 'h': return [s.issueH([int(x) for x in it[1:].split('.')])]
        if it[0] == 'g': return [s.issueG([int(x) for x in it[1:].split('.')])]
        if it[0] == 'p': return [lambda: s.I(*s.poll_issue())]
        if it[0] == 'c': return [s.poll_check({'E': 0xff, 'Y': 0xff00, 'L': 0x3f0000}[it[1]]), lambda: s.stamp('ok' + it[1])]
        if it[0] == 'f':
            if s.typ != 'H': return []
            ev, tag, ph = {'Y': ('Sdone', 'HS', 1), 'L': ('F1done', 'HF1', 2)}[it[1]]
            def ff():
                s.until(ev); s.stamp('pfl' + it[1]); s.flag_prog(tag, ph)[0].f(); s.stamp('fl' + it[1])
            return [ff]
        raise ValueError(it)
    def p2_late(s):
        a, b, c = 240, 241, 242
        o = [f'v_lshrrev_b32 v{a}, 3, v{vL}', f'v_lshlrev_b32 v{a}, 10, v{a}', f'v_lshrrev_b32 v{b}, 4, v{vL}', f'v_and_b32 v{c}, 7, v{vL}',
             f'v_xor_b32 v{b}, v{b}, v{c}', f'v_lshl_add_u32 v{vC}, v{b}, 4, v{a}',
             f'v_xor_b32 v{vC+1}, 64, v{vC}', f'v_add_u32 v{vC+1}, 7168, v{vC+1}', f'v_add_u32 v{vC+2}, {7168*2}, v{vC}', f'v_add_u32 v{vC+3}, {7168*2}, v{vC+1}']
        return o
    def p2_late2(s):
        a, b, c = 240, 241, 242
        o = [f'v_and_b32 v{a}, 31, v{vL}', f'v_lshlrev_b32 v{a}, 7, v{a}', f'v_bfe_u32 v{c}, v{vL}, 1, 3', f'v_lshrrev_b32 v{b}, 5, v{vL}', f'v_xor_b32 v{c}, v{c}, v{b}',
             f'v_lshl_add_u32 v{a}, v{c}, 4, v{a}', f'v_add_u32 v{vY}, s{sW13}, v{a}']
        o += [f'v_xor_b32 v{vY+k}, {32*k}, v{vY}' for k in range(1, 4)]
        for k in range(4): s.half[vY + k] = 0
        return o
    tX, tS, tDk, tSo, tDo, tDf, tXf, tYi, tRo, tRy, tF, tXo, tOo = 32, 40, 48, 50, 51, 52, 56, 72, 88, 89, 90, 94, 95
    def tail_addr(s):
        a, b, c, d = 240, 241, 242, 243
        tRo, tRy, tF = s.tRo, s.tRy, s.tF
        def key(dst, row, tmp):
            return [f'v_bfe_u32 v{tmp}, v{row}, 3, 2', f'v_lshlrev_b32 v{tmp}, 1, v{tmp}', f'v_and_b32 v{dst}, 7, v{row}', f'v_xor_b32 v{dst}, v{dst}, v{tmp}']
        o = s.pi_ops(a, b) + key(c, a, b) + [f'v_lshrrev_b32 v{d}, 5, v{vL}', f'v_xor_b32 v{c}, v{c}, v{d}', f'v_lshlrev_b32 v{a}, 8, v{a}',
             f'v_lshl_add_u32 v{a}, v{c}, 4, v{a}', f's_add_u32 s{sTmp}, s{sW13}, {SLOT}', f'v_add_u32 v{tRo}, s{sTmp}, v{a}']
        r2 = s.cfg.get('reg2')
        sw_ = s.cfg.get('swap')
        if sw_:
            assert r2
            o[-2:] = [f's_add_u32 s{sTmp}, s{sW13}, {2*SLOT}', f'v_add_u32 v{tRy}, s{sTmp}, v{a}']
        elif r2: o += [f'v_add_u32 v{s.tRo2}, {3*SLOT}, v{tRo}']
        o += [f'v_and_b32 v{a}, 31, v{vL}'] + key(c, a, b) + [f'v_xor_b32 v{c}, v{c}, v{d}', f'v_lshlrev_b32 v{a}, 8, v{a}',
             f'v_lshl_add_u32 v{a}, v{c}, 4, v{a}'] + ([f's_add_u32 s{sTmp}, s{sW13}, {SLOT if r2 == 1 else 0}', f'v_add_u32 v{tRo}, s{sTmp}, v{a}', f'v_add_u32 v{s.tRo2}, {(3 if r2 == 1 else 4)*SLOT}, v{tRo}'] if sw_ else
             [f's_add_u32 s{sTmp}, s{sW13}, {(2 if r2 else 3)*SLOT}', f'v_add_u32 v{tRy}, s{sTmp}, v{a}'])
        o += [f'v_lshrrev_b32 v{b}, 4, v{vL}', f'v_and_b32 v{c}, 15, v{vL}', f'v_xor_b32 v{a}, v{b}, v{c}', f's_lshl_b32 s{sTmp}, s{sTp}, 2', f'v_xor_b32 v{a}, s{sTmp}, v{a}',
              f'v_lshlrev_b32 v{a}, 4, v{a}', f'v_lshl_add_u32 v{a}, v{b}, 8, v{a}',
              f's_lshl_b32 s{sTmp}, s{sTp}, 12', (f's_mul_i32 s{sTmp2}, s{sCp}, {(4 if r2 == 2 else 3)*SLOT}' if r2 else f's_lshl_b32 s{sTmp2}, s{sCp}, 15'), f's_add_u32 s{sTmp}, s{sTmp}, s{sTmp2}', f's_add_u32 s{sTmp}, s{sTmp}, {0 if r2 == 2 else SLOT}',
              f'v_add_u32 v{tF}, s{sTmp}, v{a}', f'v_xor_b32 v{tF+1}, 64, v{tF}', f'v_xor_b32 v{tF+2}, 32, v{tF}', f'v_xor_b32 v{tF+3}, 96, v{tF}',
              f'v_lshlrev_b32 v{s.tOo}, 11, v{b}', f'v_lshl_add_u32 v{s.tOo}, v{c}, 4, v{s.tOo}',
              f'v_lshlrev_b32 v{s.tXo}, 10, v{b}', f'v_lshl_add_u32 v{s.tXo}, v{c}, 3, v{s.tXo}',
              f'v_lshlrev_b32 v{s.tSo}, 3, v{b}', f'v_lshlrev_b32 v{s.tDo}, 3, v{c}', f'v_add_u32 v{s.tDo}, s{sDko}, v{s.tDo}']
        return o
    def tail_loads(s):
        o = []
        for i in range(4):
            o.append(s.atom([f's_add_u32 s{sTmp}, s{sXb}, {4096*i}', (f'buffer_load_dwordx2 v[{s.tX+2*i}:{s.tX+2*i+1}], v{s.tXo}, s[{sX}:{sX+3}], s{sTmp} offen', 'TX')]))
        for i in range(4):
            o.append((f'buffer_load_dwordx2 v[{s.tS+2*i}:{s.tS+2*i+1}], v{s.tSo}, s[{sWS}:{sWS+3}], s{sSb} offen offset:{32*i} sc1', 'TX'))
        o.append((f'global_load_dwordx2 v[{s.tDk}:{s.tDk+1}], v{s.tDo}, s[{kDk}:{kDk+1}]', 'TX'))
        return o
    def tail_early(s):
        eX, eS, eD, b, c = 204, 205, 218, 219, 220
        def f():
            I = s.I
            if s.typ == 'H': s.until('s3done')
            I(f'v_lshrrev_b32 v{b}, 4, v{vL}'); I(f'v_and_b32 v{c}, 15, v{vL}')
            I(f'v_lshlrev_b32 v{eX}, 10, v{b}'); I(f'v_lshl_add_u32 v{eX}, v{c}, 3, v{eX}')
            I(f'v_lshlrev_b32 v{eS}, 3, v{b}'); I(f'v_lshlrev_b32 v{eD}, 3, v{c}'); I(f'v_add_u32 v{eD}, s{sDko}, v{eD}')
            for i in range(4):
                I(f's_add_u32 s{sKa}, s{sXb}, {4096*i}')
                I(f'buffer_load_dwordx2 v[{s.tX+2*i}:{s.tX+2*i+1}], v{eX}, s[{sX}:{sX+3}], s{sKa} offen', 'TX')
            for i in range(4):
                I(f'buffer_load_dwordx2 v[{s.tS+2*i}:{s.tS+2*i+1}], v{eS}, s[{sWS}:{sWS+3}], s{sSb} offen offset:{32*i} sc1', 'TX')
            I(f'global_load_dwordx2 v[{s.tDk}:{s.tDk+1}], v{eD}, s[{kDk}:{kDk+1}]', 'TX')
        return f
    def tail_pre(s):
        tX, tS, tDk, tDf, tXf, tYi = s.tX, s.tS, s.tDk, s.tDf, s.tXf, s.tYi
        o = [f'v_lshlrev_b32 v{tDf}, 16, v{tDk}', f'v_and_b32 v{tDf+1}, 0xffff0000, v{tDk}', f'v_lshlrev_b32 v{tDf+2}, 16, v{tDk+1}', f'v_and_b32 v{tDf+3}, 0xffff0000, v{tDk+1}']
        for i in range(4):
            m = tS + 2 * i; rs = m + 1; x0 = tX + 2 * i; xf = tXf + 4 * i; y = tYi + 4 * i
            o += [f'v_lshlrev_b32 v{rs}, 16, v{m}', f'v_rcp_f32 v{rs}, v{rs}', f'v_and_b32 v{m}, 0xffff0000, v{m}',
                  f'v_lshlrev_b32 v{xf}, 16, v{x0}', f'v_and_b32 v{xf+1}, 0xffff0000, v{x0}', f'v_lshlrev_b32 v{xf+2}, 16, v{x0+1}', f'v_and_b32 v{xf+3}, 0xffff0000, v{x0+1}']
            o += [f'v_sub_f32 v{y+j}, v{xf+j}, v{m}' for j in range(4)]
            o += [f'v_mul_f32 v{y+j}, v{y+j}, v{rs}' for j in range(4)]
            o += [f'v_mul_f32 v{y+j}, v{y+j}, v{tDf+j}' for j in range(4)]
        return o
    tRo2 = 96
    def part_write(s, base, acc, base2=None, ees=(0, 1), ts=(0, 1)):
        o = []
        for ee in ees:
            for A in range(4):
                k = (8 * ee + 2 * A) * 16
                tmp = 240 + (A & 1); tmp2 = 242 + (A & 1)
                if k:
                    o.append(f'v_xor_b32 v{tmp}, {k}, v{base}')
                    if base2: o.append(f'v_xor_b32 v{tmp2}, {k}, v{base2}')
                else: tmp = base; tmp2 = base2
                for t in ts:
                    r = acc + 16 * (2 * ee + t) + 4 * A
                    if base2 and t: o.append(f'ds_write_b128 v{tmp2}, a[{r}:{r+3}]')
                    else: o.append(f'ds_write_b128 v{tmp}, a[{r}:{r+3}] offset:{t*SLOT}')
        return o
    tO = 96
    def o_gate(s):
        O = s.tO; T = 112
        o = []
        for i in range(4):
            for src in range(4):
                r = O + 16 * src + 4 * i
                o.append(f'ds_read_b128 v[{r}:{r+3}], v{s.tF+i} offset:{src*8192 + i*1024}')
        if s.cfg.get('reg2') == 2:
            o += [s.atom([f's_mul_i32 s{sTmp}, s{sCp}, {3*SLOT}', f's_sub_u32 s{sTmp}, {2*SLOT}, s{sTmp}'] + [f'v_add_u32 v{s.tF+i}, s{sTmp}, v{s.tF+i}' for i in range(4)])]
        elif s.cfg.get('reg2'):
            o += [s.atom([f's_lshl_b32 s{sTmp}, s{sCp}, 16', f's_sub_u32 s{sTmp}, {SLOT}, s{sTmp}'] + [f'v_add_u32 v{s.tF+i}, s{sTmp}, v{s.tF+i}' for i in range(4)])]
        else: o += [f'v_add_u32 v{s.tF+i}, {HALF}, v{s.tF+i}' for i in range(4)]
        for i in range(4):
            for j in range(4):
                r = O + 4 * i + j
                o += [f'v_add_f32 v{r}, v{r}, v{r+16}', f'v_add_f32 v{r+32}, v{r+32}, v{r+48}']
            for j in range(4):
                r = O + 4 * i + j
                o += [f'v_add_f32 v{r}, v{r}, v{r+32}']
        if s.cfg.get('swap'):
            for k in range(16): o.append(f'v_add_f32 v{O+k}, v{O+k}, v{s.tYi+k}')
            return o
        for r in range(O, O + 16): o.append(f'v_mul_f32 v{r+16}, {NLOG2E:#x}, v{r}')
        for r in range(O, O + 16): o.append(f'v_exp_f32 v{r+16}, v{r+16}')
        for r in range(O, O + 16): o.append(f'v_add_f32 v{r+16}, 1.0, v{r+16}')
        for r in range(O, O + 16): o.append(f'v_rcp_f32 v{r+16}, v{r+16}')
        for r in range(O, O + 16): o.append(f'v_mul_f32 v{r}, v{r}, v{r+16}')
        return o

    def p2(s):
        e = s.e; I = s.I; cfg = s.cfg; H = s.typ == 'H'
        sched = cfg['sched']
        e.wait_tag('W0')
        for f in s.readA(0, 0, 0): f()
        buf = 0
        def acc(ty, ee, t):
            b = (ACCO if ty == 'o' else ACCY) + 16 * (2 * ee + t)
            return f'a[{b}:{b+15}]'
        started = set()
        dma = deque()
        swap = cfg.get('swap')
        ACCF, ACCL = (ACCY, ACCO) if swap else (ACCO, ACCY)
        qo = max(q for q in range(11) if s.TYPES[q][0] == ('y' if swap else 'o')) + 1
        assert (qo == 8 and cfg.get('reg2') == 1 and cfg.get('qbar', -1) >= 0) or (qo == 9 and not cfg.get('reg2')) or \
            (qo == 7 and cfg.get('reg2') == 2 and swap and 0 <= cfg.get('qbar', -1) <= 7 and cfg.get('wslot') == {10: 1} and any('W10' in x for x in sched[8:]))
        stag = cfg.get('stag')
        def rdS(ee, s_):
            r = 16 * ee + 4 * s_
            def f():
                if s.TYPES[10][0] == 'o':
                    va = vA0 if ee == 0 else vA1
                    o = s.addr(va, s.wslot(10))
                    for k in range(2): s.I(f'ds_read_b64_tr_b16 v[{r+2*k}:{r+2*k+1}], v{va} offset:{o + s_*2048 + 1024*k}')
                    return
                o = s.addr(vY + s_, s.wslot(10))
                s.I(f'ds_read_b128 v[{r}:{r+3}], v{vY+s_} offset:{o + ee*4096}')
            return f
        def FA(qq, ee, s_): return (208 if ee else 0) + 16 * (qq - 9) + 4 * s_
        def rdQ(qq, ee, s_):
            r = FA(qq, ee, s_)
            def f():
                va = vA0 if ee == 0 else vA1
                o = s.addr(va, s.wslot(qq))
                for k in range(2): s.I(f'ds_read_b64_tr_b16 v[{r+2*k}:{r+2*k+1}], v{va} offset:{o + s_*2048 + 1024*k}')
            return f
        for q in range(11):
            ty, j = s.TYPES[q]
            if cfg.get('sc3'):
                ity = lambda n: s.TYPES[n][0] == 'y'
                if any(it[0] == 'W' and ity(int(it[1:])) for it in sched[q]) or (q + 1 < 11 and ity(q + 1)): s.until('late')
                if q == cfg['tq']: s.add(s.tail_addr())
                if q == 6: s.drain()
            for it in sched[q]: dma.extend(s.sched_item(it))
            if s.typ == 'L': dma.extend(s.pfL(f'q{q}'))
            if not cfg.get('sc3'):
                if q == 2: s.add(s.tail_addr())
                if q == 3:
                    s.until('Sdone'); s.add(s.p2_late())
                if q == 4: s.drain(); s.add(s.p2_late2())
                if q == 6: s.drain()
            if q == 7 and not cfg.get('tearly'): s.add(s.tail_loads())
            if q == cfg.get('tpq', 8): s.add(s.tail_pre())
            if q == cfg.get('qbar', -1): s.barrier('BQ')
            if q == qo:
                pw = s.part_write(s.tRo, ACCF, s.tRo2 if cfg.get('reg2') else None)
                if cfg.get('pwc'):
                    g = []; cur = []; nw = 0
                    for x in pw:
                        cur.append(x)
                        if x.startswith('ds_write'):
                            a_ = Atom(cur); a_.cost = cfg['pwc']; g.append(a_); cur = []
                            pwp = cfg.get('pwp', [0]); g += [('skip', 0)] * pwp[nw % len(pwp)]; nw += 1
                    assert not cur
                    pw = g
                s.add(pw)
            def bo():
                s.drain(); s.barrier('BO')
                og = s.o_gate()
                if cfg.get('prc'):
                    def wrap(x):
                        if isinstance(x, str) and x.startswith('ds_read'):
                            a_ = Atom([x]); a_.cost = cfg['prc']; return a_
                        return x
                    og = [wrap(x) for x in og]
                s.add(og)
            bok = cfg.get('bok', 0)
            if q == qo + 1 and bok == 0: bo()
            bud = cfg['budP0'] if q < 3 else cfg['budP']
            if q >= qo: bud = cfg.get('budT', bud)
            if cfg.get('mrg') and q == 10: continue
            if cfg.get('mrg') and q == 9:
                assert swap and cfg.get('chain') and s.TYPES[9][0] == 'o' and s.TYPES[10][0] == 'o' and not dma and not sched[10]
                dl = cfg.get('chd', 2)
                aops = deque([rdQ(9, 1, x) for x in range(4)] + [rdQ(10, 0, x) for x in range(4)] + [rdQ(10, 1, x) for x in range(4)])
                order_ = [(0, 0, 9), (0, 1, 9), (0, 0, 10), (0, 1, 10), (1, 0, 9), (1, 0, 10), (1, 1, 9), (1, 1, 10)]
                done_ = {12 + dl - 1: (0, 0), 16 + dl - 1: (0, 1), 24 + dl - 1: (1, 0)}
                yw = deque(); k = 0
                for (ee, t, qq) in order_:
                    for s_ in range(4):
                        r = FA(qq, ee, s_)
                        br = (qq & 3) * 32 + 8 * s_ + 4 * t
                        A = acc('o', ee, t)
                        I(f'v_mfma_f32_32x32x16_bf16 {A}, v[{r}:{r+3}], a[{br}:{br+3}], {A}')
                        n0 = e.n
                        if k == 4: e.wait_tag('W10')
                        if bok and q > qo and 16 * (q - qo - 1) + k == bok: bo()
                        if aops: aops.popleft()()
                        if k in done_: yw.extend(s.part_write(s.tRy, ACCL, ees=(done_[k][0],), ts=(done_[k][1],)))
                        for _ in range(cfg.get('ywn', 2)):
                            if yw: I(yw.popleft())
                        s.gap(n0, bud)
                        k += 1
                        if k == 16: s.stamp('q9e')
                while yw: I(yw.popleft())
                continue
            if stag and q == 10:
                assert ty == ('o' if swap else 'y')
                aops = deque(rdS(1, s_) for s_ in range(4)); yw = deque()
                k = 0
                if cfg.get('chain'):
                    dl = cfg.get('chd', 2)
                    order_ = [(ee, t, s_) for ee in range(2) for t in range(2) for s_ in range(4)]
                    for k, (ee, t, s_) in enumerate(order_):
                        r = 16 * ee + 4 * s_
                        br = (q & 3) * 32 + 8 * s_ + 4 * t
                        A = acc(ty, ee, t)
                        I(f'v_mfma_f32_32x32x16_bf16 {A}, v[{r}:{r+3}], a[{br}:{br+3}], {A}')
                        n0 = e.n
                        if aops: aops.popleft()()
                        if k >= 4 + dl - 1 and (k - (dl - 1)) % 4 == 0:
                            tl = (k - (dl - 1)) // 4 - 1
                            yw.extend(s.part_write(s.tRy, ACCL, ees=(tl >> 1,), ts=(tl & 1,)))
                        for _ in range(cfg.get('ywn', 2)):
                            if yw: I(yw.popleft())
                        s.gap(n0, bud)
                    while yw: I(yw.popleft())
                    s.stamp(f'q{q}e')
                    continue
                for ee in range(2):
                    for s_ in range(4):
                        for t in range(2):
                            r = 16 * ee + 4 * s_
                            br = (q & 3) * 32 + 8 * s_ + 4 * t
                            A = acc(ty, ee, t)
                            I(f'v_mfma_f32_32x32x16_bf16 {A}, v[{r}:{r+3}], a[{br}:{br+3}], {A}')
                            n0 = e.n
                            if aops: aops.popleft()()
                            if k == 8: yw.extend(s.part_write(s.tRy, ACCL, ees=(0,)))
                            if k >= 9:
                                for _ in range(cfg.get('ywn', 2)):
                                    if yw: I(yw.popleft())
                            s.gap(n0, bud)
                            k += 1
                while yw: I(yw.popleft())
                s.stamp(f'q{q}e')
                continue
            for s_ in range(4):
                if cfg.get('mrg') and q == 8 and s_ == 3: aops = deque(rdQ(9, 0, x) for x in range(4)); needw = 'W9'
                elif stag and q == 9 and s_ == 3: aops = deque(rdS(0, x) for x in range(4)); needw = 'W10'
                elif s_ < 3: aops = deque(s.readA(q, s_ + 1, buf ^ 1)); needw = None
                elif q + 1 < 11: aops = deque(s.readA(q + 1, 0, buf ^ 1)); needw = f'W{q+1}'
                else: aops = deque(); needw = None
                k = 0
                for ee in range(2):
                    for t in range(2):
                        r = WF + 8 * buf + 4 * ee
                        br = (q & 3) * 32 + 8 * s_ + 4 * t
                        A = acc(ty, ee, t)
                        cs = A if (ty, ee, t) in started else '0'
                        started.add((ty, ee, t))
                        I(f'v_mfma_f32_32x32x16_bf16 {A}, v[{r}:{r+3}], a[{br}:{br+3}], {cs}')
                        n0 = e.n
                        if k == 0 and needw: e.wait_tag(needw)
                        if bok and 16 * (q - qo - 1) + 4 * s_ + k == bok and q > qo: bo()
                        if aops: aops.popleft()()
                        left = max(1, cfg.get('fastq', {}).get(q, 16) - (4 * s_ + k))
                        s.pace(dma, left)
                        s.gap(n0, bud)
                        k += 1
                while aops: aops.popleft()()
                buf ^= 1
            while dma: dma.popleft()()
            s.stamp(f'q{q}e')
        s.drain()
        s.stamp('P2end')
        for x in s.part_write(s.tRy, ACCL, ees=((1,) if stag else (0, 1)), ts=((1,) if cfg.get('chain') else (0, 1))): I(x)
        pk = cfg.get('pk')
        if pk:
            for j in range(2): I(f'v_mov_b32 v{160+j}, {NLOG2E:#x}'); I(f'v_mov_b32 v{162+j}, 1.0')
        s.barrier('BY')
        Y = [0, 112, 128, 144]
        for i in range(4):
            for src in range(4):
                r = Y[src] + 4 * i
                I(f'ds_read_b128 v[{r}:{r+3}], v{s.tF+i} offset:{src*8192 + i*1024}')
        for i in range(4):
            if swap and pk:
                P = lambda op, d, a, b: I(f'{op} v[{d}:{d+1}], v[{a}:{a+1}], v[{b}:{b+1}]')
                r = Y[0] + 4 * i; T = Y[1] + 4 * i
                for j in (0, 2): P('v_pk_add_f32', r + j, r + j, Y[3] + 4 * i + j); P('v_pk_add_f32', T + j, T + j, Y[2] + 4 * i + j)
                for j in (0, 2): P('v_pk_add_f32', r + j, r + j, T + j)
                for j in (0, 2): P('v_pk_mul_f32', T + j, r + j, 160)
                for j in range(4): I(f'v_exp_f32 v{T+j}, v{T+j}')
                for j in (0, 2): P('v_pk_add_f32', T + j, T + j, 162)
                for j in range(4): I(f'v_rcp_f32 v{T+j}, v{T+j}')
                for j in (0, 2): P('v_pk_mul_f32', r + j, r + j, T + j)
                for j in (0, 2): I(f'v_pk_fma_f32 v[{r+j}:{r+j+1}], v[{r+j}:{r+j+1}], v[{s.tO+4*i+j}:{s.tO+4*i+j+1}], v[{s.tXf+4*i+j}:{s.tXf+4*i+j+1}]')
                I(f's_add_u32 s{sTmp}, s{sOb}, {8192*i}')
                I(f'buffer_store_dwordx4 v[{r}:{r+3}], v{s.tOo}, s[{sOUT}:{sOUT+3}], s{sTmp} offen' + s.cfg.get('osc', ''))
                continue
            if swap:
                for j in range(4):
                    I(f'v_add_f32 v{Y[0]+4*i+j}, v{Y[0]+4*i+j}, v{Y[3]+4*i+j}'); I(f'v_add_f32 v{Y[1]+4*i+j}, v{Y[1]+4*i+j}, v{Y[2]+4*i+j}')
                for j in range(4):
                    I(f'v_add_f32 v{Y[0]+4*i+j}, v{Y[0]+4*i+j}, v{Y[1]+4*i+j}')
                T = Y[1] + 4 * i; r = Y[0] + 4 * i
                for j in range(4): I(f'v_mul_f32 v{T+j}, {NLOG2E:#x}, v{r+j}')
                for j in range(4): I(f'v_exp_f32 v{T+j}, v{T+j}')
                for j in range(4): I(f'v_add_f32 v{T+j}, 1.0, v{T+j}')
                for j in range(4): I(f'v_rcp_f32 v{T+j}, v{T+j}')
                for j in range(4): I(f'v_mul_f32 v{r+j}, v{r+j}, v{T+j}')
            else:
              for j in range(4):
                I(f'v_add_f32 v{Y[0]+4*i+j}, v{Y[0]+4*i+j}, v{s.tYi+4*i+j}'); I(f'v_add_f32 v{Y[1]+4*i+j}, v{Y[1]+4*i+j}, v{Y[2]+4*i+j}')
              for j in range(4):
                I(f'v_add_f32 v{Y[0]+4*i+j}, v{Y[0]+4*i+j}, v{Y[3]+4*i+j}')
              for j in range(4):
                I(f'v_add_f32 v{Y[0]+4*i+j}, v{Y[0]+4*i+j}, v{Y[1]+4*i+j}')
            for j in range(4):
                I(f'v_fma_f32 v{Y[0]+4*i+j}, v{Y[0]+4*i+j}, v{s.tO+4*i+j}, v{s.tXf+4*i+j}')
            I(f's_add_u32 s{sTmp}, s{sOb}, {8192*i}')
            I(f'buffer_store_dwordx4 v[{Y[0]+4*i}:{Y[0]+4*i+3}], v{s.tOo}, s[{sOUT}:{sOUT+3}], s{sTmp} offen' + s.cfg.get('osc', ''))

    def body(s):
        e = s.e; I = s.I; cfg = s.cfg; typ = s.typ
        s.prologue()
        H = typ == 'H'
        tb_ = s.capture(s.tab)
        skip = cfg.get('skip', ())
        K = lambda n, l: [] if n in skip else (l() if callable(l) else l)
        s.add(K('pub', s.pub_prog) + [s.fstamp('pub')] + K('tab', tb_) + [s.mark('tabdone')])
        o1, o2 = s.fcs_prog()
        s.add([s.gate(f'B{cfg["fcs"]}')] + K('fcs', o1 + o2) + [s.fstamp('fcs')])
        s.add([s.gate(f'B{cfg["gA_issue"]}')] + K('gA', s.gA_issue))
        s.add([s.gate(f'B{cfg["gB_issue"]}')] + K('gB', s.gB_issue))
        s.add([s.gate(f'B{cfg["gA_proc"]}')] + K('gA', s.gA_proc) + [s.mark('gAdone'), s.fstamp('gA')])
        s.add([s.gate(f'B{cfg["gB_proc"]}')] + K('gB', s.gB_proc) + [s.mark('gBdone'), s.fstamp('gB')])
        if cfg.get('stopA'):
            s.stopA = True
        def readsA(st, ks):
            b = WF + 8 * ((4 * st + ks) & 1)
            xp = cfg.get('xp', '')
            return ([] if 'S' in xp else s.rd_S(st, ks, b)) + ([] if 'x' in xp else s.rd_x(st, ks, 0) + s.rd_x(st, ks, 1)) + ([] if 'W' in xp else s.rd_W(st & 3, 24576 + 2048 * ks, b + 4))
        pf = cfg['pf']; NR = 4
        assert pf == 3
        npass = 3 if H else 1
        order = [(p, kk) for p in range(npass) for kk in range(32)]
        def rdP(idx):
            p, kk = order[idx]
            st = 8 + 2 * p + (kk >> 4)
            return s.rd_W(st & 3, (kk & 15) * 2048, WF + 4 * (idx % NR))
        dma = deque(s.dma_list(2))
        for f in readsA(0, 0): f()
        nst = 8 + 2 * npass
        def next_dma(stb):
            l = next_dma0(stb)
            if H:
                for k, (b, unit) in enumerate(cfg.get('pf2', ())):
                    if b == stb: l = l + [s.pf2_item(unit, k)]
            else: l = l + s.pfL(f'B{stb}')
            return l
        def next_dma0(stb):
            l = []
            if 'D' in cfg.get('xp', ''): return l
            if 'H' in cfg.get('xp', ''): return s.dma_list(stb + 2)[:4]
            if stb == 1: l = (s.dma_csc() + s.dma_list(3)) if cfg['fcs'] <= 3 else (s.dma_list(3) + s.dma_csc())
            elif stb < 8: l = s.dma_list(stb + 2)
            elif stb == 8: l = (s.dma_list(10) + s.dma_list(11)) if nst > 11 else []
            elif stb + 3 < nst: l = s.dma_list(stb + 3)
            elif H and cfg['p2'] and stb in (11, 12, 13): l = s.issueW(stb - 11)
            return l
        for st in range(8):
            for ks in range(4):
                kk = 4 * st + ks
                b = WF + 8 * (kk & 1)
                if ks < 3: nxt = readsA(st, ks + 1)
                elif st < 7: nxt = readsA(st + 1, 0)
                else: nxt = []
                nxt = deque(nxt)
                seq = [(aS, 0, True), (aS, 1, True), (aG0, 0, False), (aG0, 1, False)]
                for m, (base, t, isS) in enumerate(seq):
                    acc = base + 16 * t
                    xr = (kk * 2 + t) * 4
                    w = f'v[{b}:{b+3}]' if isS else f'v[{b+4}:{b+7}]'
                    c = '0' if kk == 0 else f'v[{acc}:{acc+15}]'
                    if isS: I(f'v_mfma_f32_32x32x16_bf16 v[{acc}:{acc+15}], a[{xr}:{xr+3}], {w}, {c}')
                    else: I(f'v_mfma_f32_32x32x16_bf16 v[{acc}:{acc+15}], {w}, a[{xr}:{xr+3}], {c}')
                    n0 = e.n
                    if ks == 3 and m == 0:
                        if st + 1 == 6: s.until('tabdone')
                        if st + 1 == cfg['gBbar'] and not cfg.get('stopA'): s.until('gBdone')
                        s.barrier(f'B{st+1}', f'D{st+1}')
                        while dma: dma.popleft()()
                        dma = deque(next_dma(st + 1))
                        if st == 7:
                            nxt = deque(rdP(0) + rdP(1))
                        n0 = e.n
                    nrd = 2 if m < 2 else 1
                    if m == 3: nrd = 9
                    for _ in range(nrd):
                        if nxt: nxt.popleft()()
                    left = 16 - (4 * ((ks + 1) & 3) + m)
                    s.pace(dma, left)
                    s.gap(n0, cfg['budA'])
        s.stamp('Aend')
        if cfg.get('stopA'):
            s.drain(); s.stamp('end'); s.final_stamps(); e.raw('s_endpgm')
            for f in s.slow: f()
            return
        s.until('gAdone')
        gb = s.gate(f'B{cfg["gBbar"]}')
        totb = cfg['totb'] if H else 10
        sc3 = H and cfg.get('sc3')
        if sc3:
            totb = None
            G1p = [s.gate('Cend')] + s.aug_F(aG1, 2) + s.g_part(aG1, 0, 64) + s.g_part(aG1 + 16, 1, 64) + [s.mark('G1done'), s.fstamp('G1')]
            gk = lambda k: [s.gate(f'p{cfg[k][0]}k{cfg[k][1]}')] if cfg.get(k) else []
            G0p = [gb] + s.aug_F(aG0, 0) + s.g_part(aG0, 0, 152) + s.g_part(aG0 + 16, 1, 152) + [s.fstamp('G0')]
            S1p = s.aug_S() + s.s1(0) + s.s1(1) + [s.mark('s1done'), s.fstamp('s1'), s.gate('TOT')] + s.s2() + [s.fstamp('s2')]
            prog = (G0p + S1p) if cfg.get('g0first') else (S1p + G0p)
            prog += [s.gate('Bend')] + s.aug_F(aU0, 1) + s.u_part(aG0, aU0, 0, 0) + s.u_part(aG0 + 16, aU0 + 16, 1, 0) + [s.mark('F0done'), s.fstamp('F0st')]
            prog += gk('s3ik') + s.s3_issue() + [s.fstamp('s3i')] + gk('s3pk') + s.s3() + [s.mark('s3done'), s.fstamp('s3')]
            gp = cfg['g1pos']
            prog += (G1p if gp == 0 else []) + s.s4(0) + (G1p if gp == 1 else []) + s.s4(1) + [s.mark('Sdone'), s.fstamp('Sdone')]
            prog += s.p2_late() + s.p2_late2() + [s.mark('late')] + (G1p if gp == 2 else [])
            prog += [s.gate('Dend')] + s.aug_F(aU1, 3) + s.u_part(aG1, aU1, 0, 1) + s.u_part(aG1 + 16, aU1 + 16, 1, 1) + [s.mark('F1done'), s.fstamp('F1st')]
            s.add(prog)
        elif H:
            s.add([gb] + s.aug_F(aG0, 0) + s.g_part(aG0, 0, 152) + s.g_part(aG0 + 16, 1, 152) + [s.fstamp('G0')] +
                  [s.gate('Bend')] + s.aug_F(aU0, 1) + s.u_part(aG0, aU0, 0, 0) + s.u_part(aG0 + 16, aU0 + 16, 1, 0) + [s.mark('F0done'), s.fstamp('F0st')] +
                  s.aug_S() + s.s1(0) + s.s1(1) + [s.mark('s1done')])
        else:
            s.add(s.aug_S() + s.s1(0) + [gb] + s.aug_F(aG0, 0) + s.g_part(aG0, 0, 152) + s.s1(1) + [s.mark('s1done')] + s.g_part(aG0 + 16, 1, 152))
        issued = 2
        for f in rdP(2): f()
        issued = 3
        for idx, (p, kk) in enumerate(order):
            st = 8 + 2 * p + (kk >> 4)
            fr = WF + 4 * (idx % NR)
            accb = [aU0, aG1, aU1][p]
            bud = [cfg['budB'], cfg['budC'], cfg['budD']][p]
            s.events.add(f'p{p}k{kk}')
            if sc3 and p == 0 and kk == cfg['totk']:
                s.until('s1done'); s.barrier('TOT')
            if sc3 and (p, kk) == tuple(cfg['flEk']):
                s.until('F0done'); s.addfront(s.flag_prog('HF0', 0) + [s.mark('flEdone'), s.fstamp('flE')])
            if sc3 and cfg.get('fYk') and (p, kk) == tuple(cfg['fYk']):
                s.until('Sdone'); s.addfront(s.flag_prog('HS', 1) + [s.fstamp('flY')])
            if (kk & 15) == 16 - pf and (st + 1 < nst or (H and cfg['p2'])):
                if st + 1 == cfg['gBbar']: s.until('gBdone')
                if st + 1 == totb: s.until('s1done')
                if H and not sc3 and st + 1 == cfg['flEb']: s.until('F0done')
                s.barrier(f'B{st+1}', f'D{st+1}' if st + 1 < nst else None)
                if H and not sc3 and st + 1 == cfg['s3b']: s.addfront(s.s3_issue())
                if st + 1 == totb: s.addfront(s.s2() + [s.mark('s2done'), s.fstamp('s2')])
                if H and not sc3 and st + 1 == cfg['flEb']: s.addfront(s.flag_prog('HF0', 0) + [s.mark('flEdone'), s.fstamp('flE')])
                if p == 2 and cfg.get('nofl') and kk >= cfg['cE']: dma.extend(next_dma(st + 1))
                else:
                    while dma: dma.popleft()()
                    dma = deque(next_dma(st + 1))
            if p == 2:
                if kk == 0 and not sc3:
                    s.add(s.aug_F(aG1, 2) + s.g_part(aG1, 0, 64) + s.g_part(aG1 + 16, 1, 64) + [s.mark('G1done'), s.fstamp('G1')])
                if cfg['p2']:
                    if kk == cfg['pE']: dma.appendleft(lambda: s.I(*s.poll_issue()))
                    if kk == cfg['cE']:
                        s.until('flEdone')
                        dma.append(lambda: s.stamp('epre'))
                        dma.append(s.poll_check(0xff))
                        dma.append(lambda: s.stamp('eok'))
                        if cfg.get('hE'): dma.append(s.issueH(cfg['hE']))
                        for q in range(cfg.get('nEB', 2)): dma.extend(s.issueB(q))
                        if cfg.get('tearly'): dma.append(s.tail_early())
                        if cfg.get('gE'): dma.append(s.issueG(cfg['gE']))
            nxt = deque()
            if issued < len(order):
                nxt = deque(rdP(issued)); issued += 1
            for t in range(2):
                acc = accb + 16 * t
                xr = (kk * 2 + t) * 4
                c = '0' if kk == 0 else f'v[{acc}:{acc+15}]'
                I(f'v_mfma_f32_32x32x16_bf16 v[{acc}:{acc+15}], v[{fr}:{fr+3}], a[{xr}:{xr+3}], {c}')
                n0 = e.n
                if nxt: nxt.popleft()()
                if p == 2 and kk >= cfg['cE'] and cfg['p2']: left = 2 * (cfg.get('dEnd', 32) - kk) - t
                else: left = 32 - (2 * (((kk & 15) + pf) & 15) + t)
                s.pace(dma, left)
                s.gap(n0, bud)
            if kk == 31:
                s.stamp(['Bend', 'Cend', 'Dend'][p]); s.events.add(['Bend', 'Cend', 'Dend'][p])
        while dma: dma.popleft()()
        if not H:
            s.until('s1done')
            s.barrier('B10')
            if cfg['p2'] and not cfg.get('Lw', 1):
                for q in range(3):
                    for f in s.issueW(q): f()
            s.addfront(s.s2())
            s.add(s.aug_F(aU0, 1) + s.u_part(aG0, aU0, 0, 0) + s.u_part(aG0 + 16, aU0 + 16, 1, 0))
            s.drain()
            for f in s.pfL('F0'): f()
            if cfg['p2'] and cfg.get('Lw', 1) == 1:
                for q in range(3):
                    for f in s.issueW(q): f()
            s.stamp('F1st')
            fE = s.flag_prog('HF0', 0) + [s.fstamp('flE')]
            post = [Fn(f, 8) for f in s.pfL('s3i')]
            if cfg['p2'] and cfg.get('Lw', 1) == 2:
                post += [Fn(f, 8) for q in range(3) for f in s.issueW(q)]
            pre_ = (fE + s.s3_issue() + post if cfg.get('LfE', 0) else s.s3_issue() + post + fE) + s.s3() + [s.fstamp('s3')] + s.s4(0) + s.s4(1) + [s.mark('Sdone'), s.fstamp('Sdone')]
            if cfg.get('Lw', 1) == 4:
                Wl = [Fn(f, 8) for q in range(3) for f in s.issueW(q)]
                Bl = [Fn(f, 8) for q in range(cfg.get('nEB', 2)) for f in s.issueB(q)]
                chk_ = [Fn(s.poll_check(0xff), 8), s.fstamp('eok')] + ([Fn(s.issueH(cfg['hE']), 8)] if cfg.get('hE') else [])
                s.add(pre_ + [Fn(lambda: s.I(*s.poll_issue()), 8)] + [Fn(f, 8) for f in s.pfL('S')] + Wl + s.flag_prog('HS', 1) + [s.fstamp('flY')] + chk_ + Bl + ([Fn(s.tail_early(), 8)] if cfg.get('tearly') else []) + ([Fn(s.issueG(cfg['gE']), 8)] if cfg.get('gE') else []) +
                      [Fn(f, 8) for f in s.pfL('S2')] + s.p2_late() + s.p2_late2() + [s.mark('late')])
                s.drain()
            else:
                s.add(pre_ + [Fn(f, 8) for f in s.pfL('S')] + s.flag_prog('HS', 1) + [s.fstamp('flY')] + [Fn(f, 8) for f in s.pfL('S2')])
                if cfg['p2'] and cfg.get('Lw', 1) == 3: s.add([Fn(f, 8) for q in range(3) for f in s.issueW(q)])
                if cfg.get('sc3'): s.add(s.p2_late() + s.p2_late2() + [s.mark('late')])
                s.drain()
                if cfg['p2']:
                    I(*s.poll_issue()); s.poll_check(0xff)(); s.stamp('eok')
                    if cfg.get('hE'): s.issueH(cfg['hE'])()
                    if cfg.get('gE'): s.issueG(cfg['gE'])()
                    for q in range(cfg.get('nEB', 2)):
                        for f in s.issueB(q): f()
        elif not sc3:
            s.add(s.aug_F(aU1, 3) + s.u_part(aG1, aU1, 0, 1) + s.u_part(aG1 + 16, aU1 + 16, 1, 1) + [s.fstamp('F1st')] + s.s3() + [s.fstamp('s3')] + s.s4(0) + s.flag_prog('HF1', 2) + [s.fstamp('flL')] +
                  s.s4(1) + [s.mark('Sdone'), s.fstamp('Sdone')] + ['s_nop 0'] * cfg.get('ydelay', 0) + s.flag_prog('HS', 1) + [s.fstamp('flY')])
        if sc3 and cfg.get('f1first', 1):
            s.until('F1done')
        if cfg['p2']: s.p2()
        else: s.drain()
        s.stamp('end')
        s.final_stamps()
        e.raw('s_endpgm')
        for f in s.slow: f()
    def gate_mark(s, ev): return ('gate', ev)

def gen_fz(ts=False, cfg=None):
    e = Em(); I = e.I
    cfg = cfg or {}
    e.raw('s_cmp_ge_u32 s2, 256'); e.raw('s_cbranch_scc1 FZ_done')
    I(f's_load_dwordx16 s[64:79], s[0:1], 0')
    I(f's_load_dwordx8 s[80:87], s[0:1], 64')
    I(f's_load_dwordx8 s[88:95], s[0:1], 96')
    e.raw(f's_memrealtime s[{sSB}:{sSB+1}]')
    if ts: e.raw(f'{ts} s[98:99]')
    I(f'v_and_b32 v{vL}, 63, v0'); I(f'v_lshrrev_b32 v{vT}, 6, v0'); I(f'v_readfirstlane_b32 s{sw}, v{vT}')
    if cfg.get('codepf', 1):
        e.raw('s_getpc_b64 s[4:5]'); e.label('PF_base')
        I(f's_lshr_b32 s6, s2, 3'); I(f's_and_b32 s6, s6, 1'); I(f's_lshl_b32 s6, s6, 15')
        I(f'v_lshlrev_b32 v{vT+1}, 7, v0'); I(f'v_add_u32 v{vT+1}, s6, v{vT+1}')
        e.raw(f'v_min_u32 v{vT+1}, TEXT_END-PF_base-4, v{vT+1}')
        I(f'v_mov_b32 v{vT+4}, s4'); I(f'v_mov_b32 v{vT+5}, s5')
        I(f'v_add_co_u32 v{vT+4}, vcc, v{vT+4}, v{vT+1}'); I(f'v_addc_co_u32 v{vT+5}, vcc, 0, v{vT+5}, vcc')
        I(f'global_load_dword v{vDUM}, v[{vT+4}:{vT+5}], off')
    I(f's_and_b32 s{sTmp}, s2, 7'); I(f's_lshr_b32 s{sTmp2}, s2, 3')
    I(f's_lshr_b32 s{sRho}, s{sTmp2}, 2'); I(f's_and_b32 s{sU}, s{sTmp2}, 3')
    I(f's_and_b32 s{sTmp3}, s{sTmp}, 1'); I(f's_lshl_b32 s{sR}, s{sRho}, 1'); I(f's_add_u32 s{sR}, s{sR}, s{sTmp3}')
    I(f's_lshr_b32 s{sG}, s{sTmp}, 1'); I(f's_lshl_b32 s{sC}, s{sG}, 2'); I(f's_add_u32 s{sC}, s{sC}, s{sU}')
    I(f's_lshl_b32 s{sTmp}, s{sU}, 1')
    offm = cfg.get('offm', 'zero')
    if offm == 'cur': I(f's_add_u32 s{sOff}, s{sRho}, s{sTmp}'); I(f's_and_b32 s{sOff}, s{sOff}, 7')
    elif offm == 'zero': I(f's_mov_b32 s{sOff}, 0')
    elif offm == 'rho': I(f's_mov_b32 s{sOff}, s{sRho}')
    elif offm == 'u2': I(f's_mov_b32 s{sOff}, s{sTmp}')
    elif offm == 'rho4': I(f's_and_b32 s{sOff}, s{sRho}, 1'); I(f's_lshl_b32 s{sOff}, s{sOff}, 2')
    elif offm == 'rho2': I(f's_and_b32 s{sOff}, s{sRho}, 3'); I(f's_lshl_b32 s{sOff}, s{sOff}, 1')
    elif offm == 'xcd': I(f's_and_b32 s{sOff}, s2, 7')
    I(f's_mul_i32 s{sSo2}, s{sG}, 7'); I(f's_add_u32 s{sSo2}, s{sSo2}, s{sTmp}'); I(f's_lshl_b32 s{sSo2}, s{sSo2}, 7')
    I(f's_and_b32 s{sTp}, s{sw}, 1'); I(f's_lshr_b32 s{sCp}, s{sw}, 1')
    for s_, n in [(sX, 2048*512*2), (sW1, 512*1792*2), (sW3, 512*1792*2), (sCSC, 512*1792*2), (sSB, 512*512*2), (sWS, WS_SIZE), (sDBG, 256)]:
        I(f's_mov_b32 s{s_+2}, {n}'); I(f's_mov_b32 s{s_+3}, 0x00020000')
    I(f's_lshl_b32 s{sXo}, s{sR}, 2'); I(f's_add_u32 s{sXo}, s{sXo}, s{sw}'); I(f's_lshl_b32 s{sXo}, s{sXo}, 15')
    I(f's_lshl_b32 s{sSo}, s{sC}, 15'); I(f's_lshl_b32 s{sTmp}, s{sTp}, 13'); I(f's_add_u32 s{sSo}, s{sSo}, s{sTmp}')
    I(f's_mul_i32 s{sFo}, s{sw}, {16*WROW}'); I(f's_add_u32 s{sFo}, s{sFo}, s{sSo2}')
    I(f's_lshl_b32 s{sW12}, s{sw}, 12'); I(f's_lshl_b32 s{sW11}, s{sw}, 11'); I(f's_lshl_b32 s{sW13}, s{sw}, 13')
    a, b, c, d = vT, vT + 1, vT + 2, vT + 3
    I(f'v_lshlrev_b32 v{vHB}, 4, v{vL}')
    I(f'v_lshrrev_b32 v{a}, 5, v{vL}'); I(f'v_lshlrev_b32 v{a}, 4, v{a}'); I(f'v_and_b32 v{b}, 8, v{vL}'); I(f'v_add_u32 v{a}, v{a}, v{b}')
    I(f'v_bfe_u32 v{b}, v{vL}, 4, 1'); I(f'v_add_u32 v{a}, v{a}, v{b}'); I(f'v_lshlrev_b32 v{a}, 10, v{a}')
    I(f'v_and_b32 v{b}, 7, v{vL}'); I(f'v_lshrrev_b32 v{c}, 4, v{vL}'); I(f'v_xor_b32 v{d}, v{b}, v{c}')
    I(f'v_lshl_add_u32 v{vDX}, v{d}, 4, v{a}')
    I(f'v_xor_b32 v{vDX+1}, 64, v{vDX}'); I(f'v_add_u32 v{vDX+1}, 1024, v{vDX+1}')
    I(f'v_add_u32 v{vDX+2}, 2048, v{vDX}'); I(f'v_add_u32 v{vDX+3}, 2048, v{vDX+1}')
    I(f'v_bfe_u32 v{a}, v{vL}, 4, 1'); I(f'v_lshlrev_b32 v{a}, 2, v{a}'); I(f'v_xor_b32 v{a}, v{a}, v{b}'); I(f'v_lshlrev_b32 v{a}, 4, v{a}')
    I(f'v_lshrrev_b32 v{d}, 3, v{vL}'); I(f'v_mul_u32_u24 v{vDF}, {WROW}, v{d}'); I(f'v_add_u32 v{vDF}, v{vDF}, v{a}')
    for i in range(1, 4): I(f'v_add_u32 v{vDF+i}, {27648*i}, v{vDF}')
    I(f's_lshl_b32 s{sTmp}, s{sTp}, 2'); I(f'v_add_u32 v{c}, s{sTmp}, v{c}'); I(f'v_xor_b32 v{a}, v{b}, v{c}')
    I(f'v_lshlrev_b32 v{a}, 4, v{a}'); I(f'v_lshl_add_u32 v{vDS}, v{d}, 10, v{a}'); I(f'v_add_u32 v{vDS+1}, 15360, v{vDS}')
    gH = Gen('H', e, ts, cfg); gL = Gen('L', e, ts, cfg)
    gH.lds_addrs(); gH.pre_karg()
    e.force_wait('lgkmcnt(0)')
    if ts: I(f'v_writelane_b32 v{vTS}, s98, 0')
    I(f's_cmp_eq_u32 s{sU}, 3'); e.raw('s_cbranch_scc1 FZ_L')
    sv = (dict(e.lastw), dict(e.lastsw))
    for g, lab in ((gH, None), (gL, 'FZ_L')):
        if lab: e.label(lab); e.reset_hazards(pad=2); e.lgk = []; e.vm = []
        g.body()
    e.label('FZ_done'); e.raw('s_endpgm')
    return e
```
